```python
import torch

def _softmax(x, axis=-1):
    return torch.softmax(x, dim=axis)
def _gelu(x):
    return torch.nn.functional.gelu(x, approximate="tanh")
def _silu(x):
    return torch.nn.functional.silu(x)
def _sigmoid(x):
    return torch.sigmoid(x)
def _layernorm(x, axis=-1, eps=1e-5):
    m = x.mean(dim=axis, keepdim=True)
    v = x.var(dim=axis, keepdim=True, unbiased=False)
    return (x - m) / torch.sqrt(v + eps)
def _scatter_add(tgt, idx, src, axis=0):
    return tgt.clone().index_add_(axis, idx, src)
def _segment_sum(src, seg, n):
    out = torch.zeros((n,) + src.shape[1:], dtype=src.dtype)
    return out.index_add_(0, seg, src)
def _pad(x, pw):
    flat = tuple(v for pair in reversed(pw) for v in pair)
    return torch.nn.functional.pad(x, flat)

kernel_name = 'sequential_preLN__sliding_block_cached__glu_gated_reglu__decode'

def setup_inputs():

    _w = (lambda a: (lambda t: t.to(torch.bfloat16) if t.is_floating_point() else t)(torch.as_tensor(a)))
    def _A_setup():
        B, Sq, D = 1, 1, 576
        Hq, Hkv, Sk, Dh = 32, 16, 65536, 128
        assert Hq % Hkv == 0, (Hq, Hkv)
        return {
            "x": _w((lambda *s: torch.randn(*s, dtype=torch.bfloat16) * 0.05)(B, Sq, D)),
            "k_cache": _w((lambda *s: torch.randn(*s, dtype=torch.bfloat16) * 1.6)(B, Hkv, Sk, Dh)),
            "v_cache": _w((lambda *s: torch.randn(*s, dtype=torch.bfloat16) * 0.8)(B, Hkv, Sk, Dh)),
            "wq": _w((lambda *s: torch.randn(*s, dtype=torch.bfloat16) * 1.6)(D, Hq * Dh) * (D ** -0.5)),
            "wo": _w((lambda *s: torch.randn(*s, dtype=torch.bfloat16) * 0.8)(Hq * Dh, D) * ((Hq * Dh) ** -0.5)),
        }
    _A_in = _A_setup()

    def _B_setup():
        B, S, D, F = 1, 1, 576, 4608
        return {
            "x": _w((lambda *s: torch.randn(*s, dtype=torch.bfloat16) * 0.05)(B, S, D)),
            "W_gate": _w((lambda *s: torch.randn(*s, dtype=torch.bfloat16) * 0.4)(D, F) * (2.0 / D) ** 0.5),
            "W_up": _w((lambda *s: torch.randn(*s, dtype=torch.bfloat16) * 0.4)(D, F) * (2.0 / D) ** 0.5),
            "W_down": _w((lambda *s: torch.randn(*s, dtype=torch.bfloat16) * 0.4)(F, D) * (1.0 / F) ** 0.5),
        }
    _B_in = _B_setup()

    return {
        "A_x": _A_in["x"],
        "A_k_cache": _A_in["k_cache"],
        "A_v_cache": _A_in["v_cache"],
        "A_wq": _A_in["wq"],
        "A_wo": _A_in["wo"],
        "B_x": _B_in["x"],
        "B_W_gate": _B_in["W_gate"],
        "B_W_up": _B_in["W_up"],
        "B_W_down": _B_in["W_down"],
    }

def reference(A_x, A_k_cache, A_v_cache, A_wq, A_wo, B_x, B_W_gate, B_W_up, B_W_down):
    def _A_ref(x, k_cache, v_cache, wq, wo):
        B, Sq, D = x.shape
        Hq, Dh = 32, 128
        Hkv, Sk = k_cache.shape[1], k_cache.shape[2]
        W = min(4096, max(256, Sk // 4))
        rep = Hq // Hkv
        q = (lambda x, *d: x.permute(*d))((x @ wq).reshape(B, Sq, Hq, Dh), 0, 2, 1, 3)
        k = (lambda x, n, axis: torch.repeat_interleave(x, n, dim=axis))(k_cache[:, :, Sk - W:, :], rep, axis=1)
        v = (lambda x, n, axis: torch.repeat_interleave(x, n, dim=axis))(v_cache[:, :, Sk - W:, :], rep, axis=1)
        scores = torch.einsum("bhqd,bhkd->bhqk", q, k) * (Dh ** -0.5)
        p = _softmax(scores, axis=-1)
        o = torch.einsum("bhqk,bhkd->bhqd", p, v)
        return (lambda x, *d: x.permute(*d))(o, 0, 2, 1, 3).reshape(B, Sq, Hq * Dh) @ wo

    def _B_ref(x, W_gate, W_up, W_down):
        gate = torch.einsum("bsd,df->bsf", x, W_gate)
        up = torch.einsum("bsd,df->bsf", x, W_up)
        gate = gate * (lambda x, dt: x.to(dt))(gate > 0, gate.dtype)
        h = gate * up
        return torch.einsum("bsf,fd->bsd", h, W_down)

    x = A_x
    h = x + _A_ref(_layernorm(x, axis=-1), A_k_cache, A_v_cache, A_wq, A_wo)
    h2 = h + _B_ref(_layernorm(h, axis=-1), B_W_gate, B_W_up, B_W_down)
    return h2
```

```python
import sys, struct, math
NAME = "sequential_preLN__sliding_block_cached__glu_gated_reglu__decode"
def f2b(x): return struct.unpack("<I", struct.pack("<f", x))[0]

class Cfg:
    W1 = 20; WWO = 14; WGU = 12; WD = 20
    NT = "nt"
    STAMP = False
    LOCAL = 1
    PF = 1
    WG0 = 14; NG0 = 0
    WG1 = 14
    WUP = 16
    GUROT = 0
    ROT = 5
    LONLY = 0
    H3GATE = 1
    T_H1 = 0
    D_H1 = 0; B_H1 = 0; B_ML = 0; B_H2 = 0; B_H3 = 0; B_H4 = 2; B_AL = 2
    SPIN = 1 << 16
    GSPIN = 1 << 13

WS_H1 = 0x00000; WS_ML = 0x10000; WS_H2 = 0x18000; WS_H3 = 0x38000; WS_AL = 0x3d000; WS_EP = 0x3f000; WS_H4 = 0x40000; WS_ST = 0x100000
L_WQ = 0; L_K = 18432; L_V = L_K + 65536; L_SB = L_V + 65536
L_XN = L_SB
L_QB = L_XN + 1152
L_MX = L_QB + 512
L_LW = L_MX + 32
L_OP = L_LW + 32
L_R5 = L_OP + 3072
L_HN = L_R5 + 2048
L_R7 = L_HN + 1152
L_QP = L_R7 + 256
L_CT = L_QP + 256
L_END = L_CT + 64
LDS_BYTES = 161280
assert L_END <= LDS_BYTES
POIS_LO, POIS_HI = L_QB, L_CT
F_G, F_U, F_D = 0, 36864, L_V
O_WO = 0
CSCALE = f2b(math.log2(math.e) / math.sqrt(128.0))

class A:
    def __init__(s, cfg): s.L = []; s.cfg = cfg; s.uid = 0
    def __call__(s, t):
        for ln in t.split("\n"):
            ln = ln.strip()
            if ln: s.L.append(("" if ln.endswith(":") else "    ") + ln)
    def lab(s, base): s.uid += 1; return f"{base}_{s.uid}"
    def nop(s, n):
        while n > 0:
            k = min(n, 16); s(f"s_nop {k-1}"); n -= k
    def stamp(s, idx):
        if s.cfg.STAMP: s(f"s_memrealtime s[{64+2*idx}:{65+2*idx}]")
    def exec64(s, lo, hi): s(f"s_mov_b32 exec_lo, {hex(lo)}\ns_mov_b32 exec_hi, {hex(hi)}")
    def sleep(s, n):
        while n > 0:
            k = min(n, 127); s(f"s_sleep {k}"); n -= k

def lds_wait_ge(a, addr_v, val, tmp_v, tmp_s="s31", cnt_s="s60", off=0):
    if a.cfg.LONLY and off in (4, 8, 12, 16): return
    L = a.lab("LW"); X = a.lab("LX")
    o = f" offset:{off}" if off else ""
    a(f"s_mov_b32 {cnt_s}, 0\n{L}:\nds_read_b32 {tmp_v}, {addr_v}{o}")
    a(f"s_add_u32 {cnt_s}, {cnt_s}, 1\ns_cmp_gt_u32 {cnt_s}, {a.cfg.SPIN}\ns_cbranch_scc1 {X}")
    a(f"s_waitcnt lgkmcnt(0)\nv_readfirstlane_b32 {tmp_s}, {tmp_v}\ns_cmp_lt_u32 {tmp_s}, {val}\ns_cbranch_scc1 {L}\n{X}:\ns_waitcnt lgkmcnt(0)")

def lds_set(a, addr_v, off, val_v, op="ds_write_b32"):
    a(f"s_mov_b64 exec, 1\n{op} {addr_v}, {val_v} offset:{off}\ns_mov_b64 exec, -1")

def dpp(a, op, v, ctl): a(f"{op}_dpp {v}, {v}, {v} {ctl} row_mask:0xf bank_mask:0xf")
def row_red(a, op, vs):
    if isinstance(vs, str): vs = [vs]
    for ctl in ("quad_perm:[1,0,3,2]", "quad_perm:[2,3,0,1]", "row_half_mirror", "row_mirror"):
        a.nop(max(0, 3 - len(vs))) if len(vs) < 3 else None
        for v in vs: dpp(a, op, v, ctl)
    a.nop(0)
def xrow_red(a, op, v, t):
    a(f"v_mov_b32 {t}, {v}"); a.nop(2)
    a(f"v_permlane16_swap_b32 {v}, {t}"); a.nop(1)
    a(f"{op} {v}, {v}, {t}\nv_mov_b32 {t}, {v}"); a.nop(2)
    a(f"v_permlane32_swap_b32 {v}, {t}"); a.nop(1)
    a(f"{op} {v}, {v}, {t}")

def spin_head(a, cnt, bound, name):
    Lp, Lx = a.lab(name), a.lab(name + "X")
    a(f"s_mov_b32 {cnt}, 0\n{Lp}:")
    return Lp, Lx
def spin_bound(a, cnt, bound, Lx):
    a(f"s_add_u32 {cnt}, {cnt}, 1\ns_cmp_gt_u32 {cnt}, {bound}\ns_cbranch_scc1 {Lx}")

def tagcheck(a, acc, regs, vtag):
    regs = list(regs)
    a(f"v_xor_b32 {acc}, v{regs[0]}, v{vtag}")
    for r in regs[1:]: a(f"v_bitop3_b32 {acc}, {acc}, v{r}, v{vtag} bitop3:0xf6")
    a(f"v_and_b32 {acc}, 0x3ff, {acc}\nv_cmp_ne_u32 vcc, 0, {acc}")

def stamps_out(a):
    if not a.cfg.STAMP: return
    a("s_waitcnt lgkmcnt(0)")
    a(f"s_lshl_b32 s40, s2, 3\ns_add_u32 s40, s40, s3\ns_lshl_b32 s40, s40, 7\ns_add_u32 s40, s40, {WS_ST}")
    a("s_add_u32 s40, s26, s40\ns_addc_u32 s41, s27, 0\ns_mov_b64 exec, 1\nv_mov_b32 v250, 0")
    for i in range(16):
        a(f"v_mov_b32 v252, s{64+2*i}\nv_mov_b32 v253, s{65+2*i}\nglobal_store_dwordx2 v250, v[252:253], s[40:41] offset:{8*i}")
        a.nop(2)

def gen_loader(a):
    cfg = a.cfg; NT = cfg.NT
    V_L16, V_WQ, V_K, V_P, V_FA, V_FV, V_T = 4, 5, 6, 10, 16, 17, 18
    a("L_loader:\ns_setprio 1")
    a(f"v_lshlrev_b32 v{V_L16}, 4, v1")
    a(f"v_lshrrev_b32 v20, 3, v1\nv_lshlrev_b32 v20, 13, v20\nv_and_b32 v21, 7, v1\nv_lshlrev_b32 v21, 4, v21\nv_add_u32 v{V_WQ}, v20, v21")
    a("s_lshr_b32 s40, s29, 2\ns_mul_i32 s40, s40, 1179648")
    a("s_and_b32 s41, s29, 3\ns_lshl_b32 s41, s41, 7\ns_lshl_b32 s42, s28, 9\ns_add_u32 s41, s41, s42\ns_add_u32 s40, s40, s41")
    a("s_add_u32 s32, s10, s40\ns_addc_u32 s33, s11, 0\ns_sub_u32 s34, 4718592, s40\ns_mov_b32 s35, 0x20000")
    def raw(pat, off=0):
        o = f" offset:{off}" if off else ""
        a(f"buffer_load_dwordx4 v{pat}, s[32:35], s36 offen{o} {NT} lds")
    def signal(val):
        a(f"v_mov_b32 v{V_FV}, {val}"); lds_set(a, f"v{V_FA}", 0, f"v{V_FV}")
    class Seq:
        def __init__(s, W, n, pend): s.n = n; s.W = W; s.pend = pend
        def after(s):
            n = s.n
            if n >= s.W - 1:
                a(f"s_waitcnt vmcnt({s.W-1})")
                landed = n - s.W + 1
                while s.pend and s.pend[0][0] <= landed: signal(s.pend.pop(0)[1])
                if cfg.T_H1 and landed == 18 + cfg.T_H1:
                    a(f"v_mov_b32 v{V_FV}, 1"); lds_set(a, f"v{V_FA}", 24, f"v{V_FV}")
            s.n += 1
        def drain(s):
            last = s.n - 1
            while s.pend:
                e, v = s.pend.pop(0)
                a(f"s_waitcnt vmcnt({last-e})"); signal(v)
    q = Seq(cfg.W1, 0, [])
    a(f"s_mov_b32 m0, {L_WQ}\ns_mov_b32 s36, 0")
    q.pend.append((17, 1))
    for i in range(18):
        if i: a("s_add_u32 m0, m0, 0x400\ns_add_u32 s36, s36, 0x10000")
        else: a.nop(1)
        raw(V_WQ); q.after()
        if i == 1:
            a("v_lshrrev_b32 v20, 4, v1\nv_lshlrev_b32 v21, 2, v20\nv_and_b32 v22, 15, v1\nv_xor_b32 v22, v22, v21\nv_lshlrev_b32 v20, 8, v20")
            for p in range(4): a(f"v_xor_b32 v23, {p}, v22\nv_lshlrev_b32 v23, 4, v23\nv_add_u32 v{V_K+p}, v20, v23")
            a(f"v_mov_b32 v{V_FA}, {L_CT}")
        if i == 5: a("s_barrier")
    a.stamp(1)
    for name, p, lbase, pats in (("K", 6, L_K, [V_K, V_K+1, V_K+2, V_K+3]), ("V", 8, L_V, [V_L16]*4)):
        a(f"s_lshl_b32 s40, s28, 24\ns_lshl_b32 s42, s29, 16\ns_add_u32 s42, s42, {(65536-4096)*256}\ns_add_u32 s40, s40, s42")
        a(f"s_add_u32 s32, s{p}, s40\ns_addc_u32 s33, s{p+1}, 0\ns_mov_b32 s34, 65536\ns_mov_b32 m0, {lbase}\ns_mov_b32 s36, 0")
        if cfg.ROT: a(f"s_mul_i32 s36, s28, {cfg.ROT}\ns_add_u32 s36, s36, s29\ns_and_b32 s36, s36, 15\ns_lshl_b32 s36, s36, 12")
        base = q.n
        if name == "K": q.pend.append((base + 63, 2))
        else:
            for r in range(4): q.pend.append((base + 16*r + 15, 3 + r))
        for i in range(64):
            if i and i % 4 == 0:
                a("s_add_u32 m0, m0, 0x1000\ns_add_u32 s36, s36, 0x1000")
                if cfg.ROT: a("s_and_b32 s36, s36, 0xffff")
            elif i == 0: a.nop(1)
            raw(pats[i % 4], off=(i % 4) * 1024); q.after()
        a.stamp(2 if name == "K" else 3)
    lds_wait_ge(a, f"v{V_FA}", 4, "v19", "s43", "s44", off=4)
    a.stamp(4)
    n0, p0 = q.n, list(q.pend)
    a("s_cmp_ge_u32 s29, 9\ns_cbranch_scc1 L_ld_o")
    q = Seq(cfg.WGU, n0, list(p0))
    a(f"v_lshrrev_b32 v20, 2, v1\nv_mul_u32_u24 v20, 9216, v20\nv_and_b32 v21, 3, v1\nv_lshlrev_b32 v21, 4, v21\nv_add_u32 v{V_P}, v20, v21")
    a("s_mul_i32 s45, s28, 288\ns_lshl_b32 s46, s29, 5\ns_add_u32 s45, s45, s46")
    def gu_tile(p, lb, mile, W):
        q.W = W
        q.pend.append((q.n + 35, mile))
        a(f"s_lshl_b32 s40, s45, 1\ns_add_u32 s32, s{p}, s40\ns_addc_u32 s33, s{p+1}, 0\ns_sub_u32 s34, 5308416, s40\ns_mov_b32 m0, {lb}\ns_mov_b32 s36, 0")
        for i in range(36):
            if i: a(f"s_add_u32 m0, m0, 0x400\ns_add_u32 s36, s36, {16*9216}")
            else: a.nop(1)
            if mile == 7 and i < cfg.NG0: q.W = cfg.WG0
            else: q.W = W
            raw(V_P); q.after()
    gu_tile(16, F_G, 7, cfg.WG1)
    a.stamp(5)
    lds_wait_ge(a, f"v{V_FA}", 4, "v19", "s43", "s44", off=8)
    a(f"s_mul_i32 s40, s45, 1152\ns_add_u32 s32, s20, s40\ns_addc_u32 s33, s21, 0\ns_mov_b32 s34, {32*1152}\ns_mov_b32 m0, {F_D}\ns_mov_b32 s36, 0")
    q.pend.append((q.n + 35, 8)); q.W = cfg.WD
    for i in range(36):
        if i and i % 4 == 0: a("s_add_u32 m0, m0, 0x1000\ns_add_u32 s36, s36, 0x1000")
        elif i == 0: a.nop(1)
        raw(V_L16, off=(i % 4) * 1024); q.after()
    a.stamp(7)
    gu_tile(18, F_U, 9, cfg.WUP)
    a(f"v_mov_b32 v{V_FV}, 1"); lds_set(a, f"v{V_FA}", 12, f"v{V_FV}")
    a.stamp(6)
    q.drain()
    a("s_branch L_ld_done")
    a("L_ld_o:")
    q = Seq(cfg.WWO, n0, list(p0))
    for p in range(3):
        a(f"v_add_u32 v20, {64*p}, v1\nv_mul_u32_u24 v21, 171, v20\nv_lshrrev_b32 v21, 11, v21")
        a(f"v_mul_u32_u24 v22, 12, v21\nv_sub_u32 v22, v20, v22\nv_lshlrev_b32 v22, 4, v22\nv_mul_u32_u24 v21, 1152, v21\nv_add_u32 v{V_P+p}, v21, v22")
    a("s_mul_i32 s40, s28, 294912\ns_sub_u32 s41, s29, 9\ns_mul_i32 s41, s41, 160\ns_add_u32 s40, s40, s41")
    a(f"s_add_u32 s32, s12, s40\ns_addc_u32 s33, s13, 0\ns_sub_u32 s34, 4718592, s40\ns_mov_b32 m0, {O_WO}\ns_mov_b32 s36, 0")
    for c in range(4): q.pend.append((q.n + 12*c + 11, 7 + c))
    for i in range(48):
        if i:
            a("s_add_u32 m0, m0, 0x400")
            if i % 3 == 0: a(f"s_add_u32 s36, s36, {16*1152}")
            else: a.nop(1)
        else: a.nop(1)
        raw(V_P + i % 3); q.after()
    a(f"v_mov_b32 v{V_FV}, 1"); lds_set(a, f"v{V_FA}", 12, f"v{V_FV}")
    a.stamp(5)
    if cfg.PF:
        a("s_and_b32 s40, s2, 7\ns_lshr_b32 s41, s2, 3\ns_and_b32 s44, s41, 1\ns_lshr_b32 s41, s41, 1\ns_sub_u32 s41, s41, 9\ns_lshl_b32 s41, s41, 1\ns_add_u32 s41, s41, s44")
        a("s_mul_i32 s40, s40, 1152\ns_add_u32 s32, s18, s40\ns_addc_u32 s33, s19, 0\ns_sub_u32 s34, 5308416, s40\ns_lshl_b32 s41, s41, 6\ns_mov_b32 s46, 7282\ns_mov_b32 s47, 9216")
        for t in range(6):
            a(f"s_add_u32 s40, s41, {64*14*t}\nv_add_u32 v20, s40, v1\nv_mul_lo_u32 v21, s46, v20\nv_lshrrev_b32 v21, 16, v21")
            a(f"v_mul_u32_u24 v22, 9, v21\nv_sub_u32 v22, v20, v22\nv_lshlrev_b32 v22, 7, v22\nv_mul_lo_u32 v21, s47, v21\nv_add_u32 v{24+t}, v21, v22")
        lds_wait_ge(a, f"v{V_FA}", 4, "v19", "s43", "s44", off=16)
        a("s_mov_b32 s36, 0")
        npf = 6
        for t in range(npf):
            a(f"buffer_load_dword v{32+t}, v{24+t}, s[32:35], s36 offen {NT}")
            q.n += 1
    q.drain()
    a("L_ld_done:")
    a.stamp(8)
    if cfg.STAMP: a("s_getreg_b32 s94, hwreg(HW_REG_XCC_ID)\ns_and_b32 s94, s94, 15\ns_add_u32 s94, s94, 1\ns_mov_b32 s95, 0")
    stamps_out(a)
    a("s_endpgm")

def gen_consumer(a):
    cfg = a.cfg
    VL, VJ, VKG, VL16, VCT = 1, 2, 3, 4, 5
    VX = 196
    XF = 216
    VT = 12
    VTAG = 11
    a("L_consumer:")
    a(f"v_and_b32 v{VJ}, 15, v{VL}\nv_lshrrev_b32 v{VKG}, 4, v{VL}\nv_lshlrev_b32 v{VL16}, 4, v{VL}\nv_mov_b32 v{VCT}, {L_CT}\ns_sub_u32 s30, s3, 1")
    a(f"s_load_dword s58, s[26:27], {WS_EP}")
    a(f"global_load_dwordx4 v[20:23], v{VL16}, s[4:5]")
    a(f"v_lshlrev_b32 v{VT}, 2, v{VL}\nv_mov_b32 v24, 0\ns_mov_b32 exec_hi, 0\nglobal_load_dword v24, v{VT}, s[4:5] offset:1024\ns_mov_b64 exec, -1")
    a("s_cmp_lg_u32 s30, 0\ns_cbranch_scc1 L_p0_notc0")
    a("v_mov_b32 v28, -1\nv_mov_b32 v29, -1\nv_mov_b32 v30, -1\nv_mov_b32 v31, -1")
    nb = POIS_HI - POIS_LO
    a(f"v_add_u32 v{VT}, {POIS_LO}, v{VL16}")
    off = 0
    while off < nb:
        rem = nb - off
        if rem < 1024: a(f"v_cmp_gt_u32 vcc, {rem}, v{VL16}\ns_and_saveexec_b64 s[40:41], vcc")
        a(f"ds_write_b128 v{VT}, v[28:31] offset:{off}")
        if rem < 1024: a("s_mov_b64 exec, s[40:41]")
        off += 1024
    a(f"v_mov_b32 v32, 0\nv_mov_b32 v33, 0\nv_mov_b32 v34, 0\nv_mov_b32 v35, 0\nds_write_b128 v{VCT}, v[32:35]\nds_write_b128 v{VCT}, v[32:35] offset:16")
    a("s_waitcnt lgkmcnt(0)\ns_barrier")
    if cfg.LONLY == 1: a("s_branch L_fin")
    def wsaddr(lo): a(f"s_add_u32 s42, s26, {lo}\ns_addc_u32 s43, s27, 0")
    def pst(off=0): a(f"global_store_dwordx4 v{VL16}, v[28:31], s[42:43]" + (f" offset:{off}" if off else "") + " sc1")
    a(f"s_lshl_b32 s46, s28, 4\ns_add_u32 s46, s46, s29\ns_lshl_b32 s40, s46, 9\ns_add_u32 s40, s40, {WS_H2}"); wsaddr("s40")
    a("s_mov_b32 exec_hi, 0"); pst(); a("s_mov_b64 exec, -1")
    a("s_cmp_ge_u32 s29, 9\ns_cbranch_scc1 L_p0_o")
    a(f"v_and_b32 v{VT}, 1, v{VKG}\nv_lshlrev_b32 v{VT}, 3, v{VT}\nv_lshl_add_u32 v{VT}, v{VJ}, 4, v{VT}")
    for cb in range(4): a(f"global_load_dwordx2 v[{VX+2*cb}:{VX+2*cb+1}], v{VT}, s[4:5] offset:{256*cb}")
    a(f"v_mov_b32 v{VX+8}, 0\nv_mov_b32 v{VX+9}, 0"); a.exec64(0x00ff00ff, 0x00ff00ff)
    a(f"global_load_dwordx2 v[{VX+8}:{VX+9}], v{VT}, s[4:5] offset:1024\ns_mov_b64 exec, -1")
    a("s_waitcnt vmcnt(6)")
    a("s_branch L_p0_ln")
    a("L_p0_o:")
    a(f"s_sub_u32 s41, s29, 9\ns_mul_i32 s40, s41, 160\ns_mul_i32 s44, s28, 1152\ns_add_u32 s40, s40, s44\ns_add_u32 s40, s40, {WS_H3}"); wsaddr("s40")
    a("s_mov_b64 exec, 0x3ff\ns_cmp_eq_u32 s41, 6\ns_cselect_b32 exec_lo, 0xfff, exec_lo"); pst(); a("s_mov_b64 exec, -1")
    a("s_waitcnt vmcnt(2)")
    a("s_branch L_p0_ln")
    a("L_p0_notc0:\ns_barrier\ns_waitcnt vmcnt(0)")
    a("L_p0_ln:")
    if cfg.LONLY in (1, 2): a("s_branch L_fin")
    a.stamp(0)
    for i in range(5): a(f"v_lshlrev_b32 v{32+2*i}, 16, v{20+i}\nv_and_b32 v{33+2*i}, 0xffff0000, v{20+i}")
    a("v_add_f32 v42, v32, v33")
    for i in range(2, 10): a(f"v_add_f32 v42, v42, v{32+i}")
    row_red(a, "v_add_f32", "v42"); xrow_red(a, "v_add_f32", "v42", "v43")
    a(f"v_mul_f32 v42, {hex(f2b(1.0/576))}, v42")
    for i in range(10): a(f"v_sub_f32 v{32+i}, v{32+i}, v42")
    a("s_mov_b32 exec_lo, 0\nv_mov_b32 v40, 0\nv_mov_b32 v41, 0\ns_mov_b64 exec, -1")
    a("v_mul_f32 v43, v32, v32")
    for i in range(1, 10): a(f"v_fmac_f32 v43, v{32+i}, v{32+i}")
    row_red(a, "v_add_f32", "v43"); xrow_red(a, "v_add_f32", "v43", "v44")
    a(f"v_mov_b32 v44, {hex(f2b(1e-5))}\nv_fmac_f32 v44, {hex(f2b(1.0/576))}, v43\nv_rsq_f32 v44, v44")
    a.nop(1)
    for i in range(10): a(f"v_mul_f32 v{32+i}, v{32+i}, v44")
    for i in range(5): a(f"v_cvt_pk_bf16_f32 v{20+i}, v{32+2*i}, v{33+2*i}")
    a(f"v_add_u32 v{VT}, {L_XN}, v{VL16}\nds_write_b128 v{VT}, v[20:23]")
    a(f"v_lshlrev_b32 v{VT}, 2, v{VL}\nv_add_u32 v{VT}, {L_XN+1024}, v{VT}\ns_mov_b32 exec_hi, 0\nds_write_b32 v{VT}, v24\ns_mov_b64 exec, -1")
    a(f"v_bfe_u32 v{VT}, v{VL}, 2, 2\nv_lshl_add_u32 v{VT}, v{VKG}, 2, v{VT}\nv_lshlrev_b32 v{VT}, 7, v{VT}")
    a(f"v_and_b32 v{VT+1}, 3, v{VL}\nv_lshl_add_u32 v{VT}, v{VT+1}, 3, v{VT}")
    a(f"s_lshl_b32 s40, s30, 5\ns_add_u32 s40, s40, {L_WQ}\nv_add_u32 v{VT}, s40, v{VT}")
    a(f"s_lshr_b32 s40, s29, 2\ns_mul_i32 s40, s40, 288\ns_add_u32 s40, s40, {L_XN}\nv_lshlrev_b32 v{VT+1}, 3, v{VKG}\nv_add_u32 v{VT+1}, s40, v{VT+1}")
    a("s_waitcnt lgkmcnt(0)")
    for t in range(9): a(f"ds_read_b64 v[{40+2*t}:{41+2*t}], v{VT+1} offset:{32*t}")
    for r in range(4): a(f"v_mov_b32 v{60+r}, 0")
    a("s_lshr_b32 s40, s29, 2\ns_lshl_b32 s40, s40, 10\ns_and_b32 s41, s29, 3\ns_lshl_b32 s41, s41, 8\ns_add_u32 s40, s40, s41")
    a(f"s_lshl_b32 s41, s28, 12\ns_add_u32 s40, s40, s41")
    a("s_add_u32 s42, s26, s40\ns_addc_u32 s43, s27, 0")
    lds_wait_ge(a, f"v{VCT}", 1, f"v{VT+2}")
    a.stamp(1)
    for t in range(9): a(f"ds_read_b64_tr_b16 v[{20+2*t}:{21+2*t}], v{VT} offset:{2048*t}")
    for t in range(9):
        a(f"s_waitcnt lgkmcnt({8-t})")
        a(f"v_mfma_f32_16x16x16_bf16 v[60:63], v[{20+2*t}:{21+2*t}], v[{40+2*t}:{41+2*t}], v[60:63]")
    a(f"s_lshl_b32 s40, s30, 6\ns_add_u32 s40, s40, {L_QP}\nv_lshlrev_b32 v{VT}, 4, v{VKG}\nv_add_u32 v{VT}, s40, v{VT}")
    a(f"s_add_u32 s58, s58, 1\ns_and_b32 s56, s58, 0x3ff\ns_mov_b32 s57, 0xfffffc00\nv_mov_b32 v{VTAG}, s56")
    a.nop(1)
    a.exec64(0x00010001, 0x00010001)
    a(f"ds_write_b128 v{VT}, v[60:63]\ns_mov_b64 exec, -1")
    a("s_cmp_lg_u32 s30, 0\ns_cbranch_scc1 L_p1_done")
    a(f"v_add_u32 v{VT}, {L_QP}, v{VL16}\ns_mov_b64 exec, 0xffff")
    Lp, Lx = spin_head(a, "s60", cfg.SPIN, "QP")
    a(f"ds_read_b128 v[60:63], v{VT}"); spin_bound(a, "s60", cfg.SPIN, Lx)
    a(f"s_waitcnt lgkmcnt(0)\nv_max3_u32 v{VT+1}, v60, v61, v62\nv_max_u32 v{VT+1}, v{VT+1}, v63\nv_cmp_eq_u32 vcc, -1, v{VT+1}\ns_cbranch_vccnz {Lp}\n{Lx}:\ns_waitcnt lgkmcnt(0)")
    for e in range(4): a(f"v_and_or_b32 v{60+e}, v{60+e}, s57, v{VTAG}")
    a("s_waitcnt vmcnt(0)")
    a(f"global_store_dwordx4 v{VL16}, v[60:63], s[42:43] sc1\ns_mov_b64 exec, -1")
    L = a.lab("XU")
    a(f"s_cmp_ge_u32 s29, 9\ns_cbranch_scc1 {L}")
    for i in range(10): a(f"v_lshlrev_b32 v{XF+2*i}, 16, v{VX+i}\nv_and_b32 v{XF+2*i+1}, 0xffff0000, v{VX+i}")
    a(f"s_branch L_p1_done\n{L}:")
    a(f"s_sub_u32 s41, s29, 9\ns_lshl_b32 s40, s28, 7\ns_lshl_b32 s44, s41, 2\ns_add_u32 s40, s40, s44\ns_add_u32 s40, s40, {WS_AL}")
    a(f"v_lshlrev_b32 v{VT}, 2, v{VL}\nv_add_u32 v{VT}, s40, v{VT}\nv_mov_b32 v{VT+1}, s58")
    a(f"s_mov_b64 exec, 1\ns_cmp_eq_u32 s41, 6\ns_cselect_b32 exec_lo, 3, exec_lo\nglobal_store_dword v{VT}, v{VT+1}, s[26:27] sc1\ns_mov_b64 exec, -1")
    a("L_p1_done:")
    if cfg.LONLY == 3: a("s_branch L_fin")
    a.stamp(2)
    QF, S, AO, MK, KA, KF, O = 20, 36, 64, 52, 56, 128, 60
    a(f"v_and_b32 v{VT+1}, 3, v{VJ}\nv_lshrrev_b32 v{VT+2}, 2, v{VJ}")
    a(f"v_lshl_add_u32 v{VT+3}, v{VT+1}, 2, v{VT+2}\nv_lshlrev_b32 v{VT+3}, 8, v{VT+3}")
    a(f"s_lshl_b32 s40, s30, 12\ns_add_u32 s40, s40, {L_K}\nv_add_u32 v{VT+3}, s40, v{VT+3}\nv_xor_b32 v{VT+1}, v{VT+1}, v{VKG}")
    for dd in range(4):
        a(f"v_xor_b32 v{VT+4}, {dd}, v{VT+2}\nv_lshl_add_u32 v{VT+4}, v{VT+4}, 2, v{VT+1}\nv_lshl_add_u32 v{KA+dd}, v{VT+4}, 4, v{VT+3}")
    a(f"v_and_b32 v{VT+1}, 1, v{VJ}\nv_cmp_eq_u32 vcc, 1, v{VT+1}\nv_mov_b32 v{VT+2}, 0xffff\nv_mov_b32 v{VT+4}, 0xffff0000")
    a.nop(1)
    a(f"v_cndmask_b32 v{VT+2}, v{VT+2}, v{VT+4}, vcc\nv_bfe_u32 v{VT+1}, v{VJ}, 1, 2")
    for t in range(4):
        a(f"v_cmp_eq_u32 vcc, {t}, v{VT+1}"); a.nop(2)
        a(f"v_cndmask_b32 v{MK+t}, 0, v{VT+2}, vcc")
    a("s_cmp_lg_u32 s30, 0\ns_cbranch_scc1 L_p2_skip")
    a.sleep(cfg.D_H1)
    if cfg.T_H1: lds_wait_ge(a, f"v{VCT}", 1, f"v{VT+2}", off=24)
    a(f"s_lshl_b32 s40, s28, 12\ns_add_u32 s42, s26, s40\ns_addc_u32 s43, s27, 0")
    Lp, Lx = spin_head(a, "s60", cfg.GSPIN, "H1")
    for rb in range(4): a(f"global_load_dwordx4 v[{20+4*rb}:{23+4*rb}], v{VL16}, s[42:43] offset:{1024*rb} sc1")
    spin_bound(a, "s60", cfg.GSPIN, Lx)
    a("s_waitcnt vmcnt(0)")
    tagcheck(a, "v40", range(20, 36), VTAG)
    a(f"s_and_b64 exec, exec, vcc\ns_cbranch_execz {Lx}"); a.sleep(cfg.B_H1); a(f"s_branch {Lp}")
    a(f"{Lx}:\ns_mov_b64 exec, -1\ns_waitcnt vmcnt(0)")
    for e in range(4): a(f"v_add_f32 v{36+e}, v{20+e}, v{24+e}\nv_add_f32 v{40+e}, v{28+e}, v{32+e}\nv_add_f32 v{36+e}, v{36+e}, v{40+e}")
    a("v_cvt_pk_bf16_f32 v36, v36, v37\nv_cvt_pk_bf16_f32 v37, v38, v39")
    a(f"v_lshlrev_b32 v{VT}, 3, v{VL}\nv_add_u32 v{VT}, {L_QB}, v{VT}\nds_write_b64 v{VT}, v[36:37]")
    a("L_p2_skip:")
    if cfg.LONLY == 4: a("s_branch L_fin")
    a.stamp(3)
    a(f"v_lshrrev_b32 v{VT}, 3, v{VJ}\nv_lshlrev_b32 v{VT}, 8, v{VT}\nv_lshl_add_u32 v{VT}, v{VKG}, 4, v{VT}\nv_add_u32 v{VT}, {L_QB}, v{VT}")
    Lp, Lx = spin_head(a, "s60", cfg.SPIN, "QF")
    for dd in range(4): a(f"ds_read_b128 v[{QF+4*dd}:{QF+4*dd+3}], v{VT} offset:{64*dd}")
    spin_bound(a, "s60", cfg.SPIN, Lx)
    a(f"s_waitcnt lgkmcnt(0)\nv_max3_u32 v{VT+1}, v{QF}, v{QF+1}, v{QF+2}")
    for i in range(3, 15, 2): a(f"v_max3_u32 v{VT+1}, v{VT+1}, v{QF+i}, v{QF+i+1}")
    a(f"v_max_u32 v{VT+1}, v{VT+1}, v{QF+15}\nv_cmp_eq_u32 vcc, -1, v{VT+1}\ns_cbranch_vccnz {Lp}\n{Lx}:\ns_waitcnt lgkmcnt(0)")
    a.stamp(4)
    for i in range(16): a(f"v_mov_b32 v{S+i}, 0")
    lds_wait_ge(a, f"v{VCT}", 2, f"v{VT+2}")
    a.stamp(5)
    for r in range(4):
        for dd in range(4): a(f"ds_read_b128 v[{KF+16*r+4*dd}:{KF+16*r+4*dd+3}], v{KA+dd} offset:{16384*r}")
    for r in range(4):
        for dd in range(4):
            n = 4*r + dd
            a(f"s_waitcnt lgkmcnt({15-n})")
            a(f"v_mfma_f32_16x16x32_bf16 v[{S+4*r}:{S+4*r+3}], v[{KF+16*r+4*dd}:{KF+16*r+4*dd+3}], v[{QF+4*dd}:{QF+4*dd+3}], v[{S+4*r}:{S+4*r+3}]")
    a(f"v_mov_b32 v{VT+2}, 1"); lds_set(a, f"v{VCT}", 4, f"v{VT+2}", "ds_add_u32")
    a.nop(8)
    a(f"v_max3_f32 v{VT+1}, v{S}, v{S+1}, v{S+2}")
    for i in range(3, 15, 2): a(f"v_max3_f32 v{VT+1}, v{VT+1}, v{S+i}, v{S+i+1}")
    a(f"v_max_f32 v{VT+1}, v{VT+1}, v{S+15}")
    xrow_red(a, "v_max_f32", f"v{VT+1}", f"v{VT+2}")
    a(f"v_lshrrev_b32 v{VT+2}, 3, v{VJ}\nv_lshlrev_b32 v{VT+2}, 4, v{VT+2}\nv_add_u32 v{VT+3}, {L_MX}, v{VT+2}")
    a(f"s_lshl_b32 s40, s30, 2\nv_add_u32 v{VT+4}, s40, v{VT+3}")
    a(f"s_mov_b64 exec, 0x101\nds_write_b32 v{VT+4}, v{VT+1}\ns_mov_b64 exec, -1")
    Lp, Lx = spin_head(a, "s60", cfg.SPIN, "MX")
    a(f"ds_read_b128 v[{KF}:{KF+3}], v{VT+3}"); spin_bound(a, "s60", cfg.SPIN, Lx)
    a(f"s_waitcnt lgkmcnt(0)\nv_max3_u32 v{VT+5}, v{KF}, v{KF+1}, v{KF+2}\nv_max_u32 v{VT+5}, v{VT+5}, v{KF+3}\nv_cmp_eq_u32 vcc, -1, v{VT+5}\ns_cbranch_vccnz {Lp}")
    a(f"{Lx}:\ns_waitcnt lgkmcnt(0)")
    a(f"v_max3_f32 v{VT+1}, v{KF}, v{KF+1}, v{KF+2}\nv_max_f32 v{VT+1}, v{VT+1}, v{KF+3}")
    a(f"s_mov_b32 s44, {hex(CSCALE)}\nv_mul_f32 v17, s44, v{VT+1}")
    a(f"s_getreg_b32 s59, hwreg(HW_REG_XCC_ID)\ns_and_b32 s59, s59, 7\ns_lshl_b32 s45, s59, 10\ns_or_b32 s45, s45, s56\nv_and_b32 v17, 0xffffe000, v17\nv_or_b32 v17, s45, v17")
    for i in range(16): a(f"v_fma_f32 v{S+i}, v{S+i}, s44, -v17")
    for i in range(16): a(f"v_exp_f32 v{S+i}, v{S+i}")
    a.nop(1)
    a(f"v_add_f32 v{VT+1}, v{S}, v{S+1}")
    for i in range(2, 16): a(f"v_add_f32 v{VT+1}, v{VT+1}, v{S+i}")
    xrow_red(a, "v_add_f32", f"v{VT+1}", f"v{VT+2}")
    a(f"v_add_u32 v{VT+4}, {L_LW-L_MX}, v{VT+4}")
    a(f"s_mov_b64 exec, 0x101\nds_write_b32 v{VT+4}, v{VT+1}\ns_mov_b64 exec, -1")
    a("s_cmp_lg_u32 s30, 3\ns_cbranch_scc1 L_p3_noml")
    a(f"v_add_u32 v{VT+3}, {L_LW-L_MX}, v{VT+3}")
    Lp, Lx = spin_head(a, "s60", cfg.SPIN, "LW")
    a(f"ds_read_b128 v[{KF}:{KF+3}], v{VT+3}"); spin_bound(a, "s60", cfg.SPIN, Lx)
    a(f"s_waitcnt lgkmcnt(0)\nv_add_f32 v{KF}, v{KF}, v{KF+1}\nv_add_f32 v{KF+2}, v{KF+2}, v{KF+3}\nv_add_f32 v19, v{KF}, v{KF+2}")
    a(f"v_cmp_u_f32 vcc, v19, v19\ns_cbranch_vccnz {Lp}\n{Lx}:\ns_waitcnt lgkmcnt(0)")
    a(f"s_lshl_b32 s46, s28, 4\ns_add_u32 s40, s46, s29\ns_lshl_b32 s40, s40, 7\ns_add_u32 s40, s40, {WS_ML}\ns_add_u32 s42, s26, s40\ns_addc_u32 s43, s27, 0")
    a(f"v_and_or_b32 v19, v19, s57, v{VTAG}")
    a("v_readlane_b32 s46, v17, 0\nv_readlane_b32 s47, v19, 0\nv_readlane_b32 s48, v17, 8\nv_readlane_b32 s49, v19, 8")
    a("v_mov_b32 v28, s46\nv_mov_b32 v29, s47\nv_mov_b32 v30, s48\nv_mov_b32 v31, s49")
    a(f"s_mov_b64 exec, 0xff\nglobal_store_dwordx4 v{VL16}, v[28:31], s[42:43] sc1\ns_mov_b64 exec, -1")
    a("L_p3_noml:")
    for i in range(16):
        a(f"v_cvt_pk_bf16_f32 v{S+i}, v{S+i}, v{S+i}")
        for t in range(4): a(f"v_and_b32 v{AO+4*i+t}, v{S+i}, v{MK+t}")
    a.stamp(6)
    a("s_cmp_lg_u32 s30, 0\ns_cbranch_scc1 L_p3_noalive")
    a(f"v_lshrrev_b32 v{VT}, 2, v{VL}\nv_lshlrev_b32 v{VT}, 7, v{VT}\nv_and_b32 v{VT+1}, 3, v{VL}\nv_lshl_add_u32 v{VT}, v{VT+1}, 3, v{VT}\nv_add_u32 v{VT}, {WS_AL}, v{VT}")
    Lp, Lx = spin_head(a, "s60", cfg.GSPIN, "AA")
    a(f"global_load_dwordx2 v[14:15], v{VT}, s[26:27] sc1"); spin_bound(a, "s60", cfg.GSPIN, Lx)
    a(f"s_waitcnt vmcnt(0)\nv_cmp_ne_u32 vcc, s58, v14\nv_cmp_ne_u32 s[40:41], s58, v15\ns_or_b64 vcc, vcc, s[40:41]\ns_cbranch_vccz {Lx}"); a.sleep(cfg.B_AL); a(f"s_branch {Lp}\n{Lx}:\ns_waitcnt vmcnt(0)")
    a("L_p3_noalive:")
    if cfg.LONLY == 5: a("s_branch L_fin")
    VF = KF
    MLR = 20
    a(f"s_lshl_b32 s40, s30, 12\ns_add_u32 s40, s40, {L_V}\nv_add_u32 v{VT}, s40, v{VL16}")
    a(f"s_lshl_b32 s40, s28, 11\ns_add_u32 s40, s40, {WS_ML}\ns_add_u32 s42, s26, s40\ns_addc_u32 s43, s27, 0\nv_lshlrev_b32 v16, 7, v{VJ}")
    for r in range(4): a(f"v_mov_b32 v{O+r}, 0")
    for r in range(4):
        if r == 3:
            L = a.lab("MLS")
            a(f"s_cmp_lg_u32 s30, 3\ns_cbranch_scc1 {L}")
            Lp, Lx = a.lab("ML"), a.lab("MLX")
            a("s_mov_b32 s61, 0\ns_branch " + Lp + "_chk")
            a(f"{Lp}:\nglobal_load_dwordx4 v[{MLR}:{MLR+3}], v16, s[42:43] sc1")
            a(f"{Lp}_chk:")
            spin_bound(a, "s61", cfg.GSPIN, Lx)
            a("s_waitcnt vmcnt(0)")
            tagcheck(a, f"v{VT+2}", range(MLR, MLR+4), VTAG)
            a(f"s_and_b64 exec, exec, vcc\ns_cbranch_execz {Lx}"); a.sleep(cfg.B_ML); a(f"s_branch {Lp}")
            a(f"{Lx}:\ns_mov_b64 exec, -1\ns_waitcnt vmcnt(0)")
            a(f"v_bfe_u32 v24, v{MLR}, 10, 3\nv_cmp_ne_u32 vcc, s59, v24\ns_mov_b64 s[50:51], vcc")
            a(f"v_mov_b32 v24, v{MLR}\nv_mov_b32 v25, v{MLR+2}")
            row_red(a, "v_max_f32", ["v24", "v25"])
            a(f"v_sub_f32 v26, v{MLR}, v24\nv_sub_f32 v27, v{MLR+2}, v25\nv_exp_f32 v26, v26\nv_exp_f32 v27, v27")
            a.nop(1)
            a(f"v_mul_f32 v26, v26, v{MLR+1}\nv_mul_f32 v27, v27, v{MLR+3}")
            row_red(a, "v_add_f32", ["v26", "v27"])
            a("v_readlane_b32 s44, v17, 0\nv_readlane_b32 s45, v17, 8")
            a("v_rcp_f32 v26, v26\nv_rcp_f32 v27, v27\nv_sub_f32 v24, s44, v24\nv_sub_f32 v25, s45, v25\nv_exp_f32 v24, v24\nv_exp_f32 v25, v25")
            a.nop(1)
            a("v_mul_f32 v24, v24, v26\nv_mul_f32 v25, v25, v27")
            a("s_mov_b32 exec_lo, 0\nv_mov_b32 v24, v25\ns_mov_b64 exec, -1")
            a(f"s_lshl_b32 s40, s28, 4\ns_add_u32 s40, s40, s29\ns_lshl_b32 s40, s40, 9\ns_add_u32 s40, s40, {WS_H2}\ns_add_u32 s42, s26, s40\ns_addc_u32 s43, s27, 0")
            a(f"v_lshrrev_b32 v25, 1, v{VKG}\nv_lshlrev_b32 v25, 8, v25\nv_lshl_add_u32 v25, v{VJ}, 4, v25")
            a(f"{L}:")
        lds_wait_ge(a, f"v{VCT}", 3 + r, f"v{VT+2}")
        for t in range(4): a(f"ds_read_b128 v[{VF+4*t}:{VF+4*t+3}], v{VT} offset:{16384*r+1024*t}")
        if r == 1:
            L = a.lab("MLI")
            a(f"s_cmp_lg_u32 s30, 3\ns_cbranch_scc1 {L}\nglobal_load_dwordx4 v[{MLR}:{MLR+3}], v16, s[42:43] sc1\n{L}:")
        for t in range(4):
            a(f"s_waitcnt lgkmcnt({3-t})")
            a(f"v_mfma_f32_16x16x32_bf16 v[{O}:{O+3}], v[{AO+16*r+4*t}:{AO+16*r+4*t+3}], v[{VF+4*t}:{VF+4*t+3}], v[{O}:{O+3}]")
    a(f"v_mov_b32 v{VT+2}, 1"); lds_set(a, f"v{VCT}", 8, f"v{VT+2}", "ds_add_u32")
    a.stamp(7)
    a("s_cmp_eq_u32 s30, 3\ns_cbranch_scc1 L_p4_pub")
    a(f"s_lshl_b32 s40, s30, 10\ns_add_u32 s40, s40, {L_OP}\nv_add_u32 v{VT}, s40, v{VL16}")
    a(f"ds_write_b128 v{VT}, v[{O}:{O+3}]")
    a("s_branch L_p4_done")
    a("L_p4_pub:")
    a(f"v_add_u32 v{VT}, {L_OP}, v{VL16}")
    Lp, Lx = spin_head(a, "s60", cfg.SPIN, "OP")
    for w in range(3): a(f"ds_read_b128 v[{VF+4*w}:{VF+4*w+3}], v{VT} offset:{1024*w}")
    spin_bound(a, "s60", cfg.SPIN, Lx)
    a("s_waitcnt lgkmcnt(0)")
    for e in range(4): a(f"v_add_f32 v{VF+12+e}, v{VF+e}, v{VF+4+e}\nv_add_f32 v{VF+12+e}, v{VF+12+e}, v{VF+8+e}")
    a(f"v_add_f32 v{VT+3}, v{VF+12}, v{VF+13}\nv_add_f32 v{VT+4}, v{VF+14}, v{VF+15}\nv_add_f32 v{VT+3}, v{VT+3}, v{VT+4}")
    a(f"v_cmp_u_f32 vcc, v{VT+3}, v{VT+3}\ns_cbranch_vccnz {Lp}\n{Lx}:\ns_waitcnt lgkmcnt(0)")
    for e in range(4): a(f"v_add_f32 v{O+e}, v{O+e}, v{VF+12+e}\nv_mul_f32 v{O+e}, v{O+e}, v24")
    a(f"v_cvt_pk_bf16_f32 v28, v{O}, v{O+1}\nv_cvt_pk_bf16_f32 v29, v{O+2}, v{O+3}\nv_mov_b32 v30, v28\nv_mov_b32 v31, v29")
    a.nop(1)
    a("v_permlane16_swap_b32 v28, v30\nv_permlane16_swap_b32 v29, v31")
    a.nop(2)
    a.exec64(0x0000ffff, 0x0000ffff)
    L1, L2 = a.lab("PUBG"), a.lab("PUBD")
    a(f"s_cmp_lg_u64 s[50:51], 0\ns_cbranch_scc1 {L1}") if cfg.LOCAL else a(f"s_branch {L1}")
    a(f"global_store_dwordx4 v25, v[28:31], s[42:43]\ns_branch {L2}\n{L1}:")
    a(f"global_store_dwordx4 v25, v[28:31], s[42:43] sc1\n{L2}:\ns_mov_b64 exec, -1")
    a("L_p4_done:")
    a.stamp(8)
    a("s_cmp_lt_u32 s29, 9\ns_cbranch_scc1 L_role_f")
    G, BF, D5 = 20, 64, 112
    a(f"s_lshl_b32 s40, s28, 13\ns_add_u32 s40, s40, {WS_H2}\ns_add_u32 s42, s26, s40\ns_addc_u32 s43, s27, 0")
    a(f"v_lshlrev_b32 v{VT}, 9, v{VJ}\nv_lshl_add_u32 v{VT}, v{VKG}, 4, v{VT}\ns_lshl_b32 s40, s30, 7\nv_add_u32 v{VT}, s40, v{VT}")
    a(f"v_bfe_u32 v{VT+2}, v{VL}, 2, 2\nv_lshl_add_u32 v{VT+2}, v{VKG}, 3, v{VT+2}\ns_lshl_b32 s40, s30, 6\nv_add_u32 v{VT+2}, s40, v{VT+2}")
    a(f"v_mul_u32_u24 v{VT+2}, 192, v{VT+2}\nv_and_b32 v{VT+3}, 3, v{VL}\nv_lshl_add_u32 v{VT+2}, v{VT+3}, 3, v{VT+2}")
    for i in range(24): a(f"v_mov_b32 v{D5+i}, 0")
    lds_wait_ge(a, f"v{VCT}", 1, f"v{VT+4}", off=12)
    a("s_mov_b32 s62, 0")
    Lp, Lx = spin_head(a, "s61", cfg.GSPIN, "H2")
    for t in range(2): a(f"global_load_dwordx4 v[{G+4*t}:{G+4*t+3}], v{VT}, s[42:43] offset:{64*t} sc1")
    Lq = a.lab("H2F")
    a(f"s_cmp_lg_u32 s62, 0\ns_cbranch_scc1 {Lq}\ns_mov_b32 s62, 1")
    a(f"v_mov_b32 v{VT+4}, 1"); lds_set(a, f"v{VCT}", 16, f"v{VT+4}", "ds_add_u32")
    a("s_add_u32 s63, s30, 7")
    lds_wait_ge(a, f"v{VCT}", "s63", f"v{VT+4}")
    for t in range(2):
        for nb_ in range(6):
            for h in range(2):
                a(f"ds_read_b64_tr_b16 v[{BF+8*nb_+4*t+2*h}:{BF+8*nb_+4*t+2*h+1}], v{VT+2} offset:{O_WO+t*6144+h*768+nb_*32}")
    a(f"{Lq}:")
    spin_bound(a, "s61", cfg.GSPIN, Lx)
    a(f"s_waitcnt vmcnt(0)\nv_max3_u32 v{VT+4}, v{G}, v{G+1}, v{G+2}\nv_max3_u32 v{VT+4}, v{VT+4}, v{G+3}, v{G+4}\nv_max3_u32 v{VT+4}, v{VT+4}, v{G+5}, v{G+6}\nv_max_u32 v{VT+4}, v{VT+4}, v{G+7}")
    a(f"v_cmp_eq_u32 vcc, -1, v{VT+4}\ns_and_b64 exec, exec, vcc\ns_cbranch_execz {Lx}"); a.sleep(cfg.B_H2); a(f"s_branch {Lp}")
    a(f"{Lx}:\ns_mov_b64 exec, -1\ns_waitcnt vmcnt(0) lgkmcnt(0)")
    a.stamp(9)
    for t in range(2):
        for nb_ in range(6):
            a(f"v_mfma_f32_16x16x32_bf16 v[{D5+4*nb_}:{D5+4*nb_+3}], v[{G+4*t}:{G+4*t+3}], v[{BF+8*nb_+4*t}:{BF+8*nb_+4*t+3}], v[{D5+4*nb_}:{D5+4*nb_+3}]")
    a.nop(4)
    for nb_ in range(6):
        b = D5 + 4*nb_
        if nb_ == 5: a.nop(4)
        a(f"v_add_f32 v{b}, v{b}, v{b+1}\nv_add_f32 v{b+2}, v{b+2}, v{b+3}\nv_add_f32 v{b}, v{b}, v{b+2}")
    a0, a1, a2, a3 = D5, D5+4, D5+8, D5+12
    b0, b1 = D5+16, D5+20
    z0, z1 = D5+1, D5+2
    a(f"v_mov_b32 v{z0}, 0\nv_mov_b32 v{z1}, 0"); a.nop(2)
    a(f"v_permlane32_swap_b32 v{a0}, v{a2}\nv_permlane32_swap_b32 v{a1}, v{a3}\nv_permlane32_swap_b32 v{b0}, v{z0}\nv_permlane32_swap_b32 v{b1}, v{z1}"); a.nop(1)
    a(f"v_add_f32 v{a0}, v{a0}, v{a2}\nv_add_f32 v{a1}, v{a1}, v{a3}\nv_add_f32 v{b0}, v{b0}, v{z0}\nv_add_f32 v{b1}, v{b1}, v{z1}"); a.nop(2)
    a(f"v_permlane16_swap_b32 v{a0}, v{a1}\nv_permlane16_swap_b32 v{b0}, v{b1}"); a.nop(1)
    a(f"v_add_f32 v{a0}, v{a0}, v{a1}\nv_add_f32 v{b0}, v{b0}, v{b1}")
    a(f"s_lshl_b32 s40, s30, 9\ns_add_u32 s40, s40, {L_R5}\nv_lshlrev_b32 v{VT}, 2, v{VL}\nv_add_u32 v{VT}, s40, v{VT}")
    a(f"ds_write_b32 v{VT}, v{a0}\nds_write_b32 v{VT}, v{b0} offset:256")
    a("s_cmp_lg_u32 s30, 3\ns_cbranch_scc1 L_p5_done")
    a(f"v_lshlrev_b32 v{VT}, 5, v{VL}\nv_add_u32 v{VT}, {L_R5}, v{VT}")
    a("s_sub_u32 s41, s29, 9\ns_mov_b64 exec, 0x3ff\ns_cmp_eq_u32 s41, 6\ns_cselect_b32 exec_lo, 0xfff, exec_lo")
    Lp, Lx = spin_head(a, "s60", cfg.SPIN, "R5")
    for w in range(4):
        for h in range(2): a(f"ds_read_b128 v[{BF+8*w+4*h}:{BF+8*w+4*h+3}], v{VT} offset:{512*w+16*h}")
    spin_bound(a, "s60", cfg.SPIN, Lx)
    a("s_waitcnt lgkmcnt(0)")
    for e in range(8): a(f"v_add_f32 v{G+e}, v{BF+e}, v{BF+8+e}\nv_add_f32 v{BF+32+e}, v{BF+16+e}, v{BF+24+e}\nv_add_f32 v{G+e}, v{G+e}, v{BF+32+e}")
    a(f"v_add_f32 v{VT+3}, v{G}, v{G+1}")
    for e in range(2, 8): a(f"v_add_f32 v{VT+3}, v{VT+3}, v{G+e}")
    a(f"v_cmp_u_f32 vcc, v{VT+3}, v{VT+3}\ns_cbranch_vccnz {Lp}\n{Lx}:\ns_waitcnt lgkmcnt(0)")
    for e in range(4): a(f"v_cvt_pk_bf16_f32 v{G+e}, v{G+2*e}, v{G+2*e+1}")
    a(f"s_mul_i32 s40, s41, 160\ns_mul_i32 s44, s28, 1152\ns_add_u32 s40, s40, s44\ns_add_u32 s40, s40, {WS_H3}\ns_add_u32 s42, s26, s40\ns_addc_u32 s43, s27, 0")
    a(f"global_store_dwordx4 v{VL16}, v[{G}:{G+3}], s[42:43] sc1\ns_mov_b64 exec, -1")
    a("L_p5_done:")
    a.stamp(10)
    a("s_cmp_lg_u32 s30, 0\ns_cbranch_scc1 L_fin")
    a("s_and_b32 s40, s2, 7\ns_lshr_b32 s41, s2, 3\ns_and_b32 s44, s41, 1\ns_lshr_b32 s41, s41, 1\ns_sub_u32 s41, s41, 9\ns_lshl_b32 s41, s41, 1\ns_add_u32 s41, s41, s44")
    a("s_cmp_lt_u32 s41, 8\ns_cbranch_scc1 L_p9_go\ns_cmp_ge_u32 s41, 12\ns_cbranch_scc1 L_fin\ns_cmp_ge_u32 s40, 2\ns_cbranch_scc1 L_fin")
    a("L_p9_go:")
    a("s_lshr_b32 s44, s41, 2\ns_lshl_b32 s44, s44, 3\ns_add_u32 s44, s44, s40\ns_lshl_b32 s44, s44, 5\ns_and_b32 s45, s41, 3\ns_lshl_b32 s45, s45, 3\ns_add_u32 s44, s44, s45")
    a(f"s_lshl_b32 s40, s44, 1\ns_add_u32 s40, s40, {WS_H3}\ns_add_u32 s42, s26, s40\ns_addc_u32 s43, s27, 0")
    a(f"v_mul_u32_u24 v{VT}, 1152, v{VJ}\nv_lshl_add_u32 v{VT}, v{VKG}, 1, v{VT}")
    a(f"s_lshl_b32 s40, s44, 1\ns_add_u32 s46, s4, s40\ns_addc_u32 s47, s5, 0\nv_lshlrev_b32 v{VT+1}, 1, v{VKG}")
    a(f"global_load_ushort v26, v{VT+1}, s[46:47]\nglobal_load_ushort v27, v{VT+1}, s[46:47] offset:8")
    Lp, Lx = spin_head(a, "s60", cfg.GSPIN, "HH")
    a(f"global_load_ushort v24, v{VT}, s[42:43] sc1\nglobal_load_ushort v25, v{VT}, s[42:43] offset:8 sc1"); spin_bound(a, "s60", cfg.GSPIN, Lx)
    a("s_waitcnt vmcnt(0)\nv_max_u32 v28, v24, v25\nv_cmp_eq_u32 vcc, 0xffff, v28\ns_and_b64 exec, exec, vcc")
    a(f"s_cbranch_execz {Lx}"); a.sleep(2); a(f"s_branch {Lp}\n{Lx}:\ns_mov_b64 exec, -1\ns_waitcnt vmcnt(0)")
    a("v_lshlrev_b32 v24, 16, v24\nv_lshlrev_b32 v25, 16, v25\nv_lshlrev_b32 v26, 16, v26\nv_lshlrev_b32 v27, 16, v27")
    row_red(a, "v_add_f32", ["v24", "v25"])
    a("v_add_f32 v24, v24, v26\nv_add_f32 v25, v25, v27")
    a.exec64(0xaaaaaaaa, 0xaaaaaaaa); a("v_mov_b32 v24, v25\ns_mov_b64 exec, -1")
    a(f"s_lshl_b32 s40, s44, 2\ns_add_u32 s40, s40, {WS_H4}\ns_add_u32 s42, s26, s40\ns_addc_u32 s43, s27, 0")
    a(f"v_lshrrev_b32 v{VT}, 1, v{VL}\nv_mul_u32_u24 v{VT}, 2304, v{VT}\nv_and_b32 v{VT+1}, 1, v{VL}\nv_lshl_add_u32 v{VT}, v{VT+1}, 4, v{VT}")
    for t in range(1, 5): a(f"v_add_u32 v{VT+t}, {32*2304*t}, v{VT}")
    for e in range(4): a(f"v_mov_b32 v{80+e}, v{VTAG}")
    a("s_mov_b64 s[46:47], -1")
    Lp, Lx = spin_head(a, "s60", cfg.GSPIN, "H4")
    for t in range(4): a(f"global_load_dwordx4 v[{64+4*t}:{67+4*t}], v{VT+t}, s[42:43] sc1")
    a(f"s_mov_b32 exec_hi, 0\nglobal_load_dwordx4 v[80:83], v{VT+4}, s[42:43] sc1\ns_mov_b64 exec, s[46:47]")
    spin_bound(a, "s60", cfg.GSPIN, Lx)
    a("s_waitcnt vmcnt(0)")
    tagcheck(a, "v28", range(64, 84), VTAG)
    a(f"s_and_b64 s[46:47], exec, vcc\ns_mov_b64 exec, s[46:47]\ns_cbranch_execz {Lx}"); a.sleep(cfg.B_H4); a(f"s_branch {Lp}")
    a(f"{Lx}:\ns_mov_b64 exec, -1\ns_waitcnt vmcnt(0)")
    a.stamp(14)
    for e in range(4): a(f"v_add_f32 v{20+e}, v{64+e}, v{68+e}\nv_add_f32 v{28+e}, v{72+e}, v{76+e}\nv_add_f32 v{20+e}, v{20+e}, v{80+e}\nv_add_f32 v{20+e}, v{20+e}, v{28+e}")
    a.nop(2)
    a("v_permlane32_swap_b32 v20, v22\nv_permlane32_swap_b32 v21, v23"); a.nop(1)
    a("v_add_f32 v20, v20, v22\nv_add_f32 v21, v21, v23"); a.nop(2)
    a("v_permlane16_swap_b32 v20, v21"); a.nop(1)
    a("v_add_f32 v20, v20, v21")
    for ctl in ("row_ror:8", "row_ror:4", "row_ror:2"):
        a.nop(2); dpp(a, "v_add_f32", "v20", ctl)
    a("v_add_f32 v20, v20, v24\nv_cvt_pk_bf16_f32 v20, v20, v20")
    a(f"s_lshl_b32 s40, s44, 1\ns_add_u32 s42, s22, s40\ns_addc_u32 s43, s23, 0\nv_and_b32 v{VT}, 1, v{VL}\nv_lshlrev_b32 v{VT}, 3, v{VT}\nv_lshl_add_u32 v{VT}, v{VKG}, 1, v{VT}")
    a.exec64(0x00030003, 0x00030003)
    a(f"global_store_short v{VT}, v20, s[42:43]\ns_mov_b64 exec, -1")
    a(f"s_cmp_lg_u32 s44, 0\ns_cbranch_scc1 L_fin\nv_mov_b32 v{VT}, {WS_EP}\nv_mov_b32 v{VT+1}, s58\ns_mov_b64 exec, 1\nglobal_store_dword v{VT}, v{VT+1}, s[26:27]\ns_mov_b64 exec, -1")
    a("s_branch L_fin")
    a("L_role_f:")
    WF, RAW, HF, AC, SEL, DF = 64, 136, 136, 236, 56, 208
    a(f"v_bfe_u32 v{VT}, v{VL}, 2, 2\nv_lshl_add_u32 v{VT}, v{VKG}, 3, v{VT}\nv_lshlrev_b32 v{VT}, 6, v{VT}\nv_and_b32 v{VT+1}, 3, v{VL}\nv_lshl_add_u32 v{VT}, v{VT+1}, 3, v{VT}")
    a(f"s_and_b32 s40, s30, 1\ns_lshl_b32 s40, s40, 5\ns_lshr_b32 s41, s30, 1\ns_mul_i32 s41, s41, {F_U}\ns_add_u32 s40, s40, s41\nv_add_u32 v{VT}, s40, v{VT}")
    a(f"v_bfe_u32 v10, v{VL}, 2, 2\nv_lshl_add_u32 v10, v{VKG}, 3, v10\nv_mul_u32_u24 v10, 1152, v10")
    a(f"v_and_b32 v{VT+2}, 3, v{VL}\nv_lshlrev_b32 v{VT+2}, 3, v{VT+2}\ns_mul_i32 s40, s30, 288\ns_add_u32 s40, s40, {F_D}\nv_add_u32 v{VT+2}, s40, v{VT+2}\nv_add_u32 v10, v10, v{VT+2}")
    def wfrags():
        for t in range(18):
            for h in range(2): a(f"ds_read_b64_tr_b16 v[{WF+4*t+2*h}:{WF+4*t+2*h+1}], v{VT} offset:{2048*t+256*h}")
    def dfrags():
        for n in range(9):
            for h in range(2): a(f"ds_read_b64_tr_b16 v[{DF+4*n+2*h}:{DF+4*n+2*h+1}], v10 offset:{32*n+4608*h}")
    a("s_cmp_lg_u32 s30, 0\ns_cbranch_scc1 L_p6_skip")
    for t in range(4): a(f"v_and_b32 v{SEL+t}, 0x3f803f80, v{MK+t}")
    for pb in range(4):
        for e in range(4): a(f"v_mov_b32 v{RAW+64+4*pb+e}, 0")
    a(f"s_add_u32 s42, s26, {WS_H3}\ns_addc_u32 s43, s27, 0")
    a(f"v_mul_u32_u24 v{VT+1}, 1152, v{VKG}\nv_lshl_add_u32 v{VT+1}, v{VJ}, 4, v{VT+1}")
    lds_wait_ge(a, f"v{VCT}", 7, f"v{VT+2}")
    wfrags()
    lds_wait_ge(a, f"v{VCT}", 1, f"v{VT+2}", off=12)
    a.stamp(9)
    a("s_mov_b64 s[46:47], -1")
    Lp, Lx = spin_head(a, "s61", cfg.GSPIN, "H3")
    a("s_mov_b32 s44, s42\ns_mov_b32 s45, s43")
    for pb in range(4):
        for cb in range(4): a(f"global_load_dwordx4 v[{RAW+16*cb+4*pb}:{RAW+16*cb+4*pb+3}], v{VT+1}, s[44:45] offset:{256*cb} sc1")
        a("s_and_b32 exec_lo, exec_lo, 0x00ff00ff\ns_and_b32 exec_hi, exec_hi, 0x00ff00ff")
        Lz = a.lab("H3Z")
        a(f"s_cbranch_execz {Lz}\nglobal_load_dwordx4 v[{RAW+64+4*pb}:{RAW+64+4*pb+3}], v{VT+1}, s[44:45] offset:1024 sc1\n{Lz}:")
        a(f"s_mov_b64 exec, s[46:47]\ns_add_u32 s44, s44, {4*1152}\ns_addc_u32 s45, s45, 0")
    a("s_mov_b64 exec, -1")
    spin_bound(a, "s61", cfg.GSPIN, Lx)
    Lw = a.lab("H3W")
    a(f"s_cmp_le_u32 s61, 1\ns_cbranch_scc1 {Lw}\ns_waitcnt vmcnt(0)\n{Lw}:")
    for pb in range(4):
        a(f"s_waitcnt vmcnt({15-5*pb})")
        for cb in range(5):
            c_in = XF + 4*cb if pb == 0 else AC + 4*cb
            a(f"v_mfma_f32_16x16x32_bf16 v[{AC+4*cb}:{AC+4*cb+3}], v[{SEL}:{SEL+3}], v[{RAW+16*cb+4*pb}:{RAW+16*cb+4*pb+3}], v[{c_in}:{c_in+3}]")
    a.nop(4)
    def pr(b): return f"v[{b}:{b+1}]"
    a(f"v_pk_add_f32 v[14:15], {pr(AC)}, {pr(AC+2)}\nv_pk_mul_f32 v[16:17], {pr(AC)}, {pr(AC)}\nv_pk_fma_f32 v[16:17], {pr(AC+2)}, {pr(AC+2)}, v[16:17]")
    for i in range(4, 20, 2):
        if i == 16: a.nop(4)
        a(f"v_pk_add_f32 v[14:15], v[14:15], {pr(AC+i)}\nv_pk_fma_f32 v[16:17], {pr(AC+i)}, {pr(AC+i)}, v[16:17]")
    a("v_add_f32 v14, v14, v15\nv_add_f32 v16, v16, v17")
    a(f"v_cmp_u_f32 vcc, v14, v14\ns_cbranch_vccz {Lx}\ns_mov_b64 s[46:47], vcc\ns_mov_b64 exec, vcc"); a.sleep(cfg.B_H3); a(f"s_branch {Lp}")
    a(f"{Lx}:\ns_mov_b64 exec, -1\ns_waitcnt vmcnt(0) lgkmcnt(0)")
    a.stamp(11)
    row_red(a, "v_add_f32", ["v14", "v16"])
    a("v_mov_b32 v15, v14\nv_mov_b32 v17, v16"); a.nop(1)
    a("v_permlane16_swap_b32 v14, v15\nv_permlane16_swap_b32 v16, v17"); a.nop(1)
    a("v_add_f32 v14, v14, v15\nv_add_f32 v16, v16, v17")
    a(f"v_mul_f32 v14, {hex(f2b(1.0/576))}, v14\nv_mul_f32 v16, {hex(f2b(1.0/576))}, v16")
    a(f"v_fma_f32 v16, -v14, v14, v16\nv_max_f32 v16, 0, v16\nv_add_f32 v16, {hex(f2b(1e-5))}, v16\nv_rsq_f32 v16, v16")
    a(f"v_and_b32 v{VT+1}, 1, v{VKG}\nv_lshlrev_b32 v{VT+1}, 3, v{VT+1}\nv_lshl_add_u32 v{VT+1}, v{VJ}, 4, v{VT+1}\nv_add_u32 v{VT+1}, {L_HN}, v{VT+1}")
    a("v_mul_f32 v14, v14, v16\nv_mov_b32 v17, v16\nv_sub_f32 v14, 0, v14\nv_mov_b32 v15, v14")
    a("s_mov_b32 exec_hi, 0")
    for cb in range(5):
        a(f"v_pk_fma_f32 {pr(AC+4*cb)}, {pr(AC+4*cb)}, v[16:17], v[14:15]\nv_pk_fma_f32 {pr(AC+4*cb+2)}, {pr(AC+4*cb+2)}, v[16:17], v[14:15]")
        a(f"v_cvt_pk_bf16_f32 v{20+2*cb}, v{AC+4*cb}, v{AC+4*cb+1}\nv_cvt_pk_bf16_f32 v{21+2*cb}, v{AC+4*cb+2}, v{AC+4*cb+3}")
        if cb == 4: a("s_mov_b32 exec_lo, 0x00ff00ff")
        a(f"ds_write_b64 v{VT+1}, v[{20+2*cb}:{21+2*cb}] offset:{256*cb}")
    a("s_mov_b64 exec, -1")
    a(f"v_mov_b32 v{VT+2}, 1"); lds_set(a, f"v{VCT}", 20, f"v{VT+2}")
    lds_wait_ge(a, f"v{VCT}", 8, f"v{VT+2}")
    dfrags()
    a("s_branch L_p7_go")
    a("L_p6_skip:")
    a("s_lshr_b32 s63, s30, 1\ns_lshl_b32 s63, s63, 1\ns_add_u32 s63, s63, 7")
    lds_wait_ge(a, f"v{VCT}", "s63", f"v{VT+2}")
    wfrags()
    lds_wait_ge(a, f"v{VCT}", 9, f"v{VT+2}")
    dfrags()
    lds_wait_ge(a, f"v{VCT}", 1, f"v{VT+2}", off=20)
    a("L_p7_go:")
    D7 = 20
    a(f"v_lshlrev_b32 v{VT+1}, 4, v{VKG}\nv_add_u32 v{VT+1}, {L_HN}, v{VT+1}")
    for e in range(8): a(f"v_mov_b32 v{D7+e}, 0")
    a("s_waitcnt lgkmcnt(0)")
    for t in range(14): a(f"ds_read_b128 v[{HF+4*t}:{HF+4*t+3}], v{VT+1} offset:{64*t}")
    for t in range(18):
        if t + 14 < 18: a("s_waitcnt lgkmcnt(13)")
        else: a(f"s_waitcnt lgkmcnt({17-t})")
        a(f"v_mfma_f32_16x16x32_bf16 v[{D7+4*(t&1)}:{D7+4*(t&1)+3}], v[{WF+4*t}:{WF+4*t+3}], v[{HF+4*t}:{HF+4*t+3}], v[{D7+4*(t&1)}:{D7+4*(t&1)+3}]")
        if t + 14 < 18: a(f"ds_read_b128 v[{HF+4*(t+14)}:{HF+4*(t+14)+3}], v{VT+1} offset:{64*(t+14)}")
    a(f"s_lshl_b32 s40, s30, 6\ns_add_u32 s40, s40, {L_R7}\nv_lshlrev_b32 v{VT}, 4, v{VKG}\nv_add_u32 v{VT}, s40, v{VT}")
    a(f"v_lshlrev_b32 v{VT+1}, 5, v{VKG}\nv_add_u32 v{VT+1}, {L_R7}, v{VT+1}")
    a(f"s_mul_i32 s40, s28, 9\ns_add_u32 s40, s40, s29\ns_mul_i32 s40, s40, 2304\ns_mul_i32 s41, s30, 576\ns_add_u32 s40, s40, s41\ns_add_u32 s40, s40, {WS_H4}")
    a(f"s_add_u32 s42, s26, s40\ns_addc_u32 s43, s27, 0")
    for e in range(4): a(f"v_add_f32 v{D7+e}, v{D7+e}, v{D7+4+e}")
    a.exec64(0x00010001, 0x00010001)
    a(f"ds_write_b128 v{VT}, v[{D7}:{D7+3}]\ns_mov_b64 exec, -1")
    a.stamp(12)
    BB, D8 = 136, 20
    a(f"v_lshlrev_b32 v{VT}, 6, v{VJ}\nv_lshl_add_u32 v{VT}, v{VKG}, 4, v{VT}")
    Lp, Lx = spin_head(a, "s60", cfg.SPIN, "R7")
    a(f"ds_read_b128 v[32:35], v{VT+1}\nds_read_b128 v[36:39], v{VT+1} offset:16\nds_read_b128 v[40:43], v{VT+1} offset:128\nds_read_b128 v[44:47], v{VT+1} offset:144")
    spin_bound(a, "s60", cfg.SPIN, Lx)
    a("s_waitcnt lgkmcnt(0)")
    for e in range(8): a(f"v_max_f32 v{48+e}, 0, v{32+e}")
    for e in range(0, 8, 2): a(f"v_pk_mul_f32 {pr(48+e)}, {pr(48+e)}, {pr(40+e)}")
    a("v_max3_u32 v56, v32, v33, v34\nv_max3_u32 v57, v35, v36, v37\nv_max3_u32 v56, v56, v38, v39\nv_max3_u32 v57, v57, v40, v41\nv_max3_u32 v56, v56, v42, v43\nv_max3_u32 v57, v57, v44, v45\nv_max3_u32 v56, v56, v46, v47\nv_max_u32 v56, v56, v57")
    a(f"v_cmp_eq_u32 vcc, -1, v56\ns_cbranch_vccnz {Lp}\n{Lx}:\ns_waitcnt lgkmcnt(0)")
    for e in range(4): a(f"v_cvt_pk_bf16_f32 v{32+e}, v{48+2*e}, v{49+2*e}")
    for e in range(4): a(f"v_mov_b32 v{D8+e}, 0")
    for n in range(9):
        a(f"s_mov_b32 s46, {hex(0x00010001 << n)}\ns_mov_b32 s47, s46")
        for h in range(4): a(f"v_cndmask_b32 v{BB+4*n+h}, 0, v{32+h}, s[46:47]")
        if n:
            a(f"v_mfma_f32_16x16x32_bf16 v[{D8}:{D8+3}], v[{DF+4*(n-1)}:{DF+4*(n-1)+3}], v[{BB+4*(n-1)}:{BB+4*(n-1)+3}], v[{D8}:{D8+3}]")
    a.nop(2)
    a(f"v_mfma_f32_16x16x32_bf16 v[{D8}:{D8+3}], v[{DF+32}:{DF+35}], v[{BB+32}:{BB+35}], v[{D8}:{D8+3}]")
    a.nop(8)
    for e in range(4): a(f"v_and_or_b32 v{D8+e}, v{D8+e}, s57, v{VTAG}")
    a.exec64(0x01ff01ff, 0x01ff01ff)
    a(f"global_store_dwordx4 v{VT}, v[{D8}:{D8+3}], s[42:43] sc1\ns_mov_b64 exec, -1")
    a.stamp(13)
    a("L_fin:")
    a.stamp(15)
    stamps_out(a)
    a("s_endpgm")

def generate(cfg):
    a = A(cfg)
    K = NAME + "_kernel"
    hdr = open("cdna_kernels/" + NAME + ".s.ref").read().split("; Override launch geometry")[0]
    out = [hdr.rstrip(), "; Override launch geometry by editing the next line (default: block=256,", "; grid=ceil(out_elems/256), lds=0). Harness parses it; keep it on one line.",
           f"; @launch grid=(256,1,1) block=(320,1,1) lds={LDS_BYTES}", '.amdgcn_target "amdgcn-amd-amdhsa--gfx950"\n.text', f".globl {K}\n.p2align 8\n.type {K},@function\n{K}:"]
    a("s_cmp_ge_u32 s2, 256\ns_cbranch_scc1 L_exit")
    a("s_load_dwordx16 s[4:19], s[0:1], 0\ns_load_dwordx8 s[20:27], s[0:1], 64")
    if cfg.STAMP:
        for i in range(16): a(f"s_mov_b64 s[{64+2*i}:{65+2*i}], 0")
        a("s_memrealtime s[64:65]")
    a("v_and_b32 v1, 63, v0\nv_lshrrev_b32 v2, 6, v0")
    a("s_and_b32 s28, s2, 7\ns_lshl_b32 s28, s28, 1\ns_lshr_b32 s29, s2, 3\ns_and_b32 s29, s29, 1\ns_or_b32 s28, s28, s29\ns_lshr_b32 s29, s2, 4")
    a("v_readfirstlane_b32 s3, v2")
    a("s_waitcnt lgkmcnt(0)")
    a("s_cmp_lg_u32 s3, 0\ns_cbranch_scc1 L_consumer")
    gen_loader(a)
    gen_consumer(a)
    a("L_exit:\ns_endpgm")
    out += a.L
    out.append('.section .rodata,"a"\n.p2align 6')
    out.append(f".amdhsa_kernel {K}")
    out.append("  .amdhsa_next_free_vgpr 256\n  .amdhsa_next_free_sgpr 102\n  .amdhsa_accum_offset 256\n  .amdhsa_group_segment_fixed_size 0\n  .amdhsa_kernarg_size 96\n  .amdhsa_user_sgpr_count 2\n  .amdhsa_user_sgpr_kernarg_segment_ptr 1\n  .amdhsa_system_sgpr_workgroup_id_x 1\n.end_amdhsa_kernel")
    return "\n".join(out) + "\n"

if __name__ == "__main__":
    cfg = Cfg()
    for kv in sys.argv[2:]:
        k, v = kv.split("=")
        setattr(cfg, k, v if k == "NT" else (v == "1" if k == "STAMP" else int(v)))
    open(sys.argv[1], "w").write(generate(cfg))
```

```python
import sys, struct, math
NAME = "sequential_preLN__sliding_block_cached__glu_gated_reglu__decode"
def f2b(x): return struct.unpack("<I", struct.pack("<f", x))[0]

class Cfg:
    W1 = 20; WWO = 14; WGU = 12; WD = 20
    NT = "nt"
    STAMP = False
    DBG = 0
    LOCAL = 1
    PF = 1
    WG0 = 14; NG0 = 0
    WG1 = 14
    WUP = 16
    GUROT = 0
    ROT = 5
    LONLY = 0
    H3GATE = 1
    T_H1 = 0
    D_H1 = 0; B_H1 = 0; B_ML = 0; B_H2 = 0; B_H3 = 0; B_H4 = 2; B_AL = 2
    SPIN = 1 << 16
    GSPIN = 1 << 13

WS_H1 = 0x00000; WS_ML = 0x10000; WS_H2 = 0x18000; WS_H3 = 0x38000; WS_AL = 0x3d000; WS_EP = 0x3f000; WS_H4 = 0x40000; WS_ST = 0x100000
L_WQ = 0; L_K = 18432; L_V = L_K + 65536; L_SB = L_V + 65536
L_XN = L_SB
L_QB = L_XN + 1152
L_MX = L_QB + 512
L_LW = L_MX + 32
L_OP = L_LW + 32
L_R5 = L_OP + 3072
L_HN = L_R5 + 2048
L_R7 = L_HN + 1152
L_QP = L_R7 + 256
L_CT = L_QP + 256
L_END = L_CT + 64
LDS_BYTES = 161280
assert L_END <= LDS_BYTES
POIS_LO, POIS_HI = L_QB, L_CT
F_G, F_U, F_D = 0, 36864, L_V
O_WO = 0
CSCALE = f2b(math.log2(math.e) / math.sqrt(128.0))

class A:
    def __init__(s, cfg): s.L = []; s.cfg = cfg; s.uid = 0
    def __call__(s, t):
        for ln in t.split("\n"):
            ln = ln.strip()
            if ln: s.L.append(("" if ln.endswith(":") else "    ") + ln)
    def lab(s, base): s.uid += 1; return f"{base}_{s.uid}"
    def nop(s, n):
        while n > 0:
            k = min(n, 16); s(f"s_nop {k-1}"); n -= k
    def stamp(s, idx):
        if s.cfg.STAMP: s(f"s_memrealtime s[{64+2*idx}:{65+2*idx}]")
    def exec64(s, lo, hi): s(f"s_mov_b32 exec_lo, {hex(lo)}\ns_mov_b32 exec_hi, {hex(hi)}")
    def sleep(s, n):
        while n > 0:
            k = min(n, 127); s(f"s_sleep {k}"); n -= k

def lds_wait_ge(a, addr_v, val, tmp_v, tmp_s="s31", cnt_s="s60", off=0):
    if a.cfg.LONLY and off in (4, 8, 12, 16): return
    L = a.lab("LW"); X = a.lab("LX")
    o = f" offset:{off}" if off else ""
    a(f"s_mov_b32 {cnt_s}, 0\n{L}:\nds_read_b32 {tmp_v}, {addr_v}{o}")
    a(f"s_add_u32 {cnt_s}, {cnt_s}, 1\ns_cmp_gt_u32 {cnt_s}, {a.cfg.SPIN}\ns_cbranch_scc1 {X}")
    a(f"s_waitcnt lgkmcnt(0)\nv_readfirstlane_b32 {tmp_s}, {tmp_v}\ns_cmp_lt_u32 {tmp_s}, {val}\ns_cbranch_scc1 {L}\n{X}:\ns_waitcnt lgkmcnt(0)")

def lds_set(a, addr_v, off, val_v, op="ds_write_b32"):
    a(f"s_mov_b64 exec, 1\n{op} {addr_v}, {val_v} offset:{off}\ns_mov_b64 exec, -1")

def dpp(a, op, v, ctl): a(f"{op}_dpp {v}, {v}, {v} {ctl} row_mask:0xf bank_mask:0xf")
def row_red(a, op, vs):
    if isinstance(vs, str): vs = [vs]
    for ctl in ("quad_perm:[1,0,3,2]", "quad_perm:[2,3,0,1]", "row_half_mirror", "row_mirror"):
        a.nop(max(0, 3 - len(vs))) if len(vs) < 3 else None
        for v in vs: dpp(a, op, v, ctl)
    a.nop(0)
def xrow_red(a, op, v, t):
    a(f"v_mov_b32 {t}, {v}"); a.nop(2)
    a(f"v_permlane16_swap_b32 {v}, {t}"); a.nop(1)
    a(f"{op} {v}, {v}, {t}\nv_mov_b32 {t}, {v}"); a.nop(2)
    a(f"v_permlane32_swap_b32 {v}, {t}"); a.nop(1)
    a(f"{op} {v}, {v}, {t}")

def spin_head(a, cnt, bound, name):
    Lp, Lx = a.lab(name), a.lab(name + "X")
    a(f"s_mov_b32 {cnt}, 0\n{Lp}:")
    return Lp, Lx
def spin_bound(a, cnt, bound, Lx):
    a(f"s_add_u32 {cnt}, {cnt}, 1\ns_cmp_gt_u32 {cnt}, {bound}\ns_cbranch_scc1 {Lx}")

def tagcheck(a, acc, regs, vtag):
    regs = list(regs)
    a(f"v_xor_b32 {acc}, v{regs[0]}, v{vtag}")
    for r in regs[1:]: a(f"v_bitop3_b32 {acc}, {acc}, v{r}, v{vtag} bitop3:0xf6")
    a(f"v_and_b32 {acc}, 0x3ff, {acc}\nv_cmp_ne_u32 vcc, 0, {acc}")

def stamps_out(a, loader=False):
    if not a.cfg.STAMP: return
    if a.cfg.DBG:
        a("s_waitcnt lgkmcnt(0)\ns_mov_b64 exec, 1")
        lst = [(0, 0, True), (3, 1, False), (8, 2, False)] if loader else [(2, 3, False), (3, 4, False), (5, 5, False), (7, 6, False), (8, 7, False), (9, 8, False), (10, 9, False), (11, 10, False), (12, 11, False), (13, 12, False), (14, 13, False), (15, 14, False)]
        for (st, slot, inv) in lst:
            if inv: a(f"s_not_b32 s40, s{64+2*st}")
            else: a(f"s_mov_b32 s40, s{64+2*st}")
            a(f"v_mov_b32 v250, {4*slot}\nv_mov_b32 v251, s40\nglobal_atomic_umax v250, v251, s[24:25] sc1")
        return
    a("s_waitcnt lgkmcnt(0)")
    a(f"s_lshl_b32 s40, s2, 3\ns_add_u32 s40, s40, s3\ns_lshl_b32 s40, s40, 7\ns_add_u32 s40, s40, {WS_ST}")
    a("s_add_u32 s40, s26, s40\ns_addc_u32 s41, s27, 0\ns_mov_b64 exec, 1\nv_mov_b32 v250, 0")
    for i in range(16):
        a(f"v_mov_b32 v252, s{64+2*i}\nv_mov_b32 v253, s{65+2*i}\nglobal_store_dwordx2 v250, v[252:253], s[40:41] offset:{8*i}")
        a.nop(2)

def gen_loader(a):
    cfg = a.cfg; NT = cfg.NT
    V_L16, V_WQ, V_K, V_P, V_FA, V_FV, V_T = 4, 5, 6, 10, 16, 17, 18
    a("L_loader:\ns_setprio 1")
    a(f"v_lshlrev_b32 v{V_L16}, 4, v1")
    a(f"v_lshrrev_b32 v20, 3, v1\nv_lshlrev_b32 v20, 13, v20\nv_and_b32 v21, 7, v1\nv_lshlrev_b32 v21, 4, v21\nv_add_u32 v{V_WQ}, v20, v21")
    a("s_lshr_b32 s40, s29, 2\ns_mul_i32 s40, s40, 1179648")
    a("s_and_b32 s41, s29, 3\ns_lshl_b32 s41, s41, 7\ns_lshl_b32 s42, s28, 9\ns_add_u32 s41, s41, s42\ns_add_u32 s40, s40, s41")
    a("s_add_u32 s32, s10, s40\ns_addc_u32 s33, s11, 0\ns_sub_u32 s34, 4718592, s40\ns_mov_b32 s35, 0x20000")
    def raw(pat, off=0):
        o = f" offset:{off}" if off else ""
        a(f"buffer_load_dwordx4 v{pat}, s[32:35], s36 offen{o} {NT} lds")
    def signal(val):
        a(f"v_mov_b32 v{V_FV}, {val}"); lds_set(a, f"v{V_FA}", 0, f"v{V_FV}")
    class Seq:
        def __init__(s, W, n, pend): s.n = n; s.W = W; s.pend = pend
        def after(s):
            n = s.n
            if n >= s.W - 1:
                a(f"s_waitcnt vmcnt({s.W-1})")
                landed = n - s.W + 1
                while s.pend and s.pend[0][0] <= landed: signal(s.pend.pop(0)[1])
                if cfg.T_H1 and landed == 18 + cfg.T_H1:
                    a(f"v_mov_b32 v{V_FV}, 1"); lds_set(a, f"v{V_FA}", 24, f"v{V_FV}")
            s.n += 1
        def drain(s):
            last = s.n - 1
            while s.pend:
                e, v = s.pend.pop(0)
                a(f"s_waitcnt vmcnt({last-e})"); signal(v)
    q = Seq(cfg.W1, 0, [])
    a(f"s_mov_b32 m0, {L_WQ}\ns_mov_b32 s36, 0")
    q.pend.append((17, 1))
    for i in range(18):
        if i: a("s_add_u32 m0, m0, 0x400\ns_add_u32 s36, s36, 0x10000")
        else: a.nop(1)
        raw(V_WQ); q.after()
        if i == 1:
            a("v_lshrrev_b32 v20, 4, v1\nv_lshlrev_b32 v21, 2, v20\nv_and_b32 v22, 15, v1\nv_xor_b32 v22, v22, v21\nv_lshlrev_b32 v20, 8, v20")
            for p in range(4): a(f"v_xor_b32 v23, {p}, v22\nv_lshlrev_b32 v23, 4, v23\nv_add_u32 v{V_K+p}, v20, v23")
            a(f"v_mov_b32 v{V_FA}, {L_CT}")
        if i == 5: a("s_barrier")
    a.stamp(1)
    for name, p, lbase, pats in (("K", 6, L_K, [V_K, V_K+1, V_K+2, V_K+3]), ("V", 8, L_V, [V_L16]*4)):
        a(f"s_lshl_b32 s40, s28, 24\ns_lshl_b32 s42, s29, 16\ns_add_u32 s42, s42, {(65536-4096)*256}\ns_add_u32 s40, s40, s42")
        a(f"s_add_u32 s32, s{p}, s40\ns_addc_u32 s33, s{p+1}, 0\ns_mov_b32 s34, 65536\ns_mov_b32 m0, {lbase}\ns_mov_b32 s36, 0")
        if cfg.ROT: a(f"s_mul_i32 s36, s28, {cfg.ROT}\ns_add_u32 s36, s36, s29\ns_and_b32 s36, s36, 15\ns_lshl_b32 s36, s36, 12")
        base = q.n
        if name == "K": q.pend.append((base + 63, 2))
        else:
            for r in range(4): q.pend.append((base + 16*r + 15, 3 + r))
        for i in range(64):
            if i and i % 4 == 0:
                a("s_add_u32 m0, m0, 0x1000\ns_add_u32 s36, s36, 0x1000")
                if cfg.ROT: a("s_and_b32 s36, s36, 0xffff")
            elif i == 0: a.nop(1)
            raw(pats[i % 4], off=(i % 4) * 1024); q.after()
        a.stamp(2 if name == "K" else 3)
    lds_wait_ge(a, f"v{V_FA}", 4, "v19", "s43", "s44", off=4)
    a.stamp(4)
    n0, p0 = q.n, list(q.pend)
    a("s_cmp_ge_u32 s29, 9\ns_cbranch_scc1 L_ld_o")
    q = Seq(cfg.WGU, n0, list(p0))
    a(f"v_lshrrev_b32 v20, 2, v1\nv_mul_u32_u24 v20, 9216, v20\nv_and_b32 v21, 3, v1\nv_lshlrev_b32 v21, 4, v21\nv_add_u32 v{V_P}, v20, v21")
    a("s_mul_i32 s45, s28, 288\ns_lshl_b32 s46, s29, 5\ns_add_u32 s45, s45, s46")
    def gu_tile(p, lb, mile, W):
        q.W = W
        q.pend.append((q.n + 35, mile))
        a(f"s_lshl_b32 s40, s45, 1\ns_add_u32 s32, s{p}, s40\ns_addc_u32 s33, s{p+1}, 0\ns_sub_u32 s34, 5308416, s40\ns_mov_b32 m0, {lb}\ns_mov_b32 s36, 0")
        for i in range(36):
            if i: a(f"s_add_u32 m0, m0, 0x400\ns_add_u32 s36, s36, {16*9216}")
            else: a.nop(1)
            if mile == 7 and i < cfg.NG0: q.W = cfg.WG0
            else: q.W = W
            raw(V_P); q.after()
    gu_tile(16, F_G, 7, cfg.WG1)
    a.stamp(5)
    lds_wait_ge(a, f"v{V_FA}", 4, "v19", "s43", "s44", off=8)
    a(f"s_mul_i32 s40, s45, 1152\ns_add_u32 s32, s20, s40\ns_addc_u32 s33, s21, 0\ns_mov_b32 s34, {32*1152}\ns_mov_b32 m0, {F_D}\ns_mov_b32 s36, 0")
    q.pend.append((q.n + 35, 8)); q.W = cfg.WD
    for i in range(36):
        if i and i % 4 == 0: a("s_add_u32 m0, m0, 0x1000\ns_add_u32 s36, s36, 0x1000")
        elif i == 0: a.nop(1)
        raw(V_L16, off=(i % 4) * 1024); q.after()
    a.stamp(7)
    gu_tile(18, F_U, 9, cfg.WUP)
    a(f"v_mov_b32 v{V_FV}, 1"); lds_set(a, f"v{V_FA}", 12, f"v{V_FV}")
    a.stamp(6)
    q.drain()
    a("s_branch L_ld_done")
    a("L_ld_o:")
    q = Seq(cfg.WWO, n0, list(p0))
    for p in range(3):
        a(f"v_add_u32 v20, {64*p}, v1\nv_mul_u32_u24 v21, 171, v20\nv_lshrrev_b32 v21, 11, v21")
        a(f"v_mul_u32_u24 v22, 12, v21\nv_sub_u32 v22, v20, v22\nv_lshlrev_b32 v22, 4, v22\nv_mul_u32_u24 v21, 1152, v21\nv_add_u32 v{V_P+p}, v21, v22")
    a("s_mul_i32 s40, s28, 294912\ns_sub_u32 s41, s29, 9\ns_mul_i32 s41, s41, 160\ns_add_u32 s40, s40, s41")
    a(f"s_add_u32 s32, s12, s40\ns_addc_u32 s33, s13, 0\ns_sub_u32 s34, 4718592, s40\ns_mov_b32 m0, {O_WO}\ns_mov_b32 s36, 0")
    for c in range(4): q.pend.append((q.n + 12*c + 11, 7 + c))
    for i in range(48):
        if i:
            a("s_add_u32 m0, m0, 0x400")
            if i % 3 == 0: a(f"s_add_u32 s36, s36, {16*1152}")
            else: a.nop(1)
        else: a.nop(1)
        raw(V_P + i % 3); q.after()
    a(f"v_mov_b32 v{V_FV}, 1"); lds_set(a, f"v{V_FA}", 12, f"v{V_FV}")
    a.stamp(5)
    if cfg.PF:
        a("s_and_b32 s40, s2, 7\ns_lshr_b32 s41, s2, 3\ns_and_b32 s44, s41, 1\ns_lshr_b32 s41, s41, 1\ns_sub_u32 s41, s41, 9\ns_lshl_b32 s41, s41, 1\ns_add_u32 s41, s41, s44")
        a("s_mul_i32 s40, s40, 1152\ns_add_u32 s32, s18, s40\ns_addc_u32 s33, s19, 0\ns_sub_u32 s34, 5308416, s40\ns_lshl_b32 s41, s41, 6\ns_mov_b32 s46, 7282\ns_mov_b32 s47, 9216")
        for t in range(6):
            a(f"s_add_u32 s40, s41, {64*14*t}\nv_add_u32 v20, s40, v1\nv_mul_lo_u32 v21, s46, v20\nv_lshrrev_b32 v21, 16, v21")
            a(f"v_mul_u32_u24 v22, 9, v21\nv_sub_u32 v22, v20, v22\nv_lshlrev_b32 v22, 7, v22\nv_mul_lo_u32 v21, s47, v21\nv_add_u32 v{24+t}, v21, v22")
        lds_wait_ge(a, f"v{V_FA}", 4, "v19", "s43", "s44", off=16)
        a("s_mov_b32 s36, 0")
        npf = 6
        for t in range(npf):
            a(f"buffer_load_dword v{32+t}, v{24+t}, s[32:35], s36 offen {NT}")
            q.n += 1
    q.drain()
    a("L_ld_done:")
    a.stamp(8)
    if cfg.STAMP: a("s_getreg_b32 s94, hwreg(HW_REG_XCC_ID)\ns_and_b32 s94, s94, 15\ns_add_u32 s94, s94, 1\ns_mov_b32 s95, 0")
    stamps_out(a, True)
    a("s_endpgm")

def gen_consumer(a):
    cfg = a.cfg
    VL, VJ, VKG, VL16, VCT = 1, 2, 3, 4, 5
    VX = 196
    XF = 216
    VT = 12
    VTAG = 11
    a("L_consumer:")
    a(f"v_and_b32 v{VJ}, 15, v{VL}\nv_lshrrev_b32 v{VKG}, 4, v{VL}\nv_lshlrev_b32 v{VL16}, 4, v{VL}\nv_mov_b32 v{VCT}, {L_CT}\ns_sub_u32 s30, s3, 1")
    a(f"s_load_dword s58, s[26:27], {WS_EP}")
    a(f"global_load_dwordx4 v[20:23], v{VL16}, s[4:5]")
    a(f"v_lshlrev_b32 v{VT}, 2, v{VL}\nv_mov_b32 v24, 0\ns_mov_b32 exec_hi, 0\nglobal_load_dword v24, v{VT}, s[4:5] offset:1024\ns_mov_b64 exec, -1")
    a("s_cmp_lg_u32 s30, 0\ns_cbranch_scc1 L_p0_notc0")
    a("v_mov_b32 v28, -1\nv_mov_b32 v29, -1\nv_mov_b32 v30, -1\nv_mov_b32 v31, -1")
    nb = POIS_HI - POIS_LO
    a(f"v_add_u32 v{VT}, {POIS_LO}, v{VL16}")
    off = 0
    while off < nb:
        rem = nb - off
        if rem < 1024: a(f"v_cmp_gt_u32 vcc, {rem}, v{VL16}\ns_and_saveexec_b64 s[40:41], vcc")
        a(f"ds_write_b128 v{VT}, v[28:31] offset:{off}")
        if rem < 1024: a("s_mov_b64 exec, s[40:41]")
        off += 1024
    a(f"v_mov_b32 v32, 0\nv_mov_b32 v33, 0\nv_mov_b32 v34, 0\nv_mov_b32 v35, 0\nds_write_b128 v{VCT}, v[32:35]\nds_write_b128 v{VCT}, v[32:35] offset:16")
    a("s_waitcnt lgkmcnt(0)\ns_barrier")
    if cfg.LONLY == 1: a("s_branch L_fin")
    def wsaddr(lo): a(f"s_add_u32 s42, s26, {lo}\ns_addc_u32 s43, s27, 0")
    def pst(off=0): a(f"global_store_dwordx4 v{VL16}, v[28:31], s[42:43]" + (f" offset:{off}" if off else "") + " sc1")
    a(f"s_lshl_b32 s46, s28, 4\ns_add_u32 s46, s46, s29\ns_lshl_b32 s40, s46, 9\ns_add_u32 s40, s40, {WS_H2}"); wsaddr("s40")
    a("s_mov_b32 exec_hi, 0"); pst(); a("s_mov_b64 exec, -1")
    a("s_cmp_ge_u32 s29, 9\ns_cbranch_scc1 L_p0_o")
    a(f"v_and_b32 v{VT}, 1, v{VKG}\nv_lshlrev_b32 v{VT}, 3, v{VT}\nv_lshl_add_u32 v{VT}, v{VJ}, 4, v{VT}")
    for cb in range(4): a(f"global_load_dwordx2 v[{VX+2*cb}:{VX+2*cb+1}], v{VT}, s[4:5] offset:{256*cb}")
    a(f"v_mov_b32 v{VX+8}, 0\nv_mov_b32 v{VX+9}, 0"); a.exec64(0x00ff00ff, 0x00ff00ff)
    a(f"global_load_dwordx2 v[{VX+8}:{VX+9}], v{VT}, s[4:5] offset:1024\ns_mov_b64 exec, -1")
    a("s_waitcnt vmcnt(6)")
    a("s_branch L_p0_ln")
    a("L_p0_o:")
    a(f"s_sub_u32 s41, s29, 9\ns_mul_i32 s40, s41, 160\ns_mul_i32 s44, s28, 1152\ns_add_u32 s40, s40, s44\ns_add_u32 s40, s40, {WS_H3}"); wsaddr("s40")
    a("s_mov_b64 exec, 0x3ff\ns_cmp_eq_u32 s41, 6\ns_cselect_b32 exec_lo, 0xfff, exec_lo"); pst(); a("s_mov_b64 exec, -1")
    a("s_waitcnt vmcnt(2)")
    a("s_branch L_p0_ln")
    a("L_p0_notc0:\ns_barrier\ns_waitcnt vmcnt(0)")
    a("L_p0_ln:")
    if cfg.LONLY in (1, 2): a("s_branch L_fin")
    a.stamp(0)
    for i in range(5): a(f"v_lshlrev_b32 v{32+2*i}, 16, v{20+i}\nv_and_b32 v{33+2*i}, 0xffff0000, v{20+i}")
    a("v_add_f32 v42, v32, v33")
    for i in range(2, 10): a(f"v_add_f32 v42, v42, v{32+i}")
    row_red(a, "v_add_f32", "v42"); xrow_red(a, "v_add_f32", "v42", "v43")
    a(f"v_mul_f32 v42, {hex(f2b(1.0/576))}, v42")
    for i in range(10): a(f"v_sub_f32 v{32+i}, v{32+i}, v42")
    a("s_mov_b32 exec_lo, 0\nv_mov_b32 v40, 0\nv_mov_b32 v41, 0\ns_mov_b64 exec, -1")
    a("v_mul_f32 v43, v32, v32")
    for i in range(1, 10): a(f"v_fmac_f32 v43, v{32+i}, v{32+i}")
    row_red(a, "v_add_f32", "v43"); xrow_red(a, "v_add_f32", "v43", "v44")
    a(f"v_mov_b32 v44, {hex(f2b(1e-5))}\nv_fmac_f32 v44, {hex(f2b(1.0/576))}, v43\nv_rsq_f32 v44, v44")
    a.nop(1)
    for i in range(10): a(f"v_mul_f32 v{32+i}, v{32+i}, v44")
    for i in range(5): a(f"v_cvt_pk_bf16_f32 v{20+i}, v{32+2*i}, v{33+2*i}")
    a(f"v_add_u32 v{VT}, {L_XN}, v{VL16}\nds_write_b128 v{VT}, v[20:23]")
    a(f"v_lshlrev_b32 v{VT}, 2, v{VL}\nv_add_u32 v{VT}, {L_XN+1024}, v{VT}\ns_mov_b32 exec_hi, 0\nds_write_b32 v{VT}, v24\ns_mov_b64 exec, -1")
    a(f"v_bfe_u32 v{VT}, v{VL}, 2, 2\nv_lshl_add_u32 v{VT}, v{VKG}, 2, v{VT}\nv_lshlrev_b32 v{VT}, 7, v{VT}")
    a(f"v_and_b32 v{VT+1}, 3, v{VL}\nv_lshl_add_u32 v{VT}, v{VT+1}, 3, v{VT}")
    a(f"s_lshl_b32 s40, s30, 5\ns_add_u32 s40, s40, {L_WQ}\nv_add_u32 v{VT}, s40, v{VT}")
    a(f"s_lshr_b32 s40, s29, 2\ns_mul_i32 s40, s40, 288\ns_add_u32 s40, s40, {L_XN}\nv_lshlrev_b32 v{VT+1}, 3, v{VKG}\nv_add_u32 v{VT+1}, s40, v{VT+1}")
    a("s_waitcnt lgkmcnt(0)")
    for t in range(9): a(f"ds_read_b64 v[{40+2*t}:{41+2*t}], v{VT+1} offset:{32*t}")
    for r in range(4): a(f"v_mov_b32 v{60+r}, 0")
    a("s_lshr_b32 s40, s29, 2\ns_lshl_b32 s40, s40, 10\ns_and_b32 s41, s29, 3\ns_lshl_b32 s41, s41, 8\ns_add_u32 s40, s40, s41")
    a(f"s_lshl_b32 s41, s28, 12\ns_add_u32 s40, s40, s41")
    a("s_add_u32 s42, s26, s40\ns_addc_u32 s43, s27, 0")
    lds_wait_ge(a, f"v{VCT}", 1, f"v{VT+2}")
    a.stamp(1)
    for t in range(9): a(f"ds_read_b64_tr_b16 v[{20+2*t}:{21+2*t}], v{VT} offset:{2048*t}")
    for t in range(9):
        a(f"s_waitcnt lgkmcnt({8-t})")
        a(f"v_mfma_f32_16x16x16_bf16 v[60:63], v[{20+2*t}:{21+2*t}], v[{40+2*t}:{41+2*t}], v[60:63]")
    a(f"s_lshl_b32 s40, s30, 6\ns_add_u32 s40, s40, {L_QP}\nv_lshlrev_b32 v{VT}, 4, v{VKG}\nv_add_u32 v{VT}, s40, v{VT}")
    a(f"s_add_u32 s58, s58, 1\ns_and_b32 s56, s58, 0x3ff\ns_mov_b32 s57, 0xfffffc00\nv_mov_b32 v{VTAG}, s56")
    a.nop(1)
    a.exec64(0x00010001, 0x00010001)
    a(f"ds_write_b128 v{VT}, v[60:63]\ns_mov_b64 exec, -1")
    a("s_cmp_lg_u32 s30, 0\ns_cbranch_scc1 L_p1_done")
    a(f"v_add_u32 v{VT}, {L_QP}, v{VL16}\ns_mov_b64 exec, 0xffff")
    Lp, Lx = spin_head(a, "s60", cfg.SPIN, "QP")
    a(f"ds_read_b128 v[60:63], v{VT}"); spin_bound(a, "s60", cfg.SPIN, Lx)
    a(f"s_waitcnt lgkmcnt(0)\nv_max3_u32 v{VT+1}, v60, v61, v62\nv_max_u32 v{VT+1}, v{VT+1}, v63\nv_cmp_eq_u32 vcc, -1, v{VT+1}\ns_cbranch_vccnz {Lp}\n{Lx}:\ns_waitcnt lgkmcnt(0)")
    for e in range(4): a(f"v_and_or_b32 v{60+e}, v{60+e}, s57, v{VTAG}")
    a("s_waitcnt vmcnt(0)")
    a(f"global_store_dwordx4 v{VL16}, v[60:63], s[42:43] sc1\ns_mov_b64 exec, -1")
    L = a.lab("XU")
    a(f"s_cmp_ge_u32 s29, 9\ns_cbranch_scc1 {L}")
    for i in range(10): a(f"v_lshlrev_b32 v{XF+2*i}, 16, v{VX+i}\nv_and_b32 v{XF+2*i+1}, 0xffff0000, v{VX+i}")
    a(f"s_branch L_p1_done\n{L}:")
    a(f"s_sub_u32 s41, s29, 9\ns_lshl_b32 s40, s28, 7\ns_lshl_b32 s44, s41, 2\ns_add_u32 s40, s40, s44\ns_add_u32 s40, s40, {WS_AL}")
    a(f"v_lshlrev_b32 v{VT}, 2, v{VL}\nv_add_u32 v{VT}, s40, v{VT}\nv_mov_b32 v{VT+1}, s58")
    a(f"s_mov_b64 exec, 1\ns_cmp_eq_u32 s41, 6\ns_cselect_b32 exec_lo, 3, exec_lo\nglobal_store_dword v{VT}, v{VT+1}, s[26:27] sc1\ns_mov_b64 exec, -1")
    a("L_p1_done:")
    if cfg.LONLY == 3: a("s_branch L_fin")
    a.stamp(2)
    QF, S, AO, MK, KA, KF, O = 20, 36, 64, 52, 56, 128, 60
    a(f"v_and_b32 v{VT+1}, 3, v{VJ}\nv_lshrrev_b32 v{VT+2}, 2, v{VJ}")
    a(f"v_lshl_add_u32 v{VT+3}, v{VT+1}, 2, v{VT+2}\nv_lshlrev_b32 v{VT+3}, 8, v{VT+3}")
    a(f"s_lshl_b32 s40, s30, 12\ns_add_u32 s40, s40, {L_K}\nv_add_u32 v{VT+3}, s40, v{VT+3}\nv_xor_b32 v{VT+1}, v{VT+1}, v{VKG}")
    for dd in range(4):
        a(f"v_xor_b32 v{VT+4}, {dd}, v{VT+2}\nv_lshl_add_u32 v{VT+4}, v{VT+4}, 2, v{VT+1}\nv_lshl_add_u32 v{KA+dd}, v{VT+4}, 4, v{VT+3}")
    a(f"v_and_b32 v{VT+1}, 1, v{VJ}\nv_cmp_eq_u32 vcc, 1, v{VT+1}\nv_mov_b32 v{VT+2}, 0xffff\nv_mov_b32 v{VT+4}, 0xffff0000")
    a.nop(1)
    a(f"v_cndmask_b32 v{VT+2}, v{VT+2}, v{VT+4}, vcc\nv_bfe_u32 v{VT+1}, v{VJ}, 1, 2")
    for t in range(4):
        a(f"v_cmp_eq_u32 vcc, {t}, v{VT+1}"); a.nop(2)
        a(f"v_cndmask_b32 v{MK+t}, 0, v{VT+2}, vcc")
    a("s_cmp_lg_u32 s30, 0\ns_cbranch_scc1 L_p2_skip")
    a.sleep(cfg.D_H1)
    if cfg.T_H1: lds_wait_ge(a, f"v{VCT}", 1, f"v{VT+2}", off=24)
    a(f"s_lshl_b32 s40, s28, 12\ns_add_u32 s42, s26, s40\ns_addc_u32 s43, s27, 0")
    Lp, Lx = spin_head(a, "s60", cfg.GSPIN, "H1")
    for rb in range(4): a(f"global_load_dwordx4 v[{20+4*rb}:{23+4*rb}], v{VL16}, s[42:43] offset:{1024*rb} sc1")
    spin_bound(a, "s60", cfg.GSPIN, Lx)
    a("s_waitcnt vmcnt(0)")
    tagcheck(a, "v40", range(20, 36), VTAG)
    a(f"s_and_b64 exec, exec, vcc\ns_cbranch_execz {Lx}"); a.sleep(cfg.B_H1); a(f"s_branch {Lp}")
    a(f"{Lx}:\ns_mov_b64 exec, -1\ns_waitcnt vmcnt(0)")
    for e in range(4): a(f"v_add_f32 v{36+e}, v{20+e}, v{24+e}\nv_add_f32 v{40+e}, v{28+e}, v{32+e}\nv_add_f32 v{36+e}, v{36+e}, v{40+e}")
    a("v_cvt_pk_bf16_f32 v36, v36, v37\nv_cvt_pk_bf16_f32 v37, v38, v39")
    a(f"v_lshlrev_b32 v{VT}, 3, v{VL}\nv_add_u32 v{VT}, {L_QB}, v{VT}\nds_write_b64 v{VT}, v[36:37]")
    a("L_p2_skip:")
    if cfg.LONLY == 4: a("s_branch L_fin")
    a.stamp(3)
    a(f"v_lshrrev_b32 v{VT}, 3, v{VJ}\nv_lshlrev_b32 v{VT}, 8, v{VT}\nv_lshl_add_u32 v{VT}, v{VKG}, 4, v{VT}\nv_add_u32 v{VT}, {L_QB}, v{VT}")
    Lp, Lx = spin_head(a, "s60", cfg.SPIN, "QF")
    for dd in range(4): a(f"ds_read_b128 v[{QF+4*dd}:{QF+4*dd+3}], v{VT} offset:{64*dd}")
    spin_bound(a, "s60", cfg.SPIN, Lx)
    a(f"s_waitcnt lgkmcnt(0)\nv_max3_u32 v{VT+1}, v{QF}, v{QF+1}, v{QF+2}")
    for i in range(3, 15, 2): a(f"v_max3_u32 v{VT+1}, v{VT+1}, v{QF+i}, v{QF+i+1}")
    a(f"v_max_u32 v{VT+1}, v{VT+1}, v{QF+15}\nv_cmp_eq_u32 vcc, -1, v{VT+1}\ns_cbranch_vccnz {Lp}\n{Lx}:\ns_waitcnt lgkmcnt(0)")
    a.stamp(4)
    for i in range(16): a(f"v_mov_b32 v{S+i}, 0")
    lds_wait_ge(a, f"v{VCT}", 2, f"v{VT+2}")
    a.stamp(5)
    for r in range(4):
        for dd in range(4): a(f"ds_read_b128 v[{KF+16*r+4*dd}:{KF+16*r+4*dd+3}], v{KA+dd} offset:{16384*r}")
    for r in range(4):
        for dd in range(4):
            n = 4*r + dd
            a(f"s_waitcnt lgkmcnt({15-n})")
            a(f"v_mfma_f32_16x16x32_bf16 v[{S+4*r}:{S+4*r+3}], v[{KF+16*r+4*dd}:{KF+16*r+4*dd+3}], v[{QF+4*dd}:{QF+4*dd+3}], v[{S+4*r}:{S+4*r+3}]")
    a(f"v_mov_b32 v{VT+2}, 1"); lds_set(a, f"v{VCT}", 4, f"v{VT+2}", "ds_add_u32")
    a.nop(8)
    a(f"v_max3_f32 v{VT+1}, v{S}, v{S+1}, v{S+2}")
    for i in range(3, 15, 2): a(f"v_max3_f32 v{VT+1}, v{VT+1}, v{S+i}, v{S+i+1}")
    a(f"v_max_f32 v{VT+1}, v{VT+1}, v{S+15}")
    xrow_red(a, "v_max_f32", f"v{VT+1}", f"v{VT+2}")
    a(f"v_lshrrev_b32 v{VT+2}, 3, v{VJ}\nv_lshlrev_b32 v{VT+2}, 4, v{VT+2}\nv_add_u32 v{VT+3}, {L_MX}, v{VT+2}")
    a(f"s_lshl_b32 s40, s30, 2\nv_add_u32 v{VT+4}, s40, v{VT+3}")
    a(f"s_mov_b64 exec, 0x101\nds_write_b32 v{VT+4}, v{VT+1}\ns_mov_b64 exec, -1")
    Lp, Lx = spin_head(a, "s60", cfg.SPIN, "MX")
    a(f"ds_read_b128 v[{KF}:{KF+3}], v{VT+3}"); spin_bound(a, "s60", cfg.SPIN, Lx)
    a(f"s_waitcnt lgkmcnt(0)\nv_max3_u32 v{VT+5}, v{KF}, v{KF+1}, v{KF+2}\nv_max_u32 v{VT+5}, v{VT+5}, v{KF+3}\nv_cmp_eq_u32 vcc, -1, v{VT+5}\ns_cbranch_vccnz {Lp}")
    a(f"{Lx}:\ns_waitcnt lgkmcnt(0)")
    a(f"v_max3_f32 v{VT+1}, v{KF}, v{KF+1}, v{KF+2}\nv_max_f32 v{VT+1}, v{VT+1}, v{KF+3}")
    a(f"s_mov_b32 s44, {hex(CSCALE)}\nv_mul_f32 v17, s44, v{VT+1}")
    a(f"s_getreg_b32 s59, hwreg(HW_REG_XCC_ID)\ns_and_b32 s59, s59, 7\ns_lshl_b32 s45, s59, 10\ns_or_b32 s45, s45, s56\nv_and_b32 v17, 0xffffe000, v17\nv_or_b32 v17, s45, v17")
    for i in range(16): a(f"v_fma_f32 v{S+i}, v{S+i}, s44, -v17")
    for i in range(16): a(f"v_exp_f32 v{S+i}, v{S+i}")
    a.nop(1)
    a(f"v_add_f32 v{VT+1}, v{S}, v{S+1}")
    for i in range(2, 16): a(f"v_add_f32 v{VT+1}, v{VT+1}, v{S+i}")
    xrow_red(a, "v_add_f32", f"v{VT+1}", f"v{VT+2}")
    a(f"v_add_u32 v{VT+4}, {L_LW-L_MX}, v{VT+4}")
    a(f"s_mov_b64 exec, 0x101\nds_write_b32 v{VT+4}, v{VT+1}\ns_mov_b64 exec, -1")
    a("s_cmp_lg_u32 s30, 3\ns_cbranch_scc1 L_p3_noml")
    a(f"v_add_u32 v{VT+3}, {L_LW-L_MX}, v{VT+3}")
    Lp, Lx = spin_head(a, "s60", cfg.SPIN, "LW")
    a(f"ds_read_b128 v[{KF}:{KF+3}], v{VT+3}"); spin_bound(a, "s60", cfg.SPIN, Lx)
    a(f"s_waitcnt lgkmcnt(0)\nv_add_f32 v{KF}, v{KF}, v{KF+1}\nv_add_f32 v{KF+2}, v{KF+2}, v{KF+3}\nv_add_f32 v19, v{KF}, v{KF+2}")
    a(f"v_cmp_u_f32 vcc, v19, v19\ns_cbranch_vccnz {Lp}\n{Lx}:\ns_waitcnt lgkmcnt(0)")
    a(f"s_lshl_b32 s46, s28, 4\ns_add_u32 s40, s46, s29\ns_lshl_b32 s40, s40, 7\ns_add_u32 s40, s40, {WS_ML}\ns_add_u32 s42, s26, s40\ns_addc_u32 s43, s27, 0")
    a(f"v_and_or_b32 v19, v19, s57, v{VTAG}")
    a("v_readlane_b32 s46, v17, 0\nv_readlane_b32 s47, v19, 0\nv_readlane_b32 s48, v17, 8\nv_readlane_b32 s49, v19, 8")
    a("v_mov_b32 v28, s46\nv_mov_b32 v29, s47\nv_mov_b32 v30, s48\nv_mov_b32 v31, s49")
    a(f"s_mov_b64 exec, 0xff\nglobal_store_dwordx4 v{VL16}, v[28:31], s[42:43] sc1\ns_mov_b64 exec, -1")
    a("L_p3_noml:")
    for i in range(16):
        a(f"v_cvt_pk_bf16_f32 v{S+i}, v{S+i}, v{S+i}")
        for t in range(4): a(f"v_and_b32 v{AO+4*i+t}, v{S+i}, v{MK+t}")
    a.stamp(6)
    a("s_cmp_lg_u32 s30, 0\ns_cbranch_scc1 L_p3_noalive")
    a(f"v_lshrrev_b32 v{VT}, 2, v{VL}\nv_lshlrev_b32 v{VT}, 7, v{VT}\nv_and_b32 v{VT+1}, 3, v{VL}\nv_lshl_add_u32 v{VT}, v{VT+1}, 3, v{VT}\nv_add_u32 v{VT}, {WS_AL}, v{VT}")
    Lp, Lx = spin_head(a, "s60", cfg.GSPIN, "AA")
    a(f"global_load_dwordx2 v[14:15], v{VT}, s[26:27] sc1"); spin_bound(a, "s60", cfg.GSPIN, Lx)
    a(f"s_waitcnt vmcnt(0)\nv_cmp_ne_u32 vcc, s58, v14\nv_cmp_ne_u32 s[40:41], s58, v15\ns_or_b64 vcc, vcc, s[40:41]\ns_cbranch_vccz {Lx}"); a.sleep(cfg.B_AL); a(f"s_branch {Lp}\n{Lx}:\ns_waitcnt vmcnt(0)")
    a("L_p3_noalive:")
    if cfg.LONLY == 5: a("s_branch L_fin")
    VF = KF
    MLR = 20
    a(f"s_lshl_b32 s40, s30, 12\ns_add_u32 s40, s40, {L_V}\nv_add_u32 v{VT}, s40, v{VL16}")
    a(f"s_lshl_b32 s40, s28, 11\ns_add_u32 s40, s40, {WS_ML}\ns_add_u32 s42, s26, s40\ns_addc_u32 s43, s27, 0\nv_lshlrev_b32 v16, 7, v{VJ}")
    for r in range(4): a(f"v_mov_b32 v{O+r}, 0")
    for r in range(4):
        if r == 3:
            L = a.lab("MLS")
            a(f"s_cmp_lg_u32 s30, 3\ns_cbranch_scc1 {L}")
            Lp, Lx = a.lab("ML"), a.lab("MLX")
            a("s_mov_b32 s61, 0\ns_branch " + Lp + "_chk")
            a(f"{Lp}:\nglobal_load_dwordx4 v[{MLR}:{MLR+3}], v16, s[42:43] sc1")
            a(f"{Lp}_chk:")
            spin_bound(a, "s61", cfg.GSPIN, Lx)
            a("s_waitcnt vmcnt(0)")
            tagcheck(a, f"v{VT+2}", range(MLR, MLR+4), VTAG)
            a(f"s_and_b64 exec, exec, vcc\ns_cbranch_execz {Lx}"); a.sleep(cfg.B_ML); a(f"s_branch {Lp}")
            a(f"{Lx}:\ns_mov_b64 exec, -1\ns_waitcnt vmcnt(0)")
            a(f"v_bfe_u32 v24, v{MLR}, 10, 3\nv_cmp_ne_u32 vcc, s59, v24\ns_mov_b64 s[50:51], vcc")
            a(f"v_mov_b32 v24, v{MLR}\nv_mov_b32 v25, v{MLR+2}")
            row_red(a, "v_max_f32", ["v24", "v25"])
            a(f"v_sub_f32 v26, v{MLR}, v24\nv_sub_f32 v27, v{MLR+2}, v25\nv_exp_f32 v26, v26\nv_exp_f32 v27, v27")
            a.nop(1)
            a(f"v_mul_f32 v26, v26, v{MLR+1}\nv_mul_f32 v27, v27, v{MLR+3}")
            row_red(a, "v_add_f32", ["v26", "v27"])
            a("v_readlane_b32 s44, v17, 0\nv_readlane_b32 s45, v17, 8")
            a("v_rcp_f32 v26, v26\nv_rcp_f32 v27, v27\nv_sub_f32 v24, s44, v24\nv_sub_f32 v25, s45, v25\nv_exp_f32 v24, v24\nv_exp_f32 v25, v25")
            a.nop(1)
            a("v_mul_f32 v24, v24, v26\nv_mul_f32 v25, v25, v27")
            a("s_mov_b32 exec_lo, 0\nv_mov_b32 v24, v25\ns_mov_b64 exec, -1")
            a(f"s_lshl_b32 s40, s28, 4\ns_add_u32 s40, s40, s29\ns_lshl_b32 s40, s40, 9\ns_add_u32 s40, s40, {WS_H2}\ns_add_u32 s42, s26, s40\ns_addc_u32 s43, s27, 0")
            a(f"v_lshrrev_b32 v25, 1, v{VKG}\nv_lshlrev_b32 v25, 8, v25\nv_lshl_add_u32 v25, v{VJ}, 4, v25")
            a(f"{L}:")
        lds_wait_ge(a, f"v{VCT}", 3 + r, f"v{VT+2}")
        for t in range(4): a(f"ds_read_b128 v[{VF+4*t}:{VF+4*t+3}], v{VT} offset:{16384*r+1024*t}")
        if r == 1:
            L = a.lab("MLI")
            a(f"s_cmp_lg_u32 s30, 3\ns_cbranch_scc1 {L}\nglobal_load_dwordx4 v[{MLR}:{MLR+3}], v16, s[42:43] sc1\n{L}:")
        for t in range(4):
            a(f"s_waitcnt lgkmcnt({3-t})")
            a(f"v_mfma_f32_16x16x32_bf16 v[{O}:{O+3}], v[{AO+16*r+4*t}:{AO+16*r+4*t+3}], v[{VF+4*t}:{VF+4*t+3}], v[{O}:{O+3}]")
    a(f"v_mov_b32 v{VT+2}, 1"); lds_set(a, f"v{VCT}", 8, f"v{VT+2}", "ds_add_u32")
    a.stamp(7)
    a("s_cmp_eq_u32 s30, 3\ns_cbranch_scc1 L_p4_pub")
    a(f"s_lshl_b32 s40, s30, 10\ns_add_u32 s40, s40, {L_OP}\nv_add_u32 v{VT}, s40, v{VL16}")
    a(f"ds_write_b128 v{VT}, v[{O}:{O+3}]")
    a("s_branch L_p4_done")
    a("L_p4_pub:")
    a(f"v_add_u32 v{VT}, {L_OP}, v{VL16}")
    Lp, Lx = spin_head(a, "s60", cfg.SPIN, "OP")
    for w in range(3): a(f"ds_read_b128 v[{VF+4*w}:{VF+4*w+3}], v{VT} offset:{1024*w}")
    spin_bound(a, "s60", cfg.SPIN, Lx)
    a("s_waitcnt lgkmcnt(0)")
    for e in range(4): a(f"v_add_f32 v{VF+12+e}, v{VF+e}, v{VF+4+e}\nv_add_f32 v{VF+12+e}, v{VF+12+e}, v{VF+8+e}")
    a(f"v_add_f32 v{VT+3}, v{VF+12}, v{VF+13}\nv_add_f32 v{VT+4}, v{VF+14}, v{VF+15}\nv_add_f32 v{VT+3}, v{VT+3}, v{VT+4}")
    a(f"v_cmp_u_f32 vcc, v{VT+3}, v{VT+3}\ns_cbranch_vccnz {Lp}\n{Lx}:\ns_waitcnt lgkmcnt(0)")
    for e in range(4): a(f"v_add_f32 v{O+e}, v{O+e}, v{VF+12+e}\nv_mul_f32 v{O+e}, v{O+e}, v24")
    a(f"v_cvt_pk_bf16_f32 v28, v{O}, v{O+1}\nv_cvt_pk_bf16_f32 v29, v{O+2}, v{O+3}\nv_mov_b32 v30, v28\nv_mov_b32 v31, v29")
    a.nop(1)
    a("v_permlane16_swap_b32 v28, v30\nv_permlane16_swap_b32 v29, v31")
    a.nop(2)
    a.exec64(0x0000ffff, 0x0000ffff)
    L1, L2 = a.lab("PUBG"), a.lab("PUBD")
    a(f"s_cmp_lg_u64 s[50:51], 0\ns_cbranch_scc1 {L1}") if cfg.LOCAL else a(f"s_branch {L1}")
    a(f"global_store_dwordx4 v25, v[28:31], s[42:43]\ns_branch {L2}\n{L1}:")
    a(f"global_store_dwordx4 v25, v[28:31], s[42:43] sc1\n{L2}:\ns_mov_b64 exec, -1")
    a("L_p4_done:")
    a.stamp(8)
    a("s_cmp_lt_u32 s29, 9\ns_cbranch_scc1 L_role_f")
    G, BF, D5 = 20, 64, 112
    a(f"s_lshl_b32 s40, s28, 13\ns_add_u32 s40, s40, {WS_H2}\ns_add_u32 s42, s26, s40\ns_addc_u32 s43, s27, 0")
    a(f"v_lshlrev_b32 v{VT}, 9, v{VJ}\nv_lshl_add_u32 v{VT}, v{VKG}, 4, v{VT}\ns_lshl_b32 s40, s30, 7\nv_add_u32 v{VT}, s40, v{VT}")
    a(f"v_bfe_u32 v{VT+2}, v{VL}, 2, 2\nv_lshl_add_u32 v{VT+2}, v{VKG}, 3, v{VT+2}\ns_lshl_b32 s40, s30, 6\nv_add_u32 v{VT+2}, s40, v{VT+2}")
    a(f"v_mul_u32_u24 v{VT+2}, 192, v{VT+2}\nv_and_b32 v{VT+3}, 3, v{VL}\nv_lshl_add_u32 v{VT+2}, v{VT+3}, 3, v{VT+2}")
    for i in range(24): a(f"v_mov_b32 v{D5+i}, 0")
    lds_wait_ge(a, f"v{VCT}", 1, f"v{VT+4}", off=12)
    a("s_mov_b32 s62, 0")
    Lp, Lx = spin_head(a, "s61", cfg.GSPIN, "H2")
    for t in range(2): a(f"global_load_dwordx4 v[{G+4*t}:{G+4*t+3}], v{VT}, s[42:43] offset:{64*t} sc1")
    Lq = a.lab("H2F")
    a(f"s_cmp_lg_u32 s62, 0\ns_cbranch_scc1 {Lq}\ns_mov_b32 s62, 1")
    a(f"v_mov_b32 v{VT+4}, 1"); lds_set(a, f"v{VCT}", 16, f"v{VT+4}", "ds_add_u32")
    a("s_add_u32 s63, s30, 7")
    lds_wait_ge(a, f"v{VCT}", "s63", f"v{VT+4}")
    for t in range(2):
        for nb_ in range(6):
            for h in range(2):
                a(f"ds_read_b64_tr_b16 v[{BF+8*nb_+4*t+2*h}:{BF+8*nb_+4*t+2*h+1}], v{VT+2} offset:{O_WO+t*6144+h*768+nb_*32}")
    a(f"{Lq}:")
    spin_bound(a, "s61", cfg.GSPIN, Lx)
    a(f"s_waitcnt vmcnt(0)\nv_max3_u32 v{VT+4}, v{G}, v{G+1}, v{G+2}\nv_max3_u32 v{VT+4}, v{VT+4}, v{G+3}, v{G+4}\nv_max3_u32 v{VT+4}, v{VT+4}, v{G+5}, v{G+6}\nv_max_u32 v{VT+4}, v{VT+4}, v{G+7}")
    a(f"v_cmp_eq_u32 vcc, -1, v{VT+4}\ns_and_b64 exec, exec, vcc\ns_cbranch_execz {Lx}"); a.sleep(cfg.B_H2); a(f"s_branch {Lp}")
    a(f"{Lx}:\ns_mov_b64 exec, -1\ns_waitcnt vmcnt(0) lgkmcnt(0)")
    a.stamp(9)
    for t in range(2):
        for nb_ in range(6):
            a(f"v_mfma_f32_16x16x32_bf16 v[{D5+4*nb_}:{D5+4*nb_+3}], v[{G+4*t}:{G+4*t+3}], v[{BF+8*nb_+4*t}:{BF+8*nb_+4*t+3}], v[{D5+4*nb_}:{D5+4*nb_+3}]")
    a.nop(4)
    for nb_ in range(6):
        b = D5 + 4*nb_
        if nb_ == 5: a.nop(4)
        a(f"v_add_f32 v{b}, v{b}, v{b+1}\nv_add_f32 v{b+2}, v{b+2}, v{b+3}\nv_add_f32 v{b}, v{b}, v{b+2}")
    a0, a1, a2, a3 = D5, D5+4, D5+8, D5+12
    b0, b1 = D5+16, D5+20
    z0, z1 = D5+1, D5+2
    a(f"v_mov_b32 v{z0}, 0\nv_mov_b32 v{z1}, 0"); a.nop(2)
    a(f"v_permlane32_swap_b32 v{a0}, v{a2}\nv_permlane32_swap_b32 v{a1}, v{a3}\nv_permlane32_swap_b32 v{b0}, v{z0}\nv_permlane32_swap_b32 v{b1}, v{z1}"); a.nop(1)
    a(f"v_add_f32 v{a0}, v{a0}, v{a2}\nv_add_f32 v{a1}, v{a1}, v{a3}\nv_add_f32 v{b0}, v{b0}, v{z0}\nv_add_f32 v{b1}, v{b1}, v{z1}"); a.nop(2)
    a(f"v_permlane16_swap_b32 v{a0}, v{a1}\nv_permlane16_swap_b32 v{b0}, v{b1}"); a.nop(1)
    a(f"v_add_f32 v{a0}, v{a0}, v{a1}\nv_add_f32 v{b0}, v{b0}, v{b1}")
    a(f"s_lshl_b32 s40, s30, 9\ns_add_u32 s40, s40, {L_R5}\nv_lshlrev_b32 v{VT}, 2, v{VL}\nv_add_u32 v{VT}, s40, v{VT}")
    a(f"ds_write_b32 v{VT}, v{a0}\nds_write_b32 v{VT}, v{b0} offset:256")
    a("s_cmp_lg_u32 s30, 3\ns_cbranch_scc1 L_p5_done")
    a(f"v_lshlrev_b32 v{VT}, 5, v{VL}\nv_add_u32 v{VT}, {L_R5}, v{VT}")
    a("s_sub_u32 s41, s29, 9\ns_mov_b64 exec, 0x3ff\ns_cmp_eq_u32 s41, 6\ns_cselect_b32 exec_lo, 0xfff, exec_lo")
    Lp, Lx = spin_head(a, "s60", cfg.SPIN, "R5")
    for w in range(4):
        for h in range(2): a(f"ds_read_b128 v[{BF+8*w+4*h}:{BF+8*w+4*h+3}], v{VT} offset:{512*w+16*h}")
    spin_bound(a, "s60", cfg.SPIN, Lx)
    a("s_waitcnt lgkmcnt(0)")
    for e in range(8): a(f"v_add_f32 v{G+e}, v{BF+e}, v{BF+8+e}\nv_add_f32 v{BF+32+e}, v{BF+16+e}, v{BF+24+e}\nv_add_f32 v{G+e}, v{G+e}, v{BF+32+e}")
    a(f"v_add_f32 v{VT+3}, v{G}, v{G+1}")
    for e in range(2, 8): a(f"v_add_f32 v{VT+3}, v{VT+3}, v{G+e}")
    a(f"v_cmp_u_f32 vcc, v{VT+3}, v{VT+3}\ns_cbranch_vccnz {Lp}\n{Lx}:\ns_waitcnt lgkmcnt(0)")
    for e in range(4): a(f"v_cvt_pk_bf16_f32 v{G+e}, v{G+2*e}, v{G+2*e+1}")
    a(f"s_mul_i32 s40, s41, 160\ns_mul_i32 s44, s28, 1152\ns_add_u32 s40, s40, s44\ns_add_u32 s40, s40, {WS_H3}\ns_add_u32 s42, s26, s40\ns_addc_u32 s43, s27, 0")
    a(f"global_store_dwordx4 v{VL16}, v[{G}:{G+3}], s[42:43] sc1\ns_mov_b64 exec, -1")
    a("L_p5_done:")
    a.stamp(10)
    a("s_cmp_lg_u32 s30, 0\ns_cbranch_scc1 L_fin")
    a("s_and_b32 s40, s2, 7\ns_lshr_b32 s41, s2, 3\ns_and_b32 s44, s41, 1\ns_lshr_b32 s41, s41, 1\ns_sub_u32 s41, s41, 9\ns_lshl_b32 s41, s41, 1\ns_add_u32 s41, s41, s44")
    a("s_cmp_lt_u32 s41, 8\ns_cbranch_scc1 L_p9_go\ns_cmp_ge_u32 s41, 12\ns_cbranch_scc1 L_fin\ns_cmp_ge_u32 s40, 2\ns_cbranch_scc1 L_fin")
    a("L_p9_go:")
    a("s_lshr_b32 s44, s41, 2\ns_lshl_b32 s44, s44, 3\ns_add_u32 s44, s44, s40\ns_lshl_b32 s44, s44, 5\ns_and_b32 s45, s41, 3\ns_lshl_b32 s45, s45, 3\ns_add_u32 s44, s44, s45")
    a(f"s_lshl_b32 s40, s44, 1\ns_add_u32 s40, s40, {WS_H3}\ns_add_u32 s42, s26, s40\ns_addc_u32 s43, s27, 0")
    a(f"v_mul_u32_u24 v{VT}, 1152, v{VJ}\nv_lshl_add_u32 v{VT}, v{VKG}, 1, v{VT}")
    a(f"s_lshl_b32 s40, s44, 1\ns_add_u32 s46, s4, s40\ns_addc_u32 s47, s5, 0\nv_lshlrev_b32 v{VT+1}, 1, v{VKG}")
    a(f"global_load_ushort v26, v{VT+1}, s[46:47]\nglobal_load_ushort v27, v{VT+1}, s[46:47] offset:8")
    Lp, Lx = spin_head(a, "s60", cfg.GSPIN, "HH")
    a(f"global_load_ushort v24, v{VT}, s[42:43] sc1\nglobal_load_ushort v25, v{VT}, s[42:43] offset:8 sc1"); spin_bound(a, "s60", cfg.GSPIN, Lx)
    a("s_waitcnt vmcnt(0)\nv_max_u32 v28, v24, v25\nv_cmp_eq_u32 vcc, 0xffff, v28\ns_and_b64 exec, exec, vcc")
    a(f"s_cbranch_execz {Lx}"); a.sleep(2); a(f"s_branch {Lp}\n{Lx}:\ns_mov_b64 exec, -1\ns_waitcnt vmcnt(0)")
    a("v_lshlrev_b32 v24, 16, v24\nv_lshlrev_b32 v25, 16, v25\nv_lshlrev_b32 v26, 16, v26\nv_lshlrev_b32 v27, 16, v27")
    row_red(a, "v_add_f32", ["v24", "v25"])
    a("v_add_f32 v24, v24, v26\nv_add_f32 v25, v25, v27")
    a.exec64(0xaaaaaaaa, 0xaaaaaaaa); a("v_mov_b32 v24, v25\ns_mov_b64 exec, -1")
    a(f"s_lshl_b32 s40, s44, 2\ns_add_u32 s40, s40, {WS_H4}\ns_add_u32 s42, s26, s40\ns_addc_u32 s43, s27, 0")
    a(f"v_lshrrev_b32 v{VT}, 1, v{VL}\nv_mul_u32_u24 v{VT}, 2304, v{VT}\nv_and_b32 v{VT+1}, 1, v{VL}\nv_lshl_add_u32 v{VT}, v{VT+1}, 4, v{VT}")
    for t in range(1, 5): a(f"v_add_u32 v{VT+t}, {32*2304*t}, v{VT}")
    for e in range(4): a(f"v_mov_b32 v{80+e}, v{VTAG}")
    a("s_mov_b64 s[46:47], -1")
    Lp, Lx = spin_head(a, "s60", cfg.GSPIN, "H4")
    for t in range(4): a(f"global_load_dwordx4 v[{64+4*t}:{67+4*t}], v{VT+t}, s[42:43] sc1")
    a(f"s_mov_b32 exec_hi, 0\nglobal_load_dwordx4 v[80:83], v{VT+4}, s[42:43] sc1\ns_mov_b64 exec, s[46:47]")
    spin_bound(a, "s60", cfg.GSPIN, Lx)
    a("s_waitcnt vmcnt(0)")
    tagcheck(a, "v28", range(64, 84), VTAG)
    a(f"s_and_b64 s[46:47], exec, vcc\ns_mov_b64 exec, s[46:47]\ns_cbranch_execz {Lx}"); a.sleep(cfg.B_H4); a(f"s_branch {Lp}")
    a(f"{Lx}:\ns_mov_b64 exec, -1\ns_waitcnt vmcnt(0)")
    a.stamp(14)
    for e in range(4): a(f"v_add_f32 v{20+e}, v{64+e}, v{68+e}\nv_add_f32 v{28+e}, v{72+e}, v{76+e}\nv_add_f32 v{20+e}, v{20+e}, v{80+e}\nv_add_f32 v{20+e}, v{20+e}, v{28+e}")
    a.nop(2)
    a("v_permlane32_swap_b32 v20, v22\nv_permlane32_swap_b32 v21, v23"); a.nop(1)
    a("v_add_f32 v20, v20, v22\nv_add_f32 v21, v21, v23"); a.nop(2)
    a("v_permlane16_swap_b32 v20, v21"); a.nop(1)
    a("v_add_f32 v20, v20, v21")
    for ctl in ("row_ror:8", "row_ror:4", "row_ror:2"):
        a.nop(2); dpp(a, "v_add_f32", "v20", ctl)
    a("v_add_f32 v20, v20, v24\nv_cvt_pk_bf16_f32 v20, v20, v20")
    a(f"s_lshl_b32 s40, s44, 1\ns_add_u32 s42, s22, s40\ns_addc_u32 s43, s23, 0\nv_and_b32 v{VT}, 1, v{VL}\nv_lshlrev_b32 v{VT}, 3, v{VT}\nv_lshl_add_u32 v{VT}, v{VKG}, 1, v{VT}")
    a.exec64(0x00030003, 0x00030003)
    a(f"global_store_short v{VT}, v20, s[42:43]\ns_mov_b64 exec, -1")
    a(f"s_cmp_lg_u32 s44, 0\ns_cbranch_scc1 L_fin\nv_mov_b32 v{VT}, {WS_EP}\nv_mov_b32 v{VT+1}, s58\ns_mov_b64 exec, 1\nglobal_store_dword v{VT}, v{VT+1}, s[26:27]\ns_mov_b64 exec, -1")
    a("s_branch L_fin")
    a("L_role_f:")
    WF, RAW, HF, AC, SEL, DF = 64, 136, 136, 236, 56, 208
    a(f"v_bfe_u32 v{VT}, v{VL}, 2, 2\nv_lshl_add_u32 v{VT}, v{VKG}, 3, v{VT}\nv_lshlrev_b32 v{VT}, 6, v{VT}\nv_and_b32 v{VT+1}, 3, v{VL}\nv_lshl_add_u32 v{VT}, v{VT+1}, 3, v{VT}")
    a(f"s_and_b32 s40, s30, 1\ns_lshl_b32 s40, s40, 5\ns_lshr_b32 s41, s30, 1\ns_mul_i32 s41, s41, {F_U}\ns_add_u32 s40, s40, s41\nv_add_u32 v{VT}, s40, v{VT}")
    a(f"v_bfe_u32 v10, v{VL}, 2, 2\nv_lshl_add_u32 v10, v{VKG}, 3, v10\nv_mul_u32_u24 v10, 1152, v10")
    a(f"v_and_b32 v{VT+2}, 3, v{VL}\nv_lshlrev_b32 v{VT+2}, 3, v{VT+2}\ns_mul_i32 s40, s30, 288\ns_add_u32 s40, s40, {F_D}\nv_add_u32 v{VT+2}, s40, v{VT+2}\nv_add_u32 v10, v10, v{VT+2}")
    def wfrags():
        for t in range(18):
            for h in range(2): a(f"ds_read_b64_tr_b16 v[{WF+4*t+2*h}:{WF+4*t+2*h+1}], v{VT} offset:{2048*t+256*h}")
    def dfrags():
        for n in range(9):
            for h in range(2): a(f"ds_read_b64_tr_b16 v[{DF+4*n+2*h}:{DF+4*n+2*h+1}], v10 offset:{32*n+4608*h}")
    a("s_cmp_lg_u32 s30, 0\ns_cbranch_scc1 L_p6_skip")
    for t in range(4): a(f"v_and_b32 v{SEL+t}, 0x3f803f80, v{MK+t}")
    for pb in range(4):
        for e in range(4): a(f"v_mov_b32 v{RAW+64+4*pb+e}, 0")
    a(f"s_add_u32 s42, s26, {WS_H3}\ns_addc_u32 s43, s27, 0")
    a(f"v_mul_u32_u24 v{VT+1}, 1152, v{VKG}\nv_lshl_add_u32 v{VT+1}, v{VJ}, 4, v{VT+1}")
    lds_wait_ge(a, f"v{VCT}", 7, f"v{VT+2}")
    wfrags()
    lds_wait_ge(a, f"v{VCT}", 1, f"v{VT+2}", off=12)
    a.stamp(9)
    a("s_mov_b64 s[46:47], -1")
    Lp, Lx = spin_head(a, "s61", cfg.GSPIN, "H3")
    a("s_mov_b32 s44, s42\ns_mov_b32 s45, s43")
    for pb in range(4):
        for cb in range(4): a(f"global_load_dwordx4 v[{RAW+16*cb+4*pb}:{RAW+16*cb+4*pb+3}], v{VT+1}, s[44:45] offset:{256*cb} sc1")
        a("s_and_b32 exec_lo, exec_lo, 0x00ff00ff\ns_and_b32 exec_hi, exec_hi, 0x00ff00ff")
        Lz = a.lab("H3Z")
        a(f"s_cbranch_execz {Lz}\nglobal_load_dwordx4 v[{RAW+64+4*pb}:{RAW+64+4*pb+3}], v{VT+1}, s[44:45] offset:1024 sc1\n{Lz}:")
        a(f"s_mov_b64 exec, s[46:47]\ns_add_u32 s44, s44, {4*1152}\ns_addc_u32 s45, s45, 0")
    a("s_mov_b64 exec, -1")
    spin_bound(a, "s61", cfg.GSPIN, Lx)
    Lw = a.lab("H3W")
    a(f"s_cmp_le_u32 s61, 1\ns_cbranch_scc1 {Lw}\ns_waitcnt vmcnt(0)\n{Lw}:")
    for pb in range(4):
        a(f"s_waitcnt vmcnt({15-5*pb})")
        for cb in range(5):
            c_in = XF + 4*cb if pb == 0 else AC + 4*cb
            a(f"v_mfma_f32_16x16x32_bf16 v[{AC+4*cb}:{AC+4*cb+3}], v[{SEL}:{SEL+3}], v[{RAW+16*cb+4*pb}:{RAW+16*cb+4*pb+3}], v[{c_in}:{c_in+3}]")
    a.nop(4)
    def pr(b): return f"v[{b}:{b+1}]"
    a(f"v_pk_add_f32 v[14:15], {pr(AC)}, {pr(AC+2)}\nv_pk_mul_f32 v[16:17], {pr(AC)}, {pr(AC)}\nv_pk_fma_f32 v[16:17], {pr(AC+2)}, {pr(AC+2)}, v[16:17]")
    for i in range(4, 20, 2):
        if i == 16: a.nop(4)
        a(f"v_pk_add_f32 v[14:15], v[14:15], {pr(AC+i)}\nv_pk_fma_f32 v[16:17], {pr(AC+i)}, {pr(AC+i)}, v[16:17]")
    a("v_add_f32 v14, v14, v15\nv_add_f32 v16, v16, v17")
    a(f"v_cmp_u_f32 vcc, v14, v14\ns_cbranch_vccz {Lx}\ns_mov_b64 s[46:47], vcc\ns_mov_b64 exec, vcc"); a.sleep(cfg.B_H3); a(f"s_branch {Lp}")
    a(f"{Lx}:\ns_mov_b64 exec, -1\ns_waitcnt vmcnt(0) lgkmcnt(0)")
    a.stamp(11)
    row_red(a, "v_add_f32", ["v14", "v16"])
    a("v_mov_b32 v15, v14\nv_mov_b32 v17, v16"); a.nop(1)
    a("v_permlane16_swap_b32 v14, v15\nv_permlane16_swap_b32 v16, v17"); a.nop(1)
    a("v_add_f32 v14, v14, v15\nv_add_f32 v16, v16, v17")
    a(f"v_mul_f32 v14, {hex(f2b(1.0/576))}, v14\nv_mul_f32 v16, {hex(f2b(1.0/576))}, v16")
    a(f"v_fma_f32 v16, -v14, v14, v16\nv_max_f32 v16, 0, v16\nv_add_f32 v16, {hex(f2b(1e-5))}, v16\nv_rsq_f32 v16, v16")
    a(f"v_and_b32 v{VT+1}, 1, v{VKG}\nv_lshlrev_b32 v{VT+1}, 3, v{VT+1}\nv_lshl_add_u32 v{VT+1}, v{VJ}, 4, v{VT+1}\nv_add_u32 v{VT+1}, {L_HN}, v{VT+1}")
    a("v_mul_f32 v14, v14, v16\nv_mov_b32 v17, v16\nv_sub_f32 v14, 0, v14\nv_mov_b32 v15, v14")
    a("s_mov_b32 exec_hi, 0")
    for cb in range(5):
        a(f"v_pk_fma_f32 {pr(AC+4*cb)}, {pr(AC+4*cb)}, v[16:17], v[14:15]\nv_pk_fma_f32 {pr(AC+4*cb+2)}, {pr(AC+4*cb+2)}, v[16:17], v[14:15]")
        a(f"v_cvt_pk_bf16_f32 v{20+2*cb}, v{AC+4*cb}, v{AC+4*cb+1}\nv_cvt_pk_bf16_f32 v{21+2*cb}, v{AC+4*cb+2}, v{AC+4*cb+3}")
        if cb == 4: a("s_mov_b32 exec_lo, 0x00ff00ff")
        a(f"ds_write_b64 v{VT+1}, v[{20+2*cb}:{21+2*cb}] offset:{256*cb}")
    a("s_mov_b64 exec, -1")
    a(f"v_mov_b32 v{VT+2}, 1"); lds_set(a, f"v{VCT}", 20, f"v{VT+2}")
    lds_wait_ge(a, f"v{VCT}", 8, f"v{VT+2}")
    dfrags()
    a("s_branch L_p7_go")
    a("L_p6_skip:")
    a("s_lshr_b32 s63, s30, 1\ns_lshl_b32 s63, s63, 1\ns_add_u32 s63, s63, 7")
    lds_wait_ge(a, f"v{VCT}", "s63", f"v{VT+2}")
    wfrags()
    lds_wait_ge(a, f"v{VCT}", 9, f"v{VT+2}")
    dfrags()
    lds_wait_ge(a, f"v{VCT}", 1, f"v{VT+2}", off=20)
    a("L_p7_go:")
    D7 = 20
    a(f"v_lshlrev_b32 v{VT+1}, 4, v{VKG}\nv_add_u32 v{VT+1}, {L_HN}, v{VT+1}")
    for e in range(8): a(f"v_mov_b32 v{D7+e}, 0")
    a("s_waitcnt lgkmcnt(0)")
    for t in range(14): a(f"ds_read_b128 v[{HF+4*t}:{HF+4*t+3}], v{VT+1} offset:{64*t}")
    for t in range(18):
        if t + 14 < 18: a("s_waitcnt lgkmcnt(13)")
        else: a(f"s_waitcnt lgkmcnt({17-t})")
        a(f"v_mfma_f32_16x16x32_bf16 v[{D7+4*(t&1)}:{D7+4*(t&1)+3}], v[{WF+4*t}:{WF+4*t+3}], v[{HF+4*t}:{HF+4*t+3}], v[{D7+4*(t&1)}:{D7+4*(t&1)+3}]")
        if t + 14 < 18: a(f"ds_read_b128 v[{HF+4*(t+14)}:{HF+4*(t+14)+3}], v{VT+1} offset:{64*(t+14)}")
    a(f"s_lshl_b32 s40, s30, 6\ns_add_u32 s40, s40, {L_R7}\nv_lshlrev_b32 v{VT}, 4, v{VKG}\nv_add_u32 v{VT}, s40, v{VT}")
    a(f"v_lshlrev_b32 v{VT+1}, 5, v{VKG}\nv_add_u32 v{VT+1}, {L_R7}, v{VT+1}")
    a(f"s_mul_i32 s40, s28, 9\ns_add_u32 s40, s40, s29\ns_mul_i32 s40, s40, 2304\ns_mul_i32 s41, s30, 576\ns_add_u32 s40, s40, s41\ns_add_u32 s40, s40, {WS_H4}")
    a(f"s_add_u32 s42, s26, s40\ns_addc_u32 s43, s27, 0")
    for e in range(4): a(f"v_add_f32 v{D7+e}, v{D7+e}, v{D7+4+e}")
    a.exec64(0x00010001, 0x00010001)
    a(f"ds_write_b128 v{VT}, v[{D7}:{D7+3}]\ns_mov_b64 exec, -1")
    a.stamp(12)
    BB, D8 = 136, 20
    a(f"v_lshlrev_b32 v{VT}, 6, v{VJ}\nv_lshl_add_u32 v{VT}, v{VKG}, 4, v{VT}")
    Lp, Lx = spin_head(a, "s60", cfg.SPIN, "R7")
    a(f"ds_read_b128 v[32:35], v{VT+1}\nds_read_b128 v[36:39], v{VT+1} offset:16\nds_read_b128 v[40:43], v{VT+1} offset:128\nds_read_b128 v[44:47], v{VT+1} offset:144")
    spin_bound(a, "s60", cfg.SPIN, Lx)
    a("s_waitcnt lgkmcnt(0)")
    for e in range(8): a(f"v_max_f32 v{48+e}, 0, v{32+e}")
    for e in range(0, 8, 2): a(f"v_pk_mul_f32 {pr(48+e)}, {pr(48+e)}, {pr(40+e)}")
    a("v_max3_u32 v56, v32, v33, v34\nv_max3_u32 v57, v35, v36, v37\nv_max3_u32 v56, v56, v38, v39\nv_max3_u32 v57, v57, v40, v41\nv_max3_u32 v56, v56, v42, v43\nv_max3_u32 v57, v57, v44, v45\nv_max3_u32 v56, v56, v46, v47\nv_max_u32 v56, v56, v57")
    a(f"v_cmp_eq_u32 vcc, -1, v56\ns_cbranch_vccnz {Lp}\n{Lx}:\ns_waitcnt lgkmcnt(0)")
    for e in range(4): a(f"v_cvt_pk_bf16_f32 v{32+e}, v{48+2*e}, v{49+2*e}")
    for e in range(4): a(f"v_mov_b32 v{D8+e}, 0")
    for n in range(9):
        a(f"s_mov_b32 s46, {hex(0x00010001 << n)}\ns_mov_b32 s47, s46")
        for h in range(4): a(f"v_cndmask_b32 v{BB+4*n+h}, 0, v{32+h}, s[46:47]")
        if n:
            a(f"v_mfma_f32_16x16x32_bf16 v[{D8}:{D8+3}], v[{DF+4*(n-1)}:{DF+4*(n-1)+3}], v[{BB+4*(n-1)}:{BB+4*(n-1)+3}], v[{D8}:{D8+3}]")
    a.nop(2)
    a(f"v_mfma_f32_16x16x32_bf16 v[{D8}:{D8+3}], v[{DF+32}:{DF+35}], v[{BB+32}:{BB+35}], v[{D8}:{D8+3}]")
    a.nop(8)
    for e in range(4): a(f"v_and_or_b32 v{D8+e}, v{D8+e}, s57, v{VTAG}")
    a.exec64(0x01ff01ff, 0x01ff01ff)
    a(f"global_store_dwordx4 v{VT}, v[{D8}:{D8+3}], s[42:43] sc1\ns_mov_b64 exec, -1")
    a.stamp(13)
    a("L_fin:")
    a.stamp(15)
    stamps_out(a)
    a("s_endpgm")

def generate(cfg):
    a = A(cfg)
    K = NAME + "_kernel"
    hdr = open("cdna_kernels/" + NAME + ".s.ref").read().split("; Override launch geometry")[0]
    out = [hdr.rstrip(), "; Override launch geometry by editing the next line (default: block=256,", "; grid=ceil(out_elems/256), lds=0). Harness parses it; keep it on one line.",
           f"; @launch grid=(256,1,1) block=(320,1,1) lds={LDS_BYTES}", '.amdgcn_target "amdgcn-amd-amdhsa--gfx950"\n.text', f".globl {K}\n.p2align 8\n.type {K},@function\n{K}:"]
    a("s_cmp_ge_u32 s2, 256\ns_cbranch_scc1 L_exit")
    a("s_load_dwordx16 s[4:19], s[0:1], 0\ns_load_dwordx8 s[20:27], s[0:1], 64")
    if cfg.STAMP:
        for i in range(16): a(f"s_mov_b64 s[{64+2*i}:{65+2*i}], 0")
        a("s_memrealtime s[64:65]")
    a("v_and_b32 v1, 63, v0\nv_lshrrev_b32 v2, 6, v0")
    a("s_and_b32 s28, s2, 7\ns_lshl_b32 s28, s28, 1\ns_lshr_b32 s29, s2, 3\ns_and_b32 s29, s29, 1\ns_or_b32 s28, s28, s29\ns_lshr_b32 s29, s2, 4")
    a("v_readfirstlane_b32 s3, v2")
    a("s_waitcnt lgkmcnt(0)")
    a("s_cmp_lg_u32 s3, 0\ns_cbranch_scc1 L_consumer")
    gen_loader(a)
    gen_consumer(a)
    a("L_exit:\ns_endpgm")
    out += a.L
    out.append('.section .rodata,"a"\n.p2align 6')
    out.append(f".amdhsa_kernel {K}")
    out.append("  .amdhsa_next_free_vgpr 256\n  .amdhsa_next_free_sgpr 102\n  .amdhsa_accum_offset 256\n  .amdhsa_group_segment_fixed_size 0\n  .amdhsa_kernarg_size 96\n  .amdhsa_user_sgpr_count 2\n  .amdhsa_user_sgpr_kernarg_segment_ptr 1\n  .amdhsa_system_sgpr_workgroup_id_x 1\n.end_amdhsa_kernel")
    return "\n".join(out) + "\n"

if __name__ == "__main__":
    cfg = Cfg()
    for kv in sys.argv[2:]:
        k, v = kv.split("=")
        setattr(cfg, k, v if k == "NT" else (v == "1" if k == "STAMP" else int(v)))
    open(sys.argv[1], "w").write(generate(cfg))
```

```python
import sys, struct, math
NAME = "sequential_preLN__sliding_block_cached__glu_gated_reglu__decode"
def f2b(x): return struct.unpack("<I", struct.pack("<f", x))[0]

class Cfg:
    W1 = 20; WWO = 14; WGU = 12; WD = 20
    NT = "nt"
    STAMP = False
    DBG = 0
    LOCAL = 1
    PF = 1
    WG0 = 14; NG0 = 0
    WG1 = 14
    WUP = 16
    GUROT = 0
    ROT = 5
    LONLY = 0
    H3GATE = 1
    T_H1 = 0
    D_H1 = 0; B_H1 = 0; B_ML = 0; B_H2 = 0; B_H3 = 0; B_H4 = 2; B_AL = 2
    SPIN = 1 << 16
    GSPIN = 1 << 13

WS_H1 = 0x00000; WS_ML = 0x10000; WS_H2 = 0x18000; WS_H3 = 0x38000; WS_AL = 0x3d000; WS_EP = 0x3f000; WS_H4 = 0x40000; WS_ST = 0x100000
L_WQ = 0; L_K = 18432; L_V = L_K + 65536; L_SB = L_V + 65536
L_XN = L_SB
L_QB = L_XN + 1152
L_MX = L_QB + 512
L_LW = L_MX + 32
L_OP = L_LW + 32
L_R5 = L_OP + 3072
L_HN = L_R5 + 2048
L_R7 = L_HN + 1152
L_QP = L_R7 + 256
L_CT = L_QP + 256
L_END = L_CT + 64
LDS_BYTES = 161280
assert L_END <= LDS_BYTES
POIS_LO, POIS_HI = L_QB, L_CT
F_G, F_U, F_D = 0, 36864, L_V
O_WO = 0
CSCALE = f2b(math.log2(math.e) / math.sqrt(128.0))

class A:
    def __init__(s, cfg): s.L = []; s.cfg = cfg; s.uid = 0
    def __call__(s, t):
        for ln in t.split("\n"):
            ln = ln.strip()
            if ln: s.L.append(("" if ln.endswith(":") else "    ") + ln)
    def lab(s, base): s.uid += 1; return f"{base}_{s.uid}"
    def nop(s, n):
        while n > 0:
            k = min(n, 16); s(f"s_nop {k-1}"); n -= k
    def stamp(s, idx):
        if s.cfg.STAMP: s(f"s_memrealtime s[{64+2*idx}:{65+2*idx}]")
    def exec64(s, lo, hi): s(f"s_mov_b32 exec_lo, {hex(lo)}\ns_mov_b32 exec_hi, {hex(hi)}")
    def sleep(s, n):
        while n > 0:
            k = min(n, 127); s(f"s_sleep {k}"); n -= k

def lds_wait_ge(a, addr_v, val, tmp_v, tmp_s="s31", cnt_s="s60", off=0):
    if a.cfg.LONLY and off in (4, 8, 12, 16): return
    L = a.lab("LW"); X = a.lab("LX")
    o = f" offset:{off}" if off else ""
    a(f"s_mov_b32 {cnt_s}, 0\n{L}:\nds_read_b32 {tmp_v}, {addr_v}{o}")
    a(f"s_add_u32 {cnt_s}, {cnt_s}, 1\ns_cmp_gt_u32 {cnt_s}, {a.cfg.SPIN}\ns_cbranch_scc1 {X}")
    a(f"s_waitcnt lgkmcnt(0)\nv_readfirstlane_b32 {tmp_s}, {tmp_v}\ns_cmp_lt_u32 {tmp_s}, {val}\ns_cbranch_scc1 {L}\n{X}:\ns_waitcnt lgkmcnt(0)")

def lds_set(a, addr_v, off, val_v, op="ds_write_b32"):
    a(f"s_mov_b64 exec, 1\n{op} {addr_v}, {val_v} offset:{off}\ns_mov_b64 exec, -1")

def dpp(a, op, v, ctl): a(f"{op}_dpp {v}, {v}, {v} {ctl} row_mask:0xf bank_mask:0xf")
def row_red(a, op, vs):
    if isinstance(vs, str): vs = [vs]
    for ctl in ("quad_perm:[1,0,3,2]", "quad_perm:[2,3,0,1]", "row_half_mirror", "row_mirror"):
        a.nop(max(0, 3 - len(vs))) if len(vs) < 3 else None
        for v in vs: dpp(a, op, v, ctl)
    a.nop(0)
def xrow_red(a, op, v, t):
    a(f"v_mov_b32 {t}, {v}"); a.nop(2)
    a(f"v_permlane16_swap_b32 {v}, {t}"); a.nop(1)
    a(f"{op} {v}, {v}, {t}\nv_mov_b32 {t}, {v}"); a.nop(2)
    a(f"v_permlane32_swap_b32 {v}, {t}"); a.nop(1)
    a(f"{op} {v}, {v}, {t}")

def spin_head(a, cnt, bound, name):
    Lp, Lx = a.lab(name), a.lab(name + "X")
    a(f"s_mov_b32 {cnt}, 0\n{Lp}:")
    return Lp, Lx
def spin_bound(a, cnt, bound, Lx):
    a(f"s_add_u32 {cnt}, {cnt}, 1\ns_cmp_gt_u32 {cnt}, {bound}\ns_cbranch_scc1 {Lx}")

def tagcheck(a, acc, regs, vtag):
    regs = list(regs)
    a(f"v_xor_b32 {acc}, v{regs[0]}, v{vtag}")
    for r in regs[1:]: a(f"v_bitop3_b32 {acc}, {acc}, v{r}, v{vtag} bitop3:0xf6")
    a(f"v_and_b32 {acc}, 0x3ff, {acc}\nv_cmp_ne_u32 vcc, 0, {acc}")

def stamps_out(a, loader=False):
    if not a.cfg.STAMP: return
    if a.cfg.DBG:
        a("s_waitcnt lgkmcnt(0)\ns_mov_b64 exec, 1")
        if loader: lst = [(0, 0, 0), (255, 0, 1), (0, 3, 2), (255, 3, 3), (0, 8, 4)]
        else: lst = [(0, 7, 5), (0, 11, 6), (0, 13, 7), (144, 9, 8), (144, 10, 9), (144, 14, 10), (144, 15, 11), (145, 15, 12), (160, 15, 13), (161, 15, 14), (178, 15, 15)]
        for (wg, st, slot) in lst:
            L = a.lab("DB")
            a(f"s_cmp_lg_u32 s2, {wg}\ns_cbranch_scc1 {L}")
            if not loader: a(f"s_cmp_lg_u32 s30, 0\ns_cbranch_scc1 {L}")
            a(f"v_mov_b32 v250, {4*slot}\nv_mov_b32 v251, s{64+2*st}\nglobal_store_dword v250, v251, s[24:25]\n{L}:")
        return
    a("s_waitcnt lgkmcnt(0)")
    a(f"s_lshl_b32 s40, s2, 3\ns_add_u32 s40, s40, s3\ns_lshl_b32 s40, s40, 7\ns_add_u32 s40, s40, {WS_ST}")
    a("s_add_u32 s40, s26, s40\ns_addc_u32 s41, s27, 0\ns_mov_b64 exec, 1\nv_mov_b32 v250, 0")
    for i in range(16):
        a(f"v_mov_b32 v252, s{64+2*i}\nv_mov_b32 v253, s{65+2*i}\nglobal_store_dwordx2 v250, v[252:253], s[40:41] offset:{8*i}")
        a.nop(2)

def gen_loader(a):
    cfg = a.cfg; NT = cfg.NT
    V_L16, V_WQ, V_K, V_P, V_FA, V_FV, V_T = 4, 5, 6, 10, 16, 17, 18
    a("L_loader:\ns_setprio 1")
    a(f"v_lshlrev_b32 v{V_L16}, 4, v1")
    a(f"v_lshrrev_b32 v20, 3, v1\nv_lshlrev_b32 v20, 13, v20\nv_and_b32 v21, 7, v1\nv_lshlrev_b32 v21, 4, v21\nv_add_u32 v{V_WQ}, v20, v21")
    a("s_lshr_b32 s40, s29, 2\ns_mul_i32 s40, s40, 1179648")
    a("s_and_b32 s41, s29, 3\ns_lshl_b32 s41, s41, 7\ns_lshl_b32 s42, s28, 9\ns_add_u32 s41, s41, s42\ns_add_u32 s40, s40, s41")
    a("s_add_u32 s32, s10, s40\ns_addc_u32 s33, s11, 0\ns_sub_u32 s34, 4718592, s40\ns_mov_b32 s35, 0x20000")
    def raw(pat, off=0):
        o = f" offset:{off}" if off else ""
        a(f"buffer_load_dwordx4 v{pat}, s[32:35], s36 offen{o} {NT} lds")
    def signal(val):
        a(f"v_mov_b32 v{V_FV}, {val}"); lds_set(a, f"v{V_FA}", 0, f"v{V_FV}")
    class Seq:
        def __init__(s, W, n, pend): s.n = n; s.W = W; s.pend = pend
        def after(s):
            n = s.n
            if n >= s.W - 1:
                a(f"s_waitcnt vmcnt({s.W-1})")
                landed = n - s.W + 1
                while s.pend and s.pend[0][0] <= landed: signal(s.pend.pop(0)[1])
                if cfg.T_H1 and landed == 18 + cfg.T_H1:
                    a(f"v_mov_b32 v{V_FV}, 1"); lds_set(a, f"v{V_FA}", 24, f"v{V_FV}")
            s.n += 1
        def drain(s):
            last = s.n - 1
            while s.pend:
                e, v = s.pend.pop(0)
                a(f"s_waitcnt vmcnt({last-e})"); signal(v)
    q = Seq(cfg.W1, 0, [])
    a(f"s_mov_b32 m0, {L_WQ}\ns_mov_b32 s36, 0")
    q.pend.append((17, 1))
    for i in range(18):
        if i: a("s_add_u32 m0, m0, 0x400\ns_add_u32 s36, s36, 0x10000")
        else: a.nop(1)
        raw(V_WQ); q.after()
        if i == 1:
            a("v_lshrrev_b32 v20, 4, v1\nv_lshlrev_b32 v21, 2, v20\nv_and_b32 v22, 15, v1\nv_xor_b32 v22, v22, v21\nv_lshlrev_b32 v20, 8, v20")
            for p in range(4): a(f"v_xor_b32 v23, {p}, v22\nv_lshlrev_b32 v23, 4, v23\nv_add_u32 v{V_K+p}, v20, v23")
            a(f"v_mov_b32 v{V_FA}, {L_CT}")
        if i == 5: a("s_barrier")
    a.stamp(1)
    for name, p, lbase, pats in (("K", 6, L_K, [V_K, V_K+1, V_K+2, V_K+3]), ("V", 8, L_V, [V_L16]*4)):
        a(f"s_lshl_b32 s40, s28, 24\ns_lshl_b32 s42, s29, 16\ns_add_u32 s42, s42, {(65536-4096)*256}\ns_add_u32 s40, s40, s42")
        a(f"s_add_u32 s32, s{p}, s40\ns_addc_u32 s33, s{p+1}, 0\ns_mov_b32 s34, 65536\ns_mov_b32 m0, {lbase}\ns_mov_b32 s36, 0")
        if cfg.ROT: a(f"s_mul_i32 s36, s28, {cfg.ROT}\ns_add_u32 s36, s36, s29\ns_and_b32 s36, s36, 15\ns_lshl_b32 s36, s36, 12")
        base = q.n
        if name == "K": q.pend.append((base + 63, 2))
        else:
            for r in range(4): q.pend.append((base + 16*r + 15, 3 + r))
        for i in range(64):
            if i and i % 4 == 0:
                a("s_add_u32 m0, m0, 0x1000\ns_add_u32 s36, s36, 0x1000")
                if cfg.ROT: a("s_and_b32 s36, s36, 0xffff")
            elif i == 0: a.nop(1)
            raw(pats[i % 4], off=(i % 4) * 1024); q.after()
        a.stamp(2 if name == "K" else 3)
    lds_wait_ge(a, f"v{V_FA}", 4, "v19", "s43", "s44", off=4)
    a.stamp(4)
    n0, p0 = q.n, list(q.pend)
    a("s_cmp_ge_u32 s29, 9\ns_cbranch_scc1 L_ld_o")
    q = Seq(cfg.WGU, n0, list(p0))
    a(f"v_lshrrev_b32 v20, 2, v1\nv_mul_u32_u24 v20, 9216, v20\nv_and_b32 v21, 3, v1\nv_lshlrev_b32 v21, 4, v21\nv_add_u32 v{V_P}, v20, v21")
    a("s_mul_i32 s45, s28, 288\ns_lshl_b32 s46, s29, 5\ns_add_u32 s45, s45, s46")
    def gu_tile(p, lb, mile, W):
        q.W = W
        q.pend.append((q.n + 35, mile))
        a(f"s_lshl_b32 s40, s45, 1\ns_add_u32 s32, s{p}, s40\ns_addc_u32 s33, s{p+1}, 0\ns_sub_u32 s34, 5308416, s40\ns_mov_b32 m0, {lb}\ns_mov_b32 s36, 0")
        for i in range(36):
            if i: a(f"s_add_u32 m0, m0, 0x400\ns_add_u32 s36, s36, {16*9216}")
            else: a.nop(1)
            if mile == 7 and i < cfg.NG0: q.W = cfg.WG0
            else: q.W = W
            raw(V_P); q.after()
    gu_tile(16, F_G, 7, cfg.WG1)
    a.stamp(5)
    lds_wait_ge(a, f"v{V_FA}", 4, "v19", "s43", "s44", off=8)
    a(f"s_mul_i32 s40, s45, 1152\ns_add_u32 s32, s20, s40\ns_addc_u32 s33, s21, 0\ns_mov_b32 s34, {32*1152}\ns_mov_b32 m0, {F_D}\ns_mov_b32 s36, 0")
    q.pend.append((q.n + 35, 8)); q.W = cfg.WD
    for i in range(36):
        if i and i % 4 == 0: a("s_add_u32 m0, m0, 0x1000\ns_add_u32 s36, s36, 0x1000")
        elif i == 0: a.nop(1)
        raw(V_L16, off=(i % 4) * 1024); q.after()
    a.stamp(7)
    gu_tile(18, F_U, 9, cfg.WUP)
    a(f"v_mov_b32 v{V_FV}, 1"); lds_set(a, f"v{V_FA}", 12, f"v{V_FV}")
    a.stamp(6)
    q.drain()
    a("s_branch L_ld_done")
    a("L_ld_o:")
    q = Seq(cfg.WWO, n0, list(p0))
    for p in range(3):
        a(f"v_add_u32 v20, {64*p}, v1\nv_mul_u32_u24 v21, 171, v20\nv_lshrrev_b32 v21, 11, v21")
        a(f"v_mul_u32_u24 v22, 12, v21\nv_sub_u32 v22, v20, v22\nv_lshlrev_b32 v22, 4, v22\nv_mul_u32_u24 v21, 1152, v21\nv_add_u32 v{V_P+p}, v21, v22")
    a("s_mul_i32 s40, s28, 294912\ns_sub_u32 s41, s29, 9\ns_mul_i32 s41, s41, 160\ns_add_u32 s40, s40, s41")
    a(f"s_add_u32 s32, s12, s40\ns_addc_u32 s33, s13, 0\ns_sub_u32 s34, 4718592, s40\ns_mov_b32 m0, {O_WO}\ns_mov_b32 s36, 0")
    for c in range(4): q.pend.append((q.n + 12*c + 11, 7 + c))
    for i in range(48):
        if i:
            a("s_add_u32 m0, m0, 0x400")
            if i % 3 == 0: a(f"s_add_u32 s36, s36, {16*1152}")
            else: a.nop(1)
        else: a.nop(1)
        raw(V_P + i % 3); q.after()
    a(f"v_mov_b32 v{V_FV}, 1"); lds_set(a, f"v{V_FA}", 12, f"v{V_FV}")
    a.stamp(5)
    if cfg.PF:
        a("s_and_b32 s40, s2, 7\ns_lshr_b32 s41, s2, 3\ns_and_b32 s44, s41, 1\ns_lshr_b32 s41, s41, 1\ns_sub_u32 s41, s41, 9\ns_lshl_b32 s41, s41, 1\ns_add_u32 s41, s41, s44")
        a("s_mul_i32 s40, s40, 1152\ns_add_u32 s32, s18, s40\ns_addc_u32 s33, s19, 0\ns_sub_u32 s34, 5308416, s40\ns_lshl_b32 s41, s41, 6\ns_mov_b32 s46, 7282\ns_mov_b32 s47, 9216")
        for t in range(6):
            a(f"s_add_u32 s40, s41, {64*14*t}\nv_add_u32 v20, s40, v1\nv_mul_lo_u32 v21, s46, v20\nv_lshrrev_b32 v21, 16, v21")
            a(f"v_mul_u32_u24 v22, 9, v21\nv_sub_u32 v22, v20, v22\nv_lshlrev_b32 v22, 7, v22\nv_mul_lo_u32 v21, s47, v21\nv_add_u32 v{24+t}, v21, v22")
        lds_wait_ge(a, f"v{V_FA}", 4, "v19", "s43", "s44", off=16)
        a("s_mov_b32 s36, 0")
        npf = 6
        for t in range(npf):
            a(f"buffer_load_dword v{32+t}, v{24+t}, s[32:35], s36 offen {NT}")
            q.n += 1
    q.drain()
    a("L_ld_done:")
    a.stamp(8)
    if cfg.STAMP: a("s_getreg_b32 s94, hwreg(HW_REG_XCC_ID)\ns_and_b32 s94, s94, 15\ns_add_u32 s94, s94, 1\ns_mov_b32 s95, 0")
    stamps_out(a, True)
    a("s_endpgm")

def gen_consumer(a):
    cfg = a.cfg
    VL, VJ, VKG, VL16, VCT = 1, 2, 3, 4, 5
    VX = 196
    XF = 216
    VT = 12
    VTAG = 11
    a("L_consumer:")
    a(f"v_and_b32 v{VJ}, 15, v{VL}\nv_lshrrev_b32 v{VKG}, 4, v{VL}\nv_lshlrev_b32 v{VL16}, 4, v{VL}\nv_mov_b32 v{VCT}, {L_CT}\ns_sub_u32 s30, s3, 1")
    a(f"s_load_dword s58, s[26:27], {WS_EP}")
    a(f"global_load_dwordx4 v[20:23], v{VL16}, s[4:5]")
    a(f"v_lshlrev_b32 v{VT}, 2, v{VL}\nv_mov_b32 v24, 0\ns_mov_b32 exec_hi, 0\nglobal_load_dword v24, v{VT}, s[4:5] offset:1024\ns_mov_b64 exec, -1")
    a("s_cmp_lg_u32 s30, 0\ns_cbranch_scc1 L_p0_notc0")
    a("v_mov_b32 v28, -1\nv_mov_b32 v29, -1\nv_mov_b32 v30, -1\nv_mov_b32 v31, -1")
    nb = POIS_HI - POIS_LO
    a(f"v_add_u32 v{VT}, {POIS_LO}, v{VL16}")
    off = 0
    while off < nb:
        rem = nb - off
        if rem < 1024: a(f"v_cmp_gt_u32 vcc, {rem}, v{VL16}\ns_and_saveexec_b64 s[40:41], vcc")
        a(f"ds_write_b128 v{VT}, v[28:31] offset:{off}")
        if rem < 1024: a("s_mov_b64 exec, s[40:41]")
        off += 1024
    a(f"v_mov_b32 v32, 0\nv_mov_b32 v33, 0\nv_mov_b32 v34, 0\nv_mov_b32 v35, 0\nds_write_b128 v{VCT}, v[32:35]\nds_write_b128 v{VCT}, v[32:35] offset:16")
    a("s_waitcnt lgkmcnt(0)\ns_barrier")
    if cfg.LONLY == 1: a("s_branch L_fin")
    def wsaddr(lo): a(f"s_add_u32 s42, s26, {lo}\ns_addc_u32 s43, s27, 0")
    def pst(off=0): a(f"global_store_dwordx4 v{VL16}, v[28:31], s[42:43]" + (f" offset:{off}" if off else "") + " sc1")
    a(f"s_lshl_b32 s46, s28, 4\ns_add_u32 s46, s46, s29\ns_lshl_b32 s40, s46, 9\ns_add_u32 s40, s40, {WS_H2}"); wsaddr("s40")
    a("s_mov_b32 exec_hi, 0"); pst(); a("s_mov_b64 exec, -1")
    a("s_cmp_ge_u32 s29, 9\ns_cbranch_scc1 L_p0_o")
    a(f"v_and_b32 v{VT}, 1, v{VKG}\nv_lshlrev_b32 v{VT}, 3, v{VT}\nv_lshl_add_u32 v{VT}, v{VJ}, 4, v{VT}")
    for cb in range(4): a(f"global_load_dwordx2 v[{VX+2*cb}:{VX+2*cb+1}], v{VT}, s[4:5] offset:{256*cb}")
    a(f"v_mov_b32 v{VX+8}, 0\nv_mov_b32 v{VX+9}, 0"); a.exec64(0x00ff00ff, 0x00ff00ff)
    a(f"global_load_dwordx2 v[{VX+8}:{VX+9}], v{VT}, s[4:5] offset:1024\ns_mov_b64 exec, -1")
    a("s_waitcnt vmcnt(6)")
    a("s_branch L_p0_ln")
    a("L_p0_o:")
    a(f"s_sub_u32 s41, s29, 9\ns_mul_i32 s40, s41, 160\ns_mul_i32 s44, s28, 1152\ns_add_u32 s40, s40, s44\ns_add_u32 s40, s40, {WS_H3}"); wsaddr("s40")
    a("s_mov_b64 exec, 0x3ff\ns_cmp_eq_u32 s41, 6\ns_cselect_b32 exec_lo, 0xfff, exec_lo"); pst(); a("s_mov_b64 exec, -1")
    a("s_waitcnt vmcnt(2)")
    a("s_branch L_p0_ln")
    a("L_p0_notc0:\ns_barrier\ns_waitcnt vmcnt(0)")
    a("L_p0_ln:")
    if cfg.LONLY in (1, 2): a("s_branch L_fin")
    a.stamp(0)
    for i in range(5): a(f"v_lshlrev_b32 v{32+2*i}, 16, v{20+i}\nv_and_b32 v{33+2*i}, 0xffff0000, v{20+i}")
    a("v_add_f32 v42, v32, v33")
    for i in range(2, 10): a(f"v_add_f32 v42, v42, v{32+i}")
    row_red(a, "v_add_f32", "v42"); xrow_red(a, "v_add_f32", "v42", "v43")
    a(f"v_mul_f32 v42, {hex(f2b(1.0/576))}, v42")
    for i in range(10): a(f"v_sub_f32 v{32+i}, v{32+i}, v42")
    a("s_mov_b32 exec_lo, 0\nv_mov_b32 v40, 0\nv_mov_b32 v41, 0\ns_mov_b64 exec, -1")
    a("v_mul_f32 v43, v32, v32")
    for i in range(1, 10): a(f"v_fmac_f32 v43, v{32+i}, v{32+i}")
    row_red(a, "v_add_f32", "v43"); xrow_red(a, "v_add_f32", "v43", "v44")
    a(f"v_mov_b32 v44, {hex(f2b(1e-5))}\nv_fmac_f32 v44, {hex(f2b(1.0/576))}, v43\nv_rsq_f32 v44, v44")
    a.nop(1)
    for i in range(10): a(f"v_mul_f32 v{32+i}, v{32+i}, v44")
    for i in range(5): a(f"v_cvt_pk_bf16_f32 v{20+i}, v{32+2*i}, v{33+2*i}")
    a(f"v_add_u32 v{VT}, {L_XN}, v{VL16}\nds_write_b128 v{VT}, v[20:23]")
    a(f"v_lshlrev_b32 v{VT}, 2, v{VL}\nv_add_u32 v{VT}, {L_XN+1024}, v{VT}\ns_mov_b32 exec_hi, 0\nds_write_b32 v{VT}, v24\ns_mov_b64 exec, -1")
    a(f"v_bfe_u32 v{VT}, v{VL}, 2, 2\nv_lshl_add_u32 v{VT}, v{VKG}, 2, v{VT}\nv_lshlrev_b32 v{VT}, 7, v{VT}")
    a(f"v_and_b32 v{VT+1}, 3, v{VL}\nv_lshl_add_u32 v{VT}, v{VT+1}, 3, v{VT}")
    a(f"s_lshl_b32 s40, s30, 5\ns_add_u32 s40, s40, {L_WQ}\nv_add_u32 v{VT}, s40, v{VT}")
    a(f"s_lshr_b32 s40, s29, 2\ns_mul_i32 s40, s40, 288\ns_add_u32 s40, s40, {L_XN}\nv_lshlrev_b32 v{VT+1}, 3, v{VKG}\nv_add_u32 v{VT+1}, s40, v{VT+1}")
    a("s_waitcnt lgkmcnt(0)")
    for t in range(9): a(f"ds_read_b64 v[{40+2*t}:{41+2*t}], v{VT+1} offset:{32*t}")
    for r in range(4): a(f"v_mov_b32 v{60+r}, 0")
    a("s_lshr_b32 s40, s29, 2\ns_lshl_b32 s40, s40, 10\ns_and_b32 s41, s29, 3\ns_lshl_b32 s41, s41, 8\ns_add_u32 s40, s40, s41")
    a(f"s_lshl_b32 s41, s28, 12\ns_add_u32 s40, s40, s41")
    a("s_add_u32 s42, s26, s40\ns_addc_u32 s43, s27, 0")
    lds_wait_ge(a, f"v{VCT}", 1, f"v{VT+2}")
    a.stamp(1)
    for t in range(9): a(f"ds_read_b64_tr_b16 v[{20+2*t}:{21+2*t}], v{VT} offset:{2048*t}")
    for t in range(9):
        a(f"s_waitcnt lgkmcnt({8-t})")
        a(f"v_mfma_f32_16x16x16_bf16 v[60:63], v[{20+2*t}:{21+2*t}], v[{40+2*t}:{41+2*t}], v[60:63]")
    a(f"s_lshl_b32 s40, s30, 6\ns_add_u32 s40, s40, {L_QP}\nv_lshlrev_b32 v{VT}, 4, v{VKG}\nv_add_u32 v{VT}, s40, v{VT}")
    a(f"s_add_u32 s58, s58, 1\ns_and_b32 s56, s58, 0x3ff\ns_mov_b32 s57, 0xfffffc00\nv_mov_b32 v{VTAG}, s56")
    a.nop(1)
    a.exec64(0x00010001, 0x00010001)
    a(f"ds_write_b128 v{VT}, v[60:63]\ns_mov_b64 exec, -1")
    a("s_cmp_lg_u32 s30, 0\ns_cbranch_scc1 L_p1_done")
    a(f"v_add_u32 v{VT}, {L_QP}, v{VL16}\ns_mov_b64 exec, 0xffff")
    Lp, Lx = spin_head(a, "s60", cfg.SPIN, "QP")
    a(f"ds_read_b128 v[60:63], v{VT}"); spin_bound(a, "s60", cfg.SPIN, Lx)
    a(f"s_waitcnt lgkmcnt(0)\nv_max3_u32 v{VT+1}, v60, v61, v62\nv_max_u32 v{VT+1}, v{VT+1}, v63\nv_cmp_eq_u32 vcc, -1, v{VT+1}\ns_cbranch_vccnz {Lp}\n{Lx}:\ns_waitcnt lgkmcnt(0)")
    for e in range(4): a(f"v_and_or_b32 v{60+e}, v{60+e}, s57, v{VTAG}")
    a("s_waitcnt vmcnt(0)")
    a(f"global_store_dwordx4 v{VL16}, v[60:63], s[42:43] sc1\ns_mov_b64 exec, -1")
    L = a.lab("XU")
    a(f"s_cmp_ge_u32 s29, 9\ns_cbranch_scc1 {L}")
    for i in range(10): a(f"v_lshlrev_b32 v{XF+2*i}, 16, v{VX+i}\nv_and_b32 v{XF+2*i+1}, 0xffff0000, v{VX+i}")
    a(f"s_branch L_p1_done\n{L}:")
    a(f"s_sub_u32 s41, s29, 9\ns_lshl_b32 s40, s28, 7\ns_lshl_b32 s44, s41, 2\ns_add_u32 s40, s40, s44\ns_add_u32 s40, s40, {WS_AL}")
    a(f"v_lshlrev_b32 v{VT}, 2, v{VL}\nv_add_u32 v{VT}, s40, v{VT}\nv_mov_b32 v{VT+1}, s58")
    a(f"s_mov_b64 exec, 1\ns_cmp_eq_u32 s41, 6\ns_cselect_b32 exec_lo, 3, exec_lo\nglobal_store_dword v{VT}, v{VT+1}, s[26:27] sc1\ns_mov_b64 exec, -1")
    a("L_p1_done:")
    if cfg.LONLY == 3: a("s_branch L_fin")
    a.stamp(2)
    QF, S, AO, MK, KA, KF, O = 20, 36, 64, 52, 56, 128, 60
    a(f"v_and_b32 v{VT+1}, 3, v{VJ}\nv_lshrrev_b32 v{VT+2}, 2, v{VJ}")
    a(f"v_lshl_add_u32 v{VT+3}, v{VT+1}, 2, v{VT+2}\nv_lshlrev_b32 v{VT+3}, 8, v{VT+3}")
    a(f"s_lshl_b32 s40, s30, 12\ns_add_u32 s40, s40, {L_K}\nv_add_u32 v{VT+3}, s40, v{VT+3}\nv_xor_b32 v{VT+1}, v{VT+1}, v{VKG}")
    for dd in range(4):
        a(f"v_xor_b32 v{VT+4}, {dd}, v{VT+2}\nv_lshl_add_u32 v{VT+4}, v{VT+4}, 2, v{VT+1}\nv_lshl_add_u32 v{KA+dd}, v{VT+4}, 4, v{VT+3}")
    a(f"v_and_b32 v{VT+1}, 1, v{VJ}\nv_cmp_eq_u32 vcc, 1, v{VT+1}\nv_mov_b32 v{VT+2}, 0xffff\nv_mov_b32 v{VT+4}, 0xffff0000")
    a.nop(1)
    a(f"v_cndmask_b32 v{VT+2}, v{VT+2}, v{VT+4}, vcc\nv_bfe_u32 v{VT+1}, v{VJ}, 1, 2")
    for t in range(4):
        a(f"v_cmp_eq_u32 vcc, {t}, v{VT+1}"); a.nop(2)
        a(f"v_cndmask_b32 v{MK+t}, 0, v{VT+2}, vcc")
    a("s_cmp_lg_u32 s30, 0\ns_cbranch_scc1 L_p2_skip")
    a.sleep(cfg.D_H1)
    if cfg.T_H1: lds_wait_ge(a, f"v{VCT}", 1, f"v{VT+2}", off=24)
    a(f"s_lshl_b32 s40, s28, 12\ns_add_u32 s42, s26, s40\ns_addc_u32 s43, s27, 0")
    Lp, Lx = spin_head(a, "s60", cfg.GSPIN, "H1")
    for rb in range(4): a(f"global_load_dwordx4 v[{20+4*rb}:{23+4*rb}], v{VL16}, s[42:43] offset:{1024*rb} sc1")
    spin_bound(a, "s60", cfg.GSPIN, Lx)
    a("s_waitcnt vmcnt(0)")
    tagcheck(a, "v40", range(20, 36), VTAG)
    a(f"s_and_b64 exec, exec, vcc\ns_cbranch_execz {Lx}"); a.sleep(cfg.B_H1); a(f"s_branch {Lp}")
    a(f"{Lx}:\ns_mov_b64 exec, -1\ns_waitcnt vmcnt(0)")
    for e in range(4): a(f"v_add_f32 v{36+e}, v{20+e}, v{24+e}\nv_add_f32 v{40+e}, v{28+e}, v{32+e}\nv_add_f32 v{36+e}, v{36+e}, v{40+e}")
    a("v_cvt_pk_bf16_f32 v36, v36, v37\nv_cvt_pk_bf16_f32 v37, v38, v39")
    a(f"v_lshlrev_b32 v{VT}, 3, v{VL}\nv_add_u32 v{VT}, {L_QB}, v{VT}\nds_write_b64 v{VT}, v[36:37]")
    a("L_p2_skip:")
    if cfg.LONLY == 4: a("s_branch L_fin")
    a.stamp(3)
    a(f"v_lshrrev_b32 v{VT}, 3, v{VJ}\nv_lshlrev_b32 v{VT}, 8, v{VT}\nv_lshl_add_u32 v{VT}, v{VKG}, 4, v{VT}\nv_add_u32 v{VT}, {L_QB}, v{VT}")
    Lp, Lx = spin_head(a, "s60", cfg.SPIN, "QF")
    for dd in range(4): a(f"ds_read_b128 v[{QF+4*dd}:{QF+4*dd+3}], v{VT} offset:{64*dd}")
    spin_bound(a, "s60", cfg.SPIN, Lx)
    a(f"s_waitcnt lgkmcnt(0)\nv_max3_u32 v{VT+1}, v{QF}, v{QF+1}, v{QF+2}")
    for i in range(3, 15, 2): a(f"v_max3_u32 v{VT+1}, v{VT+1}, v{QF+i}, v{QF+i+1}")
    a(f"v_max_u32 v{VT+1}, v{VT+1}, v{QF+15}\nv_cmp_eq_u32 vcc, -1, v{VT+1}\ns_cbranch_vccnz {Lp}\n{Lx}:\ns_waitcnt lgkmcnt(0)")
    a.stamp(4)
    for i in range(16): a(f"v_mov_b32 v{S+i}, 0")
    lds_wait_ge(a, f"v{VCT}", 2, f"v{VT+2}")
    a.stamp(5)
    for r in range(4):
        for dd in range(4): a(f"ds_read_b128 v[{KF+16*r+4*dd}:{KF+16*r+4*dd+3}], v{KA+dd} offset:{16384*r}")
    for r in range(4):
        for dd in range(4):
            n = 4*r + dd
            a(f"s_waitcnt lgkmcnt({15-n})")
            a(f"v_mfma_f32_16x16x32_bf16 v[{S+4*r}:{S+4*r+3}], v[{KF+16*r+4*dd}:{KF+16*r+4*dd+3}], v[{QF+4*dd}:{QF+4*dd+3}], v[{S+4*r}:{S+4*r+3}]")
    a(f"v_mov_b32 v{VT+2}, 1"); lds_set(a, f"v{VCT}", 4, f"v{VT+2}", "ds_add_u32")
    a.nop(8)
    a(f"v_max3_f32 v{VT+1}, v{S}, v{S+1}, v{S+2}")
    for i in range(3, 15, 2): a(f"v_max3_f32 v{VT+1}, v{VT+1}, v{S+i}, v{S+i+1}")
    a(f"v_max_f32 v{VT+1}, v{VT+1}, v{S+15}")
    xrow_red(a, "v_max_f32", f"v{VT+1}", f"v{VT+2}")
    a(f"v_lshrrev_b32 v{VT+2}, 3, v{VJ}\nv_lshlrev_b32 v{VT+2}, 4, v{VT+2}\nv_add_u32 v{VT+3}, {L_MX}, v{VT+2}")
    a(f"s_lshl_b32 s40, s30, 2\nv_add_u32 v{VT+4}, s40, v{VT+3}")
    a(f"s_mov_b64 exec, 0x101\nds_write_b32 v{VT+4}, v{VT+1}\ns_mov_b64 exec, -1")
    Lp, Lx = spin_head(a, "s60", cfg.SPIN, "MX")
    a(f"ds_read_b128 v[{KF}:{KF+3}], v{VT+3}"); spin_bound(a, "s60", cfg.SPIN, Lx)
    a(f"s_waitcnt lgkmcnt(0)\nv_max3_u32 v{VT+5}, v{KF}, v{KF+1}, v{KF+2}\nv_max_u32 v{VT+5}, v{VT+5}, v{KF+3}\nv_cmp_eq_u32 vcc, -1, v{VT+5}\ns_cbranch_vccnz {Lp}")
    a(f"{Lx}:\ns_waitcnt lgkmcnt(0)")
    a(f"v_max3_f32 v{VT+1}, v{KF}, v{KF+1}, v{KF+2}\nv_max_f32 v{VT+1}, v{VT+1}, v{KF+3}")
    a(f"s_mov_b32 s44, {hex(CSCALE)}\nv_mul_f32 v17, s44, v{VT+1}")
    a(f"s_getreg_b32 s59, hwreg(HW_REG_XCC_ID)\ns_and_b32 s59, s59, 7\ns_lshl_b32 s45, s59, 10\ns_or_b32 s45, s45, s56\nv_and_b32 v17, 0xffffe000, v17\nv_or_b32 v17, s45, v17")
    for i in range(16): a(f"v_fma_f32 v{S+i}, v{S+i}, s44, -v17")
    for i in range(16): a(f"v_exp_f32 v{S+i}, v{S+i}")
    a.nop(1)
    a(f"v_add_f32 v{VT+1}, v{S}, v{S+1}")
    for i in range(2, 16): a(f"v_add_f32 v{VT+1}, v{VT+1}, v{S+i}")
    xrow_red(a, "v_add_f32", f"v{VT+1}", f"v{VT+2}")
    a(f"v_add_u32 v{VT+4}, {L_LW-L_MX}, v{VT+4}")
    a(f"s_mov_b64 exec, 0x101\nds_write_b32 v{VT+4}, v{VT+1}\ns_mov_b64 exec, -1")
    a("s_cmp_lg_u32 s30, 3\ns_cbranch_scc1 L_p3_noml")
    a(f"v_add_u32 v{VT+3}, {L_LW-L_MX}, v{VT+3}")
    Lp, Lx = spin_head(a, "s60", cfg.SPIN, "LW")
    a(f"ds_read_b128 v[{KF}:{KF+3}], v{VT+3}"); spin_bound(a, "s60", cfg.SPIN, Lx)
    a(f"s_waitcnt lgkmcnt(0)\nv_add_f32 v{KF}, v{KF}, v{KF+1}\nv_add_f32 v{KF+2}, v{KF+2}, v{KF+3}\nv_add_f32 v19, v{KF}, v{KF+2}")
    a(f"v_cmp_u_f32 vcc, v19, v19\ns_cbranch_vccnz {Lp}\n{Lx}:\ns_waitcnt lgkmcnt(0)")
    a(f"s_lshl_b32 s46, s28, 4\ns_add_u32 s40, s46, s29\ns_lshl_b32 s40, s40, 7\ns_add_u32 s40, s40, {WS_ML}\ns_add_u32 s42, s26, s40\ns_addc_u32 s43, s27, 0")
    a(f"v_and_or_b32 v19, v19, s57, v{VTAG}")
    a("v_readlane_b32 s46, v17, 0\nv_readlane_b32 s47, v19, 0\nv_readlane_b32 s48, v17, 8\nv_readlane_b32 s49, v19, 8")
    a("v_mov_b32 v28, s46\nv_mov_b32 v29, s47\nv_mov_b32 v30, s48\nv_mov_b32 v31, s49")
    a(f"s_mov_b64 exec, 0xff\nglobal_store_dwordx4 v{VL16}, v[28:31], s[42:43] sc1\ns_mov_b64 exec, -1")
    a("L_p3_noml:")
    for i in range(16):
        a(f"v_cvt_pk_bf16_f32 v{S+i}, v{S+i}, v{S+i}")
        for t in range(4): a(f"v_and_b32 v{AO+4*i+t}, v{S+i}, v{MK+t}")
    a.stamp(6)
    a("s_cmp_lg_u32 s30, 0\ns_cbranch_scc1 L_p3_noalive")
    a(f"v_lshrrev_b32 v{VT}, 2, v{VL}\nv_lshlrev_b32 v{VT}, 7, v{VT}\nv_and_b32 v{VT+1}, 3, v{VL}\nv_lshl_add_u32 v{VT}, v{VT+1}, 3, v{VT}\nv_add_u32 v{VT}, {WS_AL}, v{VT}")
    Lp, Lx = spin_head(a, "s60", cfg.GSPIN, "AA")
    a(f"global_load_dwordx2 v[14:15], v{VT}, s[26:27] sc1"); spin_bound(a, "s60", cfg.GSPIN, Lx)
    a(f"s_waitcnt vmcnt(0)\nv_cmp_ne_u32 vcc, s58, v14\nv_cmp_ne_u32 s[40:41], s58, v15\ns_or_b64 vcc, vcc, s[40:41]\ns_cbranch_vccz {Lx}"); a.sleep(cfg.B_AL); a(f"s_branch {Lp}\n{Lx}:\ns_waitcnt vmcnt(0)")
    a("L_p3_noalive:")
    if cfg.LONLY == 5: a("s_branch L_fin")
    VF = KF
    MLR = 20
    a(f"s_lshl_b32 s40, s30, 12\ns_add_u32 s40, s40, {L_V}\nv_add_u32 v{VT}, s40, v{VL16}")
    a(f"s_lshl_b32 s40, s28, 11\ns_add_u32 s40, s40, {WS_ML}\ns_add_u32 s42, s26, s40\ns_addc_u32 s43, s27, 0\nv_lshlrev_b32 v16, 7, v{VJ}")
    for r in range(4): a(f"v_mov_b32 v{O+r}, 0")
    for r in range(4):
        if r == 3:
            L = a.lab("MLS")
            a(f"s_cmp_lg_u32 s30, 3\ns_cbranch_scc1 {L}")
            Lp, Lx = a.lab("ML"), a.lab("MLX")
            a("s_mov_b32 s61, 0\ns_branch " + Lp + "_chk")
            a(f"{Lp}:\nglobal_load_dwordx4 v[{MLR}:{MLR+3}], v16, s[42:43] sc1")
            a(f"{Lp}_chk:")
            spin_bound(a, "s61", cfg.GSPIN, Lx)
            a("s_waitcnt vmcnt(0)")
            tagcheck(a, f"v{VT+2}", range(MLR, MLR+4), VTAG)
            a(f"s_and_b64 exec, exec, vcc\ns_cbranch_execz {Lx}"); a.sleep(cfg.B_ML); a(f"s_branch {Lp}")
            a(f"{Lx}:\ns_mov_b64 exec, -1\ns_waitcnt vmcnt(0)")
            a(f"v_bfe_u32 v24, v{MLR}, 10, 3\nv_cmp_ne_u32 vcc, s59, v24\ns_mov_b64 s[50:51], vcc")
            a(f"v_mov_b32 v24, v{MLR}\nv_mov_b32 v25, v{MLR+2}")
            row_red(a, "v_max_f32", ["v24", "v25"])
            a(f"v_sub_f32 v26, v{MLR}, v24\nv_sub_f32 v27, v{MLR+2}, v25\nv_exp_f32 v26, v26\nv_exp_f32 v27, v27")
            a.nop(1)
            a(f"v_mul_f32 v26, v26, v{MLR+1}\nv_mul_f32 v27, v27, v{MLR+3}")
            row_red(a, "v_add_f32", ["v26", "v27"])
            a("v_readlane_b32 s44, v17, 0\nv_readlane_b32 s45, v17, 8")
            a("v_rcp_f32 v26, v26\nv_rcp_f32 v27, v27\nv_sub_f32 v24, s44, v24\nv_sub_f32 v25, s45, v25\nv_exp_f32 v24, v24\nv_exp_f32 v25, v25")
            a.nop(1)
            a("v_mul_f32 v24, v24, v26\nv_mul_f32 v25, v25, v27")
            a("s_mov_b32 exec_lo, 0\nv_mov_b32 v24, v25\ns_mov_b64 exec, -1")
            a(f"s_lshl_b32 s40, s28, 4\ns_add_u32 s40, s40, s29\ns_lshl_b32 s40, s40, 9\ns_add_u32 s40, s40, {WS_H2}\ns_add_u32 s42, s26, s40\ns_addc_u32 s43, s27, 0")
            a(f"v_lshrrev_b32 v25, 1, v{VKG}\nv_lshlrev_b32 v25, 8, v25\nv_lshl_add_u32 v25, v{VJ}, 4, v25")
            a(f"{L}:")
        lds_wait_ge(a, f"v{VCT}", 3 + r, f"v{VT+2}")
        for t in range(4): a(f"ds_read_b128 v[{VF+4*t}:{VF+4*t+3}], v{VT} offset:{16384*r+1024*t}")
        if r == 1:
            L = a.lab("MLI")
            a(f"s_cmp_lg_u32 s30, 3\ns_cbranch_scc1 {L}\nglobal_load_dwordx4 v[{MLR}:{MLR+3}], v16, s[42:43] sc1\n{L}:")
        for t in range(4):
            a(f"s_waitcnt lgkmcnt({3-t})")
            a(f"v_mfma_f32_16x16x32_bf16 v[{O}:{O+3}], v[{AO+16*r+4*t}:{AO+16*r+4*t+3}], v[{VF+4*t}:{VF+4*t+3}], v[{O}:{O+3}]")
    a(f"v_mov_b32 v{VT+2}, 1"); lds_set(a, f"v{VCT}", 8, f"v{VT+2}", "ds_add_u32")
    a.stamp(7)
    a("s_cmp_eq_u32 s30, 3\ns_cbranch_scc1 L_p4_pub")
    a(f"s_lshl_b32 s40, s30, 10\ns_add_u32 s40, s40, {L_OP}\nv_add_u32 v{VT}, s40, v{VL16}")
    a(f"ds_write_b128 v{VT}, v[{O}:{O+3}]")
    a("s_branch L_p4_done")
    a("L_p4_pub:")
    a(f"v_add_u32 v{VT}, {L_OP}, v{VL16}")
    Lp, Lx = spin_head(a, "s60", cfg.SPIN, "OP")
    for w in range(3): a(f"ds_read_b128 v[{VF+4*w}:{VF+4*w+3}], v{VT} offset:{1024*w}")
    spin_bound(a, "s60", cfg.SPIN, Lx)
    a("s_waitcnt lgkmcnt(0)")
    for e in range(4): a(f"v_add_f32 v{VF+12+e}, v{VF+e}, v{VF+4+e}\nv_add_f32 v{VF+12+e}, v{VF+12+e}, v{VF+8+e}")
    a(f"v_add_f32 v{VT+3}, v{VF+12}, v{VF+13}\nv_add_f32 v{VT+4}, v{VF+14}, v{VF+15}\nv_add_f32 v{VT+3}, v{VT+3}, v{VT+4}")
    a(f"v_cmp_u_f32 vcc, v{VT+3}, v{VT+3}\ns_cbranch_vccnz {Lp}\n{Lx}:\ns_waitcnt lgkmcnt(0)")
    for e in range(4): a(f"v_add_f32 v{O+e}, v{O+e}, v{VF+12+e}\nv_mul_f32 v{O+e}, v{O+e}, v24")
    a(f"v_cvt_pk_bf16_f32 v28, v{O}, v{O+1}\nv_cvt_pk_bf16_f32 v29, v{O+2}, v{O+3}\nv_mov_b32 v30, v28\nv_mov_b32 v31, v29")
    a.nop(1)
    a("v_permlane16_swap_b32 v28, v30\nv_permlane16_swap_b32 v29, v31")
    a.nop(2)
    a.exec64(0x0000ffff, 0x0000ffff)
    L1, L2 = a.lab("PUBG"), a.lab("PUBD")
    a(f"s_cmp_lg_u64 s[50:51], 0\ns_cbranch_scc1 {L1}") if cfg.LOCAL else a(f"s_branch {L1}")
    a(f"global_store_dwordx4 v25, v[28:31], s[42:43]\ns_branch {L2}\n{L1}:")
    a(f"global_store_dwordx4 v25, v[28:31], s[42:43] sc1\n{L2}:\ns_mov_b64 exec, -1")
    a("L_p4_done:")
    a.stamp(8)
    a("s_cmp_lt_u32 s29, 9\ns_cbranch_scc1 L_role_f")
    G, BF, D5 = 20, 64, 112
    a(f"s_lshl_b32 s40, s28, 13\ns_add_u32 s40, s40, {WS_H2}\ns_add_u32 s42, s26, s40\ns_addc_u32 s43, s27, 0")
    a(f"v_lshlrev_b32 v{VT}, 9, v{VJ}\nv_lshl_add_u32 v{VT}, v{VKG}, 4, v{VT}\ns_lshl_b32 s40, s30, 7\nv_add_u32 v{VT}, s40, v{VT}")
    a(f"v_bfe_u32 v{VT+2}, v{VL}, 2, 2\nv_lshl_add_u32 v{VT+2}, v{VKG}, 3, v{VT+2}\ns_lshl_b32 s40, s30, 6\nv_add_u32 v{VT+2}, s40, v{VT+2}")
    a(f"v_mul_u32_u24 v{VT+2}, 192, v{VT+2}\nv_and_b32 v{VT+3}, 3, v{VL}\nv_lshl_add_u32 v{VT+2}, v{VT+3}, 3, v{VT+2}")
    for i in range(24): a(f"v_mov_b32 v{D5+i}, 0")
    lds_wait_ge(a, f"v{VCT}", 1, f"v{VT+4}", off=12)
    a("s_mov_b32 s62, 0")
    Lp, Lx = spin_head(a, "s61", cfg.GSPIN, "H2")
    for t in range(2): a(f"global_load_dwordx4 v[{G+4*t}:{G+4*t+3}], v{VT}, s[42:43] offset:{64*t} sc1")
    Lq = a.lab("H2F")
    a(f"s_cmp_lg_u32 s62, 0\ns_cbranch_scc1 {Lq}\ns_mov_b32 s62, 1")
    a(f"v_mov_b32 v{VT+4}, 1"); lds_set(a, f"v{VCT}", 16, f"v{VT+4}", "ds_add_u32")
    a("s_add_u32 s63, s30, 7")
    lds_wait_ge(a, f"v{VCT}", "s63", f"v{VT+4}")
    for t in range(2):
        for nb_ in range(6):
            for h in range(2):
                a(f"ds_read_b64_tr_b16 v[{BF+8*nb_+4*t+2*h}:{BF+8*nb_+4*t+2*h+1}], v{VT+2} offset:{O_WO+t*6144+h*768+nb_*32}")
    a(f"{Lq}:")
    spin_bound(a, "s61", cfg.GSPIN, Lx)
    a(f"s_waitcnt vmcnt(0)\nv_max3_u32 v{VT+4}, v{G}, v{G+1}, v{G+2}\nv_max3_u32 v{VT+4}, v{VT+4}, v{G+3}, v{G+4}\nv_max3_u32 v{VT+4}, v{VT+4}, v{G+5}, v{G+6}\nv_max_u32 v{VT+4}, v{VT+4}, v{G+7}")
    a(f"v_cmp_eq_u32 vcc, -1, v{VT+4}\ns_and_b64 exec, exec, vcc\ns_cbranch_execz {Lx}"); a.sleep(cfg.B_H2); a(f"s_branch {Lp}")
    a(f"{Lx}:\ns_mov_b64 exec, -1\ns_waitcnt vmcnt(0) lgkmcnt(0)")
    a.stamp(9)
    for t in range(2):
        for nb_ in range(6):
            a(f"v_mfma_f32_16x16x32_bf16 v[{D5+4*nb_}:{D5+4*nb_+3}], v[{G+4*t}:{G+4*t+3}], v[{BF+8*nb_+4*t}:{BF+8*nb_+4*t+3}], v[{D5+4*nb_}:{D5+4*nb_+3}]")
    a.nop(4)
    for nb_ in range(6):
        b = D5 + 4*nb_
        if nb_ == 5: a.nop(4)
        a(f"v_add_f32 v{b}, v{b}, v{b+1}\nv_add_f32 v{b+2}, v{b+2}, v{b+3}\nv_add_f32 v{b}, v{b}, v{b+2}")
    a0, a1, a2, a3 = D5, D5+4, D5+8, D5+12
    b0, b1 = D5+16, D5+20
    z0, z1 = D5+1, D5+2
    a(f"v_mov_b32 v{z0}, 0\nv_mov_b32 v{z1}, 0"); a.nop(2)
    a(f"v_permlane32_swap_b32 v{a0}, v{a2}\nv_permlane32_swap_b32 v{a1}, v{a3}\nv_permlane32_swap_b32 v{b0}, v{z0}\nv_permlane32_swap_b32 v{b1}, v{z1}"); a.nop(1)
    a(f"v_add_f32 v{a0}, v{a0}, v{a2}\nv_add_f32 v{a1}, v{a1}, v{a3}\nv_add_f32 v{b0}, v{b0}, v{z0}\nv_add_f32 v{b1}, v{b1}, v{z1}"); a.nop(2)
    a(f"v_permlane16_swap_b32 v{a0}, v{a1}\nv_permlane16_swap_b32 v{b0}, v{b1}"); a.nop(1)
    a(f"v_add_f32 v{a0}, v{a0}, v{a1}\nv_add_f32 v{b0}, v{b0}, v{b1}")
    a(f"s_lshl_b32 s40, s30, 9\ns_add_u32 s40, s40, {L_R5}\nv_lshlrev_b32 v{VT}, 2, v{VL}\nv_add_u32 v{VT}, s40, v{VT}")
    a(f"ds_write_b32 v{VT}, v{a0}\nds_write_b32 v{VT}, v{b0} offset:256")
    a("s_cmp_lg_u32 s30, 3\ns_cbranch_scc1 L_p5_done")
    a(f"v_lshlrev_b32 v{VT}, 5, v{VL}\nv_add_u32 v{VT}, {L_R5}, v{VT}")
    a("s_sub_u32 s41, s29, 9\ns_mov_b64 exec, 0x3ff\ns_cmp_eq_u32 s41, 6\ns_cselect_b32 exec_lo, 0xfff, exec_lo")
    Lp, Lx = spin_head(a, "s60", cfg.SPIN, "R5")
    for w in range(4):
        for h in range(2): a(f"ds_read_b128 v[{BF+8*w+4*h}:{BF+8*w+4*h+3}], v{VT} offset:{512*w+16*h}")
    spin_bound(a, "s60", cfg.SPIN, Lx)
    a("s_waitcnt lgkmcnt(0)")
    for e in range(8): a(f"v_add_f32 v{G+e}, v{BF+e}, v{BF+8+e}\nv_add_f32 v{BF+32+e}, v{BF+16+e}, v{BF+24+e}\nv_add_f32 v{G+e}, v{G+e}, v{BF+32+e}")
    a(f"v_add_f32 v{VT+3}, v{G}, v{G+1}")
    for e in range(2, 8): a(f"v_add_f32 v{VT+3}, v{VT+3}, v{G+e}")
    a(f"v_cmp_u_f32 vcc, v{VT+3}, v{VT+3}\ns_cbranch_vccnz {Lp}\n{Lx}:\ns_waitcnt lgkmcnt(0)")
    for e in range(4): a(f"v_cvt_pk_bf16_f32 v{G+e}, v{G+2*e}, v{G+2*e+1}")
    a(f"s_mul_i32 s40, s41, 160\ns_mul_i32 s44, s28, 1152\ns_add_u32 s40, s40, s44\ns_add_u32 s40, s40, {WS_H3}\ns_add_u32 s42, s26, s40\ns_addc_u32 s43, s27, 0")
    a(f"global_store_dwordx4 v{VL16}, v[{G}:{G+3}], s[42:43] sc1\ns_mov_b64 exec, -1")
    a("L_p5_done:")
    a.stamp(10)
    a("s_cmp_lg_u32 s30, 0\ns_cbranch_scc1 L_fin")
    a("s_and_b32 s40, s2, 7\ns_lshr_b32 s41, s2, 3\ns_and_b32 s44, s41, 1\ns_lshr_b32 s41, s41, 1\ns_sub_u32 s41, s41, 9\ns_lshl_b32 s41, s41, 1\ns_add_u32 s41, s41, s44")
    a("s_cmp_lt_u32 s41, 8\ns_cbranch_scc1 L_p9_go\ns_cmp_ge_u32 s41, 12\ns_cbranch_scc1 L_fin\ns_cmp_ge_u32 s40, 2\ns_cbranch_scc1 L_fin")
    a("L_p9_go:")
    a("s_lshr_b32 s44, s41, 2\ns_lshl_b32 s44, s44, 3\ns_add_u32 s44, s44, s40\ns_lshl_b32 s44, s44, 5\ns_and_b32 s45, s41, 3\ns_lshl_b32 s45, s45, 3\ns_add_u32 s44, s44, s45")
    a(f"s_lshl_b32 s40, s44, 1\ns_add_u32 s40, s40, {WS_H3}\ns_add_u32 s42, s26, s40\ns_addc_u32 s43, s27, 0")
    a(f"v_mul_u32_u24 v{VT}, 1152, v{VJ}\nv_lshl_add_u32 v{VT}, v{VKG}, 1, v{VT}")
    a(f"s_lshl_b32 s40, s44, 1\ns_add_u32 s46, s4, s40\ns_addc_u32 s47, s5, 0\nv_lshlrev_b32 v{VT+1}, 1, v{VKG}")
    a(f"global_load_ushort v26, v{VT+1}, s[46:47]\nglobal_load_ushort v27, v{VT+1}, s[46:47] offset:8")
    Lp, Lx = spin_head(a, "s60", cfg.GSPIN, "HH")
    a(f"global_load_ushort v24, v{VT}, s[42:43] sc1\nglobal_load_ushort v25, v{VT}, s[42:43] offset:8 sc1"); spin_bound(a, "s60", cfg.GSPIN, Lx)
    a("s_waitcnt vmcnt(0)\nv_max_u32 v28, v24, v25\nv_cmp_eq_u32 vcc, 0xffff, v28\ns_and_b64 exec, exec, vcc")
    a(f"s_cbranch_execz {Lx}"); a.sleep(2); a(f"s_branch {Lp}\n{Lx}:\ns_mov_b64 exec, -1\ns_waitcnt vmcnt(0)")
    a("v_lshlrev_b32 v24, 16, v24\nv_lshlrev_b32 v25, 16, v25\nv_lshlrev_b32 v26, 16, v26\nv_lshlrev_b32 v27, 16, v27")
    row_red(a, "v_add_f32", ["v24", "v25"])
    a("v_add_f32 v24, v24, v26\nv_add_f32 v25, v25, v27")
    a.exec64(0xaaaaaaaa, 0xaaaaaaaa); a("v_mov_b32 v24, v25\ns_mov_b64 exec, -1")
    a(f"s_lshl_b32 s40, s44, 2\ns_add_u32 s40, s40, {WS_H4}\ns_add_u32 s42, s26, s40\ns_addc_u32 s43, s27, 0")
    a(f"v_lshrrev_b32 v{VT}, 1, v{VL}\nv_mul_u32_u24 v{VT}, 2304, v{VT}\nv_and_b32 v{VT+1}, 1, v{VL}\nv_lshl_add_u32 v{VT}, v{VT+1}, 4, v{VT}")
    for t in range(1, 5): a(f"v_add_u32 v{VT+t}, {32*2304*t}, v{VT}")
    for e in range(4): a(f"v_mov_b32 v{80+e}, v{VTAG}")
    a("s_mov_b64 s[46:47], -1")
    Lp, Lx = spin_head(a, "s60", cfg.GSPIN, "H4")
    for t in range(4): a(f"global_load_dwordx4 v[{64+4*t}:{67+4*t}], v{VT+t}, s[42:43] sc1")
    a(f"s_mov_b32 exec_hi, 0\nglobal_load_dwordx4 v[80:83], v{VT+4}, s[42:43] sc1\ns_mov_b64 exec, s[46:47]")
    spin_bound(a, "s60", cfg.GSPIN, Lx)
    a("s_waitcnt vmcnt(0)")
    tagcheck(a, "v28", range(64, 84), VTAG)
    a(f"s_and_b64 s[46:47], exec, vcc\ns_mov_b64 exec, s[46:47]\ns_cbranch_execz {Lx}"); a.sleep(cfg.B_H4); a(f"s_branch {Lp}")
    a(f"{Lx}:\ns_mov_b64 exec, -1\ns_waitcnt vmcnt(0)")
    a.stamp(14)
    for e in range(4): a(f"v_add_f32 v{20+e}, v{64+e}, v{68+e}\nv_add_f32 v{28+e}, v{72+e}, v{76+e}\nv_add_f32 v{20+e}, v{20+e}, v{80+e}\nv_add_f32 v{20+e}, v{20+e}, v{28+e}")
    a.nop(2)
    a("v_permlane32_swap_b32 v20, v22\nv_permlane32_swap_b32 v21, v23"); a.nop(1)
    a("v_add_f32 v20, v20, v22\nv_add_f32 v21, v21, v23"); a.nop(2)
    a("v_permlane16_swap_b32 v20, v21"); a.nop(1)
    a("v_add_f32 v20, v20, v21")
    for ctl in ("row_ror:8", "row_ror:4", "row_ror:2"):
        a.nop(2); dpp(a, "v_add_f32", "v20", ctl)
    a("v_add_f32 v20, v20, v24\nv_cvt_pk_bf16_f32 v20, v20, v20")
    a(f"s_lshl_b32 s40, s44, 1\ns_add_u32 s42, s22, s40\ns_addc_u32 s43, s23, 0\nv_and_b32 v{VT}, 1, v{VL}\nv_lshlrev_b32 v{VT}, 3, v{VT}\nv_lshl_add_u32 v{VT}, v{VKG}, 1, v{VT}")
    a.exec64(0x00030003, 0x00030003)
    a(f"global_store_short v{VT}, v20, s[42:43]\ns_mov_b64 exec, -1")
    a(f"s_cmp_lg_u32 s44, 0\ns_cbranch_scc1 L_fin\nv_mov_b32 v{VT}, {WS_EP}\nv_mov_b32 v{VT+1}, s58\ns_mov_b64 exec, 1\nglobal_store_dword v{VT}, v{VT+1}, s[26:27]\ns_mov_b64 exec, -1")
    a("s_branch L_fin")
    a("L_role_f:")
    WF, RAW, HF, AC, SEL, DF = 64, 136, 136, 236, 56, 208
    a(f"v_bfe_u32 v{VT}, v{VL}, 2, 2\nv_lshl_add_u32 v{VT}, v{VKG}, 3, v{VT}\nv_lshlrev_b32 v{VT}, 6, v{VT}\nv_and_b32 v{VT+1}, 3, v{VL}\nv_lshl_add_u32 v{VT}, v{VT+1}, 3, v{VT}")
    a(f"s_and_b32 s40, s30, 1\ns_lshl_b32 s40, s40, 5\ns_lshr_b32 s41, s30, 1\ns_mul_i32 s41, s41, {F_U}\ns_add_u32 s40, s40, s41\nv_add_u32 v{VT}, s40, v{VT}")
    a(f"v_bfe_u32 v10, v{VL}, 2, 2\nv_lshl_add_u32 v10, v{VKG}, 3, v10\nv_mul_u32_u24 v10, 1152, v10")
    a(f"v_and_b32 v{VT+2}, 3, v{VL}\nv_lshlrev_b32 v{VT+2}, 3, v{VT+2}\ns_mul_i32 s40, s30, 288\ns_add_u32 s40, s40, {F_D}\nv_add_u32 v{VT+2}, s40, v{VT+2}\nv_add_u32 v10, v10, v{VT+2}")
    def wfrags():
        for t in range(18):
            for h in range(2): a(f"ds_read_b64_tr_b16 v[{WF+4*t+2*h}:{WF+4*t+2*h+1}], v{VT} offset:{2048*t+256*h}")
    def dfrags():
        for n in range(9):
            for h in range(2): a(f"ds_read_b64_tr_b16 v[{DF+4*n+2*h}:{DF+4*n+2*h+1}], v10 offset:{32*n+4608*h}")
    a("s_cmp_lg_u32 s30, 0\ns_cbranch_scc1 L_p6_skip")
    for t in range(4): a(f"v_and_b32 v{SEL+t}, 0x3f803f80, v{MK+t}")
    for pb in range(4):
        for e in range(4): a(f"v_mov_b32 v{RAW+64+4*pb+e}, 0")
    a(f"s_add_u32 s42, s26, {WS_H3}\ns_addc_u32 s43, s27, 0")
    a(f"v_mul_u32_u24 v{VT+1}, 1152, v{VKG}\nv_lshl_add_u32 v{VT+1}, v{VJ}, 4, v{VT+1}")
    lds_wait_ge(a, f"v{VCT}", 7, f"v{VT+2}")
    wfrags()
    lds_wait_ge(a, f"v{VCT}", 1, f"v{VT+2}", off=12)
    a.stamp(9)
    a("s_mov_b64 s[46:47], -1")
    Lp, Lx = spin_head(a, "s61", cfg.GSPIN, "H3")
    a("s_mov_b32 s44, s42\ns_mov_b32 s45, s43")
    for pb in range(4):
        for cb in range(4): a(f"global_load_dwordx4 v[{RAW+16*cb+4*pb}:{RAW+16*cb+4*pb+3}], v{VT+1}, s[44:45] offset:{256*cb} sc1")
        a("s_and_b32 exec_lo, exec_lo, 0x00ff00ff\ns_and_b32 exec_hi, exec_hi, 0x00ff00ff")
        Lz = a.lab("H3Z")
        a(f"s_cbranch_execz {Lz}\nglobal_load_dwordx4 v[{RAW+64+4*pb}:{RAW+64+4*pb+3}], v{VT+1}, s[44:45] offset:1024 sc1\n{Lz}:")
        a(f"s_mov_b64 exec, s[46:47]\ns_add_u32 s44, s44, {4*1152}\ns_addc_u32 s45, s45, 0")
    a("s_mov_b64 exec, -1")
    spin_bound(a, "s61", cfg.GSPIN, Lx)
    Lw = a.lab("H3W")
    a(f"s_cmp_le_u32 s61, 1\ns_cbranch_scc1 {Lw}\ns_waitcnt vmcnt(0)\n{Lw}:")
    for pb in range(4):
        a(f"s_waitcnt vmcnt({15-5*pb})")
        for cb in range(5):
            c_in = XF + 4*cb if pb == 0 else AC + 4*cb
            a(f"v_mfma_f32_16x16x32_bf16 v[{AC+4*cb}:{AC+4*cb+3}], v[{SEL}:{SEL+3}], v[{RAW+16*cb+4*pb}:{RAW+16*cb+4*pb+3}], v[{c_in}:{c_in+3}]")
    a.nop(4)
    def pr(b): return f"v[{b}:{b+1}]"
    a(f"v_pk_add_f32 v[14:15], {pr(AC)}, {pr(AC+2)}\nv_pk_mul_f32 v[16:17], {pr(AC)}, {pr(AC)}\nv_pk_fma_f32 v[16:17], {pr(AC+2)}, {pr(AC+2)}, v[16:17]")
    for i in range(4, 20, 2):
        if i == 16: a.nop(4)
        a(f"v_pk_add_f32 v[14:15], v[14:15], {pr(AC+i)}\nv_pk_fma_f32 v[16:17], {pr(AC+i)}, {pr(AC+i)}, v[16:17]")
    a("v_add_f32 v14, v14, v15\nv_add_f32 v16, v16, v17")
    a(f"v_cmp_u_f32 vcc, v14, v14\ns_cbranch_vccz {Lx}\ns_mov_b64 s[46:47], vcc\ns_mov_b64 exec, vcc"); a.sleep(cfg.B_H3); a(f"s_branch {Lp}")
    a(f"{Lx}:\ns_mov_b64 exec, -1\ns_waitcnt vmcnt(0) lgkmcnt(0)")
    a.stamp(11)
    row_red(a, "v_add_f32", ["v14", "v16"])
    a("v_mov_b32 v15, v14\nv_mov_b32 v17, v16"); a.nop(1)
    a("v_permlane16_swap_b32 v14, v15\nv_permlane16_swap_b32 v16, v17"); a.nop(1)
    a("v_add_f32 v14, v14, v15\nv_add_f32 v16, v16, v17")
    a(f"v_mul_f32 v14, {hex(f2b(1.0/576))}, v14\nv_mul_f32 v16, {hex(f2b(1.0/576))}, v16")
    a(f"v_fma_f32 v16, -v14, v14, v16\nv_max_f32 v16, 0, v16\nv_add_f32 v16, {hex(f2b(1e-5))}, v16\nv_rsq_f32 v16, v16")
    a(f"v_and_b32 v{VT+1}, 1, v{VKG}\nv_lshlrev_b32 v{VT+1}, 3, v{VT+1}\nv_lshl_add_u32 v{VT+1}, v{VJ}, 4, v{VT+1}\nv_add_u32 v{VT+1}, {L_HN}, v{VT+1}")
    a("v_mul_f32 v14, v14, v16\nv_mov_b32 v17, v16\nv_sub_f32 v14, 0, v14\nv_mov_b32 v15, v14")
    a("s_mov_b32 exec_hi, 0")
    for cb in range(5):
        a(f"v_pk_fma_f32 {pr(AC+4*cb)}, {pr(AC+4*cb)}, v[16:17], v[14:15]\nv_pk_fma_f32 {pr(AC+4*cb+2)}, {pr(AC+4*cb+2)}, v[16:17], v[14:15]")
        a(f"v_cvt_pk_bf16_f32 v{20+2*cb}, v{AC+4*cb}, v{AC+4*cb+1}\nv_cvt_pk_bf16_f32 v{21+2*cb}, v{AC+4*cb+2}, v{AC+4*cb+3}")
        if cb == 4: a("s_mov_b32 exec_lo, 0x00ff00ff")
        a(f"ds_write_b64 v{VT+1}, v[{20+2*cb}:{21+2*cb}] offset:{256*cb}")
    a("s_mov_b64 exec, -1")
    a(f"v_mov_b32 v{VT+2}, 1"); lds_set(a, f"v{VCT}", 20, f"v{VT+2}")
    lds_wait_ge(a, f"v{VCT}", 8, f"v{VT+2}")
    dfrags()
    a("s_branch L_p7_go")
    a("L_p6_skip:")
    a("s_lshr_b32 s63, s30, 1\ns_lshl_b32 s63, s63, 1\ns_add_u32 s63, s63, 7")
    lds_wait_ge(a, f"v{VCT}", "s63", f"v{VT+2}")
    wfrags()
    lds_wait_ge(a, f"v{VCT}", 9, f"v{VT+2}")
    dfrags()
    lds_wait_ge(a, f"v{VCT}", 1, f"v{VT+2}", off=20)
    a("L_p7_go:")
    D7 = 20
    a(f"v_lshlrev_b32 v{VT+1}, 4, v{VKG}\nv_add_u32 v{VT+1}, {L_HN}, v{VT+1}")
    for e in range(8): a(f"v_mov_b32 v{D7+e}, 0")
    a("s_waitcnt lgkmcnt(0)")
    for t in range(14): a(f"ds_read_b128 v[{HF+4*t}:{HF+4*t+3}], v{VT+1} offset:{64*t}")
    for t in range(18):
        if t + 14 < 18: a("s_waitcnt lgkmcnt(13)")
        else: a(f"s_waitcnt lgkmcnt({17-t})")
        a(f"v_mfma_f32_16x16x32_bf16 v[{D7+4*(t&1)}:{D7+4*(t&1)+3}], v[{WF+4*t}:{WF+4*t+3}], v[{HF+4*t}:{HF+4*t+3}], v[{D7+4*(t&1)}:{D7+4*(t&1)+3}]")
        if t + 14 < 18: a(f"ds_read_b128 v[{HF+4*(t+14)}:{HF+4*(t+14)+3}], v{VT+1} offset:{64*(t+14)}")
    a(f"s_lshl_b32 s40, s30, 6\ns_add_u32 s40, s40, {L_R7}\nv_lshlrev_b32 v{VT}, 4, v{VKG}\nv_add_u32 v{VT}, s40, v{VT}")
    a(f"v_lshlrev_b32 v{VT+1}, 5, v{VKG}\nv_add_u32 v{VT+1}, {L_R7}, v{VT+1}")
    a(f"s_mul_i32 s40, s28, 9\ns_add_u32 s40, s40, s29\ns_mul_i32 s40, s40, 2304\ns_mul_i32 s41, s30, 576\ns_add_u32 s40, s40, s41\ns_add_u32 s40, s40, {WS_H4}")
    a(f"s_add_u32 s42, s26, s40\ns_addc_u32 s43, s27, 0")
    for e in range(4): a(f"v_add_f32 v{D7+e}, v{D7+e}, v{D7+4+e}")
    a.exec64(0x00010001, 0x00010001)
    a(f"ds_write_b128 v{VT}, v[{D7}:{D7+3}]\ns_mov_b64 exec, -1")
    a.stamp(12)
    BB, D8 = 136, 20
    a(f"v_lshlrev_b32 v{VT}, 6, v{VJ}\nv_lshl_add_u32 v{VT}, v{VKG}, 4, v{VT}")
    Lp, Lx = spin_head(a, "s60", cfg.SPIN, "R7")
    a(f"ds_read_b128 v[32:35], v{VT+1}\nds_read_b128 v[36:39], v{VT+1} offset:16\nds_read_b128 v[40:43], v{VT+1} offset:128\nds_read_b128 v[44:47], v{VT+1} offset:144")
    spin_bound(a, "s60", cfg.SPIN, Lx)
    a("s_waitcnt lgkmcnt(0)")
    for e in range(8): a(f"v_max_f32 v{48+e}, 0, v{32+e}")
    for e in range(0, 8, 2): a(f"v_pk_mul_f32 {pr(48+e)}, {pr(48+e)}, {pr(40+e)}")
    a("v_max3_u32 v56, v32, v33, v34\nv_max3_u32 v57, v35, v36, v37\nv_max3_u32 v56, v56, v38, v39\nv_max3_u32 v57, v57, v40, v41\nv_max3_u32 v56, v56, v42, v43\nv_max3_u32 v57, v57, v44, v45\nv_max3_u32 v56, v56, v46, v47\nv_max_u32 v56, v56, v57")
    a(f"v_cmp_eq_u32 vcc, -1, v56\ns_cbranch_vccnz {Lp}\n{Lx}:\ns_waitcnt lgkmcnt(0)")
    for e in range(4): a(f"v_cvt_pk_bf16_f32 v{32+e}, v{48+2*e}, v{49+2*e}")
    for e in range(4): a(f"v_mov_b32 v{D8+e}, 0")
    for n in range(9):
        a(f"s_mov_b32 s46, {hex(0x00010001 << n)}\ns_mov_b32 s47, s46")
        for h in range(4): a(f"v_cndmask_b32 v{BB+4*n+h}, 0, v{32+h}, s[46:47]")
        if n:
            a(f"v_mfma_f32_16x16x32_bf16 v[{D8}:{D8+3}], v[{DF+4*(n-1)}:{DF+4*(n-1)+3}], v[{BB+4*(n-1)}:{BB+4*(n-1)+3}], v[{D8}:{D8+3}]")
    a.nop(2)
    a(f"v_mfma_f32_16x16x32_bf16 v[{D8}:{D8+3}], v[{DF+32}:{DF+35}], v[{BB+32}:{BB+35}], v[{D8}:{D8+3}]")
    a.nop(8)
    for e in range(4): a(f"v_and_or_b32 v{D8+e}, v{D8+e}, s57, v{VTAG}")
    a.exec64(0x01ff01ff, 0x01ff01ff)
    a(f"global_store_dwordx4 v{VT}, v[{D8}:{D8+3}], s[42:43] sc1\ns_mov_b64 exec, -1")
    a.stamp(13)
    a("L_fin:")
    a.stamp(15)
    stamps_out(a)
    a("s_endpgm")

def generate(cfg):
    a = A(cfg)
    K = NAME + "_kernel"
    hdr = open("cdna_kernels/" + NAME + ".s.ref").read().split("; Override launch geometry")[0]
    out = [hdr.rstrip(), "; Override launch geometry by editing the next line (default: block=256,", "; grid=ceil(out_elems/256), lds=0). Harness parses it; keep it on one line.",
           f"; @launch grid=(256,1,1) block=(320,1,1) lds={LDS_BYTES}", '.amdgcn_target "amdgcn-amd-amdhsa--gfx950"\n.text', f".globl {K}\n.p2align 8\n.type {K},@function\n{K}:"]
    a("s_cmp_ge_u32 s2, 256\ns_cbranch_scc1 L_exit")
    a("s_load_dwordx16 s[4:19], s[0:1], 0\ns_load_dwordx8 s[20:27], s[0:1], 64")
    if cfg.STAMP:
        for i in range(16): a(f"s_mov_b64 s[{64+2*i}:{65+2*i}], 0")
        a("s_memrealtime s[64:65]")
    a("v_and_b32 v1, 63, v0\nv_lshrrev_b32 v2, 6, v0")
    a("s_and_b32 s28, s2, 7\ns_lshl_b32 s28, s28, 1\ns_lshr_b32 s29, s2, 3\ns_and_b32 s29, s29, 1\ns_or_b32 s28, s28, s29\ns_lshr_b32 s29, s2, 4")
    a("v_readfirstlane_b32 s3, v2")
    a("s_waitcnt lgkmcnt(0)")
    a("s_cmp_lg_u32 s3, 0\ns_cbranch_scc1 L_consumer")
    gen_loader(a)
    gen_consumer(a)
    a("L_exit:\ns_endpgm")
    out += a.L
    out.append('.section .rodata,"a"\n.p2align 6')
    out.append(f".amdhsa_kernel {K}")
    out.append("  .amdhsa_next_free_vgpr 256\n  .amdhsa_next_free_sgpr 102\n  .amdhsa_accum_offset 256\n  .amdhsa_group_segment_fixed_size 0\n  .amdhsa_kernarg_size 96\n  .amdhsa_user_sgpr_count 2\n  .amdhsa_user_sgpr_kernarg_segment_ptr 1\n  .amdhsa_system_sgpr_workgroup_id_x 1\n.end_amdhsa_kernel")
    return "\n".join(out) + "\n"

if __name__ == "__main__":
    cfg = Cfg()
    for kv in sys.argv[2:]:
        k, v = kv.split("=")
        setattr(cfg, k, v if k == "NT" else (v == "1" if k == "STAMP" else int(v)))
    open(sys.argv[1], "w").write(generate(cfg))
```

```python
import sys, struct, math
NAME = "sequential_preLN__sliding_block_cached__glu_gated_reglu__decode"
def f2b(x): return struct.unpack("<I", struct.pack("<f", x))[0]

class Cfg:
    W1 = 20; WWO = 14; WGU = 12; WD = 20
    NT = "nt"
    STAMP = False
    DBG = 0
    LOCAL = 1
    CPF = 0
    TPF = 0
    PF = 1
    WG0 = 14; NG0 = 0
    WG1 = 14
    WUP = 16
    GUROT = 0
    ROT = 5
    LONLY = 0
    H3GATE = 1
    T_H1 = 0
    D_H1 = 0; B_H1 = 0; B_ML = 0; B_H2 = 0; B_H3 = 0; B_H4 = 2; B_AL = 2
    SPIN = 1 << 16
    GSPIN = 1 << 13

WS_H1 = 0x00000; WS_ML = 0x10000; WS_H2 = 0x18000; WS_H3 = 0x38000; WS_AL = 0x3d000; WS_EP = 0x3f000; WS_H4 = 0x40000; WS_ST = 0x100000
L_WQ = 0; L_K = 18432; L_V = L_K + 65536; L_SB = L_V + 65536
L_XN = L_SB
L_QB = L_XN + 1152
L_MX = L_QB + 512
L_LW = L_MX + 32
L_OP = L_LW + 32
L_R5 = L_OP + 3072
L_HN = L_R5 + 2048
L_R7 = L_HN + 1152
L_QP = L_R7 + 256
L_CT = L_QP + 256
L_END = L_CT + 64
LDS_BYTES = 161280
assert L_END <= LDS_BYTES
POIS_LO, POIS_HI = L_QB, L_CT
F_G, F_U, F_D = 0, 36864, L_V
O_WO = 0
CSCALE = f2b(math.log2(math.e) / math.sqrt(128.0))

class A:
    def __init__(s, cfg): s.L = []; s.cfg = cfg; s.uid = 0
    def __call__(s, t):
        for ln in t.split("\n"):
            ln = ln.strip()
            if ln: s.L.append(("" if ln.endswith(":") else "    ") + ln)
    def lab(s, base): s.uid += 1; return f"{base}_{s.uid}"
    def nop(s, n):
        while n > 0:
            k = min(n, 16); s(f"s_nop {k-1}"); n -= k
    def stamp(s, idx):
        if s.cfg.STAMP: s(f"s_memrealtime s[{64+2*idx}:{65+2*idx}]")
    def exec64(s, lo, hi): s(f"s_mov_b32 exec_lo, {hex(lo)}\ns_mov_b32 exec_hi, {hex(hi)}")
    def sleep(s, n):
        while n > 0:
            k = min(n, 127); s(f"s_sleep {k}"); n -= k

def lds_wait_ge(a, addr_v, val, tmp_v, tmp_s="s31", cnt_s="s60", off=0):
    if a.cfg.LONLY and off in (4, 8, 12, 16): return
    L = a.lab("LW"); X = a.lab("LX")
    o = f" offset:{off}" if off else ""
    a(f"s_mov_b32 {cnt_s}, 0\n{L}:\nds_read_b32 {tmp_v}, {addr_v}{o}")
    a(f"s_add_u32 {cnt_s}, {cnt_s}, 1\ns_cmp_gt_u32 {cnt_s}, {a.cfg.SPIN}\ns_cbranch_scc1 {X}")
    a(f"s_waitcnt lgkmcnt(0)\nv_readfirstlane_b32 {tmp_s}, {tmp_v}\ns_cmp_lt_u32 {tmp_s}, {val}\ns_cbranch_scc1 {L}\n{X}:\ns_waitcnt lgkmcnt(0)")

def lds_set(a, addr_v, off, val_v, op="ds_write_b32"):
    a(f"s_mov_b64 exec, 1\n{op} {addr_v}, {val_v} offset:{off}\ns_mov_b64 exec, -1")

def dpp(a, op, v, ctl): a(f"{op}_dpp {v}, {v}, {v} {ctl} row_mask:0xf bank_mask:0xf")
def row_red(a, op, vs):
    if isinstance(vs, str): vs = [vs]
    for ctl in ("quad_perm:[1,0,3,2]", "quad_perm:[2,3,0,1]", "row_half_mirror", "row_mirror"):
        a.nop(max(0, 3 - len(vs))) if len(vs) < 3 else None
        for v in vs: dpp(a, op, v, ctl)
    a.nop(0)
def xrow_red(a, op, v, t):
    a(f"v_mov_b32 {t}, {v}"); a.nop(2)
    a(f"v_permlane16_swap_b32 {v}, {t}"); a.nop(1)
    a(f"{op} {v}, {v}, {t}\nv_mov_b32 {t}, {v}"); a.nop(2)
    a(f"v_permlane32_swap_b32 {v}, {t}"); a.nop(1)
    a(f"{op} {v}, {v}, {t}")

def spin_head(a, cnt, bound, name):
    Lp, Lx = a.lab(name), a.lab(name + "X")
    a(f"s_mov_b32 {cnt}, 0\n{Lp}:")
    return Lp, Lx
def spin_bound(a, cnt, bound, Lx):
    a(f"s_add_u32 {cnt}, {cnt}, 1\ns_cmp_gt_u32 {cnt}, {bound}\ns_cbranch_scc1 {Lx}")

def tagcheck(a, acc, regs, vtag):
    regs = list(regs)
    a(f"v_xor_b32 {acc}, v{regs[0]}, v{vtag}")
    for r in regs[1:]: a(f"v_bitop3_b32 {acc}, {acc}, v{r}, v{vtag} bitop3:0xf6")
    a(f"v_and_b32 {acc}, 0x3ff, {acc}\nv_cmp_ne_u32 vcc, 0, {acc}")

def stamps_out(a, loader=False):
    if not a.cfg.STAMP: return
    if a.cfg.DBG:
        a("s_waitcnt lgkmcnt(0)\ns_mov_b64 exec, 1")
        if loader: lst = [(0, 0, 0), (255, 0, 1), (0, 3, 2), (255, 3, 3), (0, 8, 4)]
        else: lst = [(0, 7, 5), (0, 11, 6), (0, 13, 7), (144, 9, 8), (144, 10, 9), (144, 14, 10), (144, 15, 11), (145, 15, 12), (160, 15, 13), (161, 15, 14), (178, 15, 15)]
        for (wg, st, slot) in lst:
            L = a.lab("DB")
            a(f"s_cmp_lg_u32 s2, {wg}\ns_cbranch_scc1 {L}")
            if not loader: a(f"s_cmp_lg_u32 s30, 0\ns_cbranch_scc1 {L}")
            a(f"v_mov_b32 v250, {4*slot}\nv_mov_b32 v251, s{64+2*st}\nglobal_store_dword v250, v251, s[24:25]\n{L}:")
        return
    a("s_waitcnt lgkmcnt(0)")
    a(f"s_lshl_b32 s40, s2, 3\ns_add_u32 s40, s40, s3\ns_lshl_b32 s40, s40, 7\ns_add_u32 s40, s40, {WS_ST}")
    a("s_add_u32 s40, s26, s40\ns_addc_u32 s41, s27, 0\ns_mov_b64 exec, 1\nv_mov_b32 v250, 0")
    for i in range(16):
        a(f"v_mov_b32 v252, s{64+2*i}\nv_mov_b32 v253, s{65+2*i}\nglobal_store_dwordx2 v250, v[252:253], s[40:41] offset:{8*i}")
        a.nop(2)

def gen_loader(a):
    cfg = a.cfg; NT = cfg.NT
    V_L16, V_WQ, V_K, V_P, V_FA, V_FV, V_T = 4, 5, 6, 10, 16, 17, 18
    a("L_loader:\ns_setprio 1")
    a(f"v_lshlrev_b32 v{V_L16}, 4, v1")
    a(f"v_lshrrev_b32 v20, 3, v1\nv_lshlrev_b32 v20, 13, v20\nv_and_b32 v21, 7, v1\nv_lshlrev_b32 v21, 4, v21\nv_add_u32 v{V_WQ}, v20, v21")
    a("s_lshr_b32 s40, s29, 2\ns_mul_i32 s40, s40, 1179648")
    a("s_and_b32 s41, s29, 3\ns_lshl_b32 s41, s41, 7\ns_lshl_b32 s42, s28, 9\ns_add_u32 s41, s41, s42\ns_add_u32 s40, s40, s41")
    a("s_add_u32 s32, s10, s40\ns_addc_u32 s33, s11, 0\ns_sub_u32 s34, 4718592, s40\ns_mov_b32 s35, 0x20000")
    def raw(pat, off=0):
        o = f" offset:{off}" if off else ""
        a(f"buffer_load_dwordx4 v{pat}, s[32:35], s36 offen{o} {NT} lds")
    def signal(val):
        a(f"v_mov_b32 v{V_FV}, {val}"); lds_set(a, f"v{V_FA}", 0, f"v{V_FV}")
    class Seq:
        def __init__(s, W, n, pend): s.n = n; s.W = W; s.pend = pend
        def after(s):
            n = s.n
            if n >= s.W - 1:
                a(f"s_waitcnt vmcnt({s.W-1})")
                landed = n - s.W + 1
                while s.pend and s.pend[0][0] <= landed: signal(s.pend.pop(0)[1])
                if cfg.T_H1 and landed == 18 + cfg.T_H1:
                    a(f"v_mov_b32 v{V_FV}, 1"); lds_set(a, f"v{V_FA}", 24, f"v{V_FV}")
            s.n += 1
        def drain(s):
            last = s.n - 1
            while s.pend:
                e, v = s.pend.pop(0)
                a(f"s_waitcnt vmcnt({last-e})"); signal(v)
    q = Seq(cfg.W1, 0, [])
    a(f"s_mov_b32 m0, {L_WQ}\ns_mov_b32 s36, 0")
    q.pend.append((17, 1))
    for i in range(18):
        if i: a("s_add_u32 m0, m0, 0x400\ns_add_u32 s36, s36, 0x10000")
        else: a.nop(1)
        raw(V_WQ); q.after()
        if i == 1:
            a("v_lshrrev_b32 v20, 4, v1\nv_lshlrev_b32 v21, 2, v20\nv_and_b32 v22, 15, v1\nv_xor_b32 v22, v22, v21\nv_lshlrev_b32 v20, 8, v20")
            for p in range(4): a(f"v_xor_b32 v23, {p}, v22\nv_lshlrev_b32 v23, 4, v23\nv_add_u32 v{V_K+p}, v20, v23")
            a(f"v_mov_b32 v{V_FA}, {L_CT}")
        if i == 5: a("s_barrier")
    a.stamp(1)
    for name, p, lbase, pats in (("K", 6, L_K, [V_K, V_K+1, V_K+2, V_K+3]), ("V", 8, L_V, [V_L16]*4)):
        a(f"s_lshl_b32 s40, s28, 24\ns_lshl_b32 s42, s29, 16\ns_add_u32 s42, s42, {(65536-4096)*256}\ns_add_u32 s40, s40, s42")
        a(f"s_add_u32 s32, s{p}, s40\ns_addc_u32 s33, s{p+1}, 0\ns_mov_b32 s34, 65536\ns_mov_b32 m0, {lbase}\ns_mov_b32 s36, 0")
        if cfg.ROT: a(f"s_mul_i32 s36, s28, {cfg.ROT}\ns_add_u32 s36, s36, s29\ns_and_b32 s36, s36, 15\ns_lshl_b32 s36, s36, 12")
        base = q.n
        if name == "K": q.pend.append((base + 63, 2))
        else:
            for r in range(4): q.pend.append((base + 16*r + 15, 3 + r))
        for i in range(64):
            if i and i % 4 == 0:
                a("s_add_u32 m0, m0, 0x1000\ns_add_u32 s36, s36, 0x1000")
                if cfg.ROT: a("s_and_b32 s36, s36, 0xffff")
            elif i == 0: a.nop(1)
            raw(pats[i % 4], off=(i % 4) * 1024); q.after()
        a.stamp(2 if name == "K" else 3)
    lds_wait_ge(a, f"v{V_FA}", 4, "v19", "s43", "s44", off=4)
    a.stamp(4)
    n0, p0 = q.n, list(q.pend)
    a("s_cmp_ge_u32 s29, 9\ns_cbranch_scc1 L_ld_o")
    q = Seq(cfg.WGU, n0, list(p0))
    a(f"v_lshrrev_b32 v20, 2, v1\nv_mul_u32_u24 v20, 9216, v20\nv_and_b32 v21, 3, v1\nv_lshlrev_b32 v21, 4, v21\nv_add_u32 v{V_P}, v20, v21")
    a("s_mul_i32 s45, s28, 288\ns_lshl_b32 s46, s29, 5\ns_add_u32 s45, s45, s46")
    def gu_tile(p, lb, mile, W):
        q.W = W
        q.pend.append((q.n + 35, mile))
        a(f"s_lshl_b32 s40, s45, 1\ns_add_u32 s32, s{p}, s40\ns_addc_u32 s33, s{p+1}, 0\ns_sub_u32 s34, 5308416, s40\ns_mov_b32 m0, {lb}\ns_mov_b32 s36, 0")
        for i in range(36):
            if i: a(f"s_add_u32 m0, m0, 0x400\ns_add_u32 s36, s36, {16*9216}")
            else: a.nop(1)
            if mile == 7 and i < cfg.NG0: q.W = cfg.WG0
            else: q.W = W
            raw(V_P); q.after()
    gu_tile(16, F_G, 7, cfg.WG1)
    a.stamp(5)
    lds_wait_ge(a, f"v{V_FA}", 4, "v19", "s43", "s44", off=8)
    a(f"s_mul_i32 s40, s45, 1152\ns_add_u32 s32, s20, s40\ns_addc_u32 s33, s21, 0\ns_mov_b32 s34, {32*1152}\ns_mov_b32 m0, {F_D}\ns_mov_b32 s36, 0")
    q.pend.append((q.n + 35, 8)); q.W = cfg.WD
    for i in range(36):
        if i and i % 4 == 0: a("s_add_u32 m0, m0, 0x1000\ns_add_u32 s36, s36, 0x1000")
        elif i == 0: a.nop(1)
        raw(V_L16, off=(i % 4) * 1024); q.after()
    a.stamp(7)
    gu_tile(18, F_U, 9, cfg.WUP)
    a(f"v_mov_b32 v{V_FV}, 1"); lds_set(a, f"v{V_FA}", 12, f"v{V_FV}")
    a.stamp(6)
    q.drain()
    a("s_branch L_ld_done")
    a("L_ld_o:")
    q = Seq(cfg.WWO, n0, list(p0))
    for p in range(3):
        a(f"v_add_u32 v20, {64*p}, v1\nv_mul_u32_u24 v21, 171, v20\nv_lshrrev_b32 v21, 11, v21")
        a(f"v_mul_u32_u24 v22, 12, v21\nv_sub_u32 v22, v20, v22\nv_lshlrev_b32 v22, 4, v22\nv_mul_u32_u24 v21, 1152, v21\nv_add_u32 v{V_P+p}, v21, v22")
    a("s_mul_i32 s40, s28, 294912\ns_sub_u32 s41, s29, 9\ns_mul_i32 s41, s41, 160\ns_add_u32 s40, s40, s41")
    a(f"s_add_u32 s32, s12, s40\ns_addc_u32 s33, s13, 0\ns_sub_u32 s34, 4718592, s40\ns_mov_b32 m0, {O_WO}\ns_mov_b32 s36, 0")
    for c in range(4): q.pend.append((q.n + 12*c + 11, 7 + c))
    for i in range(48):
        if i:
            a("s_add_u32 m0, m0, 0x400")
            if i % 3 == 0: a(f"s_add_u32 s36, s36, {16*1152}")
            else: a.nop(1)
        else: a.nop(1)
        raw(V_P + i % 3); q.after()
    a(f"v_mov_b32 v{V_FV}, 1"); lds_set(a, f"v{V_FA}", 12, f"v{V_FV}")
    a.stamp(5)
    if cfg.PF:
        a("s_and_b32 s40, s2, 7\ns_lshr_b32 s41, s2, 3\ns_and_b32 s44, s41, 1\ns_lshr_b32 s41, s41, 1\ns_sub_u32 s41, s41, 9\ns_lshl_b32 s41, s41, 1\ns_add_u32 s41, s41, s44")
        a("s_mul_i32 s40, s40, 1152\ns_add_u32 s32, s18, s40\ns_addc_u32 s33, s19, 0\ns_sub_u32 s34, 5308416, s40\ns_lshl_b32 s41, s41, 6\ns_mov_b32 s46, 7282\ns_mov_b32 s47, 9216")
        for t in range(6):
            a(f"s_add_u32 s40, s41, {64*14*t}\nv_add_u32 v20, s40, v1\nv_mul_lo_u32 v21, s46, v20\nv_lshrrev_b32 v21, 16, v21")
            a(f"v_mul_u32_u24 v22, 9, v21\nv_sub_u32 v22, v20, v22\nv_lshlrev_b32 v22, 7, v22\nv_mul_lo_u32 v21, s47, v21\nv_add_u32 v{24+t}, v21, v22")
        lds_wait_ge(a, f"v{V_FA}", 4, "v19", "s43", "s44", off=16)
        a("s_mov_b32 s36, 0")
        npf = 6
        for t in range(npf):
            a(f"buffer_load_dword v{32+t}, v{24+t}, s[32:35], s36 offen {NT}")
            q.n += 1
    q.drain()
    a("L_ld_done:")
    a.stamp(8)
    if cfg.STAMP: a("s_getreg_b32 s94, hwreg(HW_REG_XCC_ID)\ns_and_b32 s94, s94, 15\ns_add_u32 s94, s94, 1\ns_mov_b32 s95, 0")
    stamps_out(a, True)
    a("s_endpgm")

def gen_consumer(a):
    cfg = a.cfg
    VL, VJ, VKG, VL16, VCT = 1, 2, 3, 4, 5
    VX = 196
    XF = 216
    VT = 12
    VTAG = 11
    a("L_consumer:")
    a(f"v_and_b32 v{VJ}, 15, v{VL}\nv_lshrrev_b32 v{VKG}, 4, v{VL}\nv_lshlrev_b32 v{VL16}, 4, v{VL}\nv_mov_b32 v{VCT}, {L_CT}\ns_sub_u32 s30, s3, 1")
    a(f"s_load_dword s58, s[26:27], {WS_EP}")
    if cfg.CPF:
        a("s_getpc_b64 s[52:53]\nL_pc:\ns_sub_u32 s52, s52, (L_pc - KSTART)\ns_subb_u32 s53, s53, 0")
        a("s_lshr_b32 s40, s2, 3\ns_lshl_b32 s40, s40, 2\ns_add_u32 s40, s40, s30\ns_lshl_b32 s40, s40, 8")
        a("s_add_u32 s52, s52, s40\ns_addc_u32 s53, s53, 0\ns_load_dword s54, s[52:53], 0\ns_load_dword s55, s[52:53], 128")
    if cfg.TPF:
        L = a.lab("TP")
        a(f"s_cmp_lg_u32 s30, 1\ns_cbranch_scc1 {L}")
        a(f"s_lshl_b32 s40, s28, 24\ns_lshl_b32 s41, s29, 16\ns_add_u32 s40, s40, s41\ns_add_u32 s40, s40, {(65536-4096)*256}")
        a("s_add_u32 s52, s8, s40\ns_addc_u32 s53, s9, 0\ns_load_dword s54, s[52:53], 0")
        for p in (16, 18, 20, 12):
            for off in (0, 0x200000, 0x400000):
                a(f"s_add_u32 s52, s{p}, {off}\ns_addc_u32 s53, s{p+1}, 0\ns_load_dword s54, s[52:53], 0")
        a(f"{L}:")
    a(f"global_load_dwordx4 v[20:23], v{VL16}, s[4:5]")
    a(f"v_lshlrev_b32 v{VT}, 2, v{VL}\nv_mov_b32 v24, 0\ns_mov_b32 exec_hi, 0\nglobal_load_dword v24, v{VT}, s[4:5] offset:1024\ns_mov_b64 exec, -1")
    a("s_cmp_lg_u32 s30, 0\ns_cbranch_scc1 L_p0_notc0")
    a("v_mov_b32 v28, -1\nv_mov_b32 v29, -1\nv_mov_b32 v30, -1\nv_mov_b32 v31, -1")
    nb = POIS_HI - POIS_LO
    a(f"v_add_u32 v{VT}, {POIS_LO}, v{VL16}")
    off = 0
    while off < nb:
        rem = nb - off
        if rem < 1024: a(f"v_cmp_gt_u32 vcc, {rem}, v{VL16}\ns_and_saveexec_b64 s[40:41], vcc")
        a(f"ds_write_b128 v{VT}, v[28:31] offset:{off}")
        if rem < 1024: a("s_mov_b64 exec, s[40:41]")
        off += 1024
    a(f"v_mov_b32 v32, 0\nv_mov_b32 v33, 0\nv_mov_b32 v34, 0\nv_mov_b32 v35, 0\nds_write_b128 v{VCT}, v[32:35]\nds_write_b128 v{VCT}, v[32:35] offset:16")
    a("s_waitcnt lgkmcnt(0)\ns_barrier")
    if cfg.LONLY == 1: a("s_branch L_fin")
    def wsaddr(lo): a(f"s_add_u32 s42, s26, {lo}\ns_addc_u32 s43, s27, 0")
    def pst(off=0): a(f"global_store_dwordx4 v{VL16}, v[28:31], s[42:43]" + (f" offset:{off}" if off else "") + " sc1")
    a(f"s_lshl_b32 s46, s28, 4\ns_add_u32 s46, s46, s29\ns_lshl_b32 s40, s46, 9\ns_add_u32 s40, s40, {WS_H2}"); wsaddr("s40")
    a("s_mov_b32 exec_hi, 0"); pst(); a("s_mov_b64 exec, -1")
    a("s_cmp_ge_u32 s29, 9\ns_cbranch_scc1 L_p0_o")
    a(f"v_and_b32 v{VT}, 1, v{VKG}\nv_lshlrev_b32 v{VT}, 3, v{VT}\nv_lshl_add_u32 v{VT}, v{VJ}, 4, v{VT}")
    for cb in range(4): a(f"global_load_dwordx2 v[{VX+2*cb}:{VX+2*cb+1}], v{VT}, s[4:5] offset:{256*cb}")
    a(f"v_mov_b32 v{VX+8}, 0\nv_mov_b32 v{VX+9}, 0"); a.exec64(0x00ff00ff, 0x00ff00ff)
    a(f"global_load_dwordx2 v[{VX+8}:{VX+9}], v{VT}, s[4:5] offset:1024\ns_mov_b64 exec, -1")
    a("s_waitcnt vmcnt(6)")
    a("s_branch L_p0_ln")
    a("L_p0_o:")
    a(f"s_sub_u32 s41, s29, 9\ns_mul_i32 s40, s41, 160\ns_mul_i32 s44, s28, 1152\ns_add_u32 s40, s40, s44\ns_add_u32 s40, s40, {WS_H3}"); wsaddr("s40")
    a("s_mov_b64 exec, 0x3ff\ns_cmp_eq_u32 s41, 6\ns_cselect_b32 exec_lo, 0xfff, exec_lo"); pst(); a("s_mov_b64 exec, -1")
    a("s_waitcnt vmcnt(2)")
    a("s_branch L_p0_ln")
    a("L_p0_notc0:\ns_barrier\ns_waitcnt vmcnt(0)")
    a("L_p0_ln:")
    if cfg.LONLY in (1, 2): a("s_branch L_fin")
    a.stamp(0)
    for i in range(5): a(f"v_lshlrev_b32 v{32+2*i}, 16, v{20+i}\nv_and_b32 v{33+2*i}, 0xffff0000, v{20+i}")
    a("v_add_f32 v42, v32, v33")
    for i in range(2, 10): a(f"v_add_f32 v42, v42, v{32+i}")
    row_red(a, "v_add_f32", "v42"); xrow_red(a, "v_add_f32", "v42", "v43")
    a(f"v_mul_f32 v42, {hex(f2b(1.0/576))}, v42")
    for i in range(10): a(f"v_sub_f32 v{32+i}, v{32+i}, v42")
    a("s_mov_b32 exec_lo, 0\nv_mov_b32 v40, 0\nv_mov_b32 v41, 0\ns_mov_b64 exec, -1")
    a("v_mul_f32 v43, v32, v32")
    for i in range(1, 10): a(f"v_fmac_f32 v43, v{32+i}, v{32+i}")
    row_red(a, "v_add_f32", "v43"); xrow_red(a, "v_add_f32", "v43", "v44")
    a(f"v_mov_b32 v44, {hex(f2b(1e-5))}\nv_fmac_f32 v44, {hex(f2b(1.0/576))}, v43\nv_rsq_f32 v44, v44")
    a.nop(1)
    for i in range(10): a(f"v_mul_f32 v{32+i}, v{32+i}, v44")
    for i in range(5): a(f"v_cvt_pk_bf16_f32 v{20+i}, v{32+2*i}, v{33+2*i}")
    a(f"v_add_u32 v{VT}, {L_XN}, v{VL16}\nds_write_b128 v{VT}, v[20:23]")
    a(f"v_lshlrev_b32 v{VT}, 2, v{VL}\nv_add_u32 v{VT}, {L_XN+1024}, v{VT}\ns_mov_b32 exec_hi, 0\nds_write_b32 v{VT}, v24\ns_mov_b64 exec, -1")
    a(f"v_bfe_u32 v{VT}, v{VL}, 2, 2\nv_lshl_add_u32 v{VT}, v{VKG}, 2, v{VT}\nv_lshlrev_b32 v{VT}, 7, v{VT}")
    a(f"v_and_b32 v{VT+1}, 3, v{VL}\nv_lshl_add_u32 v{VT}, v{VT+1}, 3, v{VT}")
    a(f"s_lshl_b32 s40, s30, 5\ns_add_u32 s40, s40, {L_WQ}\nv_add_u32 v{VT}, s40, v{VT}")
    a(f"s_lshr_b32 s40, s29, 2\ns_mul_i32 s40, s40, 288\ns_add_u32 s40, s40, {L_XN}\nv_lshlrev_b32 v{VT+1}, 3, v{VKG}\nv_add_u32 v{VT+1}, s40, v{VT+1}")
    a("s_waitcnt lgkmcnt(0)")
    for t in range(9): a(f"ds_read_b64 v[{40+2*t}:{41+2*t}], v{VT+1} offset:{32*t}")
    for r in range(4): a(f"v_mov_b32 v{60+r}, 0")
    a("s_lshr_b32 s40, s29, 2\ns_lshl_b32 s40, s40, 10\ns_and_b32 s41, s29, 3\ns_lshl_b32 s41, s41, 8\ns_add_u32 s40, s40, s41")
    a(f"s_lshl_b32 s41, s28, 12\ns_add_u32 s40, s40, s41")
    a("s_add_u32 s42, s26, s40\ns_addc_u32 s43, s27, 0")
    lds_wait_ge(a, f"v{VCT}", 1, f"v{VT+2}")
    a.stamp(1)
    for t in range(9): a(f"ds_read_b64_tr_b16 v[{20+2*t}:{21+2*t}], v{VT} offset:{2048*t}")
    for t in range(9):
        a(f"s_waitcnt lgkmcnt({8-t})")
        a(f"v_mfma_f32_16x16x16_bf16 v[60:63], v[{20+2*t}:{21+2*t}], v[{40+2*t}:{41+2*t}], v[60:63]")
    a(f"s_lshl_b32 s40, s30, 6\ns_add_u32 s40, s40, {L_QP}\nv_lshlrev_b32 v{VT}, 4, v{VKG}\nv_add_u32 v{VT}, s40, v{VT}")
    a(f"s_add_u32 s58, s58, 1\ns_and_b32 s56, s58, 0x3ff\ns_mov_b32 s57, 0xfffffc00\nv_mov_b32 v{VTAG}, s56")
    a.nop(1)
    a.exec64(0x00010001, 0x00010001)
    a(f"ds_write_b128 v{VT}, v[60:63]\ns_mov_b64 exec, -1")
    a("s_cmp_lg_u32 s30, 0\ns_cbranch_scc1 L_p1_done")
    a(f"v_add_u32 v{VT}, {L_QP}, v{VL16}\ns_mov_b64 exec, 0xffff")
    Lp, Lx = spin_head(a, "s60", cfg.SPIN, "QP")
    a(f"ds_read_b128 v[60:63], v{VT}"); spin_bound(a, "s60", cfg.SPIN, Lx)
    a(f"s_waitcnt lgkmcnt(0)\nv_max3_u32 v{VT+1}, v60, v61, v62\nv_max_u32 v{VT+1}, v{VT+1}, v63\nv_cmp_eq_u32 vcc, -1, v{VT+1}\ns_cbranch_vccnz {Lp}\n{Lx}:\ns_waitcnt lgkmcnt(0)")
    for e in range(4): a(f"v_and_or_b32 v{60+e}, v{60+e}, s57, v{VTAG}")
    a("s_waitcnt vmcnt(0)")
    a(f"global_store_dwordx4 v{VL16}, v[60:63], s[42:43] sc1\ns_mov_b64 exec, -1")
    L = a.lab("XU")
    a(f"s_cmp_ge_u32 s29, 9\ns_cbranch_scc1 {L}")
    for i in range(10): a(f"v_lshlrev_b32 v{XF+2*i}, 16, v{VX+i}\nv_and_b32 v{XF+2*i+1}, 0xffff0000, v{VX+i}")
    a(f"s_branch L_p1_done\n{L}:")
    a(f"s_sub_u32 s41, s29, 9\ns_lshl_b32 s40, s28, 7\ns_lshl_b32 s44, s41, 2\ns_add_u32 s40, s40, s44\ns_add_u32 s40, s40, {WS_AL}")
    a(f"v_lshlrev_b32 v{VT}, 2, v{VL}\nv_add_u32 v{VT}, s40, v{VT}\nv_mov_b32 v{VT+1}, s58")
    a(f"s_mov_b64 exec, 1\ns_cmp_eq_u32 s41, 6\ns_cselect_b32 exec_lo, 3, exec_lo\nglobal_store_dword v{VT}, v{VT+1}, s[26:27] sc1\ns_mov_b64 exec, -1")
    a("L_p1_done:")
    if cfg.LONLY == 3: a("s_branch L_fin")
    a.stamp(2)
    QF, S, AO, MK, KA, KF, O = 20, 36, 64, 52, 56, 128, 60
    a(f"v_and_b32 v{VT+1}, 3, v{VJ}\nv_lshrrev_b32 v{VT+2}, 2, v{VJ}")
    a(f"v_lshl_add_u32 v{VT+3}, v{VT+1}, 2, v{VT+2}\nv_lshlrev_b32 v{VT+3}, 8, v{VT+3}")
    a(f"s_lshl_b32 s40, s30, 12\ns_add_u32 s40, s40, {L_K}\nv_add_u32 v{VT+3}, s40, v{VT+3}\nv_xor_b32 v{VT+1}, v{VT+1}, v{VKG}")
    for dd in range(4):
        a(f"v_xor_b32 v{VT+4}, {dd}, v{VT+2}\nv_lshl_add_u32 v{VT+4}, v{VT+4}, 2, v{VT+1}\nv_lshl_add_u32 v{KA+dd}, v{VT+4}, 4, v{VT+3}")
    a(f"v_and_b32 v{VT+1}, 1, v{VJ}\nv_cmp_eq_u32 vcc, 1, v{VT+1}\nv_mov_b32 v{VT+2}, 0xffff\nv_mov_b32 v{VT+4}, 0xffff0000")
    a.nop(1)
    a(f"v_cndmask_b32 v{VT+2}, v{VT+2}, v{VT+4}, vcc\nv_bfe_u32 v{VT+1}, v{VJ}, 1, 2")
    for t in range(4):
        a(f"v_cmp_eq_u32 vcc, {t}, v{VT+1}"); a.nop(2)
        a(f"v_cndmask_b32 v{MK+t}, 0, v{VT+2}, vcc")
    a("s_cmp_lg_u32 s30, 0\ns_cbranch_scc1 L_p2_skip")
    a.sleep(cfg.D_H1)
    if cfg.T_H1: lds_wait_ge(a, f"v{VCT}", 1, f"v{VT+2}", off=24)
    a(f"s_lshl_b32 s40, s28, 12\ns_add_u32 s42, s26, s40\ns_addc_u32 s43, s27, 0")
    Lp, Lx = spin_head(a, "s60", cfg.GSPIN, "H1")
    for rb in range(4): a(f"global_load_dwordx4 v[{20+4*rb}:{23+4*rb}], v{VL16}, s[42:43] offset:{1024*rb} sc1")
    spin_bound(a, "s60", cfg.GSPIN, Lx)
    a("s_waitcnt vmcnt(0)")
    tagcheck(a, "v40", range(20, 36), VTAG)
    a(f"s_and_b64 exec, exec, vcc\ns_cbranch_execz {Lx}"); a.sleep(cfg.B_H1); a(f"s_branch {Lp}")
    a(f"{Lx}:\ns_mov_b64 exec, -1\ns_waitcnt vmcnt(0)")
    for e in range(4): a(f"v_add_f32 v{36+e}, v{20+e}, v{24+e}\nv_add_f32 v{40+e}, v{28+e}, v{32+e}\nv_add_f32 v{36+e}, v{36+e}, v{40+e}")
    a("v_cvt_pk_bf16_f32 v36, v36, v37\nv_cvt_pk_bf16_f32 v37, v38, v39")
    a(f"v_lshlrev_b32 v{VT}, 3, v{VL}\nv_add_u32 v{VT}, {L_QB}, v{VT}\nds_write_b64 v{VT}, v[36:37]")
    a("L_p2_skip:")
    if cfg.LONLY == 4: a("s_branch L_fin")
    a.stamp(3)
    a(f"v_lshrrev_b32 v{VT}, 3, v{VJ}\nv_lshlrev_b32 v{VT}, 8, v{VT}\nv_lshl_add_u32 v{VT}, v{VKG}, 4, v{VT}\nv_add_u32 v{VT}, {L_QB}, v{VT}")
    Lp, Lx = spin_head(a, "s60", cfg.SPIN, "QF")
    for dd in range(4): a(f"ds_read_b128 v[{QF+4*dd}:{QF+4*dd+3}], v{VT} offset:{64*dd}")
    spin_bound(a, "s60", cfg.SPIN, Lx)
    a(f"s_waitcnt lgkmcnt(0)\nv_max3_u32 v{VT+1}, v{QF}, v{QF+1}, v{QF+2}")
    for i in range(3, 15, 2): a(f"v_max3_u32 v{VT+1}, v{VT+1}, v{QF+i}, v{QF+i+1}")
    a(f"v_max_u32 v{VT+1}, v{VT+1}, v{QF+15}\nv_cmp_eq_u32 vcc, -1, v{VT+1}\ns_cbranch_vccnz {Lp}\n{Lx}:\ns_waitcnt lgkmcnt(0)")
    a.stamp(4)
    for i in range(16): a(f"v_mov_b32 v{S+i}, 0")
    lds_wait_ge(a, f"v{VCT}", 2, f"v{VT+2}")
    a.stamp(5)
    for r in range(4):
        for dd in range(4): a(f"ds_read_b128 v[{KF+16*r+4*dd}:{KF+16*r+4*dd+3}], v{KA+dd} offset:{16384*r}")
    for r in range(4):
        for dd in range(4):
            n = 4*r + dd
            a(f"s_waitcnt lgkmcnt({15-n})")
            a(f"v_mfma_f32_16x16x32_bf16 v[{S+4*r}:{S+4*r+3}], v[{KF+16*r+4*dd}:{KF+16*r+4*dd+3}], v[{QF+4*dd}:{QF+4*dd+3}], v[{S+4*r}:{S+4*r+3}]")
    a(f"v_mov_b32 v{VT+2}, 1"); lds_set(a, f"v{VCT}", 4, f"v{VT+2}", "ds_add_u32")
    a.nop(8)
    a(f"v_max3_f32 v{VT+1}, v{S}, v{S+1}, v{S+2}")
    for i in range(3, 15, 2): a(f"v_max3_f32 v{VT+1}, v{VT+1}, v{S+i}, v{S+i+1}")
    a(f"v_max_f32 v{VT+1}, v{VT+1}, v{S+15}")
    xrow_red(a, "v_max_f32", f"v{VT+1}", f"v{VT+2}")
    a(f"v_lshrrev_b32 v{VT+2}, 3, v{VJ}\nv_lshlrev_b32 v{VT+2}, 4, v{VT+2}\nv_add_u32 v{VT+3}, {L_MX}, v{VT+2}")
    a(f"s_lshl_b32 s40, s30, 2\nv_add_u32 v{VT+4}, s40, v{VT+3}")
    a(f"s_mov_b64 exec, 0x101\nds_write_b32 v{VT+4}, v{VT+1}\ns_mov_b64 exec, -1")
    Lp, Lx = spin_head(a, "s60", cfg.SPIN, "MX")
    a(f"ds_read_b128 v[{KF}:{KF+3}], v{VT+3}"); spin_bound(a, "s60", cfg.SPIN, Lx)
    a(f"s_waitcnt lgkmcnt(0)\nv_max3_u32 v{VT+5}, v{KF}, v{KF+1}, v{KF+2}\nv_max_u32 v{VT+5}, v{VT+5}, v{KF+3}\nv_cmp_eq_u32 vcc, -1, v{VT+5}\ns_cbranch_vccnz {Lp}")
    a(f"{Lx}:\ns_waitcnt lgkmcnt(0)")
    a(f"v_max3_f32 v{VT+1}, v{KF}, v{KF+1}, v{KF+2}\nv_max_f32 v{VT+1}, v{VT+1}, v{KF+3}")
    a(f"s_mov_b32 s44, {hex(CSCALE)}\nv_mul_f32 v17, s44, v{VT+1}")
    a(f"s_getreg_b32 s59, hwreg(HW_REG_XCC_ID)\ns_and_b32 s59, s59, 7\ns_lshl_b32 s45, s59, 10\ns_or_b32 s45, s45, s56\nv_and_b32 v17, 0xffffe000, v17\nv_or_b32 v17, s45, v17")
    for i in range(16): a(f"v_fma_f32 v{S+i}, v{S+i}, s44, -v17")
    for i in range(16): a(f"v_exp_f32 v{S+i}, v{S+i}")
    a.nop(1)
    a(f"v_add_f32 v{VT+1}, v{S}, v{S+1}")
    for i in range(2, 16): a(f"v_add_f32 v{VT+1}, v{VT+1}, v{S+i}")
    xrow_red(a, "v_add_f32", f"v{VT+1}", f"v{VT+2}")
    a(f"v_add_u32 v{VT+4}, {L_LW-L_MX}, v{VT+4}")
    a(f"s_mov_b64 exec, 0x101\nds_write_b32 v{VT+4}, v{VT+1}\ns_mov_b64 exec, -1")
    a("s_cmp_lg_u32 s30, 3\ns_cbranch_scc1 L_p3_noml")
    a(f"v_add_u32 v{VT+3}, {L_LW-L_MX}, v{VT+3}")
    Lp, Lx = spin_head(a, "s60", cfg.SPIN, "LW")
    a(f"ds_read_b128 v[{KF}:{KF+3}], v{VT+3}"); spin_bound(a, "s60", cfg.SPIN, Lx)
    a(f"s_waitcnt lgkmcnt(0)\nv_add_f32 v{KF}, v{KF}, v{KF+1}\nv_add_f32 v{KF+2}, v{KF+2}, v{KF+3}\nv_add_f32 v19, v{KF}, v{KF+2}")
    a(f"v_cmp_u_f32 vcc, v19, v19\ns_cbranch_vccnz {Lp}\n{Lx}:\ns_waitcnt lgkmcnt(0)")
    a(f"s_lshl_b32 s46, s28, 4\ns_add_u32 s40, s46, s29\ns_lshl_b32 s40, s40, 7\ns_add_u32 s40, s40, {WS_ML}\ns_add_u32 s42, s26, s40\ns_addc_u32 s43, s27, 0")
    a(f"v_and_or_b32 v19, v19, s57, v{VTAG}")
    a("v_readlane_b32 s46, v17, 0\nv_readlane_b32 s47, v19, 0\nv_readlane_b32 s48, v17, 8\nv_readlane_b32 s49, v19, 8")
    a("v_mov_b32 v28, s46\nv_mov_b32 v29, s47\nv_mov_b32 v30, s48\nv_mov_b32 v31, s49")
    a(f"s_mov_b64 exec, 0xff\nglobal_store_dwordx4 v{VL16}, v[28:31], s[42:43] sc1\ns_mov_b64 exec, -1")
    a("L_p3_noml:")
    for i in range(16):
        a(f"v_cvt_pk_bf16_f32 v{S+i}, v{S+i}, v{S+i}")
        for t in range(4): a(f"v_and_b32 v{AO+4*i+t}, v{S+i}, v{MK+t}")
    a.stamp(6)
    a("s_cmp_lg_u32 s30, 0\ns_cbranch_scc1 L_p3_noalive")
    a(f"v_lshrrev_b32 v{VT}, 2, v{VL}\nv_lshlrev_b32 v{VT}, 7, v{VT}\nv_and_b32 v{VT+1}, 3, v{VL}\nv_lshl_add_u32 v{VT}, v{VT+1}, 3, v{VT}\nv_add_u32 v{VT}, {WS_AL}, v{VT}")
    Lp, Lx = spin_head(a, "s60", cfg.GSPIN, "AA")
    a(f"global_load_dwordx2 v[14:15], v{VT}, s[26:27] sc1"); spin_bound(a, "s60", cfg.GSPIN, Lx)
    a(f"s_waitcnt vmcnt(0)\nv_cmp_ne_u32 vcc, s58, v14\nv_cmp_ne_u32 s[40:41], s58, v15\ns_or_b64 vcc, vcc, s[40:41]\ns_cbranch_vccz {Lx}"); a.sleep(cfg.B_AL); a(f"s_branch {Lp}\n{Lx}:\ns_waitcnt vmcnt(0)")
    a("L_p3_noalive:")
    if cfg.LONLY == 5: a("s_branch L_fin")
    VF = KF
    MLR = 20
    a(f"s_lshl_b32 s40, s30, 12\ns_add_u32 s40, s40, {L_V}\nv_add_u32 v{VT}, s40, v{VL16}")
    a(f"s_lshl_b32 s40, s28, 11\ns_add_u32 s40, s40, {WS_ML}\ns_add_u32 s42, s26, s40\ns_addc_u32 s43, s27, 0\nv_lshlrev_b32 v16, 7, v{VJ}")
    for r in range(4): a(f"v_mov_b32 v{O+r}, 0")
    for r in range(4):
        if r == 3:
            L = a.lab("MLS")
            a(f"s_cmp_lg_u32 s30, 3\ns_cbranch_scc1 {L}")
            Lp, Lx = a.lab("ML"), a.lab("MLX")
            a("s_mov_b32 s61, 0\ns_branch " + Lp + "_chk")
            a(f"{Lp}:\nglobal_load_dwordx4 v[{MLR}:{MLR+3}], v16, s[42:43] sc1")
            a(f"{Lp}_chk:")
            spin_bound(a, "s61", cfg.GSPIN, Lx)
            a("s_waitcnt vmcnt(0)")
            tagcheck(a, f"v{VT+2}", range(MLR, MLR+4), VTAG)
            a(f"s_and_b64 exec, exec, vcc\ns_cbranch_execz {Lx}"); a.sleep(cfg.B_ML); a(f"s_branch {Lp}")
            a(f"{Lx}:\ns_mov_b64 exec, -1\ns_waitcnt vmcnt(0)")
            a(f"v_bfe_u32 v24, v{MLR}, 10, 3\nv_cmp_ne_u32 vcc, s59, v24\ns_mov_b64 s[50:51], vcc")
            a(f"v_mov_b32 v24, v{MLR}\nv_mov_b32 v25, v{MLR+2}")
            row_red(a, "v_max_f32", ["v24", "v25"])
            a(f"v_sub_f32 v26, v{MLR}, v24\nv_sub_f32 v27, v{MLR+2}, v25\nv_exp_f32 v26, v26\nv_exp_f32 v27, v27")
            a.nop(1)
            a(f"v_mul_f32 v26, v26, v{MLR+1}\nv_mul_f32 v27, v27, v{MLR+3}")
            row_red(a, "v_add_f32", ["v26", "v27"])
            a("v_readlane_b32 s44, v17, 0\nv_readlane_b32 s45, v17, 8")
            a("v_rcp_f32 v26, v26\nv_rcp_f32 v27, v27\nv_sub_f32 v24, s44, v24\nv_sub_f32 v25, s45, v25\nv_exp_f32 v24, v24\nv_exp_f32 v25, v25")
            a.nop(1)
            a("v_mul_f32 v24, v24, v26\nv_mul_f32 v25, v25, v27")
            a("s_mov_b32 exec_lo, 0\nv_mov_b32 v24, v25\ns_mov_b64 exec, -1")
            a(f"s_lshl_b32 s40, s28, 4\ns_add_u32 s40, s40, s29\ns_lshl_b32 s40, s40, 9\ns_add_u32 s40, s40, {WS_H2}\ns_add_u32 s42, s26, s40\ns_addc_u32 s43, s27, 0")
            a(f"v_lshrrev_b32 v25, 1, v{VKG}\nv_lshlrev_b32 v25, 8, v25\nv_lshl_add_u32 v25, v{VJ}, 4, v25")
            a(f"{L}:")
        lds_wait_ge(a, f"v{VCT}", 3 + r, f"v{VT+2}")
        for t in range(4): a(f"ds_read_b128 v[{VF+4*t}:{VF+4*t+3}], v{VT} offset:{16384*r+1024*t}")
        if r == 1:
            L = a.lab("MLI")
            a(f"s_cmp_lg_u32 s30, 3\ns_cbranch_scc1 {L}\nglobal_load_dwordx4 v[{MLR}:{MLR+3}], v16, s[42:43] sc1\n{L}:")
        for t in range(4):
            a(f"s_waitcnt lgkmcnt({3-t})")
            a(f"v_mfma_f32_16x16x32_bf16 v[{O}:{O+3}], v[{AO+16*r+4*t}:{AO+16*r+4*t+3}], v[{VF+4*t}:{VF+4*t+3}], v[{O}:{O+3}]")
    a(f"v_mov_b32 v{VT+2}, 1"); lds_set(a, f"v{VCT}", 8, f"v{VT+2}", "ds_add_u32")
    a.stamp(7)
    a("s_cmp_eq_u32 s30, 3\ns_cbranch_scc1 L_p4_pub")
    a(f"s_lshl_b32 s40, s30, 10\ns_add_u32 s40, s40, {L_OP}\nv_add_u32 v{VT}, s40, v{VL16}")
    a(f"ds_write_b128 v{VT}, v[{O}:{O+3}]")
    a("s_branch L_p4_done")
    a("L_p4_pub:")
    a(f"v_add_u32 v{VT}, {L_OP}, v{VL16}")
    Lp, Lx = spin_head(a, "s60", cfg.SPIN, "OP")
    for w in range(3): a(f"ds_read_b128 v[{VF+4*w}:{VF+4*w+3}], v{VT} offset:{1024*w}")
    spin_bound(a, "s60", cfg.SPIN, Lx)
    a("s_waitcnt lgkmcnt(0)")
    for e in range(4): a(f"v_add_f32 v{VF+12+e}, v{VF+e}, v{VF+4+e}\nv_add_f32 v{VF+12+e}, v{VF+12+e}, v{VF+8+e}")
    a(f"v_add_f32 v{VT+3}, v{VF+12}, v{VF+13}\nv_add_f32 v{VT+4}, v{VF+14}, v{VF+15}\nv_add_f32 v{VT+3}, v{VT+3}, v{VT+4}")
    a(f"v_cmp_u_f32 vcc, v{VT+3}, v{VT+3}\ns_cbranch_vccnz {Lp}\n{Lx}:\ns_waitcnt lgkmcnt(0)")
    for e in range(4): a(f"v_add_f32 v{O+e}, v{O+e}, v{VF+12+e}\nv_mul_f32 v{O+e}, v{O+e}, v24")
    a(f"v_cvt_pk_bf16_f32 v28, v{O}, v{O+1}\nv_cvt_pk_bf16_f32 v29, v{O+2}, v{O+3}\nv_mov_b32 v30, v28\nv_mov_b32 v31, v29")
    a.nop(1)
    a("v_permlane16_swap_b32 v28, v30\nv_permlane16_swap_b32 v29, v31")
    a.nop(2)
    a.exec64(0x0000ffff, 0x0000ffff)
    L1, L2 = a.lab("PUBG"), a.lab("PUBD")
    a(f"s_cmp_lg_u64 s[50:51], 0\ns_cbranch_scc1 {L1}") if cfg.LOCAL else a(f"s_branch {L1}")
    a(f"global_store_dwordx4 v25, v[28:31], s[42:43]\ns_branch {L2}\n{L1}:")
    a(f"global_store_dwordx4 v25, v[28:31], s[42:43] sc1\n{L2}:\ns_mov_b64 exec, -1")
    a("L_p4_done:")
    a.stamp(8)
    a("s_cmp_lt_u32 s29, 9\ns_cbranch_scc1 L_role_f")
    G, BF, D5 = 20, 64, 112
    a(f"s_lshl_b32 s40, s28, 13\ns_add_u32 s40, s40, {WS_H2}\ns_add_u32 s42, s26, s40\ns_addc_u32 s43, s27, 0")
    a(f"v_lshlrev_b32 v{VT}, 9, v{VJ}\nv_lshl_add_u32 v{VT}, v{VKG}, 4, v{VT}\ns_lshl_b32 s40, s30, 7\nv_add_u32 v{VT}, s40, v{VT}")
    a(f"v_bfe_u32 v{VT+2}, v{VL}, 2, 2\nv_lshl_add_u32 v{VT+2}, v{VKG}, 3, v{VT+2}\ns_lshl_b32 s40, s30, 6\nv_add_u32 v{VT+2}, s40, v{VT+2}")
    a(f"v_mul_u32_u24 v{VT+2}, 192, v{VT+2}\nv_and_b32 v{VT+3}, 3, v{VL}\nv_lshl_add_u32 v{VT+2}, v{VT+3}, 3, v{VT+2}")
    for i in range(24): a(f"v_mov_b32 v{D5+i}, 0")
    lds_wait_ge(a, f"v{VCT}", 1, f"v{VT+4}", off=12)
    a("s_mov_b32 s62, 0")
    Lp, Lx = spin_head(a, "s61", cfg.GSPIN, "H2")
    for t in range(2): a(f"global_load_dwordx4 v[{G+4*t}:{G+4*t+3}], v{VT}, s[42:43] offset:{64*t} sc1")
    Lq = a.lab("H2F")
    a(f"s_cmp_lg_u32 s62, 0\ns_cbranch_scc1 {Lq}\ns_mov_b32 s62, 1")
    a(f"v_mov_b32 v{VT+4}, 1"); lds_set(a, f"v{VCT}", 16, f"v{VT+4}", "ds_add_u32")
    a("s_add_u32 s63, s30, 7")
    lds_wait_ge(a, f"v{VCT}", "s63", f"v{VT+4}")
    for t in range(2):
        for nb_ in range(6):
            for h in range(2):
                a(f"ds_read_b64_tr_b16 v[{BF+8*nb_+4*t+2*h}:{BF+8*nb_+4*t+2*h+1}], v{VT+2} offset:{O_WO+t*6144+h*768+nb_*32}")
    a(f"{Lq}:")
    spin_bound(a, "s61", cfg.GSPIN, Lx)
    a(f"s_waitcnt vmcnt(0)\nv_max3_u32 v{VT+4}, v{G}, v{G+1}, v{G+2}\nv_max3_u32 v{VT+4}, v{VT+4}, v{G+3}, v{G+4}\nv_max3_u32 v{VT+4}, v{VT+4}, v{G+5}, v{G+6}\nv_max_u32 v{VT+4}, v{VT+4}, v{G+7}")
    a(f"v_cmp_eq_u32 vcc, -1, v{VT+4}\ns_and_b64 exec, exec, vcc\ns_cbranch_execz {Lx}"); a.sleep(cfg.B_H2); a(f"s_branch {Lp}")
    a(f"{Lx}:\ns_mov_b64 exec, -1\ns_waitcnt vmcnt(0) lgkmcnt(0)")
    a.stamp(9)
    for t in range(2):
        for nb_ in range(6):
            a(f"v_mfma_f32_16x16x32_bf16 v[{D5+4*nb_}:{D5+4*nb_+3}], v[{G+4*t}:{G+4*t+3}], v[{BF+8*nb_+4*t}:{BF+8*nb_+4*t+3}], v[{D5+4*nb_}:{D5+4*nb_+3}]")
    a.nop(4)
    for nb_ in range(6):
        b = D5 + 4*nb_
        if nb_ == 5: a.nop(4)
        a(f"v_add_f32 v{b}, v{b}, v{b+1}\nv_add_f32 v{b+2}, v{b+2}, v{b+3}\nv_add_f32 v{b}, v{b}, v{b+2}")
    a0, a1, a2, a3 = D5, D5+4, D5+8, D5+12
    b0, b1 = D5+16, D5+20
    z0, z1 = D5+1, D5+2
    a(f"v_mov_b32 v{z0}, 0\nv_mov_b32 v{z1}, 0"); a.nop(2)
    a(f"v_permlane32_swap_b32 v{a0}, v{a2}\nv_permlane32_swap_b32 v{a1}, v{a3}\nv_permlane32_swap_b32 v{b0}, v{z0}\nv_permlane32_swap_b32 v{b1}, v{z1}"); a.nop(1)
    a(f"v_add_f32 v{a0}, v{a0}, v{a2}\nv_add_f32 v{a1}, v{a1}, v{a3}\nv_add_f32 v{b0}, v{b0}, v{z0}\nv_add_f32 v{b1}, v{b1}, v{z1}"); a.nop(2)
    a(f"v_permlane16_swap_b32 v{a0}, v{a1}\nv_permlane16_swap_b32 v{b0}, v{b1}"); a.nop(1)
    a(f"v_add_f32 v{a0}, v{a0}, v{a1}\nv_add_f32 v{b0}, v{b0}, v{b1}")
    a(f"s_lshl_b32 s40, s30, 9\ns_add_u32 s40, s40, {L_R5}\nv_lshlrev_b32 v{VT}, 2, v{VL}\nv_add_u32 v{VT}, s40, v{VT}")
    a(f"ds_write_b32 v{VT}, v{a0}\nds_write_b32 v{VT}, v{b0} offset:256")
    a("s_cmp_lg_u32 s30, 3\ns_cbranch_scc1 L_p5_done")
    a(f"v_lshlrev_b32 v{VT}, 5, v{VL}\nv_add_u32 v{VT}, {L_R5}, v{VT}")
    a("s_sub_u32 s41, s29, 9\ns_mov_b64 exec, 0x3ff\ns_cmp_eq_u32 s41, 6\ns_cselect_b32 exec_lo, 0xfff, exec_lo")
    Lp, Lx = spin_head(a, "s60", cfg.SPIN, "R5")
    for w in range(4):
        for h in range(2): a(f"ds_read_b128 v[{BF+8*w+4*h}:{BF+8*w+4*h+3}], v{VT} offset:{512*w+16*h}")
    spin_bound(a, "s60", cfg.SPIN, Lx)
    a("s_waitcnt lgkmcnt(0)")
    for e in range(8): a(f"v_add_f32 v{G+e}, v{BF+e}, v{BF+8+e}\nv_add_f32 v{BF+32+e}, v{BF+16+e}, v{BF+24+e}\nv_add_f32 v{G+e}, v{G+e}, v{BF+32+e}")
    a(f"v_add_f32 v{VT+3}, v{G}, v{G+1}")
    for e in range(2, 8): a(f"v_add_f32 v{VT+3}, v{VT+3}, v{G+e}")
    a(f"v_cmp_u_f32 vcc, v{VT+3}, v{VT+3}\ns_cbranch_vccnz {Lp}\n{Lx}:\ns_waitcnt lgkmcnt(0)")
    for e in range(4): a(f"v_cvt_pk_bf16_f32 v{G+e}, v{G+2*e}, v{G+2*e+1}")
    a(f"s_mul_i32 s40, s41, 160\ns_mul_i32 s44, s28, 1152\ns_add_u32 s40, s40, s44\ns_add_u32 s40, s40, {WS_H3}\ns_add_u32 s42, s26, s40\ns_addc_u32 s43, s27, 0")
    a(f"global_store_dwordx4 v{VL16}, v[{G}:{G+3}], s[42:43] sc1\ns_mov_b64 exec, -1")
    a("L_p5_done:")
    a.stamp(10)
    a("s_cmp_lg_u32 s30, 0\ns_cbranch_scc1 L_fin")
    a("s_and_b32 s40, s2, 7\ns_lshr_b32 s41, s2, 3\ns_and_b32 s44, s41, 1\ns_lshr_b32 s41, s41, 1\ns_sub_u32 s41, s41, 9\ns_lshl_b32 s41, s41, 1\ns_add_u32 s41, s41, s44")
    a("s_cmp_lt_u32 s41, 8\ns_cbranch_scc1 L_p9_go\ns_cmp_ge_u32 s41, 12\ns_cbranch_scc1 L_fin\ns_cmp_ge_u32 s40, 2\ns_cbranch_scc1 L_fin")
    a("L_p9_go:")
    a("s_lshr_b32 s44, s41, 2\ns_lshl_b32 s44, s44, 3\ns_add_u32 s44, s44, s40\ns_lshl_b32 s44, s44, 5\ns_and_b32 s45, s41, 3\ns_lshl_b32 s45, s45, 3\ns_add_u32 s44, s44, s45")
    a(f"s_lshl_b32 s40, s44, 1\ns_add_u32 s40, s40, {WS_H3}\ns_add_u32 s42, s26, s40\ns_addc_u32 s43, s27, 0")
    a(f"v_mul_u32_u24 v{VT}, 1152, v{VJ}\nv_lshl_add_u32 v{VT}, v{VKG}, 1, v{VT}")
    a(f"s_lshl_b32 s40, s44, 1\ns_add_u32 s46, s4, s40\ns_addc_u32 s47, s5, 0\nv_lshlrev_b32 v{VT+1}, 1, v{VKG}")
    a(f"global_load_ushort v26, v{VT+1}, s[46:47]\nglobal_load_ushort v27, v{VT+1}, s[46:47] offset:8")
    Lp, Lx = spin_head(a, "s60", cfg.GSPIN, "HH")
    a(f"global_load_ushort v24, v{VT}, s[42:43] sc1\nglobal_load_ushort v25, v{VT}, s[42:43] offset:8 sc1"); spin_bound(a, "s60", cfg.GSPIN, Lx)
    a("s_waitcnt vmcnt(0)\nv_max_u32 v28, v24, v25\nv_cmp_eq_u32 vcc, 0xffff, v28\ns_and_b64 exec, exec, vcc")
    a(f"s_cbranch_execz {Lx}"); a.sleep(2); a(f"s_branch {Lp}\n{Lx}:\ns_mov_b64 exec, -1\ns_waitcnt vmcnt(0)")
    a("v_lshlrev_b32 v24, 16, v24\nv_lshlrev_b32 v25, 16, v25\nv_lshlrev_b32 v26, 16, v26\nv_lshlrev_b32 v27, 16, v27")
    row_red(a, "v_add_f32", ["v24", "v25"])
    a("v_add_f32 v24, v24, v26\nv_add_f32 v25, v25, v27")
    a.exec64(0xaaaaaaaa, 0xaaaaaaaa); a("v_mov_b32 v24, v25\ns_mov_b64 exec, -1")
    a(f"s_lshl_b32 s40, s44, 2\ns_add_u32 s40, s40, {WS_H4}\ns_add_u32 s42, s26, s40\ns_addc_u32 s43, s27, 0")
    a(f"v_lshrrev_b32 v{VT}, 1, v{VL}\nv_mul_u32_u24 v{VT}, 2304, v{VT}\nv_and_b32 v{VT+1}, 1, v{VL}\nv_lshl_add_u32 v{VT}, v{VT+1}, 4, v{VT}")
    for t in range(1, 5): a(f"v_add_u32 v{VT+t}, {32*2304*t}, v{VT}")
    for e in range(4): a(f"v_mov_b32 v{80+e}, v{VTAG}")
    a("s_mov_b64 s[46:47], -1")
    Lp, Lx = spin_head(a, "s60", cfg.GSPIN, "H4")
    for t in range(4): a(f"global_load_dwordx4 v[{64+4*t}:{67+4*t}], v{VT+t}, s[42:43] sc1")
    a(f"s_mov_b32 exec_hi, 0\nglobal_load_dwordx4 v[80:83], v{VT+4}, s[42:43] sc1\ns_mov_b64 exec, s[46:47]")
    spin_bound(a, "s60", cfg.GSPIN, Lx)
    a("s_waitcnt vmcnt(0)")
    tagcheck(a, "v28", range(64, 84), VTAG)
    a(f"s_and_b64 s[46:47], exec, vcc\ns_mov_b64 exec, s[46:47]\ns_cbranch_execz {Lx}"); a.sleep(cfg.B_H4); a(f"s_branch {Lp}")
    a(f"{Lx}:\ns_mov_b64 exec, -1\ns_waitcnt vmcnt(0)")
    a.stamp(14)
    for e in range(4): a(f"v_add_f32 v{20+e}, v{64+e}, v{68+e}\nv_add_f32 v{28+e}, v{72+e}, v{76+e}\nv_add_f32 v{20+e}, v{20+e}, v{80+e}\nv_add_f32 v{20+e}, v{20+e}, v{28+e}")
    a.nop(2)
    a("v_permlane32_swap_b32 v20, v22\nv_permlane32_swap_b32 v21, v23"); a.nop(1)
    a("v_add_f32 v20, v20, v22\nv_add_f32 v21, v21, v23"); a.nop(2)
    a("v_permlane16_swap_b32 v20, v21"); a.nop(1)
    a("v_add_f32 v20, v20, v21")
    for ctl in ("row_ror:8", "row_ror:4", "row_ror:2"):
        a.nop(2); dpp(a, "v_add_f32", "v20", ctl)
    a("v_add_f32 v20, v20, v24\nv_cvt_pk_bf16_f32 v20, v20, v20")
    a(f"s_lshl_b32 s40, s44, 1\ns_add_u32 s42, s22, s40\ns_addc_u32 s43, s23, 0\nv_and_b32 v{VT}, 1, v{VL}\nv_lshlrev_b32 v{VT}, 3, v{VT}\nv_lshl_add_u32 v{VT}, v{VKG}, 1, v{VT}")
    a.exec64(0x00030003, 0x00030003)
    a(f"global_store_short v{VT}, v20, s[42:43]\ns_mov_b64 exec, -1")
    a(f"s_cmp_lg_u32 s44, 0\ns_cbranch_scc1 L_fin\nv_mov_b32 v{VT}, {WS_EP}\nv_mov_b32 v{VT+1}, s58\ns_mov_b64 exec, 1\nglobal_store_dword v{VT}, v{VT+1}, s[26:27]\ns_mov_b64 exec, -1")
    a("s_branch L_fin")
    a("L_role_f:")
    WF, RAW, HF, AC, SEL, DF = 64, 136, 136, 236, 56, 208
    a(f"v_bfe_u32 v{VT}, v{VL}, 2, 2\nv_lshl_add_u32 v{VT}, v{VKG}, 3, v{VT}\nv_lshlrev_b32 v{VT}, 6, v{VT}\nv_and_b32 v{VT+1}, 3, v{VL}\nv_lshl_add_u32 v{VT}, v{VT+1}, 3, v{VT}")
    a(f"s_and_b32 s40, s30, 1\ns_lshl_b32 s40, s40, 5\ns_lshr_b32 s41, s30, 1\ns_mul_i32 s41, s41, {F_U}\ns_add_u32 s40, s40, s41\nv_add_u32 v{VT}, s40, v{VT}")
    a(f"v_bfe_u32 v10, v{VL}, 2, 2\nv_lshl_add_u32 v10, v{VKG}, 3, v10\nv_mul_u32_u24 v10, 1152, v10")
    a(f"v_and_b32 v{VT+2}, 3, v{VL}\nv_lshlrev_b32 v{VT+2}, 3, v{VT+2}\ns_mul_i32 s40, s30, 288\ns_add_u32 s40, s40, {F_D}\nv_add_u32 v{VT+2}, s40, v{VT+2}\nv_add_u32 v10, v10, v{VT+2}")
    def wfrags():
        for t in range(18):
            for h in range(2): a(f"ds_read_b64_tr_b16 v[{WF+4*t+2*h}:{WF+4*t+2*h+1}], v{VT} offset:{2048*t+256*h}")
    def dfrags():
        for n in range(9):
            for h in range(2): a(f"ds_read_b64_tr_b16 v[{DF+4*n+2*h}:{DF+4*n+2*h+1}], v10 offset:{32*n+4608*h}")
    a("s_cmp_lg_u32 s30, 0\ns_cbranch_scc1 L_p6_skip")
    for t in range(4): a(f"v_and_b32 v{SEL+t}, 0x3f803f80, v{MK+t}")
    for pb in range(4):
        for e in range(4): a(f"v_mov_b32 v{RAW+64+4*pb+e}, 0")
    a(f"s_add_u32 s42, s26, {WS_H3}\ns_addc_u32 s43, s27, 0")
    a(f"v_mul_u32_u24 v{VT+1}, 1152, v{VKG}\nv_lshl_add_u32 v{VT+1}, v{VJ}, 4, v{VT+1}")
    lds_wait_ge(a, f"v{VCT}", 7, f"v{VT+2}")
    wfrags()
    lds_wait_ge(a, f"v{VCT}", 1, f"v{VT+2}", off=12)
    a.stamp(9)
    a("s_mov_b64 s[46:47], -1")
    Lp, Lx = spin_head(a, "s61", cfg.GSPIN, "H3")
    a("s_mov_b32 s44, s42\ns_mov_b32 s45, s43")
    for pb in range(4):
        for cb in range(4): a(f"global_load_dwordx4 v[{RAW+16*cb+4*pb}:{RAW+16*cb+4*pb+3}], v{VT+1}, s[44:45] offset:{256*cb} sc1")
        a("s_and_b32 exec_lo, exec_lo, 0x00ff00ff\ns_and_b32 exec_hi, exec_hi, 0x00ff00ff")
        Lz = a.lab("H3Z")
        a(f"s_cbranch_execz {Lz}\nglobal_load_dwordx4 v[{RAW+64+4*pb}:{RAW+64+4*pb+3}], v{VT+1}, s[44:45] offset:1024 sc1\n{Lz}:")
        a(f"s_mov_b64 exec, s[46:47]\ns_add_u32 s44, s44, {4*1152}\ns_addc_u32 s45, s45, 0")
    a("s_mov_b64 exec, -1")
    spin_bound(a, "s61", cfg.GSPIN, Lx)
    Lw = a.lab("H3W")
    a(f"s_cmp_le_u32 s61, 1\ns_cbranch_scc1 {Lw}\ns_waitcnt vmcnt(0)\n{Lw}:")
    for pb in range(4):
        a(f"s_waitcnt vmcnt({15-5*pb})")
        for cb in range(5):
            c_in = XF + 4*cb if pb == 0 else AC + 4*cb
            a(f"v_mfma_f32_16x16x32_bf16 v[{AC+4*cb}:{AC+4*cb+3}], v[{SEL}:{SEL+3}], v[{RAW+16*cb+4*pb}:{RAW+16*cb+4*pb+3}], v[{c_in}:{c_in+3}]")
    a.nop(4)
    def pr(b): return f"v[{b}:{b+1}]"
    a(f"v_pk_add_f32 v[14:15], {pr(AC)}, {pr(AC+2)}\nv_pk_mul_f32 v[16:17], {pr(AC)}, {pr(AC)}\nv_pk_fma_f32 v[16:17], {pr(AC+2)}, {pr(AC+2)}, v[16:17]")
    for i in range(4, 20, 2):
        if i == 16: a.nop(4)
        a(f"v_pk_add_f32 v[14:15], v[14:15], {pr(AC+i)}\nv_pk_fma_f32 v[16:17], {pr(AC+i)}, {pr(AC+i)}, v[16:17]")
    a("v_add_f32 v14, v14, v15\nv_add_f32 v16, v16, v17")
    a(f"v_cmp_u_f32 vcc, v14, v14\ns_cbranch_vccz {Lx}\ns_mov_b64 s[46:47], vcc\ns_mov_b64 exec, vcc"); a.sleep(cfg.B_H3); a(f"s_branch {Lp}")
    a(f"{Lx}:\ns_mov_b64 exec, -1\ns_waitcnt vmcnt(0) lgkmcnt(0)")
    a.stamp(11)
    row_red(a, "v_add_f32", ["v14", "v16"])
    a("v_mov_b32 v15, v14\nv_mov_b32 v17, v16"); a.nop(1)
    a("v_permlane16_swap_b32 v14, v15\nv_permlane16_swap_b32 v16, v17"); a.nop(1)
    a("v_add_f32 v14, v14, v15\nv_add_f32 v16, v16, v17")
    a(f"v_mul_f32 v14, {hex(f2b(1.0/576))}, v14\nv_mul_f32 v16, {hex(f2b(1.0/576))}, v16")
    a(f"v_fma_f32 v16, -v14, v14, v16\nv_max_f32 v16, 0, v16\nv_add_f32 v16, {hex(f2b(1e-5))}, v16\nv_rsq_f32 v16, v16")
    a(f"v_and_b32 v{VT+1}, 1, v{VKG}\nv_lshlrev_b32 v{VT+1}, 3, v{VT+1}\nv_lshl_add_u32 v{VT+1}, v{VJ}, 4, v{VT+1}\nv_add_u32 v{VT+1}, {L_HN}, v{VT+1}")
    a("v_mul_f32 v14, v14, v16\nv_mov_b32 v17, v16\nv_sub_f32 v14, 0, v14\nv_mov_b32 v15, v14")
    a("s_mov_b32 exec_hi, 0")
    for cb in range(5):
        a(f"v_pk_fma_f32 {pr(AC+4*cb)}, {pr(AC+4*cb)}, v[16:17], v[14:15]\nv_pk_fma_f32 {pr(AC+4*cb+2)}, {pr(AC+4*cb+2)}, v[16:17], v[14:15]")
        a(f"v_cvt_pk_bf16_f32 v{20+2*cb}, v{AC+4*cb}, v{AC+4*cb+1}\nv_cvt_pk_bf16_f32 v{21+2*cb}, v{AC+4*cb+2}, v{AC+4*cb+3}")
        if cb == 4: a("s_mov_b32 exec_lo, 0x00ff00ff")
        a(f"ds_write_b64 v{VT+1}, v[{20+2*cb}:{21+2*cb}] offset:{256*cb}")
    a("s_mov_b64 exec, -1")
    a(f"v_mov_b32 v{VT+2}, 1"); lds_set(a, f"v{VCT}", 20, f"v{VT+2}")
    lds_wait_ge(a, f"v{VCT}", 8, f"v{VT+2}")
    dfrags()
    a("s_branch L_p7_go")
    a("L_p6_skip:")
    a("s_lshr_b32 s63, s30, 1\ns_lshl_b32 s63, s63, 1\ns_add_u32 s63, s63, 7")
    lds_wait_ge(a, f"v{VCT}", "s63", f"v{VT+2}")
    wfrags()
    lds_wait_ge(a, f"v{VCT}", 9, f"v{VT+2}")
    dfrags()
    lds_wait_ge(a, f"v{VCT}", 1, f"v{VT+2}", off=20)
    a("L_p7_go:")
    D7 = 20
    a(f"v_lshlrev_b32 v{VT+1}, 4, v{VKG}\nv_add_u32 v{VT+1}, {L_HN}, v{VT+1}")
    for e in range(8): a(f"v_mov_b32 v{D7+e}, 0")
    a("s_waitcnt lgkmcnt(0)")
    for t in range(14): a(f"ds_read_b128 v[{HF+4*t}:{HF+4*t+3}], v{VT+1} offset:{64*t}")
    for t in range(18):
        if t + 14 < 18: a("s_waitcnt lgkmcnt(13)")
        else: a(f"s_waitcnt lgkmcnt({17-t})")
        a(f"v_mfma_f32_16x16x32_bf16 v[{D7+4*(t&1)}:{D7+4*(t&1)+3}], v[{WF+4*t}:{WF+4*t+3}], v[{HF+4*t}:{HF+4*t+3}], v[{D7+4*(t&1)}:{D7+4*(t&1)+3}]")
        if t + 14 < 18: a(f"ds_read_b128 v[{HF+4*(t+14)}:{HF+4*(t+14)+3}], v{VT+1} offset:{64*(t+14)}")
    a(f"s_lshl_b32 s40, s30, 6\ns_add_u32 s40, s40, {L_R7}\nv_lshlrev_b32 v{VT}, 4, v{VKG}\nv_add_u32 v{VT}, s40, v{VT}")
    a(f"v_lshlrev_b32 v{VT+1}, 5, v{VKG}\nv_add_u32 v{VT+1}, {L_R7}, v{VT+1}")
    a(f"s_mul_i32 s40, s28, 9\ns_add_u32 s40, s40, s29\ns_mul_i32 s40, s40, 2304\ns_mul_i32 s41, s30, 576\ns_add_u32 s40, s40, s41\ns_add_u32 s40, s40, {WS_H4}")
    a(f"s_add_u32 s42, s26, s40\ns_addc_u32 s43, s27, 0")
    for e in range(4): a(f"v_add_f32 v{D7+e}, v{D7+e}, v{D7+4+e}")
    a.exec64(0x00010001, 0x00010001)
    a(f"ds_write_b128 v{VT}, v[{D7}:{D7+3}]\ns_mov_b64 exec, -1")
    a.stamp(12)
    BB, D8 = 136, 20
    a(f"v_lshlrev_b32 v{VT}, 6, v{VJ}\nv_lshl_add_u32 v{VT}, v{VKG}, 4, v{VT}")
    Lp, Lx = spin_head(a, "s60", cfg.SPIN, "R7")
    a(f"ds_read_b128 v[32:35], v{VT+1}\nds_read_b128 v[36:39], v{VT+1} offset:16\nds_read_b128 v[40:43], v{VT+1} offset:128\nds_read_b128 v[44:47], v{VT+1} offset:144")
    spin_bound(a, "s60", cfg.SPIN, Lx)
    a("s_waitcnt lgkmcnt(0)")
    for e in range(8): a(f"v_max_f32 v{48+e}, 0, v{32+e}")
    for e in range(0, 8, 2): a(f"v_pk_mul_f32 {pr(48+e)}, {pr(48+e)}, {pr(40+e)}")
    a("v_max3_u32 v56, v32, v33, v34\nv_max3_u32 v57, v35, v36, v37\nv_max3_u32 v56, v56, v38, v39\nv_max3_u32 v57, v57, v40, v41\nv_max3_u32 v56, v56, v42, v43\nv_max3_u32 v57, v57, v44, v45\nv_max3_u32 v56, v56, v46, v47\nv_max_u32 v56, v56, v57")
    a(f"v_cmp_eq_u32 vcc, -1, v56\ns_cbranch_vccnz {Lp}\n{Lx}:\ns_waitcnt lgkmcnt(0)")
    for e in range(4): a(f"v_cvt_pk_bf16_f32 v{32+e}, v{48+2*e}, v{49+2*e}")
    for e in range(4): a(f"v_mov_b32 v{D8+e}, 0")
    for n in range(9):
        a(f"s_mov_b32 s46, {hex(0x00010001 << n)}\ns_mov_b32 s47, s46")
        for h in range(4): a(f"v_cndmask_b32 v{BB+4*n+h}, 0, v{32+h}, s[46:47]")
        if n:
            a(f"v_mfma_f32_16x16x32_bf16 v[{D8}:{D8+3}], v[{DF+4*(n-1)}:{DF+4*(n-1)+3}], v[{BB+4*(n-1)}:{BB+4*(n-1)+3}], v[{D8}:{D8+3}]")
    a.nop(2)
    a(f"v_mfma_f32_16x16x32_bf16 v[{D8}:{D8+3}], v[{DF+32}:{DF+35}], v[{BB+32}:{BB+35}], v[{D8}:{D8+3}]")
    a.nop(8)
    for e in range(4): a(f"v_and_or_b32 v{D8+e}, v{D8+e}, s57, v{VTAG}")
    a.exec64(0x01ff01ff, 0x01ff01ff)
    a(f"global_store_dwordx4 v{VT}, v[{D8}:{D8+3}], s[42:43] sc1\ns_mov_b64 exec, -1")
    a.stamp(13)
    a("L_fin:")
    a.stamp(15)
    stamps_out(a)
    a("s_endpgm")

def generate(cfg):
    a = A(cfg)
    K = NAME + "_kernel"
    hdr = open("cdna_kernels/" + NAME + ".s.ref").read().split("; Override launch geometry")[0]
    out = [hdr.rstrip(), "; Override launch geometry by editing the next line (default: block=256,", "; grid=ceil(out_elems/256), lds=0). Harness parses it; keep it on one line.",
           f"; @launch grid=(256,1,1) block=(320,1,1) lds={LDS_BYTES}", '.amdgcn_target "amdgcn-amd-amdhsa--gfx950"\n.text', f".globl {K}\n.p2align 8\n.type {K},@function\n{K}:"]
    a("KSTART:")
    a("s_cmp_ge_u32 s2, 256\ns_cbranch_scc1 L_exit")
    a("s_load_dwordx16 s[4:19], s[0:1], 0\ns_load_dwordx8 s[20:27], s[0:1], 64")
    if cfg.STAMP:
        for i in range(16): a(f"s_mov_b64 s[{64+2*i}:{65+2*i}], 0")
        a("s_memrealtime s[64:65]")
    a("v_and_b32 v1, 63, v0\nv_lshrrev_b32 v2, 6, v0")
    a("s_and_b32 s28, s2, 7\ns_lshl_b32 s28, s28, 1\ns_lshr_b32 s29, s2, 3\ns_and_b32 s29, s29, 1\ns_or_b32 s28, s28, s29\ns_lshr_b32 s29, s2, 4")
    a("v_readfirstlane_b32 s3, v2")
    a("s_waitcnt lgkmcnt(0)")
    a("s_cmp_lg_u32 s3, 0\ns_cbranch_scc1 L_consumer")
    gen_loader(a)
    gen_consumer(a)
    a("L_exit:\ns_endpgm")
    out += a.L
    out.append('.section .rodata,"a"\n.p2align 6')
    out.append(f".amdhsa_kernel {K}")
    out.append("  .amdhsa_next_free_vgpr 256\n  .amdhsa_next_free_sgpr 102\n  .amdhsa_accum_offset 256\n  .amdhsa_group_segment_fixed_size 0\n  .amdhsa_kernarg_size 96\n  .amdhsa_user_sgpr_count 2\n  .amdhsa_user_sgpr_kernarg_segment_ptr 1\n  .amdhsa_system_sgpr_workgroup_id_x 1\n.end_amdhsa_kernel")
    return "\n".join(out) + "\n"

if __name__ == "__main__":
    cfg = Cfg()
    for kv in sys.argv[2:]:
        k, v = kv.split("=")
        setattr(cfg, k, v if k == "NT" else (v == "1" if k == "STAMP" else int(v)))
    open(sys.argv[1], "w").write(generate(cfg))
```

```python
import sys, struct, math
NAME = "sequential_preLN__sliding_block_cached__glu_gated_reglu__decode"
def f2b(x): return struct.unpack("<I", struct.pack("<f", x))[0]

class Cfg:
    W1 = 20; WWO = 14; WGU = 12; WD = 20
    NT = "nt"
    STAMP = False
    DBG = 0
    LOCAL = 1
    CPF = 0
    TPF = 0
    PF = 1
    WG0 = 14; NG0 = 0
    WG1 = 14
    WUP = 16
    GUROT = 0
    ROT = 5
    LONLY = 0
    H3GATE = 1
    T_H1 = 0
    D_H1 = 0; B_H1 = 0; B_ML = 0; B_H2 = 0; B_H3 = 0; B_H4 = 2; B_AL = 2
    SPIN = 1 << 16
    GSPIN = 1 << 13

WS_H1 = 0x00000; WS_ML = 0x10000; WS_H2 = 0x18000; WS_H3 = 0x38000; WS_AL = 0x3d000; WS_EP = 0x3f000; WS_H4 = 0x40000; WS_ST = 0x100000
L_WQ = 0; L_K = 18432; L_V = L_K + 65536; L_SB = L_V + 65536
L_XN = L_SB
L_QB = L_XN + 1152
L_MX = L_QB + 512
L_LW = L_MX + 32
L_OP = L_LW + 32
L_R5 = L_OP + 3072
L_HN = L_R5 + 2048
L_R7 = L_HN + 1152
L_QP = L_R7 + 256
L_CT = L_QP + 256
L_END = L_CT + 64
LDS_BYTES = 161280
assert L_END <= LDS_BYTES
POIS_LO, POIS_HI = L_QB, L_CT
F_G, F_U, F_D = 0, 36864, L_V
O_WO = 0
CSCALE = f2b(math.log2(math.e) / math.sqrt(128.0))

class A:
    def __init__(s, cfg): s.L = []; s.cfg = cfg; s.uid = 0
    def __call__(s, t):
        for ln in t.split("\n"):
            ln = ln.strip()
            if ln: s.L.append(("" if ln.endswith(":") else "    ") + ln)
    def lab(s, base): s.uid += 1; return f"{base}_{s.uid}"
    def nop(s, n):
        while n > 0:
            k = min(n, 16); s(f"s_nop {k-1}"); n -= k
    def stamp(s, idx):
        if s.cfg.STAMP: s(f"s_memrealtime s[{64+2*idx}:{65+2*idx}]")
    def exec64(s, lo, hi): s(f"s_mov_b32 exec_lo, {hex(lo)}\ns_mov_b32 exec_hi, {hex(hi)}")
    def sleep(s, n):
        while n > 0:
            k = min(n, 127); s(f"s_sleep {k}"); n -= k

def lds_wait_ge(a, addr_v, val, tmp_v, tmp_s="s31", cnt_s="s60", off=0):
    if a.cfg.LONLY and off in (4, 8, 12, 16): return
    L = a.lab("LW"); X = a.lab("LX")
    o = f" offset:{off}" if off else ""
    a(f"s_mov_b32 {cnt_s}, 0\n{L}:\nds_read_b32 {tmp_v}, {addr_v}{o}")
    a(f"s_add_u32 {cnt_s}, {cnt_s}, 1\ns_cmp_gt_u32 {cnt_s}, {a.cfg.SPIN}\ns_cbranch_scc1 {X}")
    a(f"s_waitcnt lgkmcnt(0)\nv_readfirstlane_b32 {tmp_s}, {tmp_v}\ns_cmp_lt_u32 {tmp_s}, {val}\ns_cbranch_scc1 {L}\n{X}:\ns_waitcnt lgkmcnt(0)")

def lds_set(a, addr_v, off, val_v, op="ds_write_b32"):
    a(f"s_mov_b64 exec, 1\n{op} {addr_v}, {val_v} offset:{off}\ns_mov_b64 exec, -1")

def dpp(a, op, v, ctl): a(f"{op}_dpp {v}, {v}, {v} {ctl} row_mask:0xf bank_mask:0xf")
def row_red(a, op, vs):
    if isinstance(vs, str): vs = [vs]
    for ctl in ("quad_perm:[1,0,3,2]", "quad_perm:[2,3,0,1]", "row_half_mirror", "row_mirror"):
        a.nop(max(0, 3 - len(vs))) if len(vs) < 3 else None
        for v in vs: dpp(a, op, v, ctl)
    a.nop(0)
def xrow_red(a, op, v, t):
    a(f"v_mov_b32 {t}, {v}"); a.nop(2)
    a(f"v_permlane16_swap_b32 {v}, {t}"); a.nop(1)
    a(f"{op} {v}, {v}, {t}\nv_mov_b32 {t}, {v}"); a.nop(2)
    a(f"v_permlane32_swap_b32 {v}, {t}"); a.nop(1)
    a(f"{op} {v}, {v}, {t}")

def spin_head(a, cnt, bound, name):
    Lp, Lx = a.lab(name), a.lab(name + "X")
    a(f"s_mov_b32 {cnt}, 0\n{Lp}:")
    return Lp, Lx
def spin_bound(a, cnt, bound, Lx):
    a(f"s_add_u32 {cnt}, {cnt}, 1\ns_cmp_gt_u32 {cnt}, {bound}\ns_cbranch_scc1 {Lx}")

def tagcheck(a, acc, regs, vtag):
    regs = list(regs)
    a(f"v_xor_b32 {acc}, v{regs[0]}, v{vtag}")
    for r in regs[1:]: a(f"v_bitop3_b32 {acc}, {acc}, v{r}, v{vtag} bitop3:0xf6")
    a(f"v_and_b32 {acc}, 0x3ff, {acc}\nv_cmp_ne_u32 vcc, 0, {acc}")

def stamps_out(a, loader=False):
    if not a.cfg.STAMP: return
    if a.cfg.DBG:
        a("s_waitcnt lgkmcnt(0)\ns_mov_b64 exec, 1")
        if loader: lst = [(0, 0, 0), (255, 0, 1), (0, 3, 2), (255, 3, 3), (0, 8, 4)]
        else: lst = [(0, 7, 5), (0, 11, 6), (0, 13, 7), (144, 9, 8), (144, 10, 9), (144, 14, 10), (144, 15, 11), (145, 15, 12), (160, 15, 13), (161, 15, 14), (178, 15, 15)]
        for (wg, st, slot) in lst:
            L = a.lab("DB")
            a(f"s_cmp_lg_u32 s2, {wg}\ns_cbranch_scc1 {L}")
            if not loader: a(f"s_cmp_lg_u32 s30, 0\ns_cbranch_scc1 {L}")
            a(f"v_mov_b32 v250, {4*slot}\nv_mov_b32 v251, s{64+2*st}\nglobal_store_dword v250, v251, s[24:25]\n{L}:")
        return
    a("s_waitcnt lgkmcnt(0)")
    a(f"s_lshl_b32 s40, s2, 3\ns_add_u32 s40, s40, s3\ns_lshl_b32 s40, s40, 7\ns_add_u32 s40, s40, {WS_ST}")
    a("s_add_u32 s40, s26, s40\ns_addc_u32 s41, s27, 0\ns_mov_b64 exec, 1\nv_mov_b32 v250, 0")
    for i in range(16):
        a(f"v_mov_b32 v252, s{64+2*i}\nv_mov_b32 v253, s{65+2*i}\nglobal_store_dwordx2 v250, v[252:253], s[40:41] offset:{8*i}")
        a.nop(2)

def page_touch(a, vlo, vhi, vdst):
    a(f"v_mov_b32 v{vlo}, s4\nv_mov_b32 v{vhi}, s5")
    a(f"s_lshl_b32 s40, s28, 24\ns_lshl_b32 s41, s29, 16\ns_add_u32 s40, s40, s41\ns_add_u32 s40, s40, {(65536-4096)*256}")
    def put(lane, p, off):
        a(f"s_add_u32 s52, s{p}, {off}\ns_addc_u32 s53, s{p+1}, 0\nv_writelane_b32 v{vlo}, s52, {lane}\nv_writelane_b32 v{vhi}, s53, {lane}")
    put(0, 6, "s40"); put(1, 8, "s40")
    a("s_mul_i32 s41, s28, 294912"); put(2, 12, "s41")
    a("s_add_u32 s41, s41, 294784"); put(3, 12, "s41")
    n = 4
    for p in (16, 18):
        for off in (0, 0x200000, 0x400000): put(n, p, off); n += 1
    a("s_mul_i32 s41, s28, 331776"); put(n, 20, "s41"); n += 1
    a("s_add_u32 s41, s41, 331648"); put(n, 20, "s41"); n += 1
    put(n, 26, 0x40000); n += 1
    put(n, 22, 0); n += 1
    a(f"s_mov_b64 exec, {hex((1 << n) - 1)}\nglobal_load_dword v{vdst}, v[{vlo}:{vhi}], off nt\ns_mov_b64 exec, -1")

def gen_loader(a):
    cfg = a.cfg; NT = cfg.NT
    V_L16, V_WQ, V_K, V_P, V_FA, V_FV, V_T = 4, 5, 6, 10, 16, 17, 18
    a("L_loader:\ns_setprio 1")
    a(f"v_lshlrev_b32 v{V_L16}, 4, v1")
    a(f"v_lshrrev_b32 v20, 3, v1\nv_lshlrev_b32 v20, 13, v20\nv_and_b32 v21, 7, v1\nv_lshlrev_b32 v21, 4, v21\nv_add_u32 v{V_WQ}, v20, v21")
    a("s_lshr_b32 s40, s29, 2\ns_mul_i32 s40, s40, 1179648")
    a("s_and_b32 s41, s29, 3\ns_lshl_b32 s41, s41, 7\ns_lshl_b32 s42, s28, 9\ns_add_u32 s41, s41, s42\ns_add_u32 s40, s40, s41")
    a("s_add_u32 s32, s10, s40\ns_addc_u32 s33, s11, 0\ns_sub_u32 s34, 4718592, s40\ns_mov_b32 s35, 0x20000")
    def raw(pat, off=0):
        o = f" offset:{off}" if off else ""
        a(f"buffer_load_dwordx4 v{pat}, s[32:35], s36 offen{o} {NT} lds")
    def signal(val):
        a(f"v_mov_b32 v{V_FV}, {val}"); lds_set(a, f"v{V_FA}", 0, f"v{V_FV}")
    class Seq:
        def __init__(s, W, n, pend): s.n = n; s.W = W; s.pend = pend
        def after(s):
            n = s.n
            if n >= s.W - 1:
                a(f"s_waitcnt vmcnt({s.W-1})")
                landed = n - s.W + 1
                while s.pend and s.pend[0][0] <= landed: signal(s.pend.pop(0)[1])
                if cfg.T_H1 and landed == 18 + cfg.T_H1:
                    a(f"v_mov_b32 v{V_FV}, 1"); lds_set(a, f"v{V_FA}", 24, f"v{V_FV}")
            s.n += 1
        def drain(s):
            last = s.n - 1
            while s.pend:
                e, v = s.pend.pop(0)
                a(f"s_waitcnt vmcnt({last-e})"); signal(v)
    q = Seq(cfg.W1, 0, [])
    a(f"s_mov_b32 m0, {L_WQ}\ns_mov_b32 s36, 0")
    q.pend.append((17, 1))
    for i in range(18):
        if i: a("s_add_u32 m0, m0, 0x400\ns_add_u32 s36, s36, 0x10000")
        else: a.nop(1)
        raw(V_WQ); q.after()
        if i == 1:
            a("v_lshrrev_b32 v20, 4, v1\nv_lshlrev_b32 v21, 2, v20\nv_and_b32 v22, 15, v1\nv_xor_b32 v22, v22, v21\nv_lshlrev_b32 v20, 8, v20")
            for p in range(4): a(f"v_xor_b32 v23, {p}, v22\nv_lshlrev_b32 v23, 4, v23\nv_add_u32 v{V_K+p}, v20, v23")
            a(f"v_mov_b32 v{V_FA}, {L_CT}")
        if i == 5: a("s_barrier")
    a.stamp(1)
    for name, p, lbase, pats in (("K", 6, L_K, [V_K, V_K+1, V_K+2, V_K+3]), ("V", 8, L_V, [V_L16]*4)):
        a(f"s_lshl_b32 s40, s28, 24\ns_lshl_b32 s42, s29, 16\ns_add_u32 s42, s42, {(65536-4096)*256}\ns_add_u32 s40, s40, s42")
        a(f"s_add_u32 s32, s{p}, s40\ns_addc_u32 s33, s{p+1}, 0\ns_mov_b32 s34, 65536\ns_mov_b32 m0, {lbase}\ns_mov_b32 s36, 0")
        if cfg.ROT: a(f"s_mul_i32 s36, s28, {cfg.ROT}\ns_add_u32 s36, s36, s29\ns_and_b32 s36, s36, 15\ns_lshl_b32 s36, s36, 12")
        base = q.n
        if name == "K": q.pend.append((base + 63, 2))
        else:
            for r in range(4): q.pend.append((base + 16*r + 15, 3 + r))
        for i in range(64):
            if i and i % 4 == 0:
                a("s_add_u32 m0, m0, 0x1000\ns_add_u32 s36, s36, 0x1000")
                if cfg.ROT: a("s_and_b32 s36, s36, 0xffff")
            elif i == 0: a.nop(1)
            raw(pats[i % 4], off=(i % 4) * 1024); q.after()
        a.stamp(2 if name == "K" else 3)
    lds_wait_ge(a, f"v{V_FA}", 4, "v19", "s43", "s44", off=4)
    a.stamp(4)
    n0, p0 = q.n, list(q.pend)
    a("s_cmp_ge_u32 s29, 9\ns_cbranch_scc1 L_ld_o")
    q = Seq(cfg.WGU, n0, list(p0))
    a(f"v_lshrrev_b32 v20, 2, v1\nv_mul_u32_u24 v20, 9216, v20\nv_and_b32 v21, 3, v1\nv_lshlrev_b32 v21, 4, v21\nv_add_u32 v{V_P}, v20, v21")
    a("s_mul_i32 s45, s28, 288\ns_lshl_b32 s46, s29, 5\ns_add_u32 s45, s45, s46")
    def gu_tile(p, lb, mile, W):
        q.W = W
        q.pend.append((q.n + 35, mile))
        a(f"s_lshl_b32 s40, s45, 1\ns_add_u32 s32, s{p}, s40\ns_addc_u32 s33, s{p+1}, 0\ns_sub_u32 s34, 5308416, s40\ns_mov_b32 m0, {lb}\ns_mov_b32 s36, 0")
        for i in range(36):
            if i: a(f"s_add_u32 m0, m0, 0x400\ns_add_u32 s36, s36, {16*9216}")
            else: a.nop(1)
            if mile == 7 and i < cfg.NG0: q.W = cfg.WG0
            else: q.W = W
            raw(V_P); q.after()
    gu_tile(16, F_G, 7, cfg.WG1)
    a.stamp(5)
    lds_wait_ge(a, f"v{V_FA}", 4, "v19", "s43", "s44", off=8)
    a(f"s_mul_i32 s40, s45, 1152\ns_add_u32 s32, s20, s40\ns_addc_u32 s33, s21, 0\ns_mov_b32 s34, {32*1152}\ns_mov_b32 m0, {F_D}\ns_mov_b32 s36, 0")
    q.pend.append((q.n + 35, 8)); q.W = cfg.WD
    for i in range(36):
        if i and i % 4 == 0: a("s_add_u32 m0, m0, 0x1000\ns_add_u32 s36, s36, 0x1000")
        elif i == 0: a.nop(1)
        raw(V_L16, off=(i % 4) * 1024); q.after()
    a.stamp(7)
    gu_tile(18, F_U, 9, cfg.WUP)
    a(f"v_mov_b32 v{V_FV}, 1"); lds_set(a, f"v{V_FA}", 12, f"v{V_FV}")
    a.stamp(6)
    q.drain()
    a("s_branch L_ld_done")
    a("L_ld_o:")
    q = Seq(cfg.WWO, n0, list(p0))
    for p in range(3):
        a(f"v_add_u32 v20, {64*p}, v1\nv_mul_u32_u24 v21, 171, v20\nv_lshrrev_b32 v21, 11, v21")
        a(f"v_mul_u32_u24 v22, 12, v21\nv_sub_u32 v22, v20, v22\nv_lshlrev_b32 v22, 4, v22\nv_mul_u32_u24 v21, 1152, v21\nv_add_u32 v{V_P+p}, v21, v22")
    a("s_mul_i32 s40, s28, 294912\ns_sub_u32 s41, s29, 9\ns_mul_i32 s41, s41, 160\ns_add_u32 s40, s40, s41")
    a(f"s_add_u32 s32, s12, s40\ns_addc_u32 s33, s13, 0\ns_sub_u32 s34, 4718592, s40\ns_mov_b32 m0, {O_WO}\ns_mov_b32 s36, 0")
    for c in range(4): q.pend.append((q.n + 12*c + 11, 7 + c))
    for i in range(48):
        if i:
            a("s_add_u32 m0, m0, 0x400")
            if i % 3 == 0: a(f"s_add_u32 s36, s36, {16*1152}")
            else: a.nop(1)
        else: a.nop(1)
        raw(V_P + i % 3); q.after()
    a(f"v_mov_b32 v{V_FV}, 1"); lds_set(a, f"v{V_FA}", 12, f"v{V_FV}")
    a.stamp(5)
    if cfg.PF:
        a("s_and_b32 s40, s2, 7\ns_lshr_b32 s41, s2, 3\ns_and_b32 s44, s41, 1\ns_lshr_b32 s41, s41, 1\ns_sub_u32 s41, s41, 9\ns_lshl_b32 s41, s41, 1\ns_add_u32 s41, s41, s44")
        a("s_mul_i32 s40, s40, 1152\ns_add_u32 s32, s18, s40\ns_addc_u32 s33, s19, 0\ns_sub_u32 s34, 5308416, s40\ns_lshl_b32 s41, s41, 6\ns_mov_b32 s46, 7282\ns_mov_b32 s47, 9216")
        for t in range(6):
            a(f"s_add_u32 s40, s41, {64*14*t}\nv_add_u32 v20, s40, v1\nv_mul_lo_u32 v21, s46, v20\nv_lshrrev_b32 v21, 16, v21")
            a(f"v_mul_u32_u24 v22, 9, v21\nv_sub_u32 v22, v20, v22\nv_lshlrev_b32 v22, 7, v22\nv_mul_lo_u32 v21, s47, v21\nv_add_u32 v{24+t}, v21, v22")
        lds_wait_ge(a, f"v{V_FA}", 4, "v19", "s43", "s44", off=16)
        a("s_mov_b32 s36, 0")
        npf = 6
        for t in range(npf):
            a(f"buffer_load_dword v{32+t}, v{24+t}, s[32:35], s36 offen {NT}")
            q.n += 1
    q.drain()
    a("L_ld_done:")
    a.stamp(8)
    if cfg.STAMP: a("s_getreg_b32 s94, hwreg(HW_REG_XCC_ID)\ns_and_b32 s94, s94, 15\ns_add_u32 s94, s94, 1\ns_mov_b32 s95, 0")
    stamps_out(a, True)
    a("s_endpgm")

def gen_consumer(a):
    cfg = a.cfg
    VL, VJ, VKG, VL16, VCT = 1, 2, 3, 4, 5
    VX = 196
    XF = 216
    VT = 12
    VTAG = 11
    a("L_consumer:")
    a(f"v_and_b32 v{VJ}, 15, v{VL}\nv_lshrrev_b32 v{VKG}, 4, v{VL}\nv_lshlrev_b32 v{VL16}, 4, v{VL}\nv_mov_b32 v{VCT}, {L_CT}\ns_sub_u32 s30, s3, 1")
    a(f"s_load_dword s58, s[26:27], {WS_EP}")
    if cfg.CPF:
        a("s_getpc_b64 s[52:53]\nL_pc:\ns_sub_u32 s52, s52, (L_pc - KSTART)\ns_subb_u32 s53, s53, 0")
        a("s_lshr_b32 s40, s2, 3\ns_lshl_b32 s40, s40, 2\ns_add_u32 s40, s40, s30\ns_lshl_b32 s40, s40, 8\ns_min_u32 s40, s40, (L_exit - KSTART - 128)")
        a("s_add_u32 s52, s52, s40\ns_addc_u32 s53, s53, 0\ns_load_dword s54, s[52:53], 0\ns_load_dword s55, s[52:53], 128")
    a(f"global_load_dwordx4 v[20:23], v{VL16}, s[4:5]")
    a(f"v_lshlrev_b32 v{VT}, 2, v{VL}\nv_mov_b32 v24, 0\ns_mov_b32 exec_hi, 0\nglobal_load_dword v24, v{VT}, s[4:5] offset:1024\ns_mov_b64 exec, -1")
    a("s_cmp_lg_u32 s30, 0\ns_cbranch_scc1 L_p0_notc0")
    a("v_mov_b32 v28, -1\nv_mov_b32 v29, -1\nv_mov_b32 v30, -1\nv_mov_b32 v31, -1")
    nb = POIS_HI - POIS_LO
    a(f"v_add_u32 v{VT}, {POIS_LO}, v{VL16}")
    off = 0
    while off < nb:
        rem = nb - off
        if rem < 1024: a(f"v_cmp_gt_u32 vcc, {rem}, v{VL16}\ns_and_saveexec_b64 s[40:41], vcc")
        a(f"ds_write_b128 v{VT}, v[28:31] offset:{off}")
        if rem < 1024: a("s_mov_b64 exec, s[40:41]")
        off += 1024
    a(f"v_mov_b32 v32, 0\nv_mov_b32 v33, 0\nv_mov_b32 v34, 0\nv_mov_b32 v35, 0\nds_write_b128 v{VCT}, v[32:35]\nds_write_b128 v{VCT}, v[32:35] offset:16")
    a("s_waitcnt lgkmcnt(0)\ns_barrier")
    if cfg.LONLY == 1: a("s_branch L_fin")
    def wsaddr(lo): a(f"s_add_u32 s42, s26, {lo}\ns_addc_u32 s43, s27, 0")
    def pst(off=0): a(f"global_store_dwordx4 v{VL16}, v[28:31], s[42:43]" + (f" offset:{off}" if off else "") + " sc1")
    a(f"s_lshl_b32 s46, s28, 4\ns_add_u32 s46, s46, s29\ns_lshl_b32 s40, s46, 9\ns_add_u32 s40, s40, {WS_H2}"); wsaddr("s40")
    a("s_mov_b32 exec_hi, 0"); pst(); a("s_mov_b64 exec, -1")
    a("s_cmp_ge_u32 s29, 9\ns_cbranch_scc1 L_p0_o")
    a(f"v_and_b32 v{VT}, 1, v{VKG}\nv_lshlrev_b32 v{VT}, 3, v{VT}\nv_lshl_add_u32 v{VT}, v{VJ}, 4, v{VT}")
    for cb in range(4): a(f"global_load_dwordx2 v[{VX+2*cb}:{VX+2*cb+1}], v{VT}, s[4:5] offset:{256*cb}")
    a(f"v_mov_b32 v{VX+8}, 0\nv_mov_b32 v{VX+9}, 0"); a.exec64(0x00ff00ff, 0x00ff00ff)
    a(f"global_load_dwordx2 v[{VX+8}:{VX+9}], v{VT}, s[4:5] offset:1024\ns_mov_b64 exec, -1")
    a("s_waitcnt vmcnt(6)")
    a("s_branch L_p0_ln")
    a("L_p0_o:")
    a(f"s_sub_u32 s41, s29, 9\ns_mul_i32 s40, s41, 160\ns_mul_i32 s44, s28, 1152\ns_add_u32 s40, s40, s44\ns_add_u32 s40, s40, {WS_H3}"); wsaddr("s40")
    a("s_mov_b64 exec, 0x3ff\ns_cmp_eq_u32 s41, 6\ns_cselect_b32 exec_lo, 0xfff, exec_lo"); pst(); a("s_mov_b64 exec, -1")
    a("s_waitcnt vmcnt(2)")
    a("s_branch L_p0_ln")
    a("L_p0_notc0:")
    if cfg.TPF:
        L = a.lab("TP")
        a(f"s_cmp_lg_u32 s30, 1\ns_cbranch_scc1 {L}")
        page_touch(a, 46, 47, 48)
        a(f"s_barrier\ns_waitcnt vmcnt(1)\ns_branch L_p0_ln\n{L}:")
    a("s_barrier\ns_waitcnt vmcnt(0)")
    a("L_p0_ln:")
    if cfg.LONLY in (1, 2): a("s_branch L_fin")
    a.stamp(0)
    for i in range(5): a(f"v_lshlrev_b32 v{32+2*i}, 16, v{20+i}\nv_and_b32 v{33+2*i}, 0xffff0000, v{20+i}")
    a("v_add_f32 v42, v32, v33")
    for i in range(2, 10): a(f"v_add_f32 v42, v42, v{32+i}")
    row_red(a, "v_add_f32", "v42"); xrow_red(a, "v_add_f32", "v42", "v43")
    a(f"v_mul_f32 v42, {hex(f2b(1.0/576))}, v42")
    for i in range(10): a(f"v_sub_f32 v{32+i}, v{32+i}, v42")
    a("s_mov_b32 exec_lo, 0\nv_mov_b32 v40, 0\nv_mov_b32 v41, 0\ns_mov_b64 exec, -1")
    a("v_mul_f32 v43, v32, v32")
    for i in range(1, 10): a(f"v_fmac_f32 v43, v{32+i}, v{32+i}")
    row_red(a, "v_add_f32", "v43"); xrow_red(a, "v_add_f32", "v43", "v44")
    a(f"v_mov_b32 v44, {hex(f2b(1e-5))}\nv_fmac_f32 v44, {hex(f2b(1.0/576))}, v43\nv_rsq_f32 v44, v44")
    a.nop(1)
    for i in range(10): a(f"v_mul_f32 v{32+i}, v{32+i}, v44")
    for i in range(5): a(f"v_cvt_pk_bf16_f32 v{20+i}, v{32+2*i}, v{33+2*i}")
    a(f"v_add_u32 v{VT}, {L_XN}, v{VL16}\nds_write_b128 v{VT}, v[20:23]")
    a(f"v_lshlrev_b32 v{VT}, 2, v{VL}\nv_add_u32 v{VT}, {L_XN+1024}, v{VT}\ns_mov_b32 exec_hi, 0\nds_write_b32 v{VT}, v24\ns_mov_b64 exec, -1")
    a(f"v_bfe_u32 v{VT}, v{VL}, 2, 2\nv_lshl_add_u32 v{VT}, v{VKG}, 2, v{VT}\nv_lshlrev_b32 v{VT}, 7, v{VT}")
    a(f"v_and_b32 v{VT+1}, 3, v{VL}\nv_lshl_add_u32 v{VT}, v{VT+1}, 3, v{VT}")
    a(f"s_lshl_b32 s40, s30, 5\ns_add_u32 s40, s40, {L_WQ}\nv_add_u32 v{VT}, s40, v{VT}")
    a(f"s_lshr_b32 s40, s29, 2\ns_mul_i32 s40, s40, 288\ns_add_u32 s40, s40, {L_XN}\nv_lshlrev_b32 v{VT+1}, 3, v{VKG}\nv_add_u32 v{VT+1}, s40, v{VT+1}")
    a("s_waitcnt lgkmcnt(0)")
    for t in range(9): a(f"ds_read_b64 v[{40+2*t}:{41+2*t}], v{VT+1} offset:{32*t}")
    for r in range(4): a(f"v_mov_b32 v{60+r}, 0")
    a("s_lshr_b32 s40, s29, 2\ns_lshl_b32 s40, s40, 10\ns_and_b32 s41, s29, 3\ns_lshl_b32 s41, s41, 8\ns_add_u32 s40, s40, s41")
    a(f"s_lshl_b32 s41, s28, 12\ns_add_u32 s40, s40, s41")
    a("s_add_u32 s42, s26, s40\ns_addc_u32 s43, s27, 0")
    lds_wait_ge(a, f"v{VCT}", 1, f"v{VT+2}")
    a.stamp(1)
    for t in range(9): a(f"ds_read_b64_tr_b16 v[{20+2*t}:{21+2*t}], v{VT} offset:{2048*t}")
    for t in range(9):
        a(f"s_waitcnt lgkmcnt({8-t})")
        a(f"v_mfma_f32_16x16x16_bf16 v[60:63], v[{20+2*t}:{21+2*t}], v[{40+2*t}:{41+2*t}], v[60:63]")
    a(f"s_lshl_b32 s40, s30, 6\ns_add_u32 s40, s40, {L_QP}\nv_lshlrev_b32 v{VT}, 4, v{VKG}\nv_add_u32 v{VT}, s40, v{VT}")
    a(f"s_add_u32 s58, s58, 1\ns_and_b32 s56, s58, 0x3ff\ns_mov_b32 s57, 0xfffffc00\nv_mov_b32 v{VTAG}, s56")
    a.nop(1)
    a.exec64(0x00010001, 0x00010001)
    a(f"ds_write_b128 v{VT}, v[60:63]\ns_mov_b64 exec, -1")
    a("s_cmp_lg_u32 s30, 0\ns_cbranch_scc1 L_p1_done")
    a(f"v_add_u32 v{VT}, {L_QP}, v{VL16}\ns_mov_b64 exec, 0xffff")
    Lp, Lx = spin_head(a, "s60", cfg.SPIN, "QP")
    a(f"ds_read_b128 v[60:63], v{VT}"); spin_bound(a, "s60", cfg.SPIN, Lx)
    a(f"s_waitcnt lgkmcnt(0)\nv_max3_u32 v{VT+1}, v60, v61, v62\nv_max_u32 v{VT+1}, v{VT+1}, v63\nv_cmp_eq_u32 vcc, -1, v{VT+1}\ns_cbranch_vccnz {Lp}\n{Lx}:\ns_waitcnt lgkmcnt(0)")
    for e in range(4): a(f"v_and_or_b32 v{60+e}, v{60+e}, s57, v{VTAG}")
    a("s_waitcnt vmcnt(0)")
    a(f"global_store_dwordx4 v{VL16}, v[60:63], s[42:43] sc1\ns_mov_b64 exec, -1")
    L = a.lab("XU")
    a(f"s_cmp_ge_u32 s29, 9\ns_cbranch_scc1 {L}")
    for i in range(10): a(f"v_lshlrev_b32 v{XF+2*i}, 16, v{VX+i}\nv_and_b32 v{XF+2*i+1}, 0xffff0000, v{VX+i}")
    a(f"s_branch L_p1_done\n{L}:")
    a(f"s_sub_u32 s41, s29, 9\ns_lshl_b32 s40, s28, 7\ns_lshl_b32 s44, s41, 2\ns_add_u32 s40, s40, s44\ns_add_u32 s40, s40, {WS_AL}")
    a(f"v_lshlrev_b32 v{VT}, 2, v{VL}\nv_add_u32 v{VT}, s40, v{VT}\nv_mov_b32 v{VT+1}, s58")
    a(f"s_mov_b64 exec, 1\ns_cmp_eq_u32 s41, 6\ns_cselect_b32 exec_lo, 3, exec_lo\nglobal_store_dword v{VT}, v{VT+1}, s[26:27] sc1\ns_mov_b64 exec, -1")
    a("L_p1_done:")
    if cfg.LONLY == 3: a("s_branch L_fin")
    a.stamp(2)
    QF, S, AO, MK, KA, KF, O = 20, 36, 64, 52, 56, 128, 60
    a(f"v_and_b32 v{VT+1}, 3, v{VJ}\nv_lshrrev_b32 v{VT+2}, 2, v{VJ}")
    a(f"v_lshl_add_u32 v{VT+3}, v{VT+1}, 2, v{VT+2}\nv_lshlrev_b32 v{VT+3}, 8, v{VT+3}")
    a(f"s_lshl_b32 s40, s30, 12\ns_add_u32 s40, s40, {L_K}\nv_add_u32 v{VT+3}, s40, v{VT+3}\nv_xor_b32 v{VT+1}, v{VT+1}, v{VKG}")
    for dd in range(4):
        a(f"v_xor_b32 v{VT+4}, {dd}, v{VT+2}\nv_lshl_add_u32 v{VT+4}, v{VT+4}, 2, v{VT+1}\nv_lshl_add_u32 v{KA+dd}, v{VT+4}, 4, v{VT+3}")
    a(f"v_and_b32 v{VT+1}, 1, v{VJ}\nv_cmp_eq_u32 vcc, 1, v{VT+1}\nv_mov_b32 v{VT+2}, 0xffff\nv_mov_b32 v{VT+4}, 0xffff0000")
    a.nop(1)
    a(f"v_cndmask_b32 v{VT+2}, v{VT+2}, v{VT+4}, vcc\nv_bfe_u32 v{VT+1}, v{VJ}, 1, 2")
    for t in range(4):
        a(f"v_cmp_eq_u32 vcc, {t}, v{VT+1}"); a.nop(2)
        a(f"v_cndmask_b32 v{MK+t}, 0, v{VT+2}, vcc")
    a("s_cmp_lg_u32 s30, 0\ns_cbranch_scc1 L_p2_skip")
    a.sleep(cfg.D_H1)
    if cfg.T_H1: lds_wait_ge(a, f"v{VCT}", 1, f"v{VT+2}", off=24)
    a(f"s_lshl_b32 s40, s28, 12\ns_add_u32 s42, s26, s40\ns_addc_u32 s43, s27, 0")
    Lp, Lx = spin_head(a, "s60", cfg.GSPIN, "H1")
    for rb in range(4): a(f"global_load_dwordx4 v[{20+4*rb}:{23+4*rb}], v{VL16}, s[42:43] offset:{1024*rb} sc1")
    spin_bound(a, "s60", cfg.GSPIN, Lx)
    a("s_waitcnt vmcnt(0)")
    tagcheck(a, "v40", range(20, 36), VTAG)
    a(f"s_and_b64 exec, exec, vcc\ns_cbranch_execz {Lx}"); a.sleep(cfg.B_H1); a(f"s_branch {Lp}")
    a(f"{Lx}:\ns_mov_b64 exec, -1\ns_waitcnt vmcnt(0)")
    for e in range(4): a(f"v_add_f32 v{36+e}, v{20+e}, v{24+e}\nv_add_f32 v{40+e}, v{28+e}, v{32+e}\nv_add_f32 v{36+e}, v{36+e}, v{40+e}")
    a("v_cvt_pk_bf16_f32 v36, v36, v37\nv_cvt_pk_bf16_f32 v37, v38, v39")
    a(f"v_lshlrev_b32 v{VT}, 3, v{VL}\nv_add_u32 v{VT}, {L_QB}, v{VT}\nds_write_b64 v{VT}, v[36:37]")
    a("L_p2_skip:")
    if cfg.LONLY == 4: a("s_branch L_fin")
    a.stamp(3)
    a(f"v_lshrrev_b32 v{VT}, 3, v{VJ}\nv_lshlrev_b32 v{VT}, 8, v{VT}\nv_lshl_add_u32 v{VT}, v{VKG}, 4, v{VT}\nv_add_u32 v{VT}, {L_QB}, v{VT}")
    Lp, Lx = spin_head(a, "s60", cfg.SPIN, "QF")
    for dd in range(4): a(f"ds_read_b128 v[{QF+4*dd}:{QF+4*dd+3}], v{VT} offset:{64*dd}")
    spin_bound(a, "s60", cfg.SPIN, Lx)
    a(f"s_waitcnt lgkmcnt(0)\nv_max3_u32 v{VT+1}, v{QF}, v{QF+1}, v{QF+2}")
    for i in range(3, 15, 2): a(f"v_max3_u32 v{VT+1}, v{VT+1}, v{QF+i}, v{QF+i+1}")
    a(f"v_max_u32 v{VT+1}, v{VT+1}, v{QF+15}\nv_cmp_eq_u32 vcc, -1, v{VT+1}\ns_cbranch_vccnz {Lp}\n{Lx}:\ns_waitcnt lgkmcnt(0)")
    a.stamp(4)
    for i in range(16): a(f"v_mov_b32 v{S+i}, 0")
    lds_wait_ge(a, f"v{VCT}", 2, f"v{VT+2}")
    a.stamp(5)
    for r in range(4):
        for dd in range(4): a(f"ds_read_b128 v[{KF+16*r+4*dd}:{KF+16*r+4*dd+3}], v{KA+dd} offset:{16384*r}")
    for r in range(4):
        for dd in range(4):
            n = 4*r + dd
            a(f"s_waitcnt lgkmcnt({15-n})")
            a(f"v_mfma_f32_16x16x32_bf16 v[{S+4*r}:{S+4*r+3}], v[{KF+16*r+4*dd}:{KF+16*r+4*dd+3}], v[{QF+4*dd}:{QF+4*dd+3}], v[{S+4*r}:{S+4*r+3}]")
    a(f"v_mov_b32 v{VT+2}, 1"); lds_set(a, f"v{VCT}", 4, f"v{VT+2}", "ds_add_u32")
    a.nop(8)
    a(f"v_max3_f32 v{VT+1}, v{S}, v{S+1}, v{S+2}")
    for i in range(3, 15, 2): a(f"v_max3_f32 v{VT+1}, v{VT+1}, v{S+i}, v{S+i+1}")
    a(f"v_max_f32 v{VT+1}, v{VT+1}, v{S+15}")
    xrow_red(a, "v_max_f32", f"v{VT+1}", f"v{VT+2}")
    a(f"v_lshrrev_b32 v{VT+2}, 3, v{VJ}\nv_lshlrev_b32 v{VT+2}, 4, v{VT+2}\nv_add_u32 v{VT+3}, {L_MX}, v{VT+2}")
    a(f"s_lshl_b32 s40, s30, 2\nv_add_u32 v{VT+4}, s40, v{VT+3}")
    a(f"s_mov_b64 exec, 0x101\nds_write_b32 v{VT+4}, v{VT+1}\ns_mov_b64 exec, -1")
    Lp, Lx = spin_head(a, "s60", cfg.SPIN, "MX")
    a(f"ds_read_b128 v[{KF}:{KF+3}], v{VT+3}"); spin_bound(a, "s60", cfg.SPIN, Lx)
    a(f"s_waitcnt lgkmcnt(0)\nv_max3_u32 v{VT+5}, v{KF}, v{KF+1}, v{KF+2}\nv_max_u32 v{VT+5}, v{VT+5}, v{KF+3}\nv_cmp_eq_u32 vcc, -1, v{VT+5}\ns_cbranch_vccnz {Lp}")
    a(f"{Lx}:\ns_waitcnt lgkmcnt(0)")
    a(f"v_max3_f32 v{VT+1}, v{KF}, v{KF+1}, v{KF+2}\nv_max_f32 v{VT+1}, v{VT+1}, v{KF+3}")
    a(f"s_mov_b32 s44, {hex(CSCALE)}\nv_mul_f32 v17, s44, v{VT+1}")
    a(f"s_getreg_b32 s59, hwreg(HW_REG_XCC_ID)\ns_and_b32 s59, s59, 7\ns_lshl_b32 s45, s59, 10\ns_or_b32 s45, s45, s56\nv_and_b32 v17, 0xffffe000, v17\nv_or_b32 v17, s45, v17")
    for i in range(16): a(f"v_fma_f32 v{S+i}, v{S+i}, s44, -v17")
    for i in range(16): a(f"v_exp_f32 v{S+i}, v{S+i}")
    a.nop(1)
    a(f"v_add_f32 v{VT+1}, v{S}, v{S+1}")
    for i in range(2, 16): a(f"v_add_f32 v{VT+1}, v{VT+1}, v{S+i}")
    xrow_red(a, "v_add_f32", f"v{VT+1}", f"v{VT+2}")
    a(f"v_add_u32 v{VT+4}, {L_LW-L_MX}, v{VT+4}")
    a(f"s_mov_b64 exec, 0x101\nds_write_b32 v{VT+4}, v{VT+1}\ns_mov_b64 exec, -1")
    a("s_cmp_lg_u32 s30, 3\ns_cbranch_scc1 L_p3_noml")
    a(f"v_add_u32 v{VT+3}, {L_LW-L_MX}, v{VT+3}")
    Lp, Lx = spin_head(a, "s60", cfg.SPIN, "LW")
    a(f"ds_read_b128 v[{KF}:{KF+3}], v{VT+3}"); spin_bound(a, "s60", cfg.SPIN, Lx)
    a(f"s_waitcnt lgkmcnt(0)\nv_add_f32 v{KF}, v{KF}, v{KF+1}\nv_add_f32 v{KF+2}, v{KF+2}, v{KF+3}\nv_add_f32 v19, v{KF}, v{KF+2}")
    a(f"v_cmp_u_f32 vcc, v19, v19\ns_cbranch_vccnz {Lp}\n{Lx}:\ns_waitcnt lgkmcnt(0)")
    a(f"s_lshl_b32 s46, s28, 4\ns_add_u32 s40, s46, s29\ns_lshl_b32 s40, s40, 7\ns_add_u32 s40, s40, {WS_ML}\ns_add_u32 s42, s26, s40\ns_addc_u32 s43, s27, 0")
    a(f"v_and_or_b32 v19, v19, s57, v{VTAG}")
    a("v_readlane_b32 s46, v17, 0\nv_readlane_b32 s47, v19, 0\nv_readlane_b32 s48, v17, 8\nv_readlane_b32 s49, v19, 8")
    a("v_mov_b32 v28, s46\nv_mov_b32 v29, s47\nv_mov_b32 v30, s48\nv_mov_b32 v31, s49")
    a(f"s_mov_b64 exec, 0xff\nglobal_store_dwordx4 v{VL16}, v[28:31], s[42:43] sc1\ns_mov_b64 exec, -1")
    a("L_p3_noml:")
    for i in range(16):
        a(f"v_cvt_pk_bf16_f32 v{S+i}, v{S+i}, v{S+i}")
        for t in range(4): a(f"v_and_b32 v{AO+4*i+t}, v{S+i}, v{MK+t}")
    a.stamp(6)
    a("s_cmp_lg_u32 s30, 0\ns_cbranch_scc1 L_p3_noalive")
    a(f"v_lshrrev_b32 v{VT}, 2, v{VL}\nv_lshlrev_b32 v{VT}, 7, v{VT}\nv_and_b32 v{VT+1}, 3, v{VL}\nv_lshl_add_u32 v{VT}, v{VT+1}, 3, v{VT}\nv_add_u32 v{VT}, {WS_AL}, v{VT}")
    Lp, Lx = spin_head(a, "s60", cfg.GSPIN, "AA")
    a(f"global_load_dwordx2 v[14:15], v{VT}, s[26:27] sc1"); spin_bound(a, "s60", cfg.GSPIN, Lx)
    a(f"s_waitcnt vmcnt(0)\nv_cmp_ne_u32 vcc, s58, v14\nv_cmp_ne_u32 s[40:41], s58, v15\ns_or_b64 vcc, vcc, s[40:41]\ns_cbranch_vccz {Lx}"); a.sleep(cfg.B_AL); a(f"s_branch {Lp}\n{Lx}:\ns_waitcnt vmcnt(0)")
    a("L_p3_noalive:")
    if cfg.LONLY == 5: a("s_branch L_fin")
    VF = KF
    MLR = 20
    a(f"s_lshl_b32 s40, s30, 12\ns_add_u32 s40, s40, {L_V}\nv_add_u32 v{VT}, s40, v{VL16}")
    a(f"s_lshl_b32 s40, s28, 11\ns_add_u32 s40, s40, {WS_ML}\ns_add_u32 s42, s26, s40\ns_addc_u32 s43, s27, 0\nv_lshlrev_b32 v16, 7, v{VJ}")
    for r in range(4): a(f"v_mov_b32 v{O+r}, 0")
    for r in range(4):
        if r == 3:
            L = a.lab("MLS")
            a(f"s_cmp_lg_u32 s30, 3\ns_cbranch_scc1 {L}")
            Lp, Lx = a.lab("ML"), a.lab("MLX")
            a("s_mov_b32 s61, 0\ns_branch " + Lp + "_chk")
            a(f"{Lp}:\nglobal_load_dwordx4 v[{MLR}:{MLR+3}], v16, s[42:43] sc1")
            a(f"{Lp}_chk:")
            spin_bound(a, "s61", cfg.GSPIN, Lx)
            a("s_waitcnt vmcnt(0)")
            tagcheck(a, f"v{VT+2}", range(MLR, MLR+4), VTAG)
            a(f"s_and_b64 exec, exec, vcc\ns_cbranch_execz {Lx}"); a.sleep(cfg.B_ML); a(f"s_branch {Lp}")
            a(f"{Lx}:\ns_mov_b64 exec, -1\ns_waitcnt vmcnt(0)")
            a(f"v_bfe_u32 v24, v{MLR}, 10, 3\nv_cmp_ne_u32 vcc, s59, v24\ns_mov_b64 s[50:51], vcc")
            a(f"v_mov_b32 v24, v{MLR}\nv_mov_b32 v25, v{MLR+2}")
            row_red(a, "v_max_f32", ["v24", "v25"])
            a(f"v_sub_f32 v26, v{MLR}, v24\nv_sub_f32 v27, v{MLR+2}, v25\nv_exp_f32 v26, v26\nv_exp_f32 v27, v27")
            a.nop(1)
            a(f"v_mul_f32 v26, v26, v{MLR+1}\nv_mul_f32 v27, v27, v{MLR+3}")
            row_red(a, "v_add_f32", ["v26", "v27"])
            a("v_readlane_b32 s44, v17, 0\nv_readlane_b32 s45, v17, 8")
            a("v_rcp_f32 v26, v26\nv_rcp_f32 v27, v27\nv_sub_f32 v24, s44, v24\nv_sub_f32 v25, s45, v25\nv_exp_f32 v24, v24\nv_exp_f32 v25, v25")
            a.nop(1)
            a("v_mul_f32 v24, v24, v26\nv_mul_f32 v25, v25, v27")
            a("s_mov_b32 exec_lo, 0\nv_mov_b32 v24, v25\ns_mov_b64 exec, -1")
            a(f"s_lshl_b32 s40, s28, 4\ns_add_u32 s40, s40, s29\ns_lshl_b32 s40, s40, 9\ns_add_u32 s40, s40, {WS_H2}\ns_add_u32 s42, s26, s40\ns_addc_u32 s43, s27, 0")
            a(f"v_lshrrev_b32 v25, 1, v{VKG}\nv_lshlrev_b32 v25, 8, v25\nv_lshl_add_u32 v25, v{VJ}, 4, v25")
            a(f"{L}:")
        lds_wait_ge(a, f"v{VCT}", 3 + r, f"v{VT+2}")
        for t in range(4): a(f"ds_read_b128 v[{VF+4*t}:{VF+4*t+3}], v{VT} offset:{16384*r+1024*t}")
        if r == 1:
            L = a.lab("MLI")
            a(f"s_cmp_lg_u32 s30, 3\ns_cbranch_scc1 {L}\nglobal_load_dwordx4 v[{MLR}:{MLR+3}], v16, s[42:43] sc1\n{L}:")
        for t in range(4):
            a(f"s_waitcnt lgkmcnt({3-t})")
            a(f"v_mfma_f32_16x16x32_bf16 v[{O}:{O+3}], v[{AO+16*r+4*t}:{AO+16*r+4*t+3}], v[{VF+4*t}:{VF+4*t+3}], v[{O}:{O+3}]")
    a(f"v_mov_b32 v{VT+2}, 1"); lds_set(a, f"v{VCT}", 8, f"v{VT+2}", "ds_add_u32")
    a.stamp(7)
    a("s_cmp_eq_u32 s30, 3\ns_cbranch_scc1 L_p4_pub")
    a(f"s_lshl_b32 s40, s30, 10\ns_add_u32 s40, s40, {L_OP}\nv_add_u32 v{VT}, s40, v{VL16}")
    a(f"ds_write_b128 v{VT}, v[{O}:{O+3}]")
    a("s_branch L_p4_done")
    a("L_p4_pub:")
    a(f"v_add_u32 v{VT}, {L_OP}, v{VL16}")
    Lp, Lx = spin_head(a, "s60", cfg.SPIN, "OP")
    for w in range(3): a(f"ds_read_b128 v[{VF+4*w}:{VF+4*w+3}], v{VT} offset:{1024*w}")
    spin_bound(a, "s60", cfg.SPIN, Lx)
    a("s_waitcnt lgkmcnt(0)")
    for e in range(4): a(f"v_add_f32 v{VF+12+e}, v{VF+e}, v{VF+4+e}\nv_add_f32 v{VF+12+e}, v{VF+12+e}, v{VF+8+e}")
    a(f"v_add_f32 v{VT+3}, v{VF+12}, v{VF+13}\nv_add_f32 v{VT+4}, v{VF+14}, v{VF+15}\nv_add_f32 v{VT+3}, v{VT+3}, v{VT+4}")
    a(f"v_cmp_u_f32 vcc, v{VT+3}, v{VT+3}\ns_cbranch_vccnz {Lp}\n{Lx}:\ns_waitcnt lgkmcnt(0)")
    for e in range(4): a(f"v_add_f32 v{O+e}, v{O+e}, v{VF+12+e}\nv_mul_f32 v{O+e}, v{O+e}, v24")
    a(f"v_cvt_pk_bf16_f32 v28, v{O}, v{O+1}\nv_cvt_pk_bf16_f32 v29, v{O+2}, v{O+3}\nv_mov_b32 v30, v28\nv_mov_b32 v31, v29")
    a.nop(1)
    a("v_permlane16_swap_b32 v28, v30\nv_permlane16_swap_b32 v29, v31")
    a.nop(2)
    a.exec64(0x0000ffff, 0x0000ffff)
    L1, L2 = a.lab("PUBG"), a.lab("PUBD")
    a(f"s_cmp_lg_u64 s[50:51], 0\ns_cbranch_scc1 {L1}") if cfg.LOCAL else a(f"s_branch {L1}")
    a(f"global_store_dwordx4 v25, v[28:31], s[42:43]\ns_branch {L2}\n{L1}:")
    a(f"global_store_dwordx4 v25, v[28:31], s[42:43] sc1\n{L2}:\ns_mov_b64 exec, -1")
    a("L_p4_done:")
    a.stamp(8)
    a("s_cmp_lt_u32 s29, 9\ns_cbranch_scc1 L_role_f")
    G, BF, D5 = 20, 64, 112
    a(f"s_lshl_b32 s40, s28, 13\ns_add_u32 s40, s40, {WS_H2}\ns_add_u32 s42, s26, s40\ns_addc_u32 s43, s27, 0")
    a(f"v_lshlrev_b32 v{VT}, 9, v{VJ}\nv_lshl_add_u32 v{VT}, v{VKG}, 4, v{VT}\ns_lshl_b32 s40, s30, 7\nv_add_u32 v{VT}, s40, v{VT}")
    a(f"v_bfe_u32 v{VT+2}, v{VL}, 2, 2\nv_lshl_add_u32 v{VT+2}, v{VKG}, 3, v{VT+2}\ns_lshl_b32 s40, s30, 6\nv_add_u32 v{VT+2}, s40, v{VT+2}")
    a(f"v_mul_u32_u24 v{VT+2}, 192, v{VT+2}\nv_and_b32 v{VT+3}, 3, v{VL}\nv_lshl_add_u32 v{VT+2}, v{VT+3}, 3, v{VT+2}")
    for i in range(24): a(f"v_mov_b32 v{D5+i}, 0")
    lds_wait_ge(a, f"v{VCT}", 1, f"v{VT+4}", off=12)
    a("s_mov_b32 s62, 0")
    Lp, Lx = spin_head(a, "s61", cfg.GSPIN, "H2")
    for t in range(2): a(f"global_load_dwordx4 v[{G+4*t}:{G+4*t+3}], v{VT}, s[42:43] offset:{64*t} sc1")
    Lq = a.lab("H2F")
    a(f"s_cmp_lg_u32 s62, 0\ns_cbranch_scc1 {Lq}\ns_mov_b32 s62, 1")
    a(f"v_mov_b32 v{VT+4}, 1"); lds_set(a, f"v{VCT}", 16, f"v{VT+4}", "ds_add_u32")
    a("s_add_u32 s63, s30, 7")
    lds_wait_ge(a, f"v{VCT}", "s63", f"v{VT+4}")
    for t in range(2):
        for nb_ in range(6):
            for h in range(2):
                a(f"ds_read_b64_tr_b16 v[{BF+8*nb_+4*t+2*h}:{BF+8*nb_+4*t+2*h+1}], v{VT+2} offset:{O_WO+t*6144+h*768+nb_*32}")
    a(f"{Lq}:")
    spin_bound(a, "s61", cfg.GSPIN, Lx)
    a(f"s_waitcnt vmcnt(0)\nv_max3_u32 v{VT+4}, v{G}, v{G+1}, v{G+2}\nv_max3_u32 v{VT+4}, v{VT+4}, v{G+3}, v{G+4}\nv_max3_u32 v{VT+4}, v{VT+4}, v{G+5}, v{G+6}\nv_max_u32 v{VT+4}, v{VT+4}, v{G+7}")
    a(f"v_cmp_eq_u32 vcc, -1, v{VT+4}\ns_and_b64 exec, exec, vcc\ns_cbranch_execz {Lx}"); a.sleep(cfg.B_H2); a(f"s_branch {Lp}")
    a(f"{Lx}:\ns_mov_b64 exec, -1\ns_waitcnt vmcnt(0) lgkmcnt(0)")
    a.stamp(9)
    for t in range(2):
        for nb_ in range(6):
            a(f"v_mfma_f32_16x16x32_bf16 v[{D5+4*nb_}:{D5+4*nb_+3}], v[{G+4*t}:{G+4*t+3}], v[{BF+8*nb_+4*t}:{BF+8*nb_+4*t+3}], v[{D5+4*nb_}:{D5+4*nb_+3}]")
    a.nop(4)
    for nb_ in range(6):
        b = D5 + 4*nb_
        if nb_ == 5: a.nop(4)
        a(f"v_add_f32 v{b}, v{b}, v{b+1}\nv_add_f32 v{b+2}, v{b+2}, v{b+3}\nv_add_f32 v{b}, v{b}, v{b+2}")
    a0, a1, a2, a3 = D5, D5+4, D5+8, D5+12
    b0, b1 = D5+16, D5+20
    z0, z1 = D5+1, D5+2
    a(f"v_mov_b32 v{z0}, 0\nv_mov_b32 v{z1}, 0"); a.nop(2)
    a(f"v_permlane32_swap_b32 v{a0}, v{a2}\nv_permlane32_swap_b32 v{a1}, v{a3}\nv_permlane32_swap_b32 v{b0}, v{z0}\nv_permlane32_swap_b32 v{b1}, v{z1}"); a.nop(1)
    a(f"v_add_f32 v{a0}, v{a0}, v{a2}\nv_add_f32 v{a1}, v{a1}, v{a3}\nv_add_f32 v{b0}, v{b0}, v{z0}\nv_add_f32 v{b1}, v{b1}, v{z1}"); a.nop(2)
    a(f"v_permlane16_swap_b32 v{a0}, v{a1}\nv_permlane16_swap_b32 v{b0}, v{b1}"); a.nop(1)
    a(f"v_add_f32 v{a0}, v{a0}, v{a1}\nv_add_f32 v{b0}, v{b0}, v{b1}")
    a(f"s_lshl_b32 s40, s30, 9\ns_add_u32 s40, s40, {L_R5}\nv_lshlrev_b32 v{VT}, 2, v{VL}\nv_add_u32 v{VT}, s40, v{VT}")
    a(f"ds_write_b32 v{VT}, v{a0}\nds_write_b32 v{VT}, v{b0} offset:256")
    a("s_cmp_lg_u32 s30, 3\ns_cbranch_scc1 L_p5_done")
    a(f"v_lshlrev_b32 v{VT}, 5, v{VL}\nv_add_u32 v{VT}, {L_R5}, v{VT}")
    a("s_sub_u32 s41, s29, 9\ns_mov_b64 exec, 0x3ff\ns_cmp_eq_u32 s41, 6\ns_cselect_b32 exec_lo, 0xfff, exec_lo")
    Lp, Lx = spin_head(a, "s60", cfg.SPIN, "R5")
    for w in range(4):
        for h in range(2): a(f"ds_read_b128 v[{BF+8*w+4*h}:{BF+8*w+4*h+3}], v{VT} offset:{512*w+16*h}")
    spin_bound(a, "s60", cfg.SPIN, Lx)
    a("s_waitcnt lgkmcnt(0)")
    for e in range(8): a(f"v_add_f32 v{G+e}, v{BF+e}, v{BF+8+e}\nv_add_f32 v{BF+32+e}, v{BF+16+e}, v{BF+24+e}\nv_add_f32 v{G+e}, v{G+e}, v{BF+32+e}")
    a(f"v_add_f32 v{VT+3}, v{G}, v{G+1}")
    for e in range(2, 8): a(f"v_add_f32 v{VT+3}, v{VT+3}, v{G+e}")
    a(f"v_cmp_u_f32 vcc, v{VT+3}, v{VT+3}\ns_cbranch_vccnz {Lp}\n{Lx}:\ns_waitcnt lgkmcnt(0)")
    for e in range(4): a(f"v_cvt_pk_bf16_f32 v{G+e}, v{G+2*e}, v{G+2*e+1}")
    a(f"s_mul_i32 s40, s41, 160\ns_mul_i32 s44, s28, 1152\ns_add_u32 s40, s40, s44\ns_add_u32 s40, s40, {WS_H3}\ns_add_u32 s42, s26, s40\ns_addc_u32 s43, s27, 0")
    a(f"global_store_dwordx4 v{VL16}, v[{G}:{G+3}], s[42:43] sc1\ns_mov_b64 exec, -1")
    a("L_p5_done:")
    a.stamp(10)
    a("s_cmp_lg_u32 s30, 0\ns_cbranch_scc1 L_fin")
    a("s_and_b32 s40, s2, 7\ns_lshr_b32 s41, s2, 3\ns_and_b32 s44, s41, 1\ns_lshr_b32 s41, s41, 1\ns_sub_u32 s41, s41, 9\ns_lshl_b32 s41, s41, 1\ns_add_u32 s41, s41, s44")
    a("s_cmp_lt_u32 s41, 8\ns_cbranch_scc1 L_p9_go\ns_cmp_ge_u32 s41, 12\ns_cbranch_scc1 L_fin\ns_cmp_ge_u32 s40, 2\ns_cbranch_scc1 L_fin")
    a("L_p9_go:")
    a("s_lshr_b32 s44, s41, 2\ns_lshl_b32 s44, s44, 3\ns_add_u32 s44, s44, s40\ns_lshl_b32 s44, s44, 5\ns_and_b32 s45, s41, 3\ns_lshl_b32 s45, s45, 3\ns_add_u32 s44, s44, s45")
    a(f"s_lshl_b32 s40, s44, 1\ns_add_u32 s40, s40, {WS_H3}\ns_add_u32 s42, s26, s40\ns_addc_u32 s43, s27, 0")
    a(f"v_mul_u32_u24 v{VT}, 1152, v{VJ}\nv_lshl_add_u32 v{VT}, v{VKG}, 1, v{VT}")
    a(f"s_lshl_b32 s40, s44, 1\ns_add_u32 s46, s4, s40\ns_addc_u32 s47, s5, 0\nv_lshlrev_b32 v{VT+1}, 1, v{VKG}")
    a(f"global_load_ushort v26, v{VT+1}, s[46:47]\nglobal_load_ushort v27, v{VT+1}, s[46:47] offset:8")
    Lp, Lx = spin_head(a, "s60", cfg.GSPIN, "HH")
    a(f"global_load_ushort v24, v{VT}, s[42:43] sc1\nglobal_load_ushort v25, v{VT}, s[42:43] offset:8 sc1"); spin_bound(a, "s60", cfg.GSPIN, Lx)
    a("s_waitcnt vmcnt(0)\nv_max_u32 v28, v24, v25\nv_cmp_eq_u32 vcc, 0xffff, v28\ns_and_b64 exec, exec, vcc")
    a(f"s_cbranch_execz {Lx}"); a.sleep(2); a(f"s_branch {Lp}\n{Lx}:\ns_mov_b64 exec, -1\ns_waitcnt vmcnt(0)")
    a("v_lshlrev_b32 v24, 16, v24\nv_lshlrev_b32 v25, 16, v25\nv_lshlrev_b32 v26, 16, v26\nv_lshlrev_b32 v27, 16, v27")
    row_red(a, "v_add_f32", ["v24", "v25"])
    a("v_add_f32 v24, v24, v26\nv_add_f32 v25, v25, v27")
    a.exec64(0xaaaaaaaa, 0xaaaaaaaa); a("v_mov_b32 v24, v25\ns_mov_b64 exec, -1")
    a(f"s_lshl_b32 s40, s44, 2\ns_add_u32 s40, s40, {WS_H4}\ns_add_u32 s42, s26, s40\ns_addc_u32 s43, s27, 0")
    a(f"v_lshrrev_b32 v{VT}, 1, v{VL}\nv_mul_u32_u24 v{VT}, 2304, v{VT}\nv_and_b32 v{VT+1}, 1, v{VL}\nv_lshl_add_u32 v{VT}, v{VT+1}, 4, v{VT}")
    for t in range(1, 5): a(f"v_add_u32 v{VT+t}, {32*2304*t}, v{VT}")
    for e in range(4): a(f"v_mov_b32 v{80+e}, v{VTAG}")
    a("s_mov_b64 s[46:47], -1")
    Lp, Lx = spin_head(a, "s60", cfg.GSPIN, "H4")
    for t in range(4): a(f"global_load_dwordx4 v[{64+4*t}:{67+4*t}], v{VT+t}, s[42:43] sc1")
    a(f"s_mov_b32 exec_hi, 0\nglobal_load_dwordx4 v[80:83], v{VT+4}, s[42:43] sc1\ns_mov_b64 exec, s[46:47]")
    spin_bound(a, "s60", cfg.GSPIN, Lx)
    a("s_waitcnt vmcnt(0)")
    tagcheck(a, "v28", range(64, 84), VTAG)
    a(f"s_and_b64 s[46:47], exec, vcc\ns_mov_b64 exec, s[46:47]\ns_cbranch_execz {Lx}"); a.sleep(cfg.B_H4); a(f"s_branch {Lp}")
    a(f"{Lx}:\ns_mov_b64 exec, -1\ns_waitcnt vmcnt(0)")
    a.stamp(14)
    for e in range(4): a(f"v_add_f32 v{20+e}, v{64+e}, v{68+e}\nv_add_f32 v{28+e}, v{72+e}, v{76+e}\nv_add_f32 v{20+e}, v{20+e}, v{80+e}\nv_add_f32 v{20+e}, v{20+e}, v{28+e}")
    a.nop(2)
    a("v_permlane32_swap_b32 v20, v22\nv_permlane32_swap_b32 v21, v23"); a.nop(1)
    a("v_add_f32 v20, v20, v22\nv_add_f32 v21, v21, v23"); a.nop(2)
    a("v_permlane16_swap_b32 v20, v21"); a.nop(1)
    a("v_add_f32 v20, v20, v21")
    for ctl in ("row_ror:8", "row_ror:4", "row_ror:2"):
        a.nop(2); dpp(a, "v_add_f32", "v20", ctl)
    a("v_add_f32 v20, v20, v24\nv_cvt_pk_bf16_f32 v20, v20, v20")
    a(f"s_lshl_b32 s40, s44, 1\ns_add_u32 s42, s22, s40\ns_addc_u32 s43, s23, 0\nv_and_b32 v{VT}, 1, v{VL}\nv_lshlrev_b32 v{VT}, 3, v{VT}\nv_lshl_add_u32 v{VT}, v{VKG}, 1, v{VT}")
    a.exec64(0x00030003, 0x00030003)
    a(f"global_store_short v{VT}, v20, s[42:43]\ns_mov_b64 exec, -1")
    a(f"s_cmp_lg_u32 s44, 0\ns_cbranch_scc1 L_fin\nv_mov_b32 v{VT}, {WS_EP}\nv_mov_b32 v{VT+1}, s58\ns_mov_b64 exec, 1\nglobal_store_dword v{VT}, v{VT+1}, s[26:27]\ns_mov_b64 exec, -1")
    a("s_branch L_fin")
    a("L_role_f:")
    WF, RAW, HF, AC, SEL, DF = 64, 136, 136, 236, 56, 208
    a(f"v_bfe_u32 v{VT}, v{VL}, 2, 2\nv_lshl_add_u32 v{VT}, v{VKG}, 3, v{VT}\nv_lshlrev_b32 v{VT}, 6, v{VT}\nv_and_b32 v{VT+1}, 3, v{VL}\nv_lshl_add_u32 v{VT}, v{VT+1}, 3, v{VT}")
    a(f"s_and_b32 s40, s30, 1\ns_lshl_b32 s40, s40, 5\ns_lshr_b32 s41, s30, 1\ns_mul_i32 s41, s41, {F_U}\ns_add_u32 s40, s40, s41\nv_add_u32 v{VT}, s40, v{VT}")
    a(f"v_bfe_u32 v10, v{VL}, 2, 2\nv_lshl_add_u32 v10, v{VKG}, 3, v10\nv_mul_u32_u24 v10, 1152, v10")
    a(f"v_and_b32 v{VT+2}, 3, v{VL}\nv_lshlrev_b32 v{VT+2}, 3, v{VT+2}\ns_mul_i32 s40, s30, 288\ns_add_u32 s40, s40, {F_D}\nv_add_u32 v{VT+2}, s40, v{VT+2}\nv_add_u32 v10, v10, v{VT+2}")
    def wfrags():
        for t in range(18):
            for h in range(2): a(f"ds_read_b64_tr_b16 v[{WF+4*t+2*h}:{WF+4*t+2*h+1}], v{VT} offset:{2048*t+256*h}")
    def dfrags():
        for n in range(9):
            for h in range(2): a(f"ds_read_b64_tr_b16 v[{DF+4*n+2*h}:{DF+4*n+2*h+1}], v10 offset:{32*n+4608*h}")
    a("s_cmp_lg_u32 s30, 0\ns_cbranch_scc1 L_p6_skip")
    for t in range(4): a(f"v_and_b32 v{SEL+t}, 0x3f803f80, v{MK+t}")
    for pb in range(4):
        for e in range(4): a(f"v_mov_b32 v{RAW+64+4*pb+e}, 0")
    a(f"s_add_u32 s42, s26, {WS_H3}\ns_addc_u32 s43, s27, 0")
    a(f"v_mul_u32_u24 v{VT+1}, 1152, v{VKG}\nv_lshl_add_u32 v{VT+1}, v{VJ}, 4, v{VT+1}")
    lds_wait_ge(a, f"v{VCT}", 7, f"v{VT+2}")
    wfrags()
    lds_wait_ge(a, f"v{VCT}", 1, f"v{VT+2}", off=12)
    a.stamp(9)
    a("s_mov_b64 s[46:47], -1")
    Lp, Lx = spin_head(a, "s61", cfg.GSPIN, "H3")
    a("s_mov_b32 s44, s42\ns_mov_b32 s45, s43")
    for pb in range(4):
        for cb in range(4): a(f"global_load_dwordx4 v[{RAW+16*cb+4*pb}:{RAW+16*cb+4*pb+3}], v{VT+1}, s[44:45] offset:{256*cb} sc1")
        a("s_and_b32 exec_lo, exec_lo, 0x00ff00ff\ns_and_b32 exec_hi, exec_hi, 0x00ff00ff")
        Lz = a.lab("H3Z")
        a(f"s_cbranch_execz {Lz}\nglobal_load_dwordx4 v[{RAW+64+4*pb}:{RAW+64+4*pb+3}], v{VT+1}, s[44:45] offset:1024 sc1\n{Lz}:")
        a(f"s_mov_b64 exec, s[46:47]\ns_add_u32 s44, s44, {4*1152}\ns_addc_u32 s45, s45, 0")
    a("s_mov_b64 exec, -1")
    spin_bound(a, "s61", cfg.GSPIN, Lx)
    Lw = a.lab("H3W")
    a(f"s_cmp_le_u32 s61, 1\ns_cbranch_scc1 {Lw}\ns_waitcnt vmcnt(0)\n{Lw}:")
    for pb in range(4):
        a(f"s_waitcnt vmcnt({15-5*pb})")
        for cb in range(5):
            c_in = XF + 4*cb if pb == 0 else AC + 4*cb
            a(f"v_mfma_f32_16x16x32_bf16 v[{AC+4*cb}:{AC+4*cb+3}], v[{SEL}:{SEL+3}], v[{RAW+16*cb+4*pb}:{RAW+16*cb+4*pb+3}], v[{c_in}:{c_in+3}]")
    a.nop(4)
    def pr(b): return f"v[{b}:{b+1}]"
    a(f"v_pk_add_f32 v[14:15], {pr(AC)}, {pr(AC+2)}\nv_pk_mul_f32 v[16:17], {pr(AC)}, {pr(AC)}\nv_pk_fma_f32 v[16:17], {pr(AC+2)}, {pr(AC+2)}, v[16:17]")
    for i in range(4, 20, 2):
        if i == 16: a.nop(4)
        a(f"v_pk_add_f32 v[14:15], v[14:15], {pr(AC+i)}\nv_pk_fma_f32 v[16:17], {pr(AC+i)}, {pr(AC+i)}, v[16:17]")
    a("v_add_f32 v14, v14, v15\nv_add_f32 v16, v16, v17")
    a(f"v_cmp_u_f32 vcc, v14, v14\ns_cbranch_vccz {Lx}\ns_mov_b64 s[46:47], vcc\ns_mov_b64 exec, vcc"); a.sleep(cfg.B_H3); a(f"s_branch {Lp}")
    a(f"{Lx}:\ns_mov_b64 exec, -1\ns_waitcnt vmcnt(0) lgkmcnt(0)")
    a.stamp(11)
    row_red(a, "v_add_f32", ["v14", "v16"])
    a("v_mov_b32 v15, v14\nv_mov_b32 v17, v16"); a.nop(1)
    a("v_permlane16_swap_b32 v14, v15\nv_permlane16_swap_b32 v16, v17"); a.nop(1)
    a("v_add_f32 v14, v14, v15\nv_add_f32 v16, v16, v17")
    a(f"v_mul_f32 v14, {hex(f2b(1.0/576))}, v14\nv_mul_f32 v16, {hex(f2b(1.0/576))}, v16")
    a(f"v_fma_f32 v16, -v14, v14, v16\nv_max_f32 v16, 0, v16\nv_add_f32 v16, {hex(f2b(1e-5))}, v16\nv_rsq_f32 v16, v16")
    a(f"v_and_b32 v{VT+1}, 1, v{VKG}\nv_lshlrev_b32 v{VT+1}, 3, v{VT+1}\nv_lshl_add_u32 v{VT+1}, v{VJ}, 4, v{VT+1}\nv_add_u32 v{VT+1}, {L_HN}, v{VT+1}")
    a("v_mul_f32 v14, v14, v16\nv_mov_b32 v17, v16\nv_sub_f32 v14, 0, v14\nv_mov_b32 v15, v14")
    a("s_mov_b32 exec_hi, 0")
    for cb in range(5):
        a(f"v_pk_fma_f32 {pr(AC+4*cb)}, {pr(AC+4*cb)}, v[16:17], v[14:15]\nv_pk_fma_f32 {pr(AC+4*cb+2)}, {pr(AC+4*cb+2)}, v[16:17], v[14:15]")
        a(f"v_cvt_pk_bf16_f32 v{20+2*cb}, v{AC+4*cb}, v{AC+4*cb+1}\nv_cvt_pk_bf16_f32 v{21+2*cb}, v{AC+4*cb+2}, v{AC+4*cb+3}")
        if cb == 4: a("s_mov_b32 exec_lo, 0x00ff00ff")
        a(f"ds_write_b64 v{VT+1}, v[{20+2*cb}:{21+2*cb}] offset:{256*cb}")
    a("s_mov_b64 exec, -1")
    a(f"v_mov_b32 v{VT+2}, 1"); lds_set(a, f"v{VCT}", 20, f"v{VT+2}")
    lds_wait_ge(a, f"v{VCT}", 8, f"v{VT+2}")
    dfrags()
    a("s_branch L_p7_go")
    a("L_p6_skip:")
    a("s_lshr_b32 s63, s30, 1\ns_lshl_b32 s63, s63, 1\ns_add_u32 s63, s63, 7")
    lds_wait_ge(a, f"v{VCT}", "s63", f"v{VT+2}")
    wfrags()
    lds_wait_ge(a, f"v{VCT}", 9, f"v{VT+2}")
    dfrags()
    lds_wait_ge(a, f"v{VCT}", 1, f"v{VT+2}", off=20)
    a("L_p7_go:")
    D7 = 20
    a(f"v_lshlrev_b32 v{VT+1}, 4, v{VKG}\nv_add_u32 v{VT+1}, {L_HN}, v{VT+1}")
    for e in range(8): a(f"v_mov_b32 v{D7+e}, 0")
    a("s_waitcnt lgkmcnt(0)")
    for t in range(14): a(f"ds_read_b128 v[{HF+4*t}:{HF+4*t+3}], v{VT+1} offset:{64*t}")
    for t in range(18):
        if t + 14 < 18: a("s_waitcnt lgkmcnt(13)")
        else: a(f"s_waitcnt lgkmcnt({17-t})")
        a(f"v_mfma_f32_16x16x32_bf16 v[{D7+4*(t&1)}:{D7+4*(t&1)+3}], v[{WF+4*t}:{WF+4*t+3}], v[{HF+4*t}:{HF+4*t+3}], v[{D7+4*(t&1)}:{D7+4*(t&1)+3}]")
        if t + 14 < 18: a(f"ds_read_b128 v[{HF+4*(t+14)}:{HF+4*(t+14)+3}], v{VT+1} offset:{64*(t+14)}")
    a(f"s_lshl_b32 s40, s30, 6\ns_add_u32 s40, s40, {L_R7}\nv_lshlrev_b32 v{VT}, 4, v{VKG}\nv_add_u32 v{VT}, s40, v{VT}")
    a(f"v_lshlrev_b32 v{VT+1}, 5, v{VKG}\nv_add_u32 v{VT+1}, {L_R7}, v{VT+1}")
    a(f"s_mul_i32 s40, s28, 9\ns_add_u32 s40, s40, s29\ns_mul_i32 s40, s40, 2304\ns_mul_i32 s41, s30, 576\ns_add_u32 s40, s40, s41\ns_add_u32 s40, s40, {WS_H4}")
    a(f"s_add_u32 s42, s26, s40\ns_addc_u32 s43, s27, 0")
    for e in range(4): a(f"v_add_f32 v{D7+e}, v{D7+e}, v{D7+4+e}")
    a.exec64(0x00010001, 0x00010001)
    a(f"ds_write_b128 v{VT}, v[{D7}:{D7+3}]\ns_mov_b64 exec, -1")
    a.stamp(12)
    BB, D8 = 136, 20
    a(f"v_lshlrev_b32 v{VT}, 6, v{VJ}\nv_lshl_add_u32 v{VT}, v{VKG}, 4, v{VT}")
    Lp, Lx = spin_head(a, "s60", cfg.SPIN, "R7")
    a(f"ds_read_b128 v[32:35], v{VT+1}\nds_read_b128 v[36:39], v{VT+1} offset:16\nds_read_b128 v[40:43], v{VT+1} offset:128\nds_read_b128 v[44:47], v{VT+1} offset:144")
    spin_bound(a, "s60", cfg.SPIN, Lx)
    a("s_waitcnt lgkmcnt(0)")
    for e in range(8): a(f"v_max_f32 v{48+e}, 0, v{32+e}")
    for e in range(0, 8, 2): a(f"v_pk_mul_f32 {pr(48+e)}, {pr(48+e)}, {pr(40+e)}")
    a("v_max3_u32 v56, v32, v33, v34\nv_max3_u32 v57, v35, v36, v37\nv_max3_u32 v56, v56, v38, v39\nv_max3_u32 v57, v57, v40, v41\nv_max3_u32 v56, v56, v42, v43\nv_max3_u32 v57, v57, v44, v45\nv_max3_u32 v56, v56, v46, v47\nv_max_u32 v56, v56, v57")
    a(f"v_cmp_eq_u32 vcc, -1, v56\ns_cbranch_vccnz {Lp}\n{Lx}:\ns_waitcnt lgkmcnt(0)")
    for e in range(4): a(f"v_cvt_pk_bf16_f32 v{32+e}, v{48+2*e}, v{49+2*e}")
    for e in range(4): a(f"v_mov_b32 v{D8+e}, 0")
    for n in range(9):
        a(f"s_mov_b32 s46, {hex(0x00010001 << n)}\ns_mov_b32 s47, s46")
        for h in range(4): a(f"v_cndmask_b32 v{BB+4*n+h}, 0, v{32+h}, s[46:47]")
        if n:
            a(f"v_mfma_f32_16x16x32_bf16 v[{D8}:{D8+3}], v[{DF+4*(n-1)}:{DF+4*(n-1)+3}], v[{BB+4*(n-1)}:{BB+4*(n-1)+3}], v[{D8}:{D8+3}]")
    a.nop(2)
    a(f"v_mfma_f32_16x16x32_bf16 v[{D8}:{D8+3}], v[{DF+32}:{DF+35}], v[{BB+32}:{BB+35}], v[{D8}:{D8+3}]")
    a.nop(8)
    for e in range(4): a(f"v_and_or_b32 v{D8+e}, v{D8+e}, s57, v{VTAG}")
    a.exec64(0x01ff01ff, 0x01ff01ff)
    a(f"global_store_dwordx4 v{VT}, v[{D8}:{D8+3}], s[42:43] sc1\ns_mov_b64 exec, -1")
    a.stamp(13)
    a("L_fin:")
    a.stamp(15)
    stamps_out(a)
    a("s_endpgm")

def generate(cfg):
    a = A(cfg)
    K = NAME + "_kernel"
    hdr = open("cdna_kernels/" + NAME + ".s.ref").read().split("; Override launch geometry")[0]
    out = [hdr.rstrip(), "; Override launch geometry by editing the next line (default: block=256,", "; grid=ceil(out_elems/256), lds=0). Harness parses it; keep it on one line.",
           f"; @launch grid=(256,1,1) block=(320,1,1) lds={LDS_BYTES}", '.amdgcn_target "amdgcn-amd-amdhsa--gfx950"\n.text', f".globl {K}\n.p2align 8\n.type {K},@function\n{K}:"]
    a("KSTART:")
    a("s_cmp_ge_u32 s2, 256\ns_cbranch_scc1 L_exit")
    a("s_load_dwordx16 s[4:19], s[0:1], 0\ns_load_dwordx8 s[20:27], s[0:1], 64")
    if cfg.STAMP:
        for i in range(16): a(f"s_mov_b64 s[{64+2*i}:{65+2*i}], 0")
        a("s_memrealtime s[64:65]")
    a("v_and_b32 v1, 63, v0\nv_lshrrev_b32 v2, 6, v0")
    a("s_and_b32 s28, s2, 7\ns_lshl_b32 s28, s28, 1\ns_lshr_b32 s29, s2, 3\ns_and_b32 s29, s29, 1\ns_or_b32 s28, s28, s29\ns_lshr_b32 s29, s2, 4")
    a("v_readfirstlane_b32 s3, v2")
    a("s_waitcnt lgkmcnt(0)")
    a("s_cmp_lg_u32 s3, 0\ns_cbranch_scc1 L_consumer")
    gen_loader(a)
    gen_consumer(a)
    a("L_exit:\ns_endpgm")
    out += a.L
    out.append('.section .rodata,"a"\n.p2align 6')
    out.append(f".amdhsa_kernel {K}")
    out.append("  .amdhsa_next_free_vgpr 256\n  .amdhsa_next_free_sgpr 102\n  .amdhsa_accum_offset 256\n  .amdhsa_group_segment_fixed_size 0\n  .amdhsa_kernarg_size 96\n  .amdhsa_user_sgpr_count 2\n  .amdhsa_user_sgpr_kernarg_segment_ptr 1\n  .amdhsa_system_sgpr_workgroup_id_x 1\n.end_amdhsa_kernel")
    return "\n".join(out) + "\n"

if __name__ == "__main__":
    cfg = Cfg()
    for kv in sys.argv[2:]:
        k, v = kv.split("=")
        setattr(cfg, k, v if k == "NT" else (v == "1" if k == "STAMP" else int(v)))
    open(sys.argv[1], "w").write(generate(cfg))
```

```python
import sys, struct, math
NAME = "sequential_preLN__sliding_block_cached__glu_gated_reglu__decode"
def f2b(x): return struct.unpack("<I", struct.pack("<f", x))[0]

class Cfg:
    W1 = 20; WWO = 14; WGU = 12; WD = 20
    NT = "nt"
    STAMP = False
    DBG = 0
    TO_H1 = 12
    MAPALT = 0
    LOCAL = 1
    DELAY = 0
    UNTIL = 0
    CPF = 0
    TPF = 0
    WOROT = 0
    NTWO = "nt"
    NTGU = "nt"
    ORD = 0
    PF = 1
    WG0 = 14; NG0 = 0
    WG1 = 14
    WUP = 16
    GUROT = 0
    ROT = 5
    LONLY = 0
    H3GATE = 1
    T_H1 = 0
    D_H1 = 0; B_H1 = 0; B_ML = 0; B_H2 = 0; B_H3 = 0; B_H4 = 2; B_AL = 2
    SPIN = 1 << 16
    GSPIN = 1 << 13

WS_H1 = 0x00000; WS_ML = 0x10000; WS_H2 = 0x18000; WS_H3 = 0x38000; WS_AL = 0x3d000; WS_XI = 0x3e000; WS_EP = 0x3f000; WS_H4 = 0x40000; WS_ST = 0x100000
L_WQ = 0; L_K = 18432; L_V = L_K + 65536; L_SB = L_V + 65536
L_XN = L_SB
L_QB = L_XN + 1152
L_MX = L_QB + 512
L_LW = L_MX + 32
L_OP = L_LW + 32
L_R5 = L_OP + 3072
L_HN = L_R5 + 2048
L_R7 = L_HN + 1152
L_QP = L_R7 + 256
L_CT = L_QP + 256
L_END = L_CT + 64
LDS_BYTES = 161280
assert L_END <= LDS_BYTES
POIS_LO, POIS_HI = L_QB, L_CT
F_G, F_U, F_D = 0, 36864, L_V
F1_D, F1_G, F1_U = 0, 36864, L_V
O_WO = 0
CSCALE = f2b(math.log2(math.e) / math.sqrt(128.0))

class A:
    def __init__(s, cfg): s.L = []; s.cfg = cfg; s.uid = 0
    def __call__(s, t):
        for ln in t.split("\n"):
            ln = ln.strip()
            if ln: s.L.append(("" if ln.endswith(":") else "    ") + ln)
    def lab(s, base): s.uid += 1; return f"{base}_{s.uid}"
    def nop(s, n):
        while n > 0:
            k = min(n, 16); s(f"s_nop {k-1}"); n -= k
    def stamp(s, idx):
        if s.cfg.STAMP: s(f"s_memrealtime s[{64+2*idx}:{65+2*idx}]")
    def exec64(s, lo, hi): s(f"s_mov_b32 exec_lo, {hex(lo)}\ns_mov_b32 exec_hi, {hex(hi)}")
    def sleep(s, n):
        while n > 0:
            k = min(n, 127); s(f"s_sleep {k}"); n -= k

def lds_wait_ge(a, addr_v, val, tmp_v, tmp_s="s31", cnt_s="s60", off=0):
    if a.cfg.LONLY and off in (4, 8, 12, 16): return
    L = a.lab("LW"); X = a.lab("LX")
    o = f" offset:{off}" if off else ""
    a(f"s_mov_b32 {cnt_s}, 0\n{L}:\nds_read_b32 {tmp_v}, {addr_v}{o}")
    a(f"s_add_u32 {cnt_s}, {cnt_s}, 1\ns_cmp_gt_u32 {cnt_s}, {a.cfg.SPIN}\ns_cbranch_scc1 {X}")
    a(f"s_waitcnt lgkmcnt(0)\nv_readfirstlane_b32 {tmp_s}, {tmp_v}\ns_cmp_lt_u32 {tmp_s}, {val}\ns_cbranch_scc1 {L}\n{X}:\ns_waitcnt lgkmcnt(0)")

def lds_set(a, addr_v, off, val_v, op="ds_write_b32"):
    a(f"s_mov_b64 exec, 1\n{op} {addr_v}, {val_v} offset:{off}\ns_mov_b64 exec, -1")

def dpp(a, op, v, ctl): a(f"{op}_dpp {v}, {v}, {v} {ctl} row_mask:0xf bank_mask:0xf")
def row_red(a, op, vs):
    if isinstance(vs, str): vs = [vs]
    for ctl in ("quad_perm:[1,0,3,2]", "quad_perm:[2,3,0,1]", "row_half_mirror", "row_mirror"):
        a.nop(max(0, 3 - len(vs))) if len(vs) < 3 else None
        for v in vs: dpp(a, op, v, ctl)
    a.nop(0)
def xrow_red(a, op, v, t):
    a(f"v_mov_b32 {t}, {v}"); a.nop(2)
    a(f"v_permlane16_swap_b32 {v}, {t}"); a.nop(1)
    a(f"{op} {v}, {v}, {t}\nv_mov_b32 {t}, {v}"); a.nop(2)
    a(f"v_permlane32_swap_b32 {v}, {t}"); a.nop(1)
    a(f"{op} {v}, {v}, {t}")

def spin_head(a, cnt, bound, name):
    Lp, Lx = a.lab(name), a.lab(name + "X")
    a(f"s_mov_b32 {cnt}, 0\n{Lp}:")
    return Lp, Lx
def spin_bound(a, cnt, bound, Lx):
    a(f"s_add_u32 {cnt}, {cnt}, 1\ns_cmp_gt_u32 {cnt}, {bound}\ns_cbranch_scc1 {Lx}")

def tagcheck(a, acc, regs, vtag):
    regs = list(regs)
    a(f"v_xor_b32 {acc}, v{regs[0]}, v{vtag}")
    for r in regs[1:]: a(f"v_bitop3_b32 {acc}, {acc}, v{r}, v{vtag} bitop3:0xf6")
    a(f"v_and_b32 {acc}, 0x3ff, {acc}\nv_cmp_ne_u32 vcc, 0, {acc}")

def stamps_out(a, loader=False):
    if not a.cfg.STAMP: return
    if a.cfg.DBG:
        a("s_waitcnt lgkmcnt(0)\ns_mov_b64 exec, 1")
        if loader: lst = [(0, 0, 0), (255, 0, 1), (0, 3, 2), (255, 3, 3), (0, 8, 4)]
        else: lst = [(0, 7, 5), (0, 11, 6), (0, 13, 7), (144, 9, 8), (144, 10, 9), (144, 14, 10), (144, 15, 11), (145, 15, 12), (160, 15, 13), (161, 15, 14), (178, 15, 15)]
        for (wg, st, slot) in lst:
            L = a.lab("DB")
            a(f"s_cmp_lg_u32 s2, {wg}\ns_cbranch_scc1 {L}")
            if not loader: a(f"s_cmp_lg_u32 s30, 0\ns_cbranch_scc1 {L}")
            a(f"v_mov_b32 v250, {4*slot}\nv_mov_b32 v251, s{64+2*st}\nglobal_store_dword v250, v251, s[24:25]\n{L}:")
        return
    a("s_waitcnt lgkmcnt(0)")
    a(f"s_lshl_b32 s40, s2, 3\ns_add_u32 s40, s40, s3\ns_lshl_b32 s40, s40, 7\ns_add_u32 s40, s40, {WS_ST}")
    a("s_add_u32 s40, s26, s40\ns_addc_u32 s41, s27, 0\ns_mov_b64 exec, 1\nv_mov_b32 v250, 0")
    for i in range(16):
        a(f"v_mov_b32 v252, s{64+2*i}\nv_mov_b32 v253, s{65+2*i}\nglobal_store_dwordx2 v250, v[252:253], s[40:41] offset:{8*i}")
        a.nop(2)

def page_touch(a, vlo, vhi, vdst):
    a(f"v_mov_b32 v{vlo}, s4\nv_mov_b32 v{vhi}, s5")
    a(f"s_lshl_b32 s40, s28, 24\ns_lshl_b32 s41, s29, 16\ns_add_u32 s40, s40, s41\ns_add_u32 s40, s40, {(65536-4096)*256}")
    def put(lane, p, off):
        a(f"s_add_u32 s52, s{p}, {off}\ns_addc_u32 s53, s{p+1}, 0\nv_writelane_b32 v{vlo}, s52, {lane}\nv_writelane_b32 v{vhi}, s53, {lane}")
    put(0, 6, "s40"); put(1, 8, "s40")
    a("s_mul_i32 s41, s28, 294912"); put(2, 12, "s41")
    a("s_add_u32 s41, s41, 294784"); put(3, 12, "s41")
    n = 4
    for p in (16, 18):
        for off in (0, 0x200000, 0x400000): put(n, p, off); n += 1
    a("s_mul_i32 s41, s28, 331776"); put(n, 20, "s41"); n += 1
    a("s_add_u32 s41, s41, 331648"); put(n, 20, "s41"); n += 1
    put(n, 26, 0x40000); n += 1
    put(n, 22, 0); n += 1
    a(f"s_mov_b64 exec, {hex((1 << n) - 1)}\nglobal_load_dword v{vdst}, v[{vlo}:{vhi}], off nt\ns_mov_b64 exec, -1")

def alive_addr(a, VL, va, vt):
    a(f"v_lshrrev_b32 v{va}, 2, v{VL}\nv_lshlrev_b32 v{va}, 7, v{va}\nv_and_b32 v{vt}, 3, v{VL}\nv_lshl_add_u32 v{va}, v{vt}, 3, v{va}\nv_add_u32 v{va}, {WS_AL}, v{va}")
def alive_load(a, va): a(f"global_load_dwordx2 v[18:19], v{va}, s[26:27] sc1")
def alive_test(a):
    a("v_cmp_ne_u32 s[50:51], s58, v18\nv_cmp_ne_u32 s[40:41], s58, v19\ns_or_b64 s[50:51], s[50:51], s[40:41]")

def gen_loader(a):
    cfg = a.cfg; NT = cfg.NT
    V_L16, V_WQ, V_K, V_P, V_FA, V_FV, V_T = 4, 5, 6, 10, 16, 17, 18
    a(f"L_loader:\ns_setprio 1\ns_load_dword s58, s[26:27], {WS_EP}")
    a(f"v_lshlrev_b32 v{V_L16}, 4, v1")
    a(f"v_lshrrev_b32 v20, 3, v1\nv_lshlrev_b32 v20, 13, v20\nv_and_b32 v21, 7, v1\nv_lshlrev_b32 v21, 4, v21\nv_add_u32 v{V_WQ}, v20, v21")
    a("s_lshr_b32 s40, s29, 2\ns_mul_i32 s40, s40, 1179648")
    a("s_and_b32 s41, s29, 3\ns_lshl_b32 s41, s41, 7\ns_lshl_b32 s42, s28, 9\ns_add_u32 s41, s41, s42\ns_add_u32 s40, s40, s41")
    a("s_add_u32 s32, s10, s40\ns_addc_u32 s33, s11, 0\ns_sub_u32 s34, 4718592, s40\ns_mov_b32 s35, 0x20000")
    def raw(pat, off=0, pol=None):
        o = f" offset:{off}" if off else ""
        a(f"buffer_load_dwordx4 v{pat}, s[32:35], s36 offen{o} {NT if pol is None else pol} lds")
    def signal(val):
        a(f"v_mov_b32 v{V_FV}, {val}"); lds_set(a, f"v{V_FA}", 0, f"v{V_FV}")
        if val == 2: a.stamp(9)
        if val == 6: a.stamp(10)
    class Seq:
        def __init__(s, W, n, pend): s.n = n; s.W = W; s.pend = pend
        def after(s):
            n = s.n
            if n >= s.W - 1:
                a(f"s_waitcnt vmcnt({s.W-1})")
                landed = n - s.W + 1
                while s.pend and s.pend[0][0] <= landed: signal(s.pend.pop(0)[1])
                if cfg.T_H1 and landed == 18 + cfg.T_H1:
                    a(f"v_mov_b32 v{V_FV}, 1"); lds_set(a, f"v{V_FA}", 24, f"v{V_FV}")
            s.n += 1
        def drain(s):
            last = s.n - 1
            while s.pend:
                e, v = s.pend.pop(0)
                a(f"s_waitcnt vmcnt({last-e})"); signal(v)
    q = Seq(cfg.W1, 0, [])
    a(f"s_mov_b32 m0, {L_WQ}\ns_mov_b32 s36, 0")
    q.pend.append((17, 1))
    for i in range(18):
        if i: a("s_add_u32 m0, m0, 0x400\ns_add_u32 s36, s36, 0x10000")
        else: a.nop(1)
        raw(V_WQ); q.after()
        if i == 1:
            a("v_lshrrev_b32 v20, 4, v1\nv_lshlrev_b32 v21, 2, v20\nv_and_b32 v22, 15, v1\nv_xor_b32 v22, v22, v21\nv_lshlrev_b32 v20, 8, v20")
            for p in range(4): a(f"v_xor_b32 v23, {p}, v22\nv_lshlrev_b32 v23, 4, v23\nv_add_u32 v{V_K+p}, v20, v23")
            a(f"v_mov_b32 v{V_FA}, {L_CT}")
        if i == 5: a("s_barrier")
    a.stamp(1)
    for name, p, lbase, pats in (("K", 6, L_K, [V_K, V_K+1, V_K+2, V_K+3]), ("V", 8, L_V, [V_L16]*4)):
        a(f"s_lshl_b32 s40, s28, 24\ns_lshl_b32 s42, s29, 16\ns_add_u32 s42, s42, {(65536-4096)*256}\ns_add_u32 s40, s40, s42")
        a(f"s_add_u32 s32, s{p}, s40\ns_addc_u32 s33, s{p+1}, 0\ns_mov_b32 s34, 65536\ns_mov_b32 m0, {lbase}\ns_mov_b32 s36, 0")
        if cfg.ROT: a(f"s_mul_i32 s36, s28, {cfg.ROT}\ns_add_u32 s36, s36, s29\ns_and_b32 s36, s36, 15\ns_lshl_b32 s36, s36, 12")
        base = q.n
        if name == "K": q.pend.append((base + 63, 2))
        else:
            for r in range(4): q.pend.append((base + 16*r + 15, 3 + r))
        for i in range(64):
            if i and i % 4 == 0:
                a("s_add_u32 m0, m0, 0x1000\ns_add_u32 s36, s36, 0x1000")
                if cfg.ROT: a("s_and_b32 s36, s36, 0xffff")
            elif i == 0: a.nop(1)
            raw(pats[i % 4], off=(i % 4) * 1024); q.after()
        a.stamp(2 if name == "K" else 3)
    lds_wait_ge(a, f"v{V_FA}", 4, "v19", "s43", "s44", off=4)
    a.stamp(4)
    n0, p0 = q.n, list(q.pend)
    a("s_cmp_ge_u32 s29, 9\ns_cbranch_scc1 L_ld_o")
    q = Seq(cfg.WGU, n0, list(p0))
    a(f"v_lshrrev_b32 v20, 2, v1\nv_mul_u32_u24 v20, 9216, v20\nv_and_b32 v21, 3, v1\nv_lshlrev_b32 v21, 4, v21\nv_add_u32 v{V_P}, v20, v21")
    a("s_mul_i32 s45, s28, 288\ns_lshl_b32 s46, s29, 5\ns_add_u32 s45, s45, s46")
    if cfg.GUROT: a("s_add_u32 s47, s28, s29\ns_and_b32 s47, s47, 1\ns_mul_i32 s47, s47, 18")
    def gu_tile(p, lb, mile, W):
        q.W = W
        q.pend.append((q.n + 35, mile))
        a(f"s_lshl_b32 s40, s45, 1\ns_add_u32 s32, s{p}, s40\ns_addc_u32 s33, s{p+1}, 0\ns_sub_u32 s34, 5308416, s40\ns_mov_b32 m0, {lb}\ns_mov_b32 s36, 0")
        if cfg.GUROT: a(f"s_lshl_b32 s48, s47, 10\ns_add_u32 m0, s48, {lb}\ns_mul_i32 s36, s47, {16*9216}")
        for i in range(36):
            if i:
                if cfg.GUROT and i == 18:
                    a(f"s_cmp_lg_u32 s47, 0\ns_cselect_b32 s48, {36*1024}, 0\ns_cselect_b32 s49, {36*16*9216}, 0\ns_sub_u32 m0, m0, s48\ns_sub_u32 s36, s36, s49")
                a(f"s_add_u32 m0, m0, 0x400\ns_add_u32 s36, s36, {16*9216}")
            else: a.nop(1)
            if p == 16 and i < cfg.NG0: q.W = cfg.WG0
            else: q.W = W
            raw(V_P, pol=cfg.NTGU); q.after()
    def down_tile(lb, mile):
        a(f"s_mul_i32 s40, s45, 1152\ns_add_u32 s32, s20, s40\ns_addc_u32 s33, s21, 0\ns_mov_b32 s34, {32*1152}\ns_mov_b32 m0, {lb}\ns_mov_b32 s36, 0")
        q.pend.append((q.n + 35, mile)); q.W = cfg.WD
        for i in range(36):
            if i and i % 4 == 0: a("s_add_u32 m0, m0, 0x1000\ns_add_u32 s36, s36, 0x1000")
            elif i == 0: a.nop(1)
            raw(V_L16, off=(i % 4) * 1024); q.after()
    if cfg.ORD == 0:
        gu_tile(16, F_G, 7, cfg.WG1)
        a.stamp(5)
        lds_wait_ge(a, f"v{V_FA}", 4, "v19", "s43", "s44", off=8)
        down_tile(F_D, 8)
        a.stamp(7)
        gu_tile(18, F_U, 9, cfg.WUP)
    else:
        down_tile(F1_D, 7)
        a.stamp(7)
        gu_tile(16, F1_G, 8, cfg.WG1)
        a.stamp(5)
        lds_wait_ge(a, f"v{V_FA}", 4, "v19", "s43", "s44", off=8)
        gu_tile(18, F1_U, 9, cfg.WUP)
    a(f"v_mov_b32 v{V_FV}, 1"); lds_set(a, f"v{V_FA}", 12, f"v{V_FV}")
    a.stamp(6)
    q.drain()
    a("s_branch L_ld_done")
    a("L_ld_o:")
    q = Seq(cfg.WWO, n0, list(p0))
    for p in range(3):
        a(f"v_add_u32 v20, {64*p}, v1\nv_mul_u32_u24 v21, 171, v20\nv_lshrrev_b32 v21, 11, v21")
        a(f"v_mul_u32_u24 v22, 12, v21\nv_sub_u32 v22, v20, v22\nv_lshlrev_b32 v22, 4, v22\nv_mul_u32_u24 v21, 1152, v21\nv_add_u32 v{V_P+p}, v21, v22")
    a("s_mul_i32 s40, s28, 294912\ns_sub_u32 s41, s29, 9\ns_mul_i32 s41, s41, 160\ns_add_u32 s40, s40, s41")
    a(f"s_add_u32 s32, s12, s40\ns_addc_u32 s33, s13, 0\ns_sub_u32 s34, 4718592, s40\ns_mov_b32 m0, {O_WO}\ns_mov_b32 s36, 0")
    for c in range(4): q.pend.append((q.n + 12*c + 11, 7 + c))
    if cfg.WOROT:
        a(f"s_and_b32 s47, s29, 1\ns_mul_i32 s48, s47, {24*1024}\ns_add_u32 m0, s48, {O_WO}\ns_mul_i32 s36, s47, {128*1152}")
    for i in range(48):
        if i:
            if cfg.WOROT and i == 24:
                a(f"s_cmp_lg_u32 s47, 0\ns_cselect_b32 s48, {48*1024}, 0\ns_cselect_b32 s49, {256*1152}, 0\ns_sub_u32 m0, m0, s48\ns_sub_u32 s36, s36, s49")
            a("s_add_u32 m0, m0, 0x400")
            if i % 3 == 0: a(f"s_add_u32 s36, s36, {16*1152}")
            else: a.nop(1)
        else: a.nop(1)
        raw(V_P + i % 3, pol=cfg.NTWO); q.after()
    a(f"v_mov_b32 v{V_FV}, 1"); lds_set(a, f"v{V_FA}", 12, f"v{V_FV}")
    a.stamp(5)
    lds_wait_ge(a, f"v{V_FA}", 4, "v19", "s43", "s44", off=16)
    a(f"s_sub_u32 s41, s29, 9\ns_lshl_b32 s40, s28, 7\ns_lshl_b32 s44, s41, 2\ns_add_u32 s40, s40, s44\ns_add_u32 s40, s40, {WS_AL}")
    a(f"s_add_u32 s58, s58, 1\nv_lshlrev_b32 v20, 2, v1\nv_add_u32 v20, s40, v20\nv_mov_b32 v21, s58")
    a(f"s_mov_b64 exec, 1\ns_cmp_eq_u32 s41, 6\ns_cselect_b32 exec_lo, 3, exec_lo\nglobal_store_dword v20, v21, s[26:27] sc1\ns_mov_b64 exec, -1")
    q.n += 1
    if cfg.PF:
        a("s_lshr_b32 s40, s28, 1\ns_and_b32 s44, s28, 1\ns_sub_u32 s41, s29, 9\ns_lshl_b32 s41, s41, 1\ns_add_u32 s41, s41, s44")
        a("s_mul_i32 s40, s40, 1152\ns_add_u32 s32, s18, s40\ns_addc_u32 s33, s19, 0\ns_sub_u32 s34, 5308416, s40\ns_lshl_b32 s41, s41, 6\ns_mov_b32 s46, 7282\ns_mov_b32 s47, 9216")
        for t in range(6):
            a(f"s_add_u32 s40, s41, {64*14*t}\nv_add_u32 v20, s40, v1\nv_mul_lo_u32 v21, s46, v20\nv_lshrrev_b32 v21, 16, v21")
            a(f"v_mul_u32_u24 v22, 9, v21\nv_sub_u32 v22, v20, v22\nv_lshlrev_b32 v22, 7, v22\nv_mul_lo_u32 v21, s47, v21\nv_add_u32 v{24+t}, v21, v22")
        a("s_mov_b32 s36, 0")
        npf = 6
        for t in range(npf):
            a(f"buffer_load_dword v{32+t}, v{24+t}, s[32:35], s36 offen {NT}")
            q.n += 1
    q.drain()
    a("L_ld_done:")
    a.stamp(8)
    if cfg.STAMP: a("s_getreg_b32 s94, hwreg(HW_REG_XCC_ID)\ns_and_b32 s94, s94, 15\ns_add_u32 s94, s94, 1\ns_mov_b32 s95, 0")
    stamps_out(a, True)
    a("s_endpgm")

def gen_consumer(a):
    cfg = a.cfg
    VL, VJ, VKG, VL16, VCT = 1, 2, 3, 4, 5
    VX = 196
    XF = 216
    VT = 12
    VTAG = 11
    a("L_consumer:")
    a(f"v_and_b32 v{VJ}, 15, v{VL}\nv_lshrrev_b32 v{VKG}, 4, v{VL}\nv_lshlrev_b32 v{VL16}, 4, v{VL}\nv_mov_b32 v{VCT}, {L_CT}\ns_sub_u32 s30, s3, 1")
    a(f"s_load_dword s58, s[26:27], {WS_EP}")
    if cfg.CPF:
        a("s_getpc_b64 s[52:53]\nL_pc:\ns_sub_u32 s52, s52, (L_pc - KSTART)\ns_subb_u32 s53, s53, 0")
        a("s_lshr_b32 s40, s2, 3\ns_lshl_b32 s40, s40, 2\ns_add_u32 s40, s40, s30\ns_lshl_b32 s40, s40, 8\ns_min_u32 s40, s40, (L_exit - KSTART - 128)")
        a("s_add_u32 s52, s52, s40\ns_addc_u32 s53, s53, 0\ns_load_dword s54, s[52:53], 0\ns_load_dword s55, s[52:53], 128")
    a(f"global_load_dwordx4 v[20:23], v{VL16}, s[4:5]")
    a(f"v_lshlrev_b32 v{VT}, 2, v{VL}\nv_mov_b32 v24, 0\ns_mov_b32 exec_hi, 0\nglobal_load_dword v24, v{VT}, s[4:5] offset:1024\ns_mov_b64 exec, -1")
    a("s_cmp_lg_u32 s30, 0\ns_cbranch_scc1 L_p0_notc0")
    a("v_mov_b32 v28, -1\nv_mov_b32 v29, -1\nv_mov_b32 v30, -1\nv_mov_b32 v31, -1")
    def wsaddr(lo): a(f"s_add_u32 s42, s26, {lo}\ns_addc_u32 s43, s27, 0")
    def pst(off=0, sc="sc1"): a(f"global_store_dwordx4 v{VL16}, v[28:31], s[42:43]" + (f" offset:{off}" if off else "") + f" {sc}")
    def h2poison(sc):
        a(f"s_lshl_b32 s46, s28, 4\ns_add_u32 s46, s46, s29\ns_lshl_b32 s40, s46, 9\ns_add_u32 s40, s40, {WS_H2}"); wsaddr("s40")
        a("s_mov_b64 exec, -1\ns_mov_b32 exec_hi, 0"); pst(0, sc); a("s_mov_b64 exec, -1")
    if cfg.LONLY != 1:
        h2poison("" if cfg.LOCAL else "sc1")
        a("s_cmp_ge_u32 s29, 9\ns_cbranch_scc1 L_p0_o")
        a(f"v_and_b32 v{VT}, 1, v{VKG}\nv_lshlrev_b32 v{VT}, 3, v{VT}\nv_lshl_add_u32 v{VT}, v{VJ}, 4, v{VT}")
        for cb in range(4): a(f"global_load_dwordx2 v[{VX+2*cb}:{VX+2*cb+1}], v{VT}, s[4:5] offset:{256*cb}")
        a(f"v_mov_b32 v{VX+8}, 0\nv_mov_b32 v{VX+9}, 0"); a.exec64(0x00ff00ff, 0x00ff00ff)
        a(f"global_load_dwordx2 v[{VX+8}:{VX+9}], v{VT}, s[4:5] offset:1024\ns_mov_b64 exec, -1")
        a("s_mov_b32 s55, 6\ns_branch L_p0_lds")
        a("L_p0_o:")
        a(f"s_sub_u32 s41, s29, 9\ns_mul_i32 s40, s41, 160\ns_mul_i32 s44, s28, 1152\ns_add_u32 s40, s40, s44\ns_add_u32 s40, s40, {WS_H3}"); wsaddr("s40")
        a("s_mov_b64 exec, 0x3ff\ns_cmp_eq_u32 s41, 6\ns_cselect_b32 exec_lo, 0xfff, exec_lo"); pst(); a("s_mov_b64 exec, -1")
        a("s_mov_b32 s55, 2")
    a("L_p0_lds:")
    nb = POIS_HI - POIS_LO
    a(f"v_add_u32 v{VT}, {POIS_LO}, v{VL16}")
    off = 0
    while off < nb:
        rem = nb - off
        if rem < 1024: a(f"v_cmp_gt_u32 vcc, {rem}, v{VL16}\ns_and_saveexec_b64 s[40:41], vcc")
        a(f"ds_write_b128 v{VT}, v[28:31] offset:{off}")
        if rem < 1024: a("s_mov_b64 exec, s[40:41]")
        off += 1024
    a(f"v_mov_b32 v32, 0\nv_mov_b32 v33, 0\nv_mov_b32 v34, 0\nv_mov_b32 v35, 0\nds_write_b128 v{VCT}, v[32:35]\nds_write_b128 v{VCT}, v[32:35] offset:16")
    a("s_waitcnt lgkmcnt(0)\ns_barrier")
    if cfg.LONLY == 1: a("s_branch L_fin")
    L = a.lab("P0W")
    a(f"s_cmp_eq_u32 s55, 2\ns_cbranch_scc1 {L}\ns_waitcnt vmcnt(6)\ns_branch L_p0_ln\n{L}:\ns_waitcnt vmcnt(2)")
    a("s_branch L_p0_ln")
    a("L_p0_notc0:")
    if cfg.TPF:
        L = a.lab("TP")
        a(f"s_cmp_lg_u32 s30, 1\ns_cbranch_scc1 {L}")
        page_touch(a, 198, 199, 200)
        a(f"s_barrier\ns_waitcnt vmcnt(1)\ns_branch L_p0_ln\n{L}:")
    a("s_barrier\ns_waitcnt vmcnt(0)")
    a("L_p0_ln:")
    if cfg.LONLY in (1, 2): a("s_branch L_fin")
    a.stamp(0)
    for i in range(5): a(f"v_lshlrev_b32 v{32+2*i}, 16, v{20+i}\nv_and_b32 v{33+2*i}, 0xffff0000, v{20+i}")
    a("v_add_f32 v42, v32, v33")
    for i in range(2, 10): a(f"v_add_f32 v42, v42, v{32+i}")
    row_red(a, "v_add_f32", "v42"); xrow_red(a, "v_add_f32", "v42", "v43")
    a(f"v_mul_f32 v42, {hex(f2b(1.0/576))}, v42")
    for i in range(10): a(f"v_sub_f32 v{32+i}, v{32+i}, v42")
    a("s_mov_b32 exec_lo, 0\nv_mov_b32 v40, 0\nv_mov_b32 v41, 0\ns_mov_b64 exec, -1")
    a("v_mul_f32 v43, v32, v32")
    for i in range(1, 10): a(f"v_fmac_f32 v43, v{32+i}, v{32+i}")
    row_red(a, "v_add_f32", "v43"); xrow_red(a, "v_add_f32", "v43", "v44")
    a(f"v_mov_b32 v44, {hex(f2b(1e-5))}\nv_fmac_f32 v44, {hex(f2b(1.0/576))}, v43\nv_rsq_f32 v44, v44")
    a.nop(1)
    for i in range(10): a(f"v_mul_f32 v{32+i}, v{32+i}, v44")
    for i in range(5): a(f"v_cvt_pk_bf16_f32 v{20+i}, v{32+2*i}, v{33+2*i}")
    a(f"v_add_u32 v{VT}, {L_XN}, v{VL16}\nds_write_b128 v{VT}, v[20:23]")
    a(f"v_lshlrev_b32 v{VT}, 2, v{VL}\nv_add_u32 v{VT}, {L_XN+1024}, v{VT}\ns_mov_b32 exec_hi, 0\nds_write_b32 v{VT}, v24\ns_mov_b64 exec, -1")
    a(f"v_bfe_u32 v{VT}, v{VL}, 2, 2\nv_lshl_add_u32 v{VT}, v{VKG}, 2, v{VT}\nv_lshlrev_b32 v{VT}, 7, v{VT}")
    a(f"v_and_b32 v{VT+1}, 3, v{VL}\nv_lshl_add_u32 v{VT}, v{VT+1}, 3, v{VT}")
    a(f"s_lshl_b32 s40, s30, 5\ns_add_u32 s40, s40, {L_WQ}\nv_add_u32 v{VT}, s40, v{VT}")
    a(f"s_lshr_b32 s40, s29, 2\ns_mul_i32 s40, s40, 288\ns_add_u32 s40, s40, {L_XN}\nv_lshlrev_b32 v{VT+1}, 3, v{VKG}\nv_add_u32 v{VT+1}, s40, v{VT+1}")
    a("s_waitcnt lgkmcnt(0)")
    for t in range(9): a(f"ds_read_b64 v[{40+2*t}:{41+2*t}], v{VT+1} offset:{32*t}")
    for r in range(4): a(f"v_mov_b32 v{60+r}, 0")
    a("s_lshr_b32 s40, s29, 2\ns_lshl_b32 s40, s40, 10\ns_and_b32 s41, s29, 3\ns_lshl_b32 s41, s41, 8\ns_add_u32 s40, s40, s41")
    a(f"s_lshl_b32 s41, s28, 12\ns_add_u32 s40, s40, s41")
    a("s_add_u32 s42, s26, s40\ns_addc_u32 s43, s27, 0")
    lds_wait_ge(a, f"v{VCT}", 1, f"v{VT+2}")
    a.stamp(1)
    for t in range(9): a(f"ds_read_b64_tr_b16 v[{20+2*t}:{21+2*t}], v{VT} offset:{2048*t}")
    for t in range(9):
        a(f"s_waitcnt lgkmcnt({8-t})")
        a(f"v_mfma_f32_16x16x16_bf16 v[60:63], v[{20+2*t}:{21+2*t}], v[{40+2*t}:{41+2*t}], v[60:63]")
    a(f"s_lshl_b32 s40, s30, 6\ns_add_u32 s40, s40, {L_QP}\nv_lshlrev_b32 v{VT}, 4, v{VKG}\nv_add_u32 v{VT}, s40, v{VT}")
    a(f"s_add_u32 s58, s58, 1\ns_and_b32 s56, s58, 0x3ff\ns_mov_b32 s57, 0xfffffc00\nv_mov_b32 v{VTAG}, s56")
    a.nop(1)
    a.exec64(0x00010001, 0x00010001)
    a(f"ds_write_b128 v{VT}, v[60:63]\ns_mov_b64 exec, -1")
    a("s_cmp_lg_u32 s30, 0\ns_cbranch_scc1 L_p1_done")
    a(f"v_add_u32 v{VT}, {L_QP}, v{VL16}\ns_mov_b64 exec, 0xffff")
    Lp, Lx = spin_head(a, "s60", cfg.SPIN, "QP")
    a(f"ds_read_b128 v[60:63], v{VT}"); spin_bound(a, "s60", cfg.SPIN, Lx)
    a(f"s_waitcnt lgkmcnt(0)\nv_max3_u32 v{VT+1}, v60, v61, v62\nv_max_u32 v{VT+1}, v{VT+1}, v63\nv_cmp_eq_u32 vcc, -1, v{VT+1}\ns_cbranch_vccnz {Lp}\n{Lx}:\ns_waitcnt lgkmcnt(0)")
    for e in range(4): a(f"v_and_or_b32 v{60+e}, v{60+e}, s57, v{VTAG}")
    a("s_mov_b64 s[48:49], s[42:43]\ns_getreg_b32 s59, hwreg(HW_REG_XCC_ID)\ns_and_b32 s59, s59, 7\ns_lshl_b32 s45, s59, 10\ns_or_b32 s45, s45, s56")
    a(f"v_mov_b32 v49, s45\ns_lshl_b32 s40, s28, 6\ns_lshl_b32 s41, s29, 2\ns_add_u32 s40, s40, s41\ns_add_u32 s40, s40, {WS_XI}\nv_mov_b32 v48, s40")
    a("s_waitcnt vmcnt(0)")
    sc0 = "" if cfg.LOCAL else "sc1"
    a(f"global_store_dwordx4 v{VL16}, v[60:63], s[48:49] {sc0}")
    if cfg.LOCAL: a(f"s_mov_b64 exec, 1\nglobal_store_dword v48, v49, s[26:27]")
    a("s_mov_b64 exec, -1")
    L = a.lab("XU")
    a(f"s_cmp_ge_u32 s29, 9\ns_cbranch_scc1 {L}")
    for i in range(10): a(f"v_lshlrev_b32 v{XF+2*i}, 16, v{VX+i}\nv_and_b32 v{XF+2*i+1}, 0xffff0000, v{VX+i}")
    a(f"{L}:")
    a("L_p1_done:")
    if cfg.LONLY == 3: a("s_branch L_fin")
    a.stamp(2)
    QF, S, AO, MK, KA, KF, O = 20, 36, 64, 52, 56, 128, 60
    a(f"v_and_b32 v{VT+1}, 3, v{VJ}\nv_lshrrev_b32 v{VT+2}, 2, v{VJ}")
    a(f"v_lshl_add_u32 v{VT+3}, v{VT+1}, 2, v{VT+2}\nv_lshlrev_b32 v{VT+3}, 8, v{VT+3}")
    a(f"s_lshl_b32 s40, s30, 12\ns_add_u32 s40, s40, {L_K}\nv_add_u32 v{VT+3}, s40, v{VT+3}\nv_xor_b32 v{VT+1}, v{VT+1}, v{VKG}")
    for dd in range(4):
        a(f"v_xor_b32 v{VT+4}, {dd}, v{VT+2}\nv_lshl_add_u32 v{VT+4}, v{VT+4}, 2, v{VT+1}\nv_lshl_add_u32 v{KA+dd}, v{VT+4}, 4, v{VT+3}")
    a(f"v_and_b32 v{VT+1}, 1, v{VJ}\nv_cmp_eq_u32 vcc, 1, v{VT+1}\nv_mov_b32 v{VT+2}, 0xffff\nv_mov_b32 v{VT+4}, 0xffff0000")
    a.nop(1)
    a(f"v_cndmask_b32 v{VT+2}, v{VT+2}, v{VT+4}, vcc\nv_bfe_u32 v{VT+1}, v{VJ}, 1, 2")
    for t in range(4):
        a(f"v_cmp_eq_u32 vcc, {t}, v{VT+1}"); a.nop(2)
        a(f"v_cndmask_b32 v{MK+t}, 0, v{VT+2}, vcc")
    a("s_cmp_lg_u32 s30, 0\ns_cbranch_scc1 L_p2_skip")
    a.sleep(cfg.D_H1)
    if cfg.T_H1: lds_wait_ge(a, f"v{VCT}", 1, f"v{VT+2}", off=24)
    a(f"s_lshl_b32 s40, s28, 12\ns_add_u32 s52, s26, s40\ns_addc_u32 s53, s27, 0\ns_mov_b32 s54, {0 if cfg.LOCAL else 1}\ns_mov_b32 s55, 0")
    a(f"s_lshl_b32 s40, s28, 6\ns_add_u32 s40, s40, {WS_XI}\nv_lshlrev_b32 v{VT}, 2, v{VJ}\nv_add_u32 v{VT}, s40, v{VT}")
    Lp, Lx = spin_head(a, "s60", cfg.GSPIN, "H1")
    if cfg.LOCAL:
        Ln = a.lab("H1N")
        a(f"s_bitcmp1_b32 s55, 0\ns_cbranch_scc0 {Ln}")
        a("s_andn2_b32 s55, s55, 1\ns_mov_b32 s54, 1")
        a("v_mov_b32 v28, -1\nv_mov_b32 v29, -1\nv_mov_b32 v30, -1\nv_mov_b32 v31, -1")
        h2poison("sc1")
        a(f"s_waitcnt vmcnt(0)\nv_or_b32 v49, 0x2000, v49\ns_mov_b64 exec, 0xffff\nglobal_store_dwordx4 v{VL16}, v[60:63], s[48:49] sc1")
        a(f"s_mov_b64 exec, 1\nglobal_store_dword v48, v49, s[26:27] sc1\ns_mov_b64 exec, -1\n{Ln}:")
    for rb in range(4): a(f"global_load_dwordx4 v[{20+4*rb}:{23+4*rb}], v{VL16}, s[52:53] offset:{1024*rb} sc1")
    if cfg.LOCAL: a(f"global_load_dword v36, v{VT}, s[26:27] sc1")
    spin_bound(a, "s60", cfg.GSPIN, Lx)
    a("s_waitcnt vmcnt(0)")
    tagcheck(a, "v40", list(range(20, 36)) + ([36] if cfg.LOCAL else []), VTAG)
    if cfg.LOCAL:
        Lf, Lg = a.lab("H1F"), a.lab("H1G")
        a(f"s_cbranch_vccnz {Lf}")
        a(f"v_bfe_u32 v40, v36, 10, 3\nv_cmp_ne_u32 vcc, s59, v40\ns_cbranch_vccz {Lx}")
        a(f"s_bitset1_b32 s55, 1\ns_cmp_lg_u32 s54, 0\ns_cbranch_scc1 {Lg}\ns_bitset1_b32 s55, 0\ns_branch {Lp}\n{Lg}:")
        a(f"v_and_b32 v40, 0x2000, v36\nv_cmp_eq_u32 vcc, 0, v40\ns_cbranch_vccz {Lx}\n{Lf}:")
        a(f"s_cmp_lg_u32 s60, {cfg.TO_H1}\ns_cbranch_scc1 {Lg}x\ns_cmp_lg_u32 s54, 0\ns_cbranch_scc1 {Lg}x\ns_bitset1_b32 s55, 0\n{Lg}x:")
        a.sleep(cfg.B_H1); a(f"s_branch {Lp}")
    else:
        a(f"s_cbranch_vccz {Lx}"); a.sleep(cfg.B_H1); a(f"s_branch {Lp}")
    a(f"{Lx}:\ns_mov_b64 exec, -1\ns_waitcnt vmcnt(0)")
    a(f"v_mov_b32 v40, s54"); lds_set(a, f"v{VCT}", 28, "v40")
    for e in range(4): a(f"v_add_f32 v{36+e}, v{20+e}, v{24+e}\nv_add_f32 v{40+e}, v{28+e}, v{32+e}\nv_add_f32 v{36+e}, v{36+e}, v{40+e}")
    a("v_cvt_pk_bf16_f32 v36, v36, v37\nv_cvt_pk_bf16_f32 v37, v38, v39")
    a(f"v_lshlrev_b32 v{VT}, 3, v{VL}\nv_add_u32 v{VT}, {L_QB}, v{VT}\nds_write_b64 v{VT}, v[36:37]")
    a("L_p2_skip:")
    if cfg.LONLY == 4: a("s_branch L_fin")
    a.stamp(3)
    a(f"v_lshrrev_b32 v{VT}, 3, v{VJ}\nv_lshlrev_b32 v{VT}, 8, v{VT}\nv_lshl_add_u32 v{VT}, v{VKG}, 4, v{VT}\nv_add_u32 v{VT}, {L_QB}, v{VT}")
    Lp, Lx = spin_head(a, "s60", cfg.SPIN, "QF")
    for dd in range(4): a(f"ds_read_b128 v[{QF+4*dd}:{QF+4*dd+3}], v{VT} offset:{64*dd}")
    spin_bound(a, "s60", cfg.SPIN, Lx)
    a(f"s_waitcnt lgkmcnt(0)\nv_max3_u32 v{VT+1}, v{QF}, v{QF+1}, v{QF+2}")
    for i in range(3, 15, 2): a(f"v_max3_u32 v{VT+1}, v{VT+1}, v{QF+i}, v{QF+i+1}")
    a(f"v_max_u32 v{VT+1}, v{VT+1}, v{QF+15}\nv_cmp_eq_u32 vcc, -1, v{VT+1}\ns_cbranch_vccnz {Lp}\n{Lx}:\ns_waitcnt lgkmcnt(0)")
    a.stamp(4)
    for i in range(16): a(f"v_mov_b32 v{S+i}, 0")
    lds_wait_ge(a, f"v{VCT}", 2, f"v{VT+2}")
    a.stamp(5)
    for r in range(4):
        for dd in range(4): a(f"ds_read_b128 v[{KF+16*r+4*dd}:{KF+16*r+4*dd+3}], v{KA+dd} offset:{16384*r}")
    for r in range(4):
        for dd in range(4):
            n = 4*r + dd
            a(f"s_waitcnt lgkmcnt({15-n})")
            a(f"v_mfma_f32_16x16x32_bf16 v[{S+4*r}:{S+4*r+3}], v[{KF+16*r+4*dd}:{KF+16*r+4*dd+3}], v[{QF+4*dd}:{QF+4*dd+3}], v[{S+4*r}:{S+4*r+3}]")
    a(f"v_mov_b32 v{VT+2}, 1"); lds_set(a, f"v{VCT}", 4, f"v{VT+2}", "ds_add_u32")
    a.nop(8)
    a(f"v_max3_f32 v{VT+1}, v{S}, v{S+1}, v{S+2}")
    for i in range(3, 15, 2): a(f"v_max3_f32 v{VT+1}, v{VT+1}, v{S+i}, v{S+i+1}")
    a(f"v_max_f32 v{VT+1}, v{VT+1}, v{S+15}")
    xrow_red(a, "v_max_f32", f"v{VT+1}", f"v{VT+2}")
    a(f"v_lshrrev_b32 v{VT+2}, 3, v{VJ}\nv_lshlrev_b32 v{VT+2}, 4, v{VT+2}\nv_add_u32 v{VT+3}, {L_MX}, v{VT+2}")
    a(f"s_lshl_b32 s40, s30, 2\nv_add_u32 v{VT+4}, s40, v{VT+3}")
    a(f"s_mov_b64 exec, 0x101\nds_write_b32 v{VT+4}, v{VT+1}\ns_mov_b64 exec, -1")
    Lp, Lx = spin_head(a, "s60", cfg.SPIN, "MX")
    a(f"ds_read_b128 v[{KF}:{KF+3}], v{VT+3}"); spin_bound(a, "s60", cfg.SPIN, Lx)
    a(f"s_waitcnt lgkmcnt(0)\nv_max3_u32 v{VT+5}, v{KF}, v{KF+1}, v{KF+2}\nv_max_u32 v{VT+5}, v{VT+5}, v{KF+3}\nv_cmp_eq_u32 vcc, -1, v{VT+5}\ns_cbranch_vccnz {Lp}")
    a(f"{Lx}:\ns_waitcnt lgkmcnt(0)")
    a(f"v_max3_f32 v{VT+1}, v{KF}, v{KF+1}, v{KF+2}\nv_max_f32 v{VT+1}, v{VT+1}, v{KF+3}")
    a(f"s_mov_b32 s44, {hex(CSCALE)}\nv_mul_f32 v17, s44, v{VT+1}")
    a(f"v_and_or_b32 v17, v17, s57, v{VTAG}")
    for i in range(16): a(f"v_fma_f32 v{S+i}, v{S+i}, s44, -v17")
    for i in range(16): a(f"v_exp_f32 v{S+i}, v{S+i}")
    a.nop(1)
    a(f"v_add_f32 v{VT+1}, v{S}, v{S+1}")
    for i in range(2, 16): a(f"v_add_f32 v{VT+1}, v{VT+1}, v{S+i}")
    xrow_red(a, "v_add_f32", f"v{VT+1}", f"v{VT+2}")
    a(f"v_add_u32 v{VT+4}, {L_LW-L_MX}, v{VT+4}")
    a(f"s_mov_b64 exec, 0x101\nds_write_b32 v{VT+4}, v{VT+1}\ns_mov_b64 exec, -1")
    a("s_cmp_lg_u32 s30, 3\ns_cbranch_scc1 L_p3_noml")
    a(f"v_add_u32 v{VT+3}, {L_LW-L_MX}, v{VT+3}")
    Lp, Lx = spin_head(a, "s60", cfg.SPIN, "LW")
    a(f"ds_read_b128 v[{KF}:{KF+3}], v{VT+3}"); spin_bound(a, "s60", cfg.SPIN, Lx)
    a(f"s_waitcnt lgkmcnt(0)\nv_add_f32 v{KF}, v{KF}, v{KF+1}\nv_add_f32 v{KF+2}, v{KF+2}, v{KF+3}\nv_add_f32 v19, v{KF}, v{KF+2}")
    a(f"v_cmp_u_f32 vcc, v19, v19\ns_cbranch_vccnz {Lp}\n{Lx}:\ns_waitcnt lgkmcnt(0)")
    a(f"s_lshl_b32 s46, s28, 4\ns_add_u32 s40, s46, s29\ns_lshl_b32 s40, s40, 7\ns_add_u32 s40, s40, {WS_ML}\ns_add_u32 s42, s26, s40\ns_addc_u32 s43, s27, 0")
    a(f"v_and_or_b32 v19, v19, s57, v{VTAG}")
    a("v_readlane_b32 s46, v17, 0\nv_readlane_b32 s47, v19, 0\nv_readlane_b32 s48, v17, 8\nv_readlane_b32 s49, v19, 8")
    a("v_mov_b32 v28, s46\nv_mov_b32 v29, s47\nv_mov_b32 v30, s48\nv_mov_b32 v31, s49")
    a(f"ds_read_b32 v{VT+2}, v{VCT} offset:28\ns_waitcnt lgkmcnt(0)\nv_readfirstlane_b32 s54, v{VT+2}\ns_mov_b64 exec, 0xff")
    L1, L2 = a.lab("MLG"), a.lab("MLD")
    a(f"s_cmp_lg_u32 s54, 0\ns_cbranch_scc1 {L1}\nglobal_store_dwordx4 v{VL16}, v[28:31], s[42:43]\ns_branch {L2}\n{L1}:")
    a(f"global_store_dwordx4 v{VL16}, v[28:31], s[42:43] sc1\n{L2}:\ns_mov_b64 exec, -1")
    a("L_p3_noml:")
    for i in range(16):
        a(f"v_cvt_pk_bf16_f32 v{S+i}, v{S+i}, v{S+i}")
        for t in range(4): a(f"v_and_b32 v{AO+4*i+t}, v{S+i}, v{MK+t}")
    a.stamp(6)
    if cfg.LONLY == 5: a("s_branch L_fin")
    VF = KF
    MLR = 20
    a(f"s_lshl_b32 s40, s30, 12\ns_add_u32 s40, s40, {L_V}\nv_add_u32 v{VT}, s40, v{VL16}")
    a(f"s_lshl_b32 s40, s28, 11\ns_add_u32 s40, s40, {WS_ML}\ns_add_u32 s42, s26, s40\ns_addc_u32 s43, s27, 0\nv_lshlrev_b32 v16, 7, v{VJ}")
    for r in range(4): a(f"v_mov_b32 v{O+r}, 0")
    MLB, MLC = 32, 36
    def ml_merge():
        a(f"v_mov_b32 v24, v{MLR}\nv_mov_b32 v25, v{MLR+2}")
        row_red(a, "v_max_f32", ["v24", "v25"])
        a(f"v_sub_f32 v26, v{MLR}, v24\nv_sub_f32 v27, v{MLR+2}, v25\nv_exp_f32 v26, v26\nv_exp_f32 v27, v27")
        a("v_readlane_b32 s44, v17, 0\nv_readlane_b32 s45, v17, 8")
        a(f"v_mul_f32 v26, v26, v{MLR+1}\nv_mul_f32 v27, v27, v{MLR+3}")
        row_red(a, "v_add_f32", ["v26", "v27"])
        a("v_sub_f32 v24, s44, v24\nv_sub_f32 v25, s45, v25\nv_rcp_f32 v26, v26\nv_rcp_f32 v27, v27\nv_exp_f32 v24, v24\nv_exp_f32 v25, v25")
        a.nop(1)
        a("v_mul_f32 v24, v24, v26\nv_mul_f32 v25, v25, v27")
        a("s_mov_b32 exec_lo, 0\nv_mov_b32 v24, v25\ns_mov_b64 exec, -1")
    def cp4(dst, src):
        for e in range(4): a(f"v_mov_b32 v{dst+e}, v{src+e}")
    for r in range(4):
        if r == 3:
            L, Lm, Ls = a.lab("MLS"), a.lab("MLM"), a.lab("MLK")
            a(f"s_cmp_lg_u32 s30, 3\ns_cbranch_scc1 {L}\ns_mov_b32 s62, 0\ns_waitcnt vmcnt(2)")
            tagcheck(a, f"v{VT+2}", range(MLR, MLR+4), VTAG)
            a(f"s_cbranch_vccz {Lm}\ns_waitcnt vmcnt(1)")
            tagcheck(a, f"v{VT+2}", range(MLB, MLB+4), VTAG)
            cp4(MLR, MLB)
            a(f"s_cbranch_vccz {Lm}\ns_mov_b32 s62, 1\ns_branch {Ls}\n{Lm}:")
            ml_merge()
            a(f"{Ls}:")
            a(f"s_lshl_b32 s40, s28, 4\ns_add_u32 s40, s40, s29\ns_lshl_b32 s40, s40, 9\ns_add_u32 s40, s40, {WS_H2}\ns_add_u32 s48, s26, s40\ns_addc_u32 s49, s27, 0")
            a(f"v_lshrrev_b32 v9, 1, v{VKG}\nv_lshlrev_b32 v9, 8, v9\nv_lshl_add_u32 v9, v{VJ}, 4, v9")
            a(f"{L}:")
        lds_wait_ge(a, f"v{VCT}", 3 + r, f"v{VT+2}")
        for t in range(4): a(f"ds_read_b128 v[{VF+4*t}:{VF+4*t+3}], v{VT} offset:{16384*r+1024*t}")
        if r < 3:
            L = a.lab("MLI"); d = (MLR, MLB, MLC)[r]
            a(f"s_cmp_lg_u32 s30, 3\ns_cbranch_scc1 {L}\nglobal_load_dwordx4 v[{d}:{d+3}], v16, s[42:43] sc1\n{L}:")
        for t in range(4):
            a(f"s_waitcnt lgkmcnt({3-t})")
            a(f"v_mfma_f32_16x16x32_bf16 v[{O}:{O+3}], v[{AO+16*r+4*t}:{AO+16*r+4*t+3}], v[{VF+4*t}:{VF+4*t+3}], v[{O}:{O+3}]")
    a(f"v_mov_b32 v{VT+2}, 1"); lds_set(a, f"v{VCT}", 8, f"v{VT+2}", "ds_add_u32")
    a.stamp(7)
    a("s_cmp_eq_u32 s30, 3\ns_cbranch_scc1 L_p4_pub")
    a(f"s_lshl_b32 s40, s30, 10\ns_add_u32 s40, s40, {L_OP}\nv_add_u32 v{VT}, s40, v{VL16}")
    a(f"ds_write_b128 v{VT}, v[{O}:{O+3}]")
    a("s_branch L_p4_done")
    a("L_p4_pub:")
    Ld = a.lab("MLD")
    a(f"s_cmp_eq_u32 s62, 0\ns_cbranch_scc1 {Ld}\ns_waitcnt vmcnt(0)")
    cp4(MLR, MLC)
    Lp, Lx = a.lab("ML"), a.lab("MLX")
    a("s_mov_b32 s61, 0\ns_branch " + Lp + "_chk")
    a(f"{Lp}:\nglobal_load_dwordx4 v[{MLR}:{MLR+3}], v16, s[42:43] sc1")
    a(f"{Lp}_chk:")
    spin_bound(a, "s61", cfg.GSPIN, Lx)
    a("s_waitcnt vmcnt(0)")
    tagcheck(a, f"v{VT+2}", range(MLR, MLR+4), VTAG)
    a(f"s_cbranch_vccz {Lx}"); a.sleep(cfg.B_ML); a(f"s_branch {Lp}")
    a(f"{Lx}:\ns_waitcnt vmcnt(0)")
    ml_merge()
    a(f"{Ld}:")
    a(f"v_add_u32 v{VT}, {L_OP}, v{VL16}")
    Lp, Lx = spin_head(a, "s60", cfg.SPIN, "OP")
    for w in range(3): a(f"ds_read_b128 v[{VF+4*w}:{VF+4*w+3}], v{VT} offset:{1024*w}")
    spin_bound(a, "s60", cfg.SPIN, Lx)
    a("s_waitcnt lgkmcnt(0)")
    for e in range(4): a(f"v_add_f32 v{VF+12+e}, v{VF+e}, v{VF+4+e}\nv_add_f32 v{VF+12+e}, v{VF+12+e}, v{VF+8+e}")
    a(f"v_add_f32 v{VT+3}, v{VF+12}, v{VF+13}\nv_add_f32 v{VT+4}, v{VF+14}, v{VF+15}\nv_add_f32 v{VT+3}, v{VT+3}, v{VT+4}")
    a(f"v_cmp_u_f32 vcc, v{VT+3}, v{VT+3}\ns_cbranch_vccnz {Lp}\n{Lx}:\ns_waitcnt lgkmcnt(0)")
    for e in range(4): a(f"v_add_f32 v{O+e}, v{O+e}, v{VF+12+e}\nv_mul_f32 v{O+e}, v{O+e}, v24")
    a(f"v_cvt_pk_bf16_f32 v28, v{O}, v{O+1}\nv_cvt_pk_bf16_f32 v29, v{O+2}, v{O+3}\nv_mov_b32 v30, v28\nv_mov_b32 v31, v29")
    a.nop(1)
    a("v_permlane16_swap_b32 v28, v30\nv_permlane16_swap_b32 v29, v31")
    a.nop(2)
    a.exec64(0x0000ffff, 0x0000ffff)
    L1, L2 = a.lab("PUBG"), a.lab("PUBD")
    a(f"s_cmp_lg_u32 s54, 0\ns_cbranch_scc1 {L1}")
    a(f"global_store_dwordx4 v9, v[28:31], s[48:49]\ns_branch {L2}\n{L1}:")
    a(f"global_store_dwordx4 v9, v[28:31], s[48:49] sc1\n{L2}:\ns_mov_b64 exec, -1")
    a("L_p4_done:")
    a.stamp(8)
    a("s_cmp_lt_u32 s29, 9\ns_cbranch_scc1 L_role_f")
    G, BF, D5 = 20, 64, 112
    a(f"s_lshl_b32 s40, s28, 13\ns_add_u32 s40, s40, {WS_H2}\ns_add_u32 s42, s26, s40\ns_addc_u32 s43, s27, 0")
    a(f"v_lshlrev_b32 v{VT}, 9, v{VJ}\nv_lshl_add_u32 v{VT}, v{VKG}, 4, v{VT}\ns_lshl_b32 s40, s30, 7\nv_add_u32 v{VT}, s40, v{VT}")
    a(f"v_bfe_u32 v{VT+2}, v{VL}, 2, 2\nv_lshl_add_u32 v{VT+2}, v{VKG}, 3, v{VT+2}\ns_lshl_b32 s40, s30, 6\nv_add_u32 v{VT+2}, s40, v{VT+2}")
    a(f"v_mul_u32_u24 v{VT+2}, 192, v{VT+2}\nv_and_b32 v{VT+3}, 3, v{VL}\nv_lshl_add_u32 v{VT+2}, v{VT+3}, 3, v{VT+2}")
    for i in range(24): a(f"v_mov_b32 v{D5+i}, 0")
    lds_wait_ge(a, f"v{VCT}", 1, f"v{VT+4}", off=12)
    a("s_mov_b32 s62, 0")
    Lp, Lx = spin_head(a, "s61", cfg.GSPIN, "H2")
    for t in range(2): a(f"global_load_dwordx4 v[{G+4*t}:{G+4*t+3}], v{VT}, s[42:43] offset:{64*t} sc1")
    Lq = a.lab("H2F")
    a(f"s_cmp_lg_u32 s62, 0\ns_cbranch_scc1 {Lq}\ns_mov_b32 s62, 1")
    a(f"v_mov_b32 v{VT+4}, 1"); lds_set(a, f"v{VCT}", 16, f"v{VT+4}", "ds_add_u32")
    if cfg.WOROT: a("s_and_b32 s63, s29, 1\ns_lshl_b32 s63, s63, 1\ns_add_u32 s63, s63, s30\ns_and_b32 s63, s63, 3\ns_add_u32 s63, s63, 7")
    else: a("s_add_u32 s63, s30, 7")
    lds_wait_ge(a, f"v{VCT}", "s63", f"v{VT+4}")
    for t in range(2):
        for nb_ in range(6):
            for h in range(2):
                a(f"ds_read_b64_tr_b16 v[{BF+8*nb_+4*t+2*h}:{BF+8*nb_+4*t+2*h+1}], v{VT+2} offset:{O_WO+t*6144+h*768+nb_*32}")
    a(f"{Lq}:")
    spin_bound(a, "s61", cfg.GSPIN, Lx)
    a(f"s_waitcnt vmcnt(0)\nv_max3_u32 v{VT+4}, v{G}, v{G+1}, v{G+2}\nv_max3_u32 v{VT+4}, v{VT+4}, v{G+3}, v{G+4}\nv_max3_u32 v{VT+4}, v{VT+4}, v{G+5}, v{G+6}\nv_max_u32 v{VT+4}, v{VT+4}, v{G+7}")
    a(f"v_cmp_eq_u32 vcc, -1, v{VT+4}\ns_and_b64 exec, exec, vcc\ns_cbranch_execz {Lx}"); a.sleep(cfg.B_H2); a(f"s_branch {Lp}")
    a(f"{Lx}:\ns_mov_b64 exec, -1\ns_waitcnt vmcnt(0) lgkmcnt(0)")
    a.stamp(9)
    for t in range(2):
        for nb_ in range(6):
            a(f"v_mfma_f32_16x16x32_bf16 v[{D5+4*nb_}:{D5+4*nb_+3}], v[{G+4*t}:{G+4*t+3}], v[{BF+8*nb_+4*t}:{BF+8*nb_+4*t+3}], v[{D5+4*nb_}:{D5+4*nb_+3}]")
    a.nop(4)
    for nb_ in range(6):
        b = D5 + 4*nb_
        if nb_ == 5: a.nop(4)
        a(f"v_add_f32 v{b}, v{b}, v{b+1}\nv_add_f32 v{b+2}, v{b+2}, v{b+3}\nv_add_f32 v{b}, v{b}, v{b+2}")
    a0, a1, a2, a3 = D5, D5+4, D5+8, D5+12
    b0, b1 = D5+16, D5+20
    z0, z1 = D5+1, D5+2
    a(f"v_mov_b32 v{z0}, 0\nv_mov_b32 v{z1}, 0"); a.nop(2)
    a(f"v_permlane32_swap_b32 v{a0}, v{a2}\nv_permlane32_swap_b32 v{a1}, v{a3}\nv_permlane32_swap_b32 v{b0}, v{z0}\nv_permlane32_swap_b32 v{b1}, v{z1}"); a.nop(1)
    a(f"v_add_f32 v{a0}, v{a0}, v{a2}\nv_add_f32 v{a1}, v{a1}, v{a3}\nv_add_f32 v{b0}, v{b0}, v{z0}\nv_add_f32 v{b1}, v{b1}, v{z1}"); a.nop(2)
    a(f"v_permlane16_swap_b32 v{a0}, v{a1}\nv_permlane16_swap_b32 v{b0}, v{b1}"); a.nop(1)
    a(f"v_add_f32 v{a0}, v{a0}, v{a1}\nv_add_f32 v{b0}, v{b0}, v{b1}")
    a(f"s_lshl_b32 s40, s30, 9\ns_add_u32 s40, s40, {L_R5}\nv_lshlrev_b32 v{VT}, 2, v{VL}\nv_add_u32 v{VT}, s40, v{VT}")
    a(f"ds_write_b32 v{VT}, v{a0}\nds_write_b32 v{VT}, v{b0} offset:256")
    a("s_cmp_lg_u32 s30, 3\ns_cbranch_scc1 L_p5_done")
    a(f"v_lshlrev_b32 v{VT}, 5, v{VL}\nv_add_u32 v{VT}, {L_R5}, v{VT}")
    a("s_sub_u32 s41, s29, 9\ns_mov_b64 exec, 0x3ff\ns_cmp_eq_u32 s41, 6\ns_cselect_b32 exec_lo, 0xfff, exec_lo")
    Lp, Lx = spin_head(a, "s60", cfg.SPIN, "R5")
    for w in range(4):
        for h in range(2): a(f"ds_read_b128 v[{BF+8*w+4*h}:{BF+8*w+4*h+3}], v{VT} offset:{512*w+16*h}")
    spin_bound(a, "s60", cfg.SPIN, Lx)
    a("s_waitcnt lgkmcnt(0)")
    for e in range(8): a(f"v_add_f32 v{G+e}, v{BF+e}, v{BF+8+e}\nv_add_f32 v{BF+32+e}, v{BF+16+e}, v{BF+24+e}\nv_add_f32 v{G+e}, v{G+e}, v{BF+32+e}")
    a(f"v_add_f32 v{VT+3}, v{G}, v{G+1}")
    for e in range(2, 8): a(f"v_add_f32 v{VT+3}, v{VT+3}, v{G+e}")
    a(f"v_cmp_u_f32 vcc, v{VT+3}, v{VT+3}\ns_cbranch_vccnz {Lp}\n{Lx}:\ns_waitcnt lgkmcnt(0)")
    for e in range(4): a(f"v_cvt_pk_bf16_f32 v{G+e}, v{G+2*e}, v{G+2*e+1}")
    a(f"s_mul_i32 s40, s41, 160\ns_mul_i32 s44, s28, 1152\ns_add_u32 s40, s40, s44\ns_add_u32 s40, s40, {WS_H3}\ns_add_u32 s42, s26, s40\ns_addc_u32 s43, s27, 0")
    a(f"global_store_dwordx4 v{VL16}, v[{G}:{G+3}], s[42:43] sc1\ns_mov_b64 exec, -1")
    a("L_p5_done:")
    a.stamp(10)
    a("s_cmp_lg_u32 s30, 0\ns_cbranch_scc1 L_fin")
    a("s_lshr_b32 s40, s28, 1\ns_and_b32 s44, s28, 1\ns_sub_u32 s41, s29, 9\ns_lshl_b32 s41, s41, 1\ns_add_u32 s41, s41, s44")
    a("s_cmp_lt_u32 s41, 8\ns_cbranch_scc1 L_p9_go\ns_cmp_ge_u32 s41, 12\ns_cbranch_scc1 L_fin\ns_cmp_ge_u32 s40, 2\ns_cbranch_scc1 L_fin")
    a("L_p9_go:")
    a("s_lshr_b32 s44, s41, 2\ns_lshl_b32 s44, s44, 3\ns_add_u32 s44, s44, s40\ns_lshl_b32 s44, s44, 5\ns_and_b32 s45, s41, 3\ns_lshl_b32 s45, s45, 3\ns_add_u32 s44, s44, s45")
    alive_addr(a, VL, 9, VT+2)
    a(f"s_lshl_b32 s40, s44, 1\ns_add_u32 s40, s40, {WS_H3}\ns_add_u32 s42, s26, s40\ns_addc_u32 s43, s27, 0")
    a(f"v_mul_u32_u24 v{VT}, 1152, v{VJ}\nv_lshl_add_u32 v{VT}, v{VKG}, 1, v{VT}")
    a(f"s_lshl_b32 s40, s44, 1\ns_add_u32 s46, s4, s40\ns_addc_u32 s47, s5, 0\nv_lshlrev_b32 v{VT+1}, 1, v{VKG}")
    a(f"global_load_ushort v26, v{VT+1}, s[46:47]\nglobal_load_ushort v27, v{VT+1}, s[46:47] offset:8")
    Lp, Lx = spin_head(a, "s60", cfg.GSPIN, "HH")
    alive_load(a, 9)
    a(f"global_load_ushort v24, v{VT}, s[42:43] sc1\nglobal_load_ushort v25, v{VT}, s[42:43] offset:8 sc1"); spin_bound(a, "s60", cfg.GSPIN, Lx)
    a("s_waitcnt vmcnt(0)"); alive_test(a)
    a("v_max_u32 v28, v24, v25\nv_cmp_eq_u32 vcc, 0xffff, v28\ns_or_b64 vcc, vcc, s[50:51]")
    a(f"s_cbranch_vccz {Lx}"); a.sleep(4); a(f"s_branch {Lp}\n{Lx}:\ns_waitcnt vmcnt(0)")
    a("v_lshlrev_b32 v24, 16, v24\nv_lshlrev_b32 v25, 16, v25\nv_lshlrev_b32 v26, 16, v26\nv_lshlrev_b32 v27, 16, v27")
    row_red(a, "v_add_f32", ["v24", "v25"])
    a("v_add_f32 v24, v24, v26\nv_add_f32 v25, v25, v27")
    a.exec64(0xaaaaaaaa, 0xaaaaaaaa); a("v_mov_b32 v24, v25\ns_mov_b64 exec, -1")
    a(f"s_lshl_b32 s40, s44, 2\ns_add_u32 s40, s40, {WS_H4}\ns_add_u32 s42, s26, s40\ns_addc_u32 s43, s27, 0")
    a(f"v_lshrrev_b32 v{VT}, 1, v{VL}\nv_mul_u32_u24 v{VT}, 2304, v{VT}\nv_and_b32 v{VT+1}, 1, v{VL}\nv_lshl_add_u32 v{VT}, v{VT+1}, 4, v{VT}")
    for t in range(1, 5): a(f"v_add_u32 v{VT+t}, {32*2304*t}, v{VT}")
    for e in range(4): a(f"v_mov_b32 v{80+e}, v{VTAG}")
    a("s_mov_b64 s[46:47], -1")
    Lp, Lx = spin_head(a, "s60", cfg.GSPIN, "H4")
    for t in range(4): a(f"global_load_dwordx4 v[{64+4*t}:{67+4*t}], v{VT+t}, s[42:43] sc1")
    a(f"s_mov_b32 exec_hi, 0\nglobal_load_dwordx4 v[80:83], v{VT+4}, s[42:43] sc1\ns_mov_b64 exec, s[46:47]")
    spin_bound(a, "s60", cfg.GSPIN, Lx)
    a("s_waitcnt vmcnt(0)")
    tagcheck(a, "v28", range(64, 84), VTAG)
    a(f"s_and_b64 s[46:47], exec, vcc\ns_mov_b64 exec, s[46:47]\ns_cbranch_execz {Lx}"); a.sleep(cfg.B_H4); a(f"s_branch {Lp}")
    a(f"{Lx}:\ns_mov_b64 exec, -1\ns_waitcnt vmcnt(0)")
    a.stamp(14)
    if cfg.UNTIL:
        L = a.lab("UNT")
        a(f"s_add_u32 s52, s96, {cfg.UNTIL}\n{L}:\ns_memrealtime s[54:55]\ns_waitcnt lgkmcnt(0)\ns_sub_u32 s54, s54, s52\ns_cmp_lt_i32 s54, 0\ns_cbranch_scc1 {L}")
    if cfg.DELAY:
        L = a.lab("DLY")
        a(f"s_memtime s[52:53]\ns_waitcnt lgkmcnt(0)\ns_add_u32 s52, s52, {cfg.DELAY}\n{L}:\ns_memtime s[54:55]\ns_waitcnt lgkmcnt(0)\ns_sub_u32 s54, s54, s52\ns_cmp_lt_i32 s54, 0\ns_cbranch_scc1 {L}")
    for e in range(4): a(f"v_add_f32 v{20+e}, v{64+e}, v{68+e}\nv_add_f32 v{28+e}, v{72+e}, v{76+e}\nv_add_f32 v{20+e}, v{20+e}, v{80+e}\nv_add_f32 v{20+e}, v{20+e}, v{28+e}")
    a.nop(2)
    a("v_permlane32_swap_b32 v20, v22\nv_permlane32_swap_b32 v21, v23"); a.nop(1)
    a("v_add_f32 v20, v20, v22\nv_add_f32 v21, v21, v23"); a.nop(2)
    a("v_permlane16_swap_b32 v20, v21"); a.nop(1)
    a("v_add_f32 v20, v20, v21")
    for ctl in ("row_ror:8", "row_ror:4", "row_ror:2"):
        a.nop(2); dpp(a, "v_add_f32", "v20", ctl)
    a("v_add_f32 v20, v20, v24\nv_cvt_pk_bf16_f32 v20, v20, v20")
    a(f"s_lshl_b32 s40, s44, 1\ns_add_u32 s42, s22, s40\ns_addc_u32 s43, s23, 0\nv_and_b32 v{VT}, 1, v{VL}\nv_lshlrev_b32 v{VT}, 3, v{VT}\nv_lshl_add_u32 v{VT}, v{VKG}, 1, v{VT}")
    a.exec64(0x00030003, 0x00030003)
    a(f"global_store_short v{VT}, v20, s[42:43]\ns_mov_b64 exec, -1")
    a(f"s_cmp_lg_u32 s44, 0\ns_cbranch_scc1 L_fin\nv_mov_b32 v{VT}, {WS_EP}\nv_mov_b32 v{VT+1}, s58\ns_mov_b64 exec, 1\nglobal_store_dword v{VT}, v{VT+1}, s[26:27]\ns_mov_b64 exec, -1")
    a("s_branch L_fin")
    a("L_role_f:")
    WF, RAW, HF, AC, SEL, DF = 64, 136, 136, 236, 56, 208
    TG, TU, TD = (F_G, F_U, F_D) if cfg.ORD == 0 else (F1_G, F1_U, F1_D)
    MG, MD = (7, 8) if cfg.ORD == 0 else (8, 7)
    a(f"v_bfe_u32 v{VT}, v{VL}, 2, 2\nv_lshl_add_u32 v{VT}, v{VKG}, 3, v{VT}\nv_lshlrev_b32 v{VT}, 6, v{VT}\nv_and_b32 v{VT+1}, 3, v{VL}\nv_lshl_add_u32 v{VT}, v{VT+1}, 3, v{VT}")
    a(f"s_and_b32 s40, s30, 1\ns_lshl_b32 s40, s40, 5\ns_lshr_b32 s41, s30, 1\ns_mul_i32 s41, s41, {TU - TG}\ns_add_u32 s40, s40, s41\ns_add_u32 s40, s40, {TG}\nv_add_u32 v{VT}, s40, v{VT}")
    a(f"v_bfe_u32 v10, v{VL}, 2, 2\nv_lshl_add_u32 v10, v{VKG}, 3, v10\nv_mul_u32_u24 v10, 1152, v10")
    a(f"v_and_b32 v{VT+2}, 3, v{VL}\nv_lshlrev_b32 v{VT+2}, 3, v{VT+2}\ns_mul_i32 s40, s30, 288\ns_add_u32 s40, s40, {TD}\nv_add_u32 v{VT+2}, s40, v{VT+2}\nv_add_u32 v10, v10, v{VT+2}")
    def wfrags():
        for t in range(18):
            for h in range(2): a(f"ds_read_b64_tr_b16 v[{WF+4*t+2*h}:{WF+4*t+2*h+1}], v{VT} offset:{2048*t+256*h}")
    def dfrags():
        for n in range(9):
            for h in range(2): a(f"ds_read_b64_tr_b16 v[{DF+4*n+2*h}:{DF+4*n+2*h+1}], v10 offset:{32*n+4608*h}")
    a("s_cmp_lg_u32 s30, 0\ns_cbranch_scc1 L_p6_skip")
    for t in range(4): a(f"v_and_b32 v{SEL+t}, 0x3f803f80, v{MK+t}")
    for pb in range(4):
        for e in range(4): a(f"v_mov_b32 v{RAW+64+4*pb+e}, 0")
    a(f"s_add_u32 s42, s26, {WS_H3}\ns_addc_u32 s43, s27, 0")
    a(f"v_mul_u32_u24 v{VT+1}, 1152, v{VKG}\nv_lshl_add_u32 v{VT+1}, v{VJ}, 4, v{VT+1}")
    lds_wait_ge(a, f"v{VCT}", MG, f"v{VT+2}")
    wfrags()
    alive_addr(a, VL, 9, 10 + 0) if False else None
    alive_addr(a, VL, 9, VT+2)
    lds_wait_ge(a, f"v{VCT}", 1, f"v{VT+2}", off=12)
    a.stamp(9)
    a("s_mov_b64 s[46:47], -1")
    Lp, Lx = spin_head(a, "s61", cfg.GSPIN, "H3")
    a("s_mov_b64 exec, -1"); alive_load(a, 9); a("s_mov_b64 exec, s[46:47]")
    a("s_mov_b32 s44, s42\ns_mov_b32 s45, s43")
    for pb in range(4):
        for cb in range(4): a(f"global_load_dwordx4 v[{RAW+16*cb+4*pb}:{RAW+16*cb+4*pb+3}], v{VT+1}, s[44:45] offset:{256*cb} sc1")
        a("s_and_b32 exec_lo, exec_lo, 0x00ff00ff\ns_and_b32 exec_hi, exec_hi, 0x00ff00ff")
        Lz = a.lab("H3Z")
        a(f"s_cbranch_execz {Lz}\nglobal_load_dwordx4 v[{RAW+64+4*pb}:{RAW+64+4*pb+3}], v{VT+1}, s[44:45] offset:1024 sc1\n{Lz}:")
        a(f"s_mov_b64 exec, s[46:47]\ns_add_u32 s44, s44, {4*1152}\ns_addc_u32 s45, s45, 0")
    a("s_mov_b64 exec, -1")
    spin_bound(a, "s61", cfg.GSPIN, Lx)
    Lw = a.lab("H3W")
    a(f"s_cmp_le_u32 s61, 1\ns_cbranch_scc1 {Lw}\ns_waitcnt vmcnt(0)\n{Lw}:")
    for pb in range(4):
        a(f"s_waitcnt vmcnt({15-5*pb})")
        if pb == 0: alive_test(a)
        for cb in range(5):
            c_in = XF + 4*cb if pb == 0 else AC + 4*cb
            a(f"v_mfma_f32_16x16x32_bf16 v[{AC+4*cb}:{AC+4*cb+3}], v[{SEL}:{SEL+3}], v[{RAW+16*cb+4*pb}:{RAW+16*cb+4*pb+3}], v[{c_in}:{c_in+3}]")
    a.nop(4)
    def pr(b): return f"v[{b}:{b+1}]"
    a(f"v_pk_add_f32 v[14:15], {pr(AC)}, {pr(AC+2)}\nv_pk_mul_f32 v[16:17], {pr(AC)}, {pr(AC)}\nv_pk_fma_f32 v[16:17], {pr(AC+2)}, {pr(AC+2)}, v[16:17]")
    for i in range(4, 20, 2):
        if i == 16: a.nop(4)
        a(f"v_pk_add_f32 v[14:15], v[14:15], {pr(AC+i)}\nv_pk_fma_f32 v[16:17], {pr(AC+i)}, {pr(AC+i)}, v[16:17]")
    a("v_add_f32 v14, v14, v15\nv_add_f32 v16, v16, v17")
    Lr = a.lab("H3R")
    a(f"v_cmp_u_f32 vcc, v14, v14\ns_cmp_lg_u64 s[50:51], 0\ns_cbranch_scc0 {Lr}\ns_mov_b64 vcc, -1\n{Lr}:")
    a(f"s_cbranch_vccz {Lx}\ns_mov_b64 s[46:47], vcc\ns_mov_b64 exec, vcc"); a.sleep(cfg.B_H3); a(f"s_branch {Lp}")
    a(f"{Lx}:\ns_mov_b64 exec, -1\ns_waitcnt vmcnt(0) lgkmcnt(0)")
    a.stamp(11)
    row_red(a, "v_add_f32", ["v14", "v16"])
    a("v_mov_b32 v15, v14\nv_mov_b32 v17, v16"); a.nop(1)
    a("v_permlane16_swap_b32 v14, v15\nv_permlane16_swap_b32 v16, v17"); a.nop(1)
    a("v_add_f32 v14, v14, v15\nv_add_f32 v16, v16, v17")
    a(f"v_mul_f32 v14, {hex(f2b(1.0/576))}, v14\nv_mul_f32 v16, {hex(f2b(1.0/576))}, v16")
    a(f"v_fma_f32 v16, -v14, v14, v16\nv_max_f32 v16, 0, v16\nv_add_f32 v16, {hex(f2b(1e-5))}, v16\nv_rsq_f32 v16, v16")
    a(f"v_and_b32 v{VT+1}, 1, v{VKG}\nv_lshlrev_b32 v{VT+1}, 3, v{VT+1}\nv_lshl_add_u32 v{VT+1}, v{VJ}, 4, v{VT+1}\nv_add_u32 v{VT+1}, {L_HN}, v{VT+1}")
    a("v_mul_f32 v14, v14, v16\nv_mov_b32 v17, v16\nv_sub_f32 v14, 0, v14\nv_mov_b32 v15, v14")
    a("s_mov_b32 exec_hi, 0")
    for cb in range(5):
        a(f"v_pk_fma_f32 {pr(AC+4*cb)}, {pr(AC+4*cb)}, v[16:17], v[14:15]\nv_pk_fma_f32 {pr(AC+4*cb+2)}, {pr(AC+4*cb+2)}, v[16:17], v[14:15]")
        a(f"v_cvt_pk_bf16_f32 v{20+2*cb}, v{AC+4*cb}, v{AC+4*cb+1}\nv_cvt_pk_bf16_f32 v{21+2*cb}, v{AC+4*cb+2}, v{AC+4*cb+3}")
        if cb == 4: a("s_mov_b32 exec_lo, 0x00ff00ff")
        a(f"ds_write_b64 v{VT+1}, v[{20+2*cb}:{21+2*cb}] offset:{256*cb}")
    a("s_mov_b64 exec, -1")
    a(f"v_mov_b32 v{VT+2}, 1"); lds_set(a, f"v{VCT}", 20, f"v{VT+2}")
    a("s_branch L_p7_go")
    a("L_p6_skip:")
    a(f"s_lshr_b32 s63, s30, 1\ns_mul_i32 s63, s63, {9 - MG}\ns_add_u32 s63, s63, {MG}")
    lds_wait_ge(a, f"v{VCT}", "s63", f"v{VT+2}")
    wfrags()
    lds_wait_ge(a, f"v{VCT}", 9, f"v{VT+2}")
    dfrags()
    lds_wait_ge(a, f"v{VCT}", 1, f"v{VT+2}", off=20)
    a("L_p7_go:")
    D7 = 20
    a(f"v_lshlrev_b32 v{VT+1}, 4, v{VKG}\nv_add_u32 v{VT+1}, {L_HN}, v{VT+1}")
    for e in range(8): a(f"v_mov_b32 v{D7+e}, 0")
    a("s_waitcnt lgkmcnt(0)")
    for t in range(14): a(f"ds_read_b128 v[{HF+4*t}:{HF+4*t+3}], v{VT+1} offset:{64*t}")
    for t in range(18):
        if t + 14 < 18: a("s_waitcnt lgkmcnt(13)")
        else: a(f"s_waitcnt lgkmcnt({17-t})")
        a(f"v_mfma_f32_16x16x32_bf16 v[{D7+4*(t&1)}:{D7+4*(t&1)+3}], v[{WF+4*t}:{WF+4*t+3}], v[{HF+4*t}:{HF+4*t+3}], v[{D7+4*(t&1)}:{D7+4*(t&1)+3}]")
        if t + 14 < 18: a(f"ds_read_b128 v[{HF+4*(t+14)}:{HF+4*(t+14)+3}], v{VT+1} offset:{64*(t+14)}")
    a(f"s_lshl_b32 s40, s30, 6\ns_add_u32 s40, s40, {L_R7}\nv_lshlrev_b32 v{VT}, 4, v{VKG}\nv_add_u32 v{VT}, s40, v{VT}")
    a(f"v_lshlrev_b32 v{VT+1}, 5, v{VKG}\nv_add_u32 v{VT+1}, {L_R7}, v{VT+1}")
    a(f"s_mul_i32 s40, s28, 9\ns_add_u32 s40, s40, s29\ns_mul_i32 s40, s40, 2304\ns_mul_i32 s41, s30, 576\ns_add_u32 s40, s40, s41\ns_add_u32 s40, s40, {WS_H4}")
    a(f"s_add_u32 s42, s26, s40\ns_addc_u32 s43, s27, 0")
    for e in range(4): a(f"v_add_f32 v{D7+e}, v{D7+e}, v{D7+4+e}")
    a.exec64(0x00010001, 0x00010001)
    a(f"ds_write_b128 v{VT}, v[{D7}:{D7+3}]\ns_mov_b64 exec, -1")
    L = a.lab("DF0")
    a(f"s_cmp_lg_u32 s30, 0\ns_cbranch_scc1 {L}")
    lds_wait_ge(a, f"v{VCT}", MD, f"v{VT+2}")
    dfrags()
    a(f"{L}:")
    a.stamp(12)
    BB, D8 = 136, 20
    a(f"v_lshlrev_b32 v{VT}, 6, v{VJ}\nv_lshl_add_u32 v{VT}, v{VKG}, 4, v{VT}")
    Lp, Lx = spin_head(a, "s60", cfg.SPIN, "R7")
    a(f"ds_read_b128 v[32:35], v{VT+1}\nds_read_b128 v[36:39], v{VT+1} offset:16\nds_read_b128 v[40:43], v{VT+1} offset:128\nds_read_b128 v[44:47], v{VT+1} offset:144")
    spin_bound(a, "s60", cfg.SPIN, Lx)
    a("s_waitcnt lgkmcnt(0)")
    for e in range(8): a(f"v_max_f32 v{48+e}, 0, v{32+e}")
    for e in range(0, 8, 2): a(f"v_pk_mul_f32 {pr(48+e)}, {pr(48+e)}, {pr(40+e)}")
    a("v_max3_u32 v56, v32, v33, v34\nv_max3_u32 v57, v35, v36, v37\nv_max3_u32 v56, v56, v38, v39\nv_max3_u32 v57, v57, v40, v41\nv_max3_u32 v56, v56, v42, v43\nv_max3_u32 v57, v57, v44, v45\nv_max3_u32 v56, v56, v46, v47\nv_max_u32 v56, v56, v57")
    a(f"v_cmp_eq_u32 vcc, -1, v56\ns_cbranch_vccnz {Lp}\n{Lx}:\ns_waitcnt lgkmcnt(0)")
    for e in range(4): a(f"v_cvt_pk_bf16_f32 v{32+e}, v{48+2*e}, v{49+2*e}")
    for e in range(4): a(f"v_mov_b32 v{D8+e}, 0")
    for n in range(9):
        a(f"s_mov_b32 s46, {hex(0x00010001 << n)}\ns_mov_b32 s47, s46")
        for h in range(4): a(f"v_cndmask_b32 v{BB+4*n+h}, 0, v{32+h}, s[46:47]")
        if n:
            a(f"v_mfma_f32_16x16x32_bf16 v[{D8}:{D8+3}], v[{DF+4*(n-1)}:{DF+4*(n-1)+3}], v[{BB+4*(n-1)}:{BB+4*(n-1)+3}], v[{D8}:{D8+3}]")
    a.nop(2)
    a(f"v_mfma_f32_16x16x32_bf16 v[{D8}:{D8+3}], v[{DF+32}:{DF+35}], v[{BB+32}:{BB+35}], v[{D8}:{D8+3}]")
    a.nop(8)
    for e in range(4): a(f"v_and_or_b32 v{D8+e}, v{D8+e}, s57, v{VTAG}")
    a.exec64(0x01ff01ff, 0x01ff01ff)
    a(f"global_store_dwordx4 v{VT}, v[{D8}:{D8+3}], s[42:43] sc1\ns_mov_b64 exec, -1")
    a.stamp(13)
    a("L_fin:")
    a.stamp(15)
    stamps_out(a)
    a("s_endpgm")

def generate(cfg):
    a = A(cfg)
    K = NAME + "_kernel"
    hdr = open("cdna_kernels/" + NAME + ".s.ref").read().split("; Override launch geometry")[0]
    out = [hdr.rstrip(), "; Override launch geometry by editing the next line (default: block=256,", "; grid=ceil(out_elems/256), lds=0). Harness parses it; keep it on one line.",
           f"; @launch grid=(256,1,1) block=(320,1,1) lds={LDS_BYTES}", '.amdgcn_target "amdgcn-amd-amdhsa--gfx950"\n.text', f".globl {K}\n.p2align 8\n.type {K},@function\n{K}:"]
    a("KSTART:")
    a("s_cmp_ge_u32 s2, 256\ns_cbranch_scc1 L_exit")
    if cfg.UNTIL: a("s_memrealtime s[96:97]")
    a("s_load_dwordx16 s[4:19], s[0:1], 0\ns_load_dwordx8 s[20:27], s[0:1], 64")
    if cfg.STAMP:
        for i in range(16): a(f"s_mov_b64 s[{64+2*i}:{65+2*i}], 0")
        a("s_memrealtime s[64:65]")
    a("v_and_b32 v1, 63, v0\nv_lshrrev_b32 v2, 6, v0")
    a("s_and_b32 s28, s2, 7\ns_lshl_b32 s28, s28, 1\ns_lshr_b32 s29, s2, 3\ns_and_b32 s29, s29, 1\ns_or_b32 s28, s28, s29\ns_lshr_b32 s29, s2, 4")
    if cfg.MAPALT: a("s_lshr_b32 s28, s2, 4\ns_and_b32 s29, s2, 15")
    a("v_readfirstlane_b32 s3, v2")
    a("s_waitcnt lgkmcnt(0)")
    a("s_cmp_lg_u32 s3, 0\ns_cbranch_scc1 L_consumer")
    gen_loader(a)
    gen_consumer(a)
    a("L_exit:\ns_endpgm")
    out += a.L
    out.append('.section .rodata,"a"\n.p2align 6')
    out.append(f".amdhsa_kernel {K}")
    out.append("  .amdhsa_next_free_vgpr 256\n  .amdhsa_next_free_sgpr 102\n  .amdhsa_accum_offset 256\n  .amdhsa_group_segment_fixed_size 0\n  .amdhsa_kernarg_size 96\n  .amdhsa_user_sgpr_count 2\n  .amdhsa_user_sgpr_kernarg_segment_ptr 1\n  .amdhsa_system_sgpr_workgroup_id_x 1\n.end_amdhsa_kernel")
    return "\n".join(out) + "\n"

if __name__ == "__main__":
    cfg = Cfg()
    for kv in sys.argv[2:]:
        k, v = kv.split("=")
        setattr(cfg, k, v if k in ("NT", "NTGU", "NTWO") else (v == "1" if k == "STAMP" else int(v)))
    open(sys.argv[1], "w").write(generate(cfg))
```

```python
import sys, struct, math
NAME = "sequential_preLN__sliding_block_cached__glu_gated_reglu__decode"
def f2b(x): return struct.unpack("<I", struct.pack("<f", x))[0]

class Cfg:
    W1 = 20; WWO = 14; WGU = 12; WD = 20
    NT = "nt"
    STAMP = False
    DBG = 0
    TO_H1 = 12
    MAPALT = 0
    LOCAL = 1
    DELAY = 0
    UNTIL = 0
    CPF = 0
    TPF = 0
    WOROT = 0
    NTWO = "nt"
    NTGU = "nt"
    ORD = 0
    EH3 = 0
    W0 = 0; N0 = 0
    NOX = 0
    WB = 0; TB = 310
    W2ND = 0
    DYN = 1
    TB2 = 540
    ALE = 1
    ILV = 0
    WIL = 12
    PFS = 0
    PF = 1
    WG0 = 14; NG0 = 0
    WG1 = 14
    WUP = 16
    GUROT = 0
    ROT = 5
    LONLY = 0
    H3GATE = 1
    T_H1 = 0
    D_H1 = 0; B_H1 = 0; B_ML = 0; B_H2 = 0; B_H3 = 0; B_H4 = 2; B_AL = 2
    SPIN = 1 << 16
    GSPIN = 1 << 13

WS_H1 = 0x00000; WS_ML = 0x10000; WS_H2 = 0x18000; WS_H3 = 0x38000; WS_AL = 0x3d000; WS_XI = 0x3e000; WS_EP = 0x3f000; WS_H4 = 0x40000; WS_ST = 0x100000
L_WQ = 0; L_K = 18432; L_V = L_K + 65536; L_SB = L_V + 65536
L_XN = L_SB
L_QB = L_XN + 1152
L_MX = L_QB + 512
L_LW = L_MX + 32
L_OP = L_LW + 32
L_R5 = L_OP + 3072
L_HN = L_R5 + 2048
L_R7 = L_HN + 1152
L_QP = L_R7 + 256
L_CT = L_QP + 256
L_END = L_CT + 64
LDS_BYTES = 161280
assert L_END <= LDS_BYTES
POIS_LO, POIS_HI = L_QB, L_CT
F_G, F_U, F_D = 0, 36864, L_V
F1_D, F1_G, F1_U = 0, 36864, L_V
O_WO = 0
CSCALE = f2b(math.log2(math.e) / math.sqrt(128.0))

class A:
    def __init__(s, cfg): s.L = []; s.cfg = cfg; s.uid = 0
    def __call__(s, t):
        for ln in t.split("\n"):
            ln = ln.strip()
            if ln: s.L.append(("" if ln.endswith(":") else "    ") + ln)
    def lab(s, base): s.uid += 1; return f"{base}_{s.uid}"
    def nop(s, n):
        while n > 0:
            k = min(n, 16); s(f"s_nop {k-1}"); n -= k
    def stamp(s, idx):
        if s.cfg.STAMP: s(f"s_memrealtime s[{64+2*idx}:{65+2*idx}]")
    def exec64(s, lo, hi): s(f"s_mov_b32 exec_lo, {hex(lo)}\ns_mov_b32 exec_hi, {hex(hi)}")
    def sleep(s, n):
        while n > 0:
            k = min(n, 127); s(f"s_sleep {k}"); n -= k

def lds_wait_ge(a, addr_v, val, tmp_v, tmp_s="s31", cnt_s="s60", off=0):
    if a.cfg.LONLY and off in (4, 8, 12, 16, 32, 36, 40): return
    L = a.lab("LW"); X = a.lab("LX")
    o = f" offset:{off}" if off else ""
    a(f"s_mov_b32 {cnt_s}, 0\n{L}:\nds_read_b32 {tmp_v}, {addr_v}{o}")
    a(f"s_add_u32 {cnt_s}, {cnt_s}, 1\ns_cmp_gt_u32 {cnt_s}, {a.cfg.SPIN}\ns_cbranch_scc1 {X}")
    a(f"s_waitcnt lgkmcnt(0)\nv_readfirstlane_b32 {tmp_s}, {tmp_v}\ns_cmp_lt_u32 {tmp_s}, {val}\ns_cbranch_scc1 {L}\n{X}:\ns_waitcnt lgkmcnt(0)")

def lds_set(a, addr_v, off, val_v, op="ds_write_b32"):
    a(f"s_mov_b64 exec, 1\n{op} {addr_v}, {val_v} offset:{off}\ns_mov_b64 exec, -1")

def dpp(a, op, v, ctl): a(f"{op}_dpp {v}, {v}, {v} {ctl} row_mask:0xf bank_mask:0xf")
def row_red(a, op, vs):
    if isinstance(vs, str): vs = [vs]
    for ctl in ("quad_perm:[1,0,3,2]", "quad_perm:[2,3,0,1]", "row_half_mirror", "row_mirror"):
        a.nop(max(0, 3 - len(vs))) if len(vs) < 3 else None
        for v in vs: dpp(a, op, v, ctl)
    a.nop(0)
def xrow_red(a, op, v, t):
    a(f"v_mov_b32 {t}, {v}"); a.nop(2)
    a(f"v_permlane16_swap_b32 {v}, {t}"); a.nop(1)
    a(f"{op} {v}, {v}, {t}\nv_mov_b32 {t}, {v}"); a.nop(2)
    a(f"v_permlane32_swap_b32 {v}, {t}"); a.nop(1)
    a(f"{op} {v}, {v}, {t}")

def spin_head(a, cnt, bound, name):
    Lp, Lx = a.lab(name), a.lab(name + "X")
    a(f"s_mov_b32 {cnt}, 0\n{Lp}:")
    return Lp, Lx
def spin_bound(a, cnt, bound, Lx):
    a(f"s_add_u32 {cnt}, {cnt}, 1\ns_cmp_gt_u32 {cnt}, {bound}\ns_cbranch_scc1 {Lx}")

def tagcheck(a, acc, regs, vtag):
    regs = list(regs)
    a(f"v_xor_b32 {acc}, v{regs[0]}, v{vtag}")
    for r in regs[1:]: a(f"v_bitop3_b32 {acc}, {acc}, v{r}, v{vtag} bitop3:0xf6")
    a(f"v_and_b32 {acc}, 0x3ff, {acc}\nv_cmp_ne_u32 vcc, 0, {acc}")

def stamps_out(a, loader=False):
    if not a.cfg.STAMP: return
    if a.cfg.DBG:
        a("s_waitcnt lgkmcnt(0)\ns_mov_b64 exec, 1")
        if loader: lst = [(0, 0, 0), (255, 0, 1), (0, 3, 2), (255, 3, 3), (0, 8, 4)]
        else: lst = [(0, 7, 5), (0, 11, 6), (0, 13, 7), (144, 9, 8), (144, 10, 9), (144, 14, 10), (144, 15, 11), (145, 15, 12), (160, 15, 13), (161, 15, 14), (178, 15, 15)]
        for (wg, st, slot) in lst:
            L = a.lab("DB")
            a(f"s_cmp_lg_u32 s2, {wg}\ns_cbranch_scc1 {L}")
            if not loader: a(f"s_cmp_lg_u32 s30, 0\ns_cbranch_scc1 {L}")
            a(f"v_mov_b32 v250, {4*slot}\nv_mov_b32 v251, s{64+2*st}\nglobal_store_dword v250, v251, s[24:25]\n{L}:")
        return
    a("s_waitcnt lgkmcnt(0)")
    a(f"s_lshl_b32 s40, s2, 3\ns_add_u32 s40, s40, s3\ns_lshl_b32 s40, s40, 7\ns_add_u32 s40, s40, {WS_ST}")
    a("s_add_u32 s40, s26, s40\ns_addc_u32 s41, s27, 0\ns_mov_b64 exec, 1\nv_mov_b32 v250, 0")
    for i in range(16):
        a(f"v_mov_b32 v252, s{64+2*i}\nv_mov_b32 v253, s{65+2*i}\nglobal_store_dwordx2 v250, v[252:253], s[40:41] offset:{8*i}")
        a.nop(2)

def page_touch(a, vlo, vhi, vdst):
    a(f"v_mov_b32 v{vlo}, s4\nv_mov_b32 v{vhi}, s5")
    a(f"s_lshl_b32 s40, s28, 24\ns_lshl_b32 s41, s29, 16\ns_add_u32 s40, s40, s41\ns_add_u32 s40, s40, {(65536-4096)*256}")
    def put(lane, p, off):
        a(f"s_add_u32 s52, s{p}, {off}\ns_addc_u32 s53, s{p+1}, 0\nv_writelane_b32 v{vlo}, s52, {lane}\nv_writelane_b32 v{vhi}, s53, {lane}")
    put(0, 6, "s40"); put(1, 8, "s40")
    a("s_mul_i32 s41, s28, 294912"); put(2, 12, "s41")
    a("s_add_u32 s41, s41, 294784"); put(3, 12, "s41")
    n = 4
    for p in (16, 18):
        for off in (0, 0x200000, 0x400000): put(n, p, off); n += 1
    a("s_mul_i32 s41, s28, 331776"); put(n, 20, "s41"); n += 1
    a("s_add_u32 s41, s41, 331648"); put(n, 20, "s41"); n += 1
    put(n, 26, 0x40000); n += 1
    put(n, 22, 0); n += 1
    a(f"s_mov_b64 exec, {hex((1 << n) - 1)}\nglobal_load_dword v{vdst}, v[{vlo}:{vhi}], off nt\ns_mov_b64 exec, -1")

def alive_addr(a, VL, va, vt):
    a(f"v_lshrrev_b32 v{va}, 2, v{VL}\nv_lshlrev_b32 v{va}, 7, v{va}\nv_and_b32 v{vt}, 3, v{VL}\nv_lshl_add_u32 v{va}, v{vt}, 3, v{va}\nv_add_u32 v{va}, {WS_AL}, v{va}")
def alive_load(a, va): a(f"global_load_dwordx2 v[18:19], v{va}, s[26:27] sc1")
def alive_test(a):
    a("v_cmp_ne_u32 s[50:51], s58, v18\nv_cmp_ne_u32 s[40:41], s58, v19\ns_or_b64 s[50:51], s[50:51], s[40:41]")

def gen_loader(a):
    cfg = a.cfg; NT = cfg.NT
    V_L16, V_WQ, V_K, V_P, V_FA, V_FV, V_T = 4, 5, 6, 10, 16, 17, 18
    a(f"L_loader:\ns_setprio 1\ns_load_dword s58, s[26:27], {WS_EP}")
    a(f"v_lshlrev_b32 v{V_L16}, 4, v1")
    a(f"v_lshrrev_b32 v20, 3, v1\nv_lshlrev_b32 v20, 13, v20\nv_and_b32 v21, 7, v1\nv_lshlrev_b32 v21, 4, v21\nv_add_u32 v{V_WQ}, v20, v21")
    a("s_lshr_b32 s40, s29, 2\ns_mul_i32 s40, s40, 1179648")
    a("s_and_b32 s41, s29, 3\ns_lshl_b32 s41, s41, 7\ns_lshl_b32 s42, s28, 9\ns_add_u32 s41, s41, s42\ns_add_u32 s40, s40, s41")
    a("s_add_u32 s32, s10, s40\ns_addc_u32 s33, s11, 0\ns_sub_u32 s34, 4718592, s40\ns_mov_b32 s35, 0x20000")
    def raw(pat, off=0, pol=None):
        o = f" offset:{off}" if off else ""
        a(f"buffer_load_dwordx4 v{pat}, s[32:35], s36 offen{o} {NT if pol is None else pol} lds")
    def signal(val):
        a(f"v_mov_b32 v{V_FV}, {val}"); lds_set(a, f"v{V_FA}", 0, f"v{V_FV}")
        if val == 1: a.stamp(11)
        if val == 5: a.stamp(9)
        if val == 9: a.stamp(10)
    class Seq:
        def __init__(s, W, n, pend): s.n = n; s.W = W; s.pend = pend; s.h1done = n > 0
        def after(s):
            n = s.n
            if cfg.W0 and n < 146 and not getattr(s, "fixed", False): s.W = cfg.W0 if n < cfg.N0 else cfg.W1
            if n >= s.W - 1:
                a(f"s_waitcnt vmcnt({s.W-1})")
                landed = n - s.W + 1
                while s.pend and s.pend[0][0] <= landed: signal(s.pend.pop(0)[1])
                if cfg.T_H1 and not s.h1done and landed >= 18 + cfg.T_H1:
                    s.h1done = True
                    a(f"v_mov_b32 v{V_FV}, 1"); lds_set(a, f"v{V_FA}", 24, f"v{V_FV}")
            s.n += 1
        def drain(s):
            last = s.n - 1
            while s.pend:
                e, v = s.pend.pop(0)
                a(f"s_waitcnt vmcnt({last-e})"); signal(v)
    q = Seq(cfg.W1, 0, [])
    a(f"s_mov_b32 m0, {L_WQ}\ns_mov_b32 s36, 0")
    q.pend.append((17, 1))
    for i in range(18):
        if i: a("s_add_u32 m0, m0, 0x400\ns_add_u32 s36, s36, 0x10000")
        else: a.nop(1)
        raw(V_WQ); q.after()
        if i == 1:
            a("v_lshrrev_b32 v20, 4, v1\nv_lshlrev_b32 v21, 2, v20\nv_and_b32 v22, 15, v1\nv_xor_b32 v22, v22, v21\nv_lshlrev_b32 v20, 8, v20")
            for p in range(4): a(f"v_xor_b32 v23, {p}, v22\nv_lshlrev_b32 v23, 4, v23\nv_add_u32 v{V_K+p}, v20, v23")
            a(f"v_mov_b32 v{V_FA}, {L_CT}")
        if i == 5: a("s_barrier")
    a.stamp(1)
    for name, p, lbase, pats in (("K", 6, L_K, [V_K, V_K+1, V_K+2, V_K+3]), ("V", 8, L_V, [V_L16]*4)):
        a(f"s_lshl_b32 s40, s28, 24\ns_lshl_b32 s42, s29, 16\ns_add_u32 s42, s42, {(65536-4096)*256}\ns_add_u32 s40, s40, s42")
        a(f"s_add_u32 s32, s{p}, s40\ns_addc_u32 s33, s{p+1}, 0\ns_mov_b32 s34, 65536\ns_mov_b32 m0, {lbase}\ns_mov_b32 s36, 0")
        if cfg.ROT: a(f"s_mul_i32 s36, s28, {cfg.ROT}\ns_add_u32 s36, s36, s29\ns_and_b32 s36, s36, 15\ns_lshl_b32 s36, s36, 12")
        base = q.n
        for r in range(4): q.pend.append((base + 16*r + 15, (2 if name == "K" else 6) + r))
        def seg(qq):
            for i in range(64):
                if i and i % 4 == 0:
                    a("s_add_u32 m0, m0, 0x1000\ns_add_u32 s36, s36, 0x1000")
                    if cfg.ROT: a("s_and_b32 s36, s36, 0xffff")
                elif i == 0: a.nop(1)
                raw(pats[i % 4], off=(i % 4) * 1024); qq.after()
                if name == "K" and i in (15, 31, 47): a.stamp(12 + (i + 1) // 16 - 1)
        if name == "V" and cfg.WB:
            a(f"s_memrealtime s[50:51]\ns_waitcnt lgkmcnt(0)\ns_sub_u32 s50, s50, s96\ns_cmp_lt_u32 s50, {cfg.TB}\ns_cbranch_scc1 L_v_normal")
            qb = Seq(cfg.WB, q.n, list(q.pend)); qb.fixed = True
            seg(qb)
            a(f"s_waitcnt vmcnt({cfg.W1-1})")
            landed = qb.n - 1 - cfg.W1 + 1
            while qb.pend and qb.pend[0][0] <= landed: signal(qb.pend.pop(0)[1])
            a("s_branch L_v_done\nL_v_normal:")
            seg(q)
            assert [x for x in q.pend] == [x for x in qb.pend], (q.pend, qb.pend)
            a("L_v_done:")
        else:
            seg(q)
        a.stamp(2 if name == "K" else 3)
    lds_wait_ge(a, f"v{V_FA}", 4, "v19", "s43", "s44", off=4)
    a.stamp(4)
    n0, p0 = q.n, list(q.pend)
    a("s_cmp_ge_u32 s29, 9\ns_cbranch_scc1 L_ld_o")
    q = Seq(cfg.WGU, n0, list(p0))
    a(f"v_lshrrev_b32 v20, 2, v1\nv_mul_u32_u24 v20, 9216, v20\nv_and_b32 v21, 3, v1\nv_lshlrev_b32 v21, 4, v21\nv_add_u32 v{V_P}, v20, v21")
    a("s_mul_i32 s45, s28, 288\ns_lshl_b32 s46, s29, 5\ns_add_u32 s45, s45, s46")
    if cfg.GUROT: a("s_add_u32 s47, s28, s29\ns_and_b32 s47, s47, 1\ns_mul_i32 s47, s47, 18")
    def gu_tile(p, lb, mile, W):
        nonlocal q
        q.W = W
        q.pend.append((q.n + 35, mile))
        a(f"s_lshl_b32 s40, s45, 1\ns_add_u32 s32, s{p}, s40\ns_addc_u32 s33, s{p+1}, 0\ns_sub_u32 s34, 5308416, s40\ns_mov_b32 m0, {lb}\ns_mov_b32 s36, 0")
        if cfg.GUROT: a(f"s_lshl_b32 s48, s47, 10\ns_add_u32 m0, s48, {lb}\ns_mul_i32 s36, s47, {16*9216}")
        for i in range(36):
            if i:
                if cfg.GUROT and i == 18:
                    a(f"s_cmp_lg_u32 s47, 0\ns_cselect_b32 s48, {36*1024}, 0\ns_cselect_b32 s52, {36*16*9216}, 0\ns_sub_u32 m0, m0, s48\ns_sub_u32 s36, s36, s52")
                a(f"s_add_u32 m0, m0, 0x400\ns_add_u32 s36, s36, {16*9216}")
            else: a.nop(1)
            if p == 16 and i < cfg.NG0: q.W = cfg.WG0
            else: q.W = W
            raw(V_P, pol=cfg.NTGU); q.after()
            if p == 18 and cfg.EH3 and i == cfg.EH3 - 1:
                a(f"v_mov_b32 v{V_FV}, 1"); lds_set(a, f"v{V_FA}", 32, f"v{V_FV}")
    def down_tile(lb, mile):
        nonlocal q
        a(f"s_mul_i32 s40, s45, 1152\ns_add_u32 s32, s20, s40\ns_addc_u32 s33, s21, 0\ns_mov_b32 s34, {32*1152}\ns_mov_b32 m0, {lb}\ns_mov_b32 s36, 0")
        q.pend.append((q.n + 35, mile)); q.W = cfg.WD
        for i in range(36):
            if i and i % 4 == 0: a("s_add_u32 m0, m0, 0x1000\ns_add_u32 s36, s36, 0x1000")
            elif i == 0: a.nop(1)
            raw(V_L16, off=(i % 4) * 1024); q.after()
    a("s_lshl_b32 s40, s45, 1\ns_add_u32 s40, s40, s16\ns_lshr_b32 s40, s40, 7\ns_and_b32 s40, s40, 7\ns_cmp_eq_u32 s40, 3\ns_cselect_b32 s49, 2, 1")
    if cfg.DYN == 0: a("s_mov_b32 s49, 1")
    if cfg.DYN == 3: a("s_mov_b32 s49, 2")
    if cfg.DYN == 2:
        a(f"s_memrealtime s[50:51]\ns_waitcnt lgkmcnt(0)\ns_sub_u32 s50, s50, s96\ns_cmp_gt_u32 s50, {cfg.TB2}\ns_cselect_b32 s49, 2, s49")
    if cfg.ILV == 1: a("s_cmp_eq_u32 s40, 3\ns_cselect_b32 s49, 3, s49")
    if cfg.ILV == 2: a("s_mov_b32 s49, 3")
    a(f"v_mov_b32 v{V_FV}, s49"); lds_set(a, f"v{V_FA}", 40, f"v{V_FV}")
    if cfg.ILV: a("s_cmp_eq_u32 s49, 3\ns_cbranch_scc1 L_ld_fc")
    a("s_cmp_eq_u32 s49, 2\ns_cbranch_scc1 L_ld_fb")
    down_tile(0, 10)
    a.stamp(7)
    gu_tile(16, 36864, 11, cfg.WG1)
    a.stamp(5)
    lds_wait_ge(a, f"v{V_FA}", 4, "v19", "s43", "s44", off=8)
    gu_tile(18, L_V, 12, cfg.WUP)
    a(f"v_mov_b32 v{V_FV}, 1"); lds_set(a, f"v{V_FA}", 12, f"v{V_FV}")
    a.stamp(6)
    q.drain()
    a("s_branch L_ld_done")
    if cfg.ILV:
        a("L_ld_fc:")
        q = Seq(cfg.WIL, n0, list(p0))
        a(f"s_mul_i32 s40, s45, 1152\ns_add_u32 s52, s20, s40\ns_addc_u32 s53, s21, 0\ns_mov_b32 s54, {32*1152}\ns_mov_b32 s55, 0x20000\ns_mov_b32 s56, 0\ns_mov_b32 s57, 0")
        nd = 0
        for (p, lb, mile) in ((16, 36864, 10), (18, L_V, 11)):
            if p == 18: lds_wait_ge(a, f"v{V_FA}", 4, "v19", "s43", "s44", off=8)
            first = q.n
            last_narrow = first + 35 + 17
            q.pend.append((last_narrow, mile))
            a(f"s_lshl_b32 s40, s45, 1\ns_add_u32 s32, s{p}, s40\ns_addc_u32 s33, s{p+1}, 0\ns_sub_u32 s34, 5308416, s40\ns_mov_b32 s59, {lb}\ns_mov_b32 s36, 0")
            if cfg.GUROT: a(f"s_lshl_b32 s48, s47, 10\ns_add_u32 s59, s48, {lb}\ns_mul_i32 s36, s47, {16*9216}")
            for i in range(36):
                if i:
                    if cfg.GUROT and i == 18:
                        a(f"s_cmp_lg_u32 s47, 0\ns_cselect_b32 s48, {36*1024}, 0\ns_cselect_b32 s51, {36*16*9216}, 0\ns_sub_u32 s59, s59, s48\ns_sub_u32 s36, s36, s51")
                    a(f"s_add_u32 s59, s59, 0x400\ns_add_u32 s36, s36, {16*9216}")
                a("s_mov_b32 m0, s59"); a.nop(1)
                raw(V_P, pol=cfg.NTGU); q.after()
                if i == 35:
                    assert q.n - 1 == last_narrow
                    if p == 18:
                        a(f"v_mov_b32 v{V_FV}, 1"); lds_set(a, f"v{V_FA}", 12, f"v{V_FV}")
                        a.stamp(6)
                    else: a.stamp(5)
                if i % 2 == 1:
                    a("s_mov_b32 m0, s57\ns_add_u32 s57, s57, 0x400")
                    a(f"buffer_load_dwordx4 v{V_L16}, s[52:55], s56 offen {NT} lds\ns_add_u32 s56, s56, 0x400")
                    nd += 1
                    if nd == 36: q.pend.append((q.n, 12))
                    q.after()
        a.stamp(7)
        q.drain()
        a("s_branch L_ld_done")
    a("L_ld_fb:")
    q = Seq(cfg.WGU, n0, list(p0))
    gu_tile(16, 36864, 10, cfg.WG1)
    a.stamp(5)
    gu_tile(18, 0, 11, cfg.WUP)
    a(f"v_mov_b32 v{V_FV}, 1"); lds_set(a, f"v{V_FA}", 12, f"v{V_FV}")
    a.stamp(6)
    if cfg.H3GATE: lds_wait_ge(a, f"v{V_FA}", 1, "v19", "s43", "s44", off=16)
    lds_wait_ge(a, f"v{V_FA}", 4, "v19", "s43", "s44", off=8)
    down_tile(L_V, 12)
    a.stamp(7)
    q.drain()
    a("s_branch L_ld_done")
    a("L_ld_o:")
    a("s_cmp_eq_u32 s29, 15\ns_cbranch_scc1 L_ld_spare")
    q = Seq(cfg.WWO, n0, list(p0))
    def alive_store():
        a(f"s_sub_u32 s41, s29, 9\ns_lshl_b32 s40, s28, 7\ns_lshl_b32 s44, s41, 2\ns_add_u32 s40, s40, s44\ns_add_u32 s40, s40, {WS_AL}")
        a(f"s_add_u32 s58, s58, 1\nv_lshlrev_b32 v20, 2, v1\nv_add_u32 v20, s40, v20\nv_mov_b32 v21, s58")
        a(f"s_mov_b64 exec, 1\ns_cmp_eq_u32 s41, 5\ns_cselect_b32 exec_lo, 7, exec_lo\nglobal_store_dword v20, v21, s[26:27] sc1\ns_mov_b64 exec, -1")
        q.n += 1
    if cfg.ALE: alive_store()
    for p in range(3):
        a(f"v_add_u32 v20, {64*p}, v1\nv_mul_u32_u24 v21, 171, v20\nv_lshrrev_b32 v21, 11, v21")
        a(f"v_mul_u32_u24 v22, 12, v21\nv_sub_u32 v22, v20, v22\nv_lshlrev_b32 v22, 4, v22\nv_mul_u32_u24 v21, 1152, v21\nv_add_u32 v{V_P+p}, v21, v22")
    a("s_mul_i32 s40, s28, 294912\ns_sub_u32 s41, s29, 9\ns_mul_i32 s41, s41, 192\ns_add_u32 s40, s40, s41")
    a(f"s_add_u32 s32, s12, s40\ns_addc_u32 s33, s13, 0\ns_sub_u32 s34, 4718592, s40\ns_mov_b32 m0, {O_WO}\ns_mov_b32 s36, 0")
    for c in range(4): q.pend.append((q.n + 12*c + 11, 10 + c))
    if cfg.WOROT:
        a(f"s_and_b32 s47, s29, 1\ns_mul_i32 s48, s47, {24*1024}\ns_add_u32 m0, s48, {O_WO}\ns_mul_i32 s36, s47, {128*1152}")
    for i in range(48):
        if i:
            if cfg.WOROT and i == 24:
                a(f"s_cmp_lg_u32 s47, 0\ns_cselect_b32 s48, {48*1024}, 0\ns_cselect_b32 s49, {256*1152}, 0\ns_sub_u32 m0, m0, s48\ns_sub_u32 s36, s36, s49")
            a("s_add_u32 m0, m0, 0x400")
            if i % 3 == 0: a(f"s_add_u32 s36, s36, {16*1152}")
            else: a.nop(1)
        else: a.nop(1)
        raw(V_P + i % 3, pol=cfg.NTWO); q.after()
    a(f"v_mov_b32 v{V_FV}, 1"); lds_set(a, f"v{V_FA}", 12, f"v{V_FV}")
    a.stamp(5)
    if not cfg.ALE:
        lds_wait_ge(a, f"v{V_FA}", 4, "v19", "s43", "s44", off=16)
        alive_store()
    elif cfg.PF:
        lds_wait_ge(a, f"v{V_FA}", 4, "v19", "s43", "s44", off=16)
    if cfg.PF:
        a("s_lshr_b32 s40, s28, 1\ns_and_b32 s44, s28, 1\ns_sub_u32 s41, s29, 9\ns_lshl_b32 s41, s41, 1\ns_add_u32 s41, s41, s44")
        a("s_mul_i32 s40, s40, 1152\ns_add_u32 s32, s18, s40\ns_addc_u32 s33, s19, 0\ns_sub_u32 s34, 5308416, s40\ns_lshl_b32 s41, s41, 6\ns_mov_b32 s46, 7282\ns_mov_b32 s47, 9216")
        for t in range(6):
            a(f"s_add_u32 s40, s41, {64*14*t}\nv_add_u32 v20, s40, v1\nv_mul_lo_u32 v21, s46, v20\nv_lshrrev_b32 v21, 16, v21")
            a(f"v_mul_u32_u24 v22, 9, v21\nv_sub_u32 v22, v20, v22\nv_lshlrev_b32 v22, 7, v22\nv_mul_lo_u32 v21, s47, v21\nv_add_u32 v{24+t}, v21, v22")
        a("s_mov_b32 s36, 0")
        npf = 6
        for t in range(npf):
            a(f"buffer_load_dword v{32+t}, v{24+t}, s[32:35], s36 offen {NT}")
            q.n += 1
    q.drain()
    a("s_branch L_ld_done")
    a("L_ld_spare:")
    q = Seq(cfg.WWO, n0, list(p0))
    q.drain()
    if cfg.PFS:
        a("s_lshr_b32 s45, s28, 1\ns_and_b32 s46, s28, 1\ns_mul_i32 s46, s46, 288\nv_add_u32 v20, s46, v1\ns_mov_b32 s47, 9216\nv_mul_lo_u32 v20, s47, v20")
        for t in range(1, 5): a(f"v_add_u32 v{20+t}, {64*9216*t}, v20")
        mats = {1: (18,), 2: (16, 18), 3: (18, 16)}[cfg.PFS]
        for rep in range(2):
            for p in mats:
                L = a.lab("PFS")
                a(f"s_lshr_b32 s40, s{p}, 7\ns_add_u32 s40, s40, s45\ns_sub_u32 s40, 3, s40\ns_and_b32 s40, s40, 7")
                if rep == 1: a(f"s_cmp_lg_u32 s40, 0\ns_cbranch_scc1 {L}\ns_mov_b32 s40, 8")
                a(f"s_mul_i32 s41, s45, 9\ns_add_u32 s40, s40, s41\ns_lshl_b32 s40, s40, 7")
                a(f"s_add_u32 s32, s{p}, s40\ns_addc_u32 s33, s{p+1}, 0\ns_sub_u32 s34, 5308416, s40\ns_mov_b32 s36, 0")
                for t in range(5): a(f"buffer_load_dword v{32+t}, v{20+t}, s[32:35], s36 offen")
                a(f"{L}:")
    a("L_ld_done:")
    a.stamp(8)
    if cfg.STAMP: a("s_getreg_b32 s94, hwreg(HW_REG_XCC_ID)\ns_and_b32 s94, s94, 15\ns_add_u32 s94, s94, 1\ns_mov_b32 s95, 0")
    stamps_out(a, True)
    a("s_endpgm")

def gen_consumer(a):
    cfg = a.cfg
    VL, VJ, VKG, VL16, VCT = 1, 2, 3, 4, 5
    VX = 196
    XF = 216
    VT = 12
    VTAG = 11
    a("L_consumer:")
    a(f"v_and_b32 v{VJ}, 15, v{VL}\nv_lshrrev_b32 v{VKG}, 4, v{VL}\nv_lshlrev_b32 v{VL16}, 4, v{VL}\nv_mov_b32 v{VCT}, {L_CT}\ns_sub_u32 s30, s3, 1")
    a(f"s_load_dword s58, s[26:27], {WS_EP}")
    if cfg.CPF:
        a("s_getpc_b64 s[52:53]\nL_pc:\ns_sub_u32 s52, s52, (L_pc - KSTART)\ns_subb_u32 s53, s53, 0")
        a("s_lshr_b32 s40, s2, 3\ns_lshl_b32 s40, s40, 2\ns_add_u32 s40, s40, s30\ns_lshl_b32 s40, s40, 8\ns_min_u32 s40, s40, (L_exit - KSTART - 128)")
        a("s_add_u32 s52, s52, s40\ns_addc_u32 s53, s53, 0\ns_load_dword s54, s[52:53], 0\ns_load_dword s55, s[52:53], 128")
    if not cfg.NOX:
        a(f"global_load_dwordx4 v[20:23], v{VL16}, s[4:5]")
        a(f"v_lshlrev_b32 v{VT}, 2, v{VL}\nv_mov_b32 v24, 0\ns_mov_b32 exec_hi, 0\nglobal_load_dword v24, v{VT}, s[4:5] offset:1024\ns_mov_b64 exec, -1")
    a("s_cmp_lg_u32 s30, 0\ns_cbranch_scc1 L_p0_notc0")
    a("v_mov_b32 v28, -1\nv_mov_b32 v29, -1\nv_mov_b32 v30, -1\nv_mov_b32 v31, -1")
    def wsaddr(lo): a(f"s_add_u32 s42, s26, {lo}\ns_addc_u32 s43, s27, 0")
    def pst(off=0, sc="sc1"): a(f"global_store_dwordx4 v{VL16}, v[28:31], s[42:43]" + (f" offset:{off}" if off else "") + f" {sc}")
    def h2poison(sc):
        a(f"s_lshl_b32 s46, s28, 4\ns_add_u32 s46, s46, s29\ns_lshl_b32 s40, s46, 9\ns_add_u32 s40, s40, {WS_H2}"); wsaddr("s40")
        a("s_mov_b64 exec, -1\ns_mov_b32 exec_hi, 0"); pst(0, sc); a("s_mov_b64 exec, -1")
    if cfg.LONLY != 1:
        h2poison("" if cfg.LOCAL else "sc1")
        a("s_cmp_ge_u32 s29, 9\ns_cbranch_scc1 L_p0_o")
        a(f"v_and_b32 v{VT}, 1, v{VKG}\nv_lshlrev_b32 v{VT}, 3, v{VT}\nv_lshl_add_u32 v{VT}, v{VJ}, 4, v{VT}")
        for cb in range(4): a(f"global_load_dwordx2 v[{VX+2*cb}:{VX+2*cb+1}], v{VT}, s[4:5] offset:{256*cb}")
        a(f"v_mov_b32 v{VX+8}, 0\nv_mov_b32 v{VX+9}, 0"); a.exec64(0x00ff00ff, 0x00ff00ff)
        a(f"global_load_dwordx2 v[{VX+8}:{VX+9}], v{VT}, s[4:5] offset:1024\ns_mov_b64 exec, -1")
        a("s_mov_b32 s55, 6\ns_branch L_p0_lds")
        a("L_p0_o:")
        a(f"s_sub_u32 s41, s29, 9\ns_mul_i32 s40, s41, 192\ns_mul_i32 s44, s28, 1152\ns_add_u32 s40, s40, s44\ns_add_u32 s40, s40, {WS_H3}"); wsaddr("s40")
        a("s_mov_b32 s55, 2\ns_cmp_eq_u32 s41, 6\ns_cbranch_scc1 L_p0_lds\ns_mov_b64 exec, 0xfff"); pst(); a("s_mov_b64 exec, -1")
        a("s_mov_b32 s55, 2")
    a("L_p0_lds:")
    nb = POIS_HI - POIS_LO
    a(f"v_add_u32 v{VT}, {POIS_LO}, v{VL16}")
    off = 0
    while off < nb:
        rem = nb - off
        if rem < 1024: a(f"v_cmp_gt_u32 vcc, {rem}, v{VL16}\ns_and_saveexec_b64 s[40:41], vcc")
        a(f"ds_write_b128 v{VT}, v[28:31] offset:{off}")
        if rem < 1024: a("s_mov_b64 exec, s[40:41]")
        off += 1024
    a(f"v_mov_b32 v32, 0\nv_mov_b32 v33, 0\nv_mov_b32 v34, 0\nv_mov_b32 v35, 0\nds_write_b128 v{VCT}, v[32:35]\nds_write_b128 v{VCT}, v[32:35] offset:16\nds_write_b128 v{VCT}, v[32:35] offset:32")
    a("s_waitcnt lgkmcnt(0)\ns_barrier")
    if cfg.LONLY == 1: a("s_branch L_fin")
    L = a.lab("P0W")
    a(f"s_cmp_eq_u32 s55, 2\ns_cbranch_scc1 {L}\ns_waitcnt vmcnt(6)\ns_branch L_p0_ln\n{L}:\ns_waitcnt vmcnt(1)")
    a("s_branch L_p0_ln")
    a("L_p0_notc0:")
    if cfg.TPF:
        L = a.lab("TP")
        a(f"s_cmp_lg_u32 s30, 1\ns_cbranch_scc1 {L}")
        page_touch(a, 198, 199, 200)
        a(f"s_barrier\ns_waitcnt vmcnt(1)\ns_branch L_p0_ln\n{L}:")
    a("s_barrier\ns_waitcnt vmcnt(0)")
    a("L_p0_ln:")
    if cfg.LONLY in (1, 2): a("s_branch L_fin")
    a.stamp(0)
    for i in range(5): a(f"v_lshlrev_b32 v{32+2*i}, 16, v{20+i}\nv_and_b32 v{33+2*i}, 0xffff0000, v{20+i}")
    a("v_add_f32 v42, v32, v33")
    for i in range(2, 10): a(f"v_add_f32 v42, v42, v{32+i}")
    row_red(a, "v_add_f32", "v42"); xrow_red(a, "v_add_f32", "v42", "v43")
    a(f"v_mul_f32 v42, {hex(f2b(1.0/576))}, v42")
    for i in range(10): a(f"v_sub_f32 v{32+i}, v{32+i}, v42")
    a("s_mov_b32 exec_lo, 0\nv_mov_b32 v40, 0\nv_mov_b32 v41, 0\ns_mov_b64 exec, -1")
    a("v_mul_f32 v43, v32, v32")
    for i in range(1, 10): a(f"v_fmac_f32 v43, v{32+i}, v{32+i}")
    row_red(a, "v_add_f32", "v43"); xrow_red(a, "v_add_f32", "v43", "v44")
    a(f"v_mov_b32 v44, {hex(f2b(1e-5))}\nv_fmac_f32 v44, {hex(f2b(1.0/576))}, v43\nv_rsq_f32 v44, v44")
    a.nop(1)
    for i in range(10): a(f"v_mul_f32 v{32+i}, v{32+i}, v44")
    for i in range(5): a(f"v_cvt_pk_bf16_f32 v{20+i}, v{32+2*i}, v{33+2*i}")
    a(f"v_add_u32 v{VT}, {L_XN}, v{VL16}\nds_write_b128 v{VT}, v[20:23]")
    a(f"v_lshlrev_b32 v{VT}, 2, v{VL}\nv_add_u32 v{VT}, {L_XN+1024}, v{VT}\ns_mov_b32 exec_hi, 0\nds_write_b32 v{VT}, v24\ns_mov_b64 exec, -1")
    a(f"v_bfe_u32 v{VT}, v{VL}, 2, 2\nv_lshl_add_u32 v{VT}, v{VKG}, 2, v{VT}\nv_lshlrev_b32 v{VT}, 7, v{VT}")
    a(f"v_and_b32 v{VT+1}, 3, v{VL}\nv_lshl_add_u32 v{VT}, v{VT+1}, 3, v{VT}")
    a(f"s_lshl_b32 s40, s30, 5\ns_add_u32 s40, s40, {L_WQ}\nv_add_u32 v{VT}, s40, v{VT}")
    a(f"s_lshr_b32 s40, s29, 2\ns_mul_i32 s40, s40, 288\ns_add_u32 s40, s40, {L_XN}\nv_lshlrev_b32 v{VT+1}, 3, v{VKG}\nv_add_u32 v{VT+1}, s40, v{VT+1}")
    a("s_waitcnt lgkmcnt(0)")
    for t in range(9): a(f"ds_read_b64 v[{40+2*t}:{41+2*t}], v{VT+1} offset:{32*t}")
    for r in range(4): a(f"v_mov_b32 v{60+r}, 0")
    a("s_lshr_b32 s40, s29, 2\ns_lshl_b32 s40, s40, 10\ns_and_b32 s41, s29, 3\ns_lshl_b32 s41, s41, 8\ns_add_u32 s40, s40, s41")
    a(f"s_lshl_b32 s41, s28, 12\ns_add_u32 s40, s40, s41")
    a("s_add_u32 s42, s26, s40\ns_addc_u32 s43, s27, 0")
    lds_wait_ge(a, f"v{VCT}", 1, f"v{VT+2}")
    a.stamp(1)
    for t in range(9): a(f"ds_read_b64_tr_b16 v[{20+2*t}:{21+2*t}], v{VT} offset:{2048*t}")
    for t in range(9):
        a(f"s_waitcnt lgkmcnt({8-t})")
        a(f"v_mfma_f32_16x16x16_bf16 v[60:63], v[{20+2*t}:{21+2*t}], v[{40+2*t}:{41+2*t}], v[60:63]")
    a(f"s_lshl_b32 s40, s30, 6\ns_add_u32 s40, s40, {L_QP}\nv_lshlrev_b32 v{VT}, 4, v{VKG}\nv_add_u32 v{VT}, s40, v{VT}")
    a(f"s_add_u32 s58, s58, 1\ns_and_b32 s56, s58, 0x3ff\ns_mov_b32 s57, 0xfffffc00\nv_mov_b32 v{VTAG}, s56")
    a.nop(1)
    a.exec64(0x00010001, 0x00010001)
    a(f"ds_write_b128 v{VT}, v[60:63]\ns_mov_b64 exec, -1")
    a("s_cmp_lg_u32 s30, 0\ns_cbranch_scc1 L_p1_done")
    a(f"v_add_u32 v{VT}, {L_QP}, v{VL16}\ns_mov_b64 exec, 0xffff")
    Lp, Lx = spin_head(a, "s60", cfg.SPIN, "QP")
    a(f"ds_read_b128 v[60:63], v{VT}"); spin_bound(a, "s60", cfg.SPIN, Lx)
    a(f"s_waitcnt lgkmcnt(0)\nv_max3_u32 v{VT+1}, v60, v61, v62\nv_max_u32 v{VT+1}, v{VT+1}, v63\nv_cmp_eq_u32 vcc, -1, v{VT+1}\ns_cbranch_vccnz {Lp}\n{Lx}:\ns_waitcnt lgkmcnt(0)")
    for e in range(4): a(f"v_and_or_b32 v{60+e}, v{60+e}, s57, v{VTAG}")
    a("s_mov_b64 s[48:49], s[42:43]\ns_getreg_b32 s59, hwreg(HW_REG_XCC_ID)\ns_and_b32 s59, s59, 7\ns_lshl_b32 s45, s59, 10\ns_or_b32 s45, s45, s56")
    a(f"v_mov_b32 v49, s45\ns_lshl_b32 s40, s28, 6\ns_lshl_b32 s41, s29, 2\ns_add_u32 s40, s40, s41\ns_add_u32 s40, s40, {WS_XI}\nv_mov_b32 v48, s40")
    a("s_waitcnt vmcnt(0)")
    sc0 = "" if cfg.LOCAL else "sc1"
    a(f"global_store_dwordx4 v{VL16}, v[60:63], s[48:49] {sc0}")
    if cfg.LOCAL: a(f"s_mov_b64 exec, 1\nglobal_store_dword v48, v49, s[26:27]")
    a("s_mov_b64 exec, -1")
    L = a.lab("XU")
    a(f"s_cmp_ge_u32 s29, 9\ns_cbranch_scc1 {L}")
    for i in range(10): a(f"v_lshlrev_b32 v{XF+2*i}, 16, v{VX+i}\nv_and_b32 v{XF+2*i+1}, 0xffff0000, v{VX+i}")
    a(f"{L}:")
    a("L_p1_done:")
    if cfg.LONLY == 3: a("s_branch L_fin")
    a.stamp(2)
    QF, S, AO, MK, KA, KF, O = 20, 36, 64, 52, 56, 128, 60
    a(f"v_and_b32 v{VT+1}, 3, v{VJ}\nv_lshrrev_b32 v{VT+2}, 2, v{VJ}")
    a(f"v_lshl_add_u32 v{VT+3}, v{VT+1}, 2, v{VT+2}\nv_lshlrev_b32 v{VT+3}, 8, v{VT+3}")
    a(f"s_lshl_b32 s40, s30, 12\ns_add_u32 s40, s40, {L_K}\nv_add_u32 v{VT+3}, s40, v{VT+3}\nv_xor_b32 v{VT+1}, v{VT+1}, v{VKG}")
    for dd in range(4):
        a(f"v_xor_b32 v{VT+4}, {dd}, v{VT+2}\nv_lshl_add_u32 v{VT+4}, v{VT+4}, 2, v{VT+1}\nv_lshl_add_u32 v{KA+dd}, v{VT+4}, 4, v{VT+3}")
    a(f"v_and_b32 v{VT+1}, 1, v{VJ}\nv_cmp_eq_u32 vcc, 1, v{VT+1}\nv_mov_b32 v{VT+2}, 0xffff\nv_mov_b32 v{VT+4}, 0xffff0000")
    a.nop(1)
    a(f"v_cndmask_b32 v{VT+2}, v{VT+2}, v{VT+4}, vcc\nv_bfe_u32 v{VT+1}, v{VJ}, 1, 2")
    for t in range(4):
        a(f"v_cmp_eq_u32 vcc, {t}, v{VT+1}"); a.nop(2)
        a(f"v_cndmask_b32 v{MK+t}, 0, v{VT+2}, vcc")
    a("s_cmp_lg_u32 s30, 0\ns_cbranch_scc1 L_p2_skip")
    a.sleep(cfg.D_H1)
    if cfg.T_H1: lds_wait_ge(a, f"v{VCT}", 1, f"v{VT+2}", off=24)
    a(f"s_lshl_b32 s40, s28, 12\ns_add_u32 s52, s26, s40\ns_addc_u32 s53, s27, 0\ns_mov_b32 s54, {0 if cfg.LOCAL else 1}\ns_mov_b32 s55, 0")
    a(f"s_lshl_b32 s40, s28, 6\ns_add_u32 s40, s40, {WS_XI}\nv_lshlrev_b32 v{VT}, 2, v{VJ}\nv_add_u32 v{VT}, s40, v{VT}")
    Lp, Lx = spin_head(a, "s60", cfg.GSPIN, "H1")
    if cfg.LOCAL:
        Ln = a.lab("H1N")
        a(f"s_bitcmp1_b32 s55, 0\ns_cbranch_scc0 {Ln}")
        a("s_andn2_b32 s55, s55, 1\ns_mov_b32 s54, 1")
        a("v_mov_b32 v28, -1\nv_mov_b32 v29, -1\nv_mov_b32 v30, -1\nv_mov_b32 v31, -1")
        h2poison("sc1")
        a(f"s_waitcnt vmcnt(0)\nv_or_b32 v49, 0x2000, v49\ns_mov_b64 exec, 0xffff\nglobal_store_dwordx4 v{VL16}, v[60:63], s[48:49] sc1")
        a(f"s_mov_b64 exec, 1\nglobal_store_dword v48, v49, s[26:27] sc1\ns_mov_b64 exec, -1\n{Ln}:")
    for rb in range(4): a(f"global_load_dwordx4 v[{20+4*rb}:{23+4*rb}], v{VL16}, s[52:53] offset:{1024*rb} sc1")
    if cfg.LOCAL: a(f"global_load_dword v36, v{VT}, s[26:27] sc1")
    spin_bound(a, "s60", cfg.GSPIN, Lx)
    a("s_waitcnt vmcnt(0)")
    tagcheck(a, "v40", list(range(20, 36)) + ([36] if cfg.LOCAL else []), VTAG)
    if cfg.LOCAL:
        Lf, Lg = a.lab("H1F"), a.lab("H1G")
        a(f"s_cbranch_vccnz {Lf}")
        a(f"v_bfe_u32 v40, v36, 10, 3\nv_cmp_ne_u32 vcc, s59, v40\ns_cbranch_vccz {Lx}")
        a(f"s_bitset1_b32 s55, 1\ns_cmp_lg_u32 s54, 0\ns_cbranch_scc1 {Lg}\ns_bitset1_b32 s55, 0\ns_branch {Lp}\n{Lg}:")
        a(f"v_and_b32 v40, 0x2000, v36\nv_cmp_eq_u32 vcc, 0, v40\ns_cbranch_vccz {Lx}\n{Lf}:")
        a(f"s_cmp_lg_u32 s60, {cfg.TO_H1}\ns_cbranch_scc1 {Lg}x\ns_cmp_lg_u32 s54, 0\ns_cbranch_scc1 {Lg}x\ns_bitset1_b32 s55, 0\n{Lg}x:")
        a.sleep(cfg.B_H1); a(f"s_branch {Lp}")
    else:
        a(f"s_cbranch_vccz {Lx}"); a.sleep(cfg.B_H1); a(f"s_branch {Lp}")
    a(f"{Lx}:\ns_mov_b64 exec, -1\ns_waitcnt vmcnt(0)")
    if cfg.STAMP: a("s_mov_b32 s88, s60\ns_mov_b32 s89, 0")
    a(f"v_mov_b32 v40, s54"); lds_set(a, f"v{VCT}", 28, "v40")
    for e in range(4): a(f"v_add_f32 v{36+e}, v{20+e}, v{24+e}\nv_add_f32 v{40+e}, v{28+e}, v{32+e}\nv_add_f32 v{36+e}, v{36+e}, v{40+e}")
    a("v_cvt_pk_bf16_f32 v36, v36, v37\nv_cvt_pk_bf16_f32 v37, v38, v39")
    a(f"v_lshlrev_b32 v{VT}, 3, v{VL}\nv_add_u32 v{VT}, {L_QB}, v{VT}\nds_write_b64 v{VT}, v[36:37]")
    a("L_p2_skip:")
    if cfg.LONLY == 4: a("s_branch L_fin")
    a.stamp(3)
    a(f"v_lshrrev_b32 v{VT}, 3, v{VJ}\nv_lshlrev_b32 v{VT}, 8, v{VT}\nv_lshl_add_u32 v{VT}, v{VKG}, 4, v{VT}\nv_add_u32 v{VT}, {L_QB}, v{VT}")
    Lp, Lx = spin_head(a, "s60", cfg.SPIN, "QF")
    for dd in range(4): a(f"ds_read_b128 v[{QF+4*dd}:{QF+4*dd+3}], v{VT} offset:{64*dd}")
    spin_bound(a, "s60", cfg.SPIN, Lx)
    a(f"s_waitcnt lgkmcnt(0)\nv_max3_u32 v{VT+1}, v{QF}, v{QF+1}, v{QF+2}")
    for i in range(3, 15, 2): a(f"v_max3_u32 v{VT+1}, v{VT+1}, v{QF+i}, v{QF+i+1}")
    a(f"v_max_u32 v{VT+1}, v{VT+1}, v{QF+15}\nv_cmp_eq_u32 vcc, -1, v{VT+1}\ns_cbranch_vccnz {Lp}\n{Lx}:\ns_waitcnt lgkmcnt(0)")
    a.stamp(4)
    for r in range(4):
        lds_wait_ge(a, f"v{VCT}", 2 + r, f"v{VT+2}")
        if r == 3: a.stamp(5)
        for dd in range(4): a(f"ds_read_b128 v[{KF+16*r+4*dd}:{KF+16*r+4*dd+3}], v{KA+dd} offset:{16384*r}")
        for dd in range(4):
            a(f"s_waitcnt lgkmcnt({3-dd})")
            cin = "0" if dd == 0 else f"v[{S+4*r}:{S+4*r+3}]"
            a(f"v_mfma_f32_16x16x32_bf16 v[{S+4*r}:{S+4*r+3}], v[{KF+16*r+4*dd}:{KF+16*r+4*dd+3}], v[{QF+4*dd}:{QF+4*dd+3}], {cin}")
    a(f"v_mov_b32 v{VT+2}, 1"); lds_set(a, f"v{VCT}", 4, f"v{VT+2}", "ds_add_u32")
    a.nop(8)
    a(f"v_max3_f32 v{VT+1}, v{S}, v{S+1}, v{S+2}")
    for i in range(3, 15, 2): a(f"v_max3_f32 v{VT+1}, v{VT+1}, v{S+i}, v{S+i+1}")
    a(f"v_max_f32 v{VT+1}, v{VT+1}, v{S+15}")
    xrow_red(a, "v_max_f32", f"v{VT+1}", f"v{VT+2}")
    a(f"v_lshrrev_b32 v{VT+2}, 3, v{VJ}\nv_lshlrev_b32 v{VT+2}, 4, v{VT+2}\nv_add_u32 v{VT+3}, {L_MX}, v{VT+2}")
    a(f"s_lshl_b32 s40, s30, 2\nv_add_u32 v{VT+4}, s40, v{VT+3}")
    a(f"s_mov_b64 exec, 0x101\nds_write_b32 v{VT+4}, v{VT+1}\ns_mov_b64 exec, -1")
    Lp, Lx = spin_head(a, "s60", cfg.SPIN, "MX")
    a(f"ds_read_b128 v[{KF}:{KF+3}], v{VT+3}"); spin_bound(a, "s60", cfg.SPIN, Lx)
    a(f"s_waitcnt lgkmcnt(0)\nv_max3_u32 v{VT+5}, v{KF}, v{KF+1}, v{KF+2}\nv_max_u32 v{VT+5}, v{VT+5}, v{KF+3}\nv_cmp_eq_u32 vcc, -1, v{VT+5}\ns_cbranch_vccnz {Lp}")
    a(f"{Lx}:\ns_waitcnt lgkmcnt(0)")
    a(f"v_max3_f32 v{VT+1}, v{KF}, v{KF+1}, v{KF+2}\nv_max_f32 v{VT+1}, v{VT+1}, v{KF+3}")
    a(f"s_mov_b32 s44, {hex(CSCALE)}\nv_mul_f32 v17, s44, v{VT+1}")
    a(f"v_and_or_b32 v17, v17, s57, v{VTAG}")
    for i in range(16): a(f"v_fma_f32 v{S+i}, v{S+i}, s44, -v17")
    for i in range(16): a(f"v_exp_f32 v{S+i}, v{S+i}")
    a.nop(1)
    a(f"v_add_f32 v{VT+1}, v{S}, v{S+1}")
    for i in range(2, 16): a(f"v_add_f32 v{VT+1}, v{VT+1}, v{S+i}")
    xrow_red(a, "v_add_f32", f"v{VT+1}", f"v{VT+2}")
    a(f"v_add_u32 v{VT+4}, {L_LW-L_MX}, v{VT+4}")
    a(f"s_mov_b64 exec, 0x101\nds_write_b32 v{VT+4}, v{VT+1}\ns_mov_b64 exec, -1")
    a("s_cmp_lg_u32 s30, 3\ns_cbranch_scc1 L_p3_noml")
    a(f"v_add_u32 v{VT+3}, {L_LW-L_MX}, v{VT+3}")
    Lp, Lx = spin_head(a, "s60", cfg.SPIN, "LW")
    a(f"ds_read_b128 v[{KF}:{KF+3}], v{VT+3}"); spin_bound(a, "s60", cfg.SPIN, Lx)
    a(f"s_waitcnt lgkmcnt(0)\nv_add_f32 v{KF}, v{KF}, v{KF+1}\nv_add_f32 v{KF+2}, v{KF+2}, v{KF+3}\nv_add_f32 v19, v{KF}, v{KF+2}")
    a(f"v_cmp_u_f32 vcc, v19, v19\ns_cbranch_vccnz {Lp}\n{Lx}:\ns_waitcnt lgkmcnt(0)")
    a(f"s_lshl_b32 s46, s28, 4\ns_add_u32 s40, s46, s29\ns_lshl_b32 s40, s40, 7\ns_add_u32 s40, s40, {WS_ML}\ns_add_u32 s42, s26, s40\ns_addc_u32 s43, s27, 0")
    a(f"v_and_or_b32 v19, v19, s57, v{VTAG}")
    a("v_readlane_b32 s46, v17, 0\nv_readlane_b32 s47, v19, 0\nv_readlane_b32 s48, v17, 8\nv_readlane_b32 s49, v19, 8")
    a("v_mov_b32 v28, s46\nv_mov_b32 v29, s47\nv_mov_b32 v30, s48\nv_mov_b32 v31, s49")
    a(f"ds_read_b32 v{VT+2}, v{VCT} offset:28\ns_waitcnt lgkmcnt(0)\nv_readfirstlane_b32 s54, v{VT+2}\ns_mov_b64 exec, 0xff")
    L1, L2 = a.lab("MLG"), a.lab("MLD")
    a(f"s_cmp_lg_u32 s54, 0\ns_cbranch_scc1 {L1}\nglobal_store_dwordx4 v{VL16}, v[28:31], s[42:43]\ns_branch {L2}\n{L1}:")
    a(f"global_store_dwordx4 v{VL16}, v[28:31], s[42:43] sc1\n{L2}:\ns_mov_b64 exec, -1")
    a("L_p3_noml:")
    for i in range(16):
        a(f"v_cvt_pk_bf16_f32 v{S+i}, v{S+i}, v{S+i}")
        for t in range(4): a(f"v_and_b32 v{AO+4*i+t}, v{S+i}, v{MK+t}")
    a.stamp(6)
    if cfg.LONLY == 5: a("s_branch L_fin")
    VF = KF
    MLR = 20
    a(f"s_lshl_b32 s40, s30, 12\ns_add_u32 s40, s40, {L_V}\nv_add_u32 v{VT}, s40, v{VL16}")
    a(f"s_lshl_b32 s40, s28, 11\ns_add_u32 s40, s40, {WS_ML}\ns_add_u32 s42, s26, s40\ns_addc_u32 s43, s27, 0\nv_lshlrev_b32 v16, 7, v{VJ}")
    for r in range(4): a(f"v_mov_b32 v{O+r}, 0")
    MLB, MLC = 32, 36
    a(f"s_lshl_b32 s40, s28, 4\ns_add_u32 s40, s40, s29\ns_lshl_b32 s40, s40, 9\ns_add_u32 s40, s40, {WS_H2}\ns_add_u32 s48, s26, s40\ns_addc_u32 s49, s27, 0")
    a(f"v_lshrrev_b32 v9, 1, v{VKG}\nv_lshlrev_b32 v9, 8, v9\nv_lshl_add_u32 v9, v{VJ}, 4, v9")
    def ml_merge():
        a(f"v_mov_b32 v24, v{MLR}\nv_mov_b32 v25, v{MLR+2}")
        row_red(a, "v_max_f32", ["v24", "v25"])
        a(f"v_sub_f32 v26, v{MLR}, v24\nv_sub_f32 v27, v{MLR+2}, v25\nv_exp_f32 v26, v26\nv_exp_f32 v27, v27")
        a("v_readlane_b32 s44, v17, 0\nv_readlane_b32 s45, v17, 8")
        a(f"v_mul_f32 v26, v26, v{MLR+1}\nv_mul_f32 v27, v27, v{MLR+3}")
        row_red(a, "v_add_f32", ["v26", "v27"])
        a("v_sub_f32 v24, s44, v24\nv_sub_f32 v25, s45, v25\nv_rcp_f32 v26, v26\nv_rcp_f32 v27, v27\nv_exp_f32 v24, v24\nv_exp_f32 v25, v25")
        a.nop(1)
        a("v_mul_f32 v24, v24, v26\nv_mul_f32 v25, v25, v27")
        a("s_mov_b32 exec_lo, 0\nv_mov_b32 v24, v25\ns_mov_b64 exec, -1")
    def cp4(dst, src):
        for e in range(4): a(f"v_mov_b32 v{dst+e}, v{src+e}")
    for r in range(4):
        if r == 3:
            L, Lm, Ls = a.lab("MLS"), a.lab("MLM"), a.lab("MLK")
            a(f"s_cmp_lg_u32 s30, 3\ns_cbranch_scc1 {L}\ns_mov_b32 s62, 0\ns_waitcnt vmcnt(2)")
            tagcheck(a, f"v{VT+2}", range(MLR, MLR+4), VTAG)
            a(f"s_cbranch_vccz {Lm}\ns_waitcnt vmcnt(1)")
            tagcheck(a, f"v{VT+2}", range(MLB, MLB+4), VTAG)
            cp4(MLR, MLB)
            a(f"s_cbranch_vccz {Lm}\ns_mov_b32 s62, 1\ns_branch {Ls}\n{Lm}:")
            ml_merge()
            a(f"{Ls}:")
            a(f"{L}:")
        lds_wait_ge(a, f"v{VCT}", 6 + r, f"v{VT+2}")
        for t in range(4): a(f"ds_read_b128 v[{VF+4*t}:{VF+4*t+3}], v{VT} offset:{16384*r+1024*t}")
        if r < 3:
            L = a.lab("MLI"); d = (MLR, MLB, MLC)[r]
            a(f"s_cmp_lg_u32 s30, 3\ns_cbranch_scc1 {L}\nglobal_load_dwordx4 v[{d}:{d+3}], v16, s[42:43] sc1\n{L}:")
        for t in range(4):
            a(f"s_waitcnt lgkmcnt({3-t})")
            a(f"v_mfma_f32_16x16x32_bf16 v[{O}:{O+3}], v[{AO+16*r+4*t}:{AO+16*r+4*t+3}], v[{VF+4*t}:{VF+4*t+3}], v[{O}:{O+3}]")
    a(f"v_mov_b32 v{VT+2}, 1"); lds_set(a, f"v{VCT}", 8, f"v{VT+2}", "ds_add_u32")
    a.stamp(7)
    a("s_cmp_eq_u32 s30, 3\ns_cbranch_scc1 L_p4_pub")
    a(f"s_lshl_b32 s40, s30, 10\ns_add_u32 s40, s40, {L_OP}\nv_add_u32 v{VT}, s40, v{VL16}")
    a(f"ds_write_b128 v{VT}, v[{O}:{O+3}]")
    a("s_branch L_p4_done")
    a("L_p4_pub:")
    Ld = a.lab("MLD")
    a(f"s_cmp_eq_u32 s62, 0\ns_cbranch_scc1 {Ld}\ns_waitcnt vmcnt(0)")
    cp4(MLR, MLC)
    Lp, Lx = a.lab("ML"), a.lab("MLX")
    a("s_mov_b32 s61, 0\ns_branch " + Lp + "_chk")
    a(f"{Lp}:\nglobal_load_dwordx4 v[{MLR}:{MLR+3}], v16, s[42:43] sc1")
    a(f"{Lp}_chk:")
    spin_bound(a, "s61", cfg.GSPIN, Lx)
    a("s_waitcnt vmcnt(0)")
    tagcheck(a, f"v{VT+2}", range(MLR, MLR+4), VTAG)
    a(f"s_cbranch_vccz {Lx}"); a.sleep(cfg.B_ML); a(f"s_branch {Lp}")
    a(f"{Lx}:\ns_waitcnt vmcnt(0)")
    ml_merge()
    a(f"{Ld}:")
    a(f"v_add_u32 v{VT}, {L_OP}, v{VL16}")
    Lp, Lx = spin_head(a, "s60", cfg.SPIN, "OP")
    for w in range(3): a(f"ds_read_b128 v[{VF+4*w}:{VF+4*w+3}], v{VT} offset:{1024*w}")
    spin_bound(a, "s60", cfg.SPIN, Lx)
    a("s_waitcnt lgkmcnt(0)")
    for e in range(4): a(f"v_add_f32 v{VF+12+e}, v{VF+e}, v{VF+4+e}\nv_add_f32 v{VF+12+e}, v{VF+12+e}, v{VF+8+e}")
    a(f"v_add_f32 v{VT+3}, v{VF+12}, v{VF+13}\nv_add_f32 v{VT+4}, v{VF+14}, v{VF+15}\nv_add_f32 v{VT+3}, v{VT+3}, v{VT+4}")
    a(f"v_cmp_u_f32 vcc, v{VT+3}, v{VT+3}\ns_cbranch_vccnz {Lp}\n{Lx}:\ns_waitcnt lgkmcnt(0)")
    for e in range(4): a(f"v_add_f32 v{O+e}, v{O+e}, v{VF+12+e}\nv_mul_f32 v{O+e}, v{O+e}, v24")
    a(f"v_cvt_pk_bf16_f32 v28, v{O}, v{O+1}\nv_cvt_pk_bf16_f32 v29, v{O+2}, v{O+3}\nv_mov_b32 v30, v28\nv_mov_b32 v31, v29")
    a.nop(1)
    a("v_permlane16_swap_b32 v28, v30\nv_permlane16_swap_b32 v29, v31")
    a.nop(2)
    a.exec64(0x0000ffff, 0x0000ffff)
    L1, L2 = a.lab("PUBG"), a.lab("PUBD")
    a(f"s_cmp_lg_u32 s54, 0\ns_cbranch_scc1 {L1}")
    a(f"global_store_dwordx4 v9, v[28:31], s[48:49]\ns_branch {L2}\n{L1}:")
    a(f"global_store_dwordx4 v9, v[28:31], s[48:49] sc1\n{L2}:\ns_mov_b64 exec, -1")
    a("L_p4_done:")
    a.stamp(8)
    a("s_cmp_lt_u32 s29, 9\ns_cbranch_scc1 L_role_f")
    G, BF, D5 = 20, 64, 112
    a("s_cmp_eq_u32 s29, 15\ns_cbranch_scc1 L_p5_done")
    a(f"s_lshl_b32 s40, s28, 13\ns_add_u32 s40, s40, {WS_H2}\ns_add_u32 s42, s26, s40\ns_addc_u32 s43, s27, 0")
    a(f"v_lshlrev_b32 v{VT}, 9, v{VJ}\nv_lshl_add_u32 v{VT}, v{VKG}, 4, v{VT}\ns_lshl_b32 s40, s30, 7\nv_add_u32 v{VT}, s40, v{VT}")
    a(f"v_bfe_u32 v{VT+2}, v{VL}, 2, 2\nv_lshl_add_u32 v{VT+2}, v{VKG}, 3, v{VT+2}\ns_lshl_b32 s40, s30, 6\nv_add_u32 v{VT+2}, s40, v{VT+2}")
    a(f"v_mul_u32_u24 v{VT+2}, 192, v{VT+2}\nv_and_b32 v{VT+3}, 3, v{VL}\nv_lshl_add_u32 v{VT+2}, v{VT+3}, 3, v{VT+2}")
    lds_wait_ge(a, f"v{VCT}", 1, f"v{VT+4}", off=12)
    a("s_mov_b32 s62, 0")
    Lp, Lx = spin_head(a, "s61", cfg.GSPIN, "H2")
    for t in range(2): a(f"global_load_dwordx4 v[{G+4*t}:{G+4*t+3}], v{VT}, s[42:43] offset:{64*t} sc1")
    Lq = a.lab("H2F")
    a(f"s_cmp_lg_u32 s62, 0\ns_cbranch_scc1 {Lq}\ns_mov_b32 s62, 1")
    a(f"v_mov_b32 v{VT+4}, 1"); lds_set(a, f"v{VCT}", 16, f"v{VT+4}", "ds_add_u32")
    if cfg.WOROT: a("s_and_b32 s63, s29, 1\ns_lshl_b32 s63, s63, 1\ns_add_u32 s63, s63, s30\ns_and_b32 s63, s63, 3\ns_add_u32 s63, s63, 10")
    else: a("s_add_u32 s63, s30, 10")
    lds_wait_ge(a, f"v{VCT}", "s63", f"v{VT+4}")
    for t in range(2):
        for nb_ in range(6):
            for h in range(2):
                a(f"ds_read_b64_tr_b16 v[{BF+8*nb_+4*t+2*h}:{BF+8*nb_+4*t+2*h+1}], v{VT+2} offset:{O_WO+t*6144+h*768+nb_*32}")
    a(f"{Lq}:")
    spin_bound(a, "s61", cfg.GSPIN, Lx)
    a(f"s_waitcnt vmcnt(0)\nv_max3_u32 v{VT+4}, v{G}, v{G+1}, v{G+2}\nv_max3_u32 v{VT+4}, v{VT+4}, v{G+3}, v{G+4}\nv_max3_u32 v{VT+4}, v{VT+4}, v{G+5}, v{G+6}\nv_max_u32 v{VT+4}, v{VT+4}, v{G+7}")
    a(f"v_cmp_eq_u32 vcc, -1, v{VT+4}\ns_and_b64 exec, exec, vcc\ns_cbranch_execz {Lx}"); a.sleep(cfg.B_H2); a(f"s_branch {Lp}")
    a(f"{Lx}:\ns_mov_b64 exec, -1\ns_waitcnt vmcnt(0) lgkmcnt(0)")
    a.stamp(9)
    for t in range(2):
        for nb_ in range(6):
            cin = "0" if t == 0 else f"v[{D5+4*nb_}:{D5+4*nb_+3}]"
            a(f"v_mfma_f32_16x16x32_bf16 v[{D5+4*nb_}:{D5+4*nb_+3}], v[{G+4*t}:{G+4*t+3}], v[{BF+8*nb_+4*t}:{BF+8*nb_+4*t+3}], {cin}")
    a.nop(4)
    for nb_ in range(6):
        b = D5 + 4*nb_
        if nb_ == 5: a.nop(4)
        a(f"v_add_f32 v{b}, v{b}, v{b+1}\nv_add_f32 v{b+2}, v{b+2}, v{b+3}\nv_add_f32 v{b}, v{b}, v{b+2}")
    a0, a1, a2, a3 = D5, D5+4, D5+8, D5+12
    b0, b1 = D5+16, D5+20
    z0, z1 = D5+1, D5+2
    a(f"v_mov_b32 v{z0}, 0\nv_mov_b32 v{z1}, 0"); a.nop(2)
    a(f"v_permlane32_swap_b32 v{a0}, v{a2}\nv_permlane32_swap_b32 v{a1}, v{a3}\nv_permlane32_swap_b32 v{b0}, v{z0}\nv_permlane32_swap_b32 v{b1}, v{z1}"); a.nop(1)
    a(f"v_add_f32 v{a0}, v{a0}, v{a2}\nv_add_f32 v{a1}, v{a1}, v{a3}\nv_add_f32 v{b0}, v{b0}, v{z0}\nv_add_f32 v{b1}, v{b1}, v{z1}"); a.nop(2)
    a(f"v_permlane16_swap_b32 v{a0}, v{a1}\nv_permlane16_swap_b32 v{b0}, v{b1}"); a.nop(1)
    a(f"v_add_f32 v{a0}, v{a0}, v{a1}\nv_add_f32 v{b0}, v{b0}, v{b1}")
    a(f"s_lshl_b32 s40, s30, 9\ns_add_u32 s40, s40, {L_R5}\nv_lshlrev_b32 v{VT}, 2, v{VL}\nv_add_u32 v{VT}, s40, v{VT}")
    a(f"ds_write_b32 v{VT}, v{a0}\nds_write_b32 v{VT}, v{b0} offset:256")
    a("s_cmp_lg_u32 s30, 3\ns_cbranch_scc1 L_p5_done")
    a(f"v_lshlrev_b32 v{VT}, 5, v{VL}\nv_add_u32 v{VT}, {L_R5}, v{VT}")
    a("s_sub_u32 s41, s29, 9\ns_mov_b64 exec, 0xfff")
    Lp, Lx = spin_head(a, "s60", cfg.SPIN, "R5")
    for w in range(4):
        for h in range(2): a(f"ds_read_b128 v[{BF+8*w+4*h}:{BF+8*w+4*h+3}], v{VT} offset:{512*w+16*h}")
    spin_bound(a, "s60", cfg.SPIN, Lx)
    a("s_waitcnt lgkmcnt(0)")
    for e in range(8): a(f"v_add_f32 v{G+e}, v{BF+e}, v{BF+8+e}\nv_add_f32 v{BF+32+e}, v{BF+16+e}, v{BF+24+e}\nv_add_f32 v{G+e}, v{G+e}, v{BF+32+e}")
    a(f"v_add_f32 v{VT+3}, v{G}, v{G+1}")
    for e in range(2, 8): a(f"v_add_f32 v{VT+3}, v{VT+3}, v{G+e}")
    a(f"v_cmp_u_f32 vcc, v{VT+3}, v{VT+3}\ns_cbranch_vccnz {Lp}\n{Lx}:\ns_waitcnt lgkmcnt(0)")
    for e in range(4): a(f"v_cvt_pk_bf16_f32 v{G+e}, v{G+2*e}, v{G+2*e+1}")
    a(f"s_mul_i32 s40, s41, 192\ns_mul_i32 s44, s28, 1152\ns_add_u32 s40, s40, s44\ns_add_u32 s40, s40, {WS_H3}\ns_add_u32 s42, s26, s40\ns_addc_u32 s43, s27, 0")
    a(f"global_store_dwordx4 v{VL16}, v[{G}:{G+3}], s[42:43] sc1\ns_mov_b64 exec, -1")
    a("L_p5_done:")
    a.stamp(10)
    a("s_cmp_lg_u32 s30, 0\ns_cbranch_scc1 L_fin")
    a("s_lshr_b32 s40, s28, 1\ns_and_b32 s44, s28, 1\ns_sub_u32 s41, s29, 9\ns_lshl_b32 s41, s41, 1\ns_add_u32 s41, s41, s44")
    a("s_cmp_lt_u32 s41, 8\ns_cbranch_scc1 L_p9_go\ns_cmp_ge_u32 s41, 12\ns_cbranch_scc1 L_fin\ns_cmp_ge_u32 s40, 2\ns_cbranch_scc1 L_fin")
    a("L_p9_go:")
    a("s_lshr_b32 s44, s41, 2\ns_lshl_b32 s44, s44, 3\ns_add_u32 s44, s44, s40\ns_lshl_b32 s44, s44, 5\ns_and_b32 s45, s41, 3\ns_lshl_b32 s45, s45, 3\ns_add_u32 s44, s44, s45")
    alive_addr(a, VL, 9, VT+2)
    a(f"s_lshl_b32 s40, s44, 1\ns_add_u32 s40, s40, {WS_H3}\ns_add_u32 s42, s26, s40\ns_addc_u32 s43, s27, 0")
    a(f"v_mul_u32_u24 v{VT}, 1152, v{VJ}\nv_lshl_add_u32 v{VT}, v{VKG}, 1, v{VT}")
    a(f"s_lshl_b32 s40, s44, 1\ns_add_u32 s46, s4, s40\ns_addc_u32 s47, s5, 0\nv_lshlrev_b32 v{VT+1}, 1, v{VKG}")
    a(f"global_load_ushort v26, v{VT+1}, s[46:47]\nglobal_load_ushort v27, v{VT+1}, s[46:47] offset:8")
    Lp, Lx = spin_head(a, "s60", cfg.GSPIN, "HH")
    alive_load(a, 9)
    a(f"global_load_ushort v24, v{VT}, s[42:43] sc1\nglobal_load_ushort v25, v{VT}, s[42:43] offset:8 sc1"); spin_bound(a, "s60", cfg.GSPIN, Lx)
    a("s_waitcnt vmcnt(0)"); alive_test(a)
    a("v_max_u32 v28, v24, v25\nv_cmp_eq_u32 vcc, 0xffff, v28\ns_or_b64 vcc, vcc, s[50:51]")
    a(f"s_cbranch_vccz {Lx}"); a.sleep(4); a(f"s_branch {Lp}\n{Lx}:\ns_waitcnt vmcnt(0)")
    a("v_lshlrev_b32 v24, 16, v24\nv_lshlrev_b32 v25, 16, v25\nv_lshlrev_b32 v26, 16, v26\nv_lshlrev_b32 v27, 16, v27")
    row_red(a, "v_add_f32", ["v24", "v25"])
    a("v_add_f32 v24, v24, v26\nv_add_f32 v25, v25, v27")
    a.exec64(0xaaaaaaaa, 0xaaaaaaaa); a("v_mov_b32 v24, v25\ns_mov_b64 exec, -1")
    a(f"s_lshl_b32 s40, s44, 2\ns_add_u32 s40, s40, {WS_H4}\ns_add_u32 s42, s26, s40\ns_addc_u32 s43, s27, 0")
    a(f"v_lshrrev_b32 v{VT}, 1, v{VL}\nv_mul_u32_u24 v{VT}, 2304, v{VT}\nv_and_b32 v{VT+1}, 1, v{VL}\nv_lshl_add_u32 v{VT}, v{VT+1}, 4, v{VT}")
    for t in range(1, 5): a(f"v_add_u32 v{VT+t}, {32*2304*t}, v{VT}")
    for e in range(4): a(f"v_mov_b32 v{80+e}, v{VTAG}")
    a("s_mov_b64 s[46:47], -1")
    Lp, Lx = spin_head(a, "s60", cfg.GSPIN, "H4")
    for t in range(4): a(f"global_load_dwordx4 v[{64+4*t}:{67+4*t}], v{VT+t}, s[42:43] sc1")
    a(f"s_mov_b32 exec_hi, 0\nglobal_load_dwordx4 v[80:83], v{VT+4}, s[42:43] sc1\ns_mov_b64 exec, s[46:47]")
    spin_bound(a, "s60", cfg.GSPIN, Lx)
    a("s_waitcnt vmcnt(0)")
    tagcheck(a, "v28", range(64, 84), VTAG)
    a(f"s_and_b64 s[46:47], exec, vcc\ns_mov_b64 exec, s[46:47]\ns_cbranch_execz {Lx}"); a.sleep(cfg.B_H4); a(f"s_branch {Lp}")
    a(f"{Lx}:\ns_mov_b64 exec, -1\ns_waitcnt vmcnt(0)")
    a.stamp(14)
    if cfg.UNTIL:
        L = a.lab("UNT")
        a(f"s_add_u32 s52, s96, {cfg.UNTIL}\n{L}:\ns_memrealtime s[54:55]\ns_waitcnt lgkmcnt(0)\ns_sub_u32 s54, s54, s52\ns_cmp_lt_i32 s54, 0\ns_cbranch_scc1 {L}")
    if cfg.DELAY:
        L = a.lab("DLY")
        a(f"s_memtime s[52:53]\ns_waitcnt lgkmcnt(0)\ns_add_u32 s52, s52, {cfg.DELAY}\n{L}:\ns_memtime s[54:55]\ns_waitcnt lgkmcnt(0)\ns_sub_u32 s54, s54, s52\ns_cmp_lt_i32 s54, 0\ns_cbranch_scc1 {L}")
    for e in range(4): a(f"v_add_f32 v{20+e}, v{64+e}, v{68+e}\nv_add_f32 v{28+e}, v{72+e}, v{76+e}\nv_add_f32 v{20+e}, v{20+e}, v{80+e}\nv_add_f32 v{20+e}, v{20+e}, v{28+e}")
    a.nop(2)
    a("v_permlane32_swap_b32 v20, v22\nv_permlane32_swap_b32 v21, v23"); a.nop(1)
    a("v_add_f32 v20, v20, v22\nv_add_f32 v21, v21, v23"); a.nop(2)
    a("v_permlane16_swap_b32 v20, v21"); a.nop(1)
    a("v_add_f32 v20, v20, v21")
    for ctl in ("row_ror:8", "row_ror:4", "row_ror:2"):
        a.nop(2); dpp(a, "v_add_f32", "v20", ctl)
    a("v_add_f32 v20, v20, v24\nv_cvt_pk_bf16_f32 v20, v20, v20")
    a(f"s_lshl_b32 s40, s44, 1\ns_add_u32 s42, s22, s40\ns_addc_u32 s43, s23, 0\nv_and_b32 v{VT}, 1, v{VL}\nv_lshlrev_b32 v{VT}, 3, v{VT}\nv_lshl_add_u32 v{VT}, v{VKG}, 1, v{VT}")
    a.exec64(0x00030003, 0x00030003)
    a(f"global_store_short v{VT}, v20, s[42:43]\ns_mov_b64 exec, -1")
    a(f"s_cmp_lg_u32 s44, 0\ns_cbranch_scc1 L_fin\nv_mov_b32 v{VT}, {WS_EP}\nv_mov_b32 v{VT+1}, s58\ns_mov_b64 exec, 1\nglobal_store_dword v{VT}, v{VT+1}, s[26:27]\ns_mov_b64 exec, -1")
    a("s_branch L_fin")
    a("L_role_f:")
    WF, RAW, HF, AC, SEL, DF = 64, 136, 136, 236, 56, 208
    lds_wait_ge(a, f"v{VCT}", 1, f"v{VT+2}", off=40)
    a(f"s_cmp_eq_u32 s31, 2\ns_cselect_b32 s98, 0, {L_V}\ns_cselect_b32 s99, {L_V}, 0\ns_cmp_ge_u32 s31, 2\ns_cselect_b32 s100, 10, 11\ns_cselect_b32 s101, 11, 12\ns_cselect_b32 s53, 12, 10")
    TG = 36864
    a(f"v_bfe_u32 v{VT}, v{VL}, 2, 2\nv_lshl_add_u32 v{VT}, v{VKG}, 3, v{VT}\nv_lshlrev_b32 v{VT}, 6, v{VT}\nv_and_b32 v{VT+1}, 3, v{VL}\nv_lshl_add_u32 v{VT}, v{VT+1}, 3, v{VT}")
    a(f"s_and_b32 s40, s30, 1\ns_lshl_b32 s40, s40, 5\ns_cmp_ge_u32 s30, 2\ns_cselect_b32 s41, s98, {TG}\ns_add_u32 s40, s40, s41\nv_add_u32 v{VT}, s40, v{VT}")
    MG, MU, MD = "s100", "s101", "s53"
    a(f"v_bfe_u32 v10, v{VL}, 2, 2\nv_lshl_add_u32 v10, v{VKG}, 3, v10\nv_mul_u32_u24 v10, 1152, v10")
    a(f"v_and_b32 v{VT+2}, 3, v{VL}\nv_lshlrev_b32 v{VT+2}, 3, v{VT+2}\ns_mul_i32 s40, s30, 288\ns_add_u32 s40, s40, s99\nv_add_u32 v{VT+2}, s40, v{VT+2}\nv_add_u32 v10, v10, v{VT+2}")
    MSK = [6, 7, 8, 30, 31, 60, 61, 62, 63]
    for n in range(9): a(f"v_xor_b32 v{MSK[n]}, {n}, v{VJ}\nv_add_u32 v{MSK[n]}, -1, v{MSK[n]}\nv_ashrrev_i32 v{MSK[n]}, 31, v{MSK[n]}")
    def wfrags():
        for t in range(18):
            for h in range(2): a(f"ds_read_b64_tr_b16 v[{WF+4*t+2*h}:{WF+4*t+2*h+1}], v{VT} offset:{2048*t+256*h}")
    def dfrags():
        for n in range(9):
            for h in range(2): a(f"ds_read_b64_tr_b16 v[{DF+4*n+2*h}:{DF+4*n+2*h+1}], v10 offset:{32*n+4608*h}")
    a("s_cmp_lg_u32 s30, 0\ns_cbranch_scc1 L_p6_skip")
    for t in range(4): a(f"v_and_b32 v{SEL+t}, 0x3f803f80, v{MK+t}")
    for pb in range(4):
        for e in range(4): a(f"v_mov_b32 v{RAW+64+4*pb+e}, 0")
    a(f"s_add_u32 s42, s26, {WS_H3}\ns_addc_u32 s43, s27, 0")
    a(f"v_mul_u32_u24 v{VT+1}, 1152, v{VKG}\nv_lshl_add_u32 v{VT+1}, v{VJ}, 4, v{VT+1}")
    lds_wait_ge(a, f"v{VCT}", MG, f"v{VT+2}")
    wfrags()
    alive_addr(a, VL, 9, 10 + 0) if False else None
    alive_addr(a, VL, 9, VT+2)
    lds_wait_ge(a, f"v{VCT}", 1, f"v{VT+2}", off=(32 if cfg.EH3 else 12))
    a.stamp(9)
    a("s_mov_b64 s[46:47], -1")
    Lp, Lx = spin_head(a, "s61", cfg.GSPIN, "H3")
    a("s_mov_b64 exec, -1"); alive_load(a, 9); a("s_mov_b64 exec, s[46:47]")
    a("s_mov_b32 s44, s42\ns_mov_b32 s45, s43")
    for pb in range(4):
        for cb in range(4): a(f"global_load_dwordx4 v[{RAW+16*cb+4*pb}:{RAW+16*cb+4*pb+3}], v{VT+1}, s[44:45] offset:{256*cb} sc1")
        a("s_and_b32 exec_lo, exec_lo, 0x00ff00ff\ns_and_b32 exec_hi, exec_hi, 0x00ff00ff")
        Lz = a.lab("H3Z")
        a(f"s_cbranch_execz {Lz}\nglobal_load_dwordx4 v[{RAW+64+4*pb}:{RAW+64+4*pb+3}], v{VT+1}, s[44:45] offset:1024 sc1\n{Lz}:")
        a(f"s_mov_b64 exec, s[46:47]\ns_add_u32 s44, s44, {4*1152}\ns_addc_u32 s45, s45, 0")
    a("s_mov_b64 exec, -1")
    if True:
        Lh = a.lab("H3H")
        a(f"s_cmp_lg_u32 s61, 0\ns_cbranch_scc1 {Lh}\nv_mov_b32 v{VT+2}, 1"); lds_set(a, f"v{VCT}", 16, f"v{VT+2}"); a(f"{Lh}:")
    spin_bound(a, "s61", cfg.GSPIN, Lx)
    Lw = a.lab("H3W")
    a(f"s_cmp_le_u32 s61, 1\ns_cbranch_scc1 {Lw}\ns_waitcnt vmcnt(0)\n{Lw}:")
    for pb in range(4):
        a(f"s_waitcnt vmcnt({15-5*pb})")
        if pb == 0: alive_test(a)
        for cb in range(5):
            c_in = XF + 4*cb if pb == 0 else AC + 4*cb
            a(f"v_mfma_f32_16x16x32_bf16 v[{AC+4*cb}:{AC+4*cb+3}], v[{SEL}:{SEL+3}], v[{RAW+16*cb+4*pb}:{RAW+16*cb+4*pb+3}], v[{c_in}:{c_in+3}]")
    a.nop(4)
    def pr(b): return f"v[{b}:{b+1}]"
    a(f"v_pk_add_f32 v[14:15], {pr(AC)}, {pr(AC+2)}\nv_pk_mul_f32 v[16:17], {pr(AC)}, {pr(AC)}\nv_pk_fma_f32 v[16:17], {pr(AC+2)}, {pr(AC+2)}, v[16:17]")
    for i in range(4, 20, 2):
        if i == 16: a.nop(4)
        a(f"v_pk_add_f32 v[14:15], v[14:15], {pr(AC+i)}\nv_pk_fma_f32 v[16:17], {pr(AC+i)}, {pr(AC+i)}, v[16:17]")
    a("v_add_f32 v14, v14, v15\nv_add_f32 v16, v16, v17")
    Lr = a.lab("H3R")
    a(f"v_cmp_u_f32 vcc, v14, v14\ns_cmp_lg_u64 s[50:51], 0\ns_cbranch_scc0 {Lr}\ns_mov_b64 vcc, -1\n{Lr}:")
    a(f"s_cbranch_vccz {Lx}\ns_mov_b64 s[46:47], vcc")
    if cfg.EH3 or cfg.W2ND:
        Le = a.lab("H3E")
        a(f"s_cmp_lg_u32 s61, 1\ns_cbranch_scc1 {Le}")
        lds_wait_ge(a, f"v{VCT}", 1, f"v{VT+3}", off=(36 if cfg.W2ND else 12))
        a(f"{Le}:")
    a("s_mov_b64 exec, s[46:47]"); a.sleep(cfg.B_H3); a(f"s_branch {Lp}")
    a(f"{Lx}:\ns_mov_b64 exec, -1\ns_waitcnt vmcnt(0) lgkmcnt(0)")
    a.stamp(11)
    row_red(a, "v_add_f32", ["v14", "v16"])
    a("v_mov_b32 v15, v14\nv_mov_b32 v17, v16"); a.nop(1)
    a("v_permlane16_swap_b32 v14, v15\nv_permlane16_swap_b32 v16, v17"); a.nop(1)
    a("v_add_f32 v14, v14, v15\nv_add_f32 v16, v16, v17")
    a(f"v_mul_f32 v14, {hex(f2b(1.0/576))}, v14\nv_mul_f32 v16, {hex(f2b(1.0/576))}, v16")
    a(f"v_fma_f32 v16, -v14, v14, v16\nv_max_f32 v16, 0, v16\nv_add_f32 v16, {hex(f2b(1e-5))}, v16\nv_rsq_f32 v16, v16")
    a(f"v_and_b32 v{VT+1}, 1, v{VKG}\nv_lshlrev_b32 v{VT+1}, 3, v{VT+1}\nv_lshl_add_u32 v{VT+1}, v{VJ}, 4, v{VT+1}\nv_add_u32 v{VT+1}, {L_HN}, v{VT+1}")
    a("v_mul_f32 v14, v14, v16\nv_mov_b32 v17, v16\nv_sub_f32 v14, 0, v14\nv_mov_b32 v15, v14")
    a("s_mov_b32 exec_hi, 0")
    for cb in range(5):
        a(f"v_pk_fma_f32 {pr(AC+4*cb)}, {pr(AC+4*cb)}, v[16:17], v[14:15]\nv_pk_fma_f32 {pr(AC+4*cb+2)}, {pr(AC+4*cb+2)}, v[16:17], v[14:15]")
        a(f"v_cvt_pk_bf16_f32 v{20+2*cb}, v{AC+4*cb}, v{AC+4*cb+1}\nv_cvt_pk_bf16_f32 v{21+2*cb}, v{AC+4*cb+2}, v{AC+4*cb+3}")
        if cb == 4: a("s_mov_b32 exec_lo, 0x00ff00ff")
        a(f"ds_write_b64 v{VT+1}, v[{20+2*cb}:{21+2*cb}] offset:{256*cb}")
    a("s_mov_b64 exec, -1")
    a(f"v_mov_b32 v{VT+2}, 1"); lds_set(a, f"v{VCT}", 20, f"v{VT+2}")
    a("s_branch L_p7_go")
    a("L_p6_skip:")
    a(f"s_cmp_ge_u32 s30, 2\ns_cselect_b32 s63, {MU}, {MG}")
    lds_wait_ge(a, f"v{VCT}", "s63", f"v{VT+2}")
    wfrags()
    L = a.lab("DFA")
    a(f"s_cmp_lg_u32 s53, 10\ns_cbranch_scc1 {L}")
    lds_wait_ge(a, f"v{VCT}", MD, f"v{VT+2}")
    dfrags()
    a(f"{L}:")
    lds_wait_ge(a, f"v{VCT}", 1, f"v{VT+2}", off=20)
    a("L_p7_go:")
    D7 = 20
    a(f"v_lshlrev_b32 v{VT+1}, 4, v{VKG}\nv_add_u32 v{VT+1}, {L_HN}, v{VT+1}")
    a("s_waitcnt lgkmcnt(0)")
    for t in range(14): a(f"ds_read_b128 v[{HF+4*t}:{HF+4*t+3}], v{VT+1} offset:{64*t}")
    for t in range(18):
        if t + 14 < 18: a("s_waitcnt lgkmcnt(13)")
        else: a(f"s_waitcnt lgkmcnt({17-t})")
        cin = "0" if t < 2 else f"v[{D7+4*(t&1)}:{D7+4*(t&1)+3}]"
        a(f"v_mfma_f32_16x16x32_bf16 v[{D7+4*(t&1)}:{D7+4*(t&1)+3}], v[{WF+4*t}:{WF+4*t+3}], v[{HF+4*t}:{HF+4*t+3}], {cin}")
        if t + 14 < 18: a(f"ds_read_b128 v[{HF+4*(t+14)}:{HF+4*(t+14)+3}], v{VT+1} offset:{64*(t+14)}")
    a(f"s_lshl_b32 s40, s30, 6\ns_add_u32 s40, s40, {L_R7}\nv_lshlrev_b32 v{VT}, 4, v{VKG}\nv_add_u32 v{VT}, s40, v{VT}")
    a(f"v_lshlrev_b32 v{VT+1}, 5, v{VKG}\nv_add_u32 v{VT+1}, {L_R7}, v{VT+1}")
    a(f"s_mul_i32 s40, s28, 9\ns_add_u32 s40, s40, s29\ns_mul_i32 s40, s40, 2304\ns_mul_i32 s41, s30, 576\ns_add_u32 s40, s40, s41\ns_add_u32 s40, s40, {WS_H4}")
    a(f"s_add_u32 s42, s26, s40\ns_addc_u32 s43, s27, 0")
    for e in range(4): a(f"v_add_f32 v{D7+e}, v{D7+e}, v{D7+4+e}")
    a.exec64(0x00010001, 0x00010001)
    a(f"ds_write_b128 v{VT}, v[{D7}:{D7+3}]\ns_mov_b64 exec, -1")
    L, L2 = a.lab("DFB"), a.lab("DFC")
    a(f"s_cmp_eq_u32 s30, 0\ns_cbranch_scc1 {L2}\ns_cmp_eq_u32 s53, 10\ns_cbranch_scc1 {L}\n{L2}:")
    lds_wait_ge(a, f"v{VCT}", MD, f"v{VT+2}")
    dfrags()
    a(f"{L}:")
    a.stamp(12)
    BB, D8 = 136, 20
    a(f"v_lshlrev_b32 v{VT}, 6, v{VJ}\nv_lshl_add_u32 v{VT}, v{VKG}, 4, v{VT}")
    Lp, Lx = spin_head(a, "s60", cfg.SPIN, "R7")
    a(f"ds_read_b128 v[32:35], v{VT+1}\nds_read_b128 v[36:39], v{VT+1} offset:16\nds_read_b128 v[40:43], v{VT+1} offset:128\nds_read_b128 v[44:47], v{VT+1} offset:144")
    spin_bound(a, "s60", cfg.SPIN, Lx)
    a("s_waitcnt lgkmcnt(0)")
    for e in range(8): a(f"v_max_f32 v{48+e}, 0, v{32+e}")
    for e in range(0, 8, 2): a(f"v_pk_mul_f32 {pr(48+e)}, {pr(48+e)}, {pr(40+e)}")
    a("v_max3_u32 v56, v32, v33, v34\nv_max3_u32 v57, v35, v36, v37\nv_max3_u32 v56, v56, v38, v39\nv_max3_u32 v57, v57, v40, v41\nv_max3_u32 v56, v56, v42, v43\nv_max3_u32 v57, v57, v44, v45\nv_max3_u32 v56, v56, v46, v47\nv_max_u32 v56, v56, v57")
    a(f"v_cmp_eq_u32 vcc, -1, v56\ns_cbranch_vccnz {Lp}\n{Lx}:\ns_waitcnt lgkmcnt(0)")
    for e in range(4): a(f"v_cvt_pk_bf16_f32 v{32+e}, v{48+2*e}, v{49+2*e}")
    for n in range(9):
        for h in range(4): a(f"v_and_b32 v{BB+4*n+h}, v{32+h}, v{MSK[n]}")
        if n:
            cin = "0" if n == 1 else f"v[{D8}:{D8+3}]"
            if n == 1: a.nop(0)
            a(f"v_mfma_f32_16x16x32_bf16 v[{D8}:{D8+3}], v[{DF+4*(n-1)}:{DF+4*(n-1)+3}], v[{BB+4*(n-1)}:{BB+4*(n-1)+3}], {cin}")
    a.nop(2)
    a(f"v_mfma_f32_16x16x32_bf16 v[{D8}:{D8+3}], v[{DF+32}:{DF+35}], v[{BB+32}:{BB+35}], v[{D8}:{D8+3}]")
    a.nop(8)
    for e in range(4): a(f"v_and_or_b32 v{D8+e}, v{D8+e}, s57, v{VTAG}")
    a.exec64(0x01ff01ff, 0x01ff01ff)
    a(f"global_store_dwordx4 v{VT}, v[{D8}:{D8+3}], s[42:43] sc1\ns_mov_b64 exec, -1")
    a.stamp(13)
    a("L_fin:")
    a.stamp(15)
    stamps_out(a)
    a("s_endpgm")

def generate(cfg):
    a = A(cfg)
    K = NAME + "_kernel"
    hdr = open("cdna_kernels/" + NAME + ".s.ref").read().split("; Override launch geometry")[0]
    out = [hdr.rstrip(), "; Override launch geometry by editing the next line (default: block=256,", "; grid=ceil(out_elems/256), lds=0). Harness parses it; keep it on one line.",
           f"; @launch grid=(256,1,1) block=(320,1,1) lds={LDS_BYTES}", '.amdgcn_target "amdgcn-amd-amdhsa--gfx950"\n.text', f".globl {K}\n.p2align 8\n.type {K},@function\n{K}:"]
    a("KSTART:")
    a("s_cmp_ge_u32 s2, 256\ns_cbranch_scc1 L_exit")
    if cfg.UNTIL or cfg.WB or cfg.DYN == 2: a("s_memrealtime s[96:97]")
    a("s_load_dwordx16 s[4:19], s[0:1], 0\ns_load_dwordx8 s[20:27], s[0:1], 64")
    if cfg.STAMP:
        for i in range(16): a(f"s_mov_b64 s[{64+2*i}:{65+2*i}], 0")
        a("s_memrealtime s[64:65]")
    a("v_and_b32 v1, 63, v0\nv_lshrrev_b32 v2, 6, v0")
    a("s_and_b32 s28, s2, 7\ns_lshl_b32 s28, s28, 1\ns_lshr_b32 s29, s2, 3\ns_and_b32 s29, s29, 1\ns_or_b32 s28, s28, s29\ns_lshr_b32 s29, s2, 4")
    if cfg.MAPALT: a("s_lshr_b32 s28, s2, 4\ns_and_b32 s29, s2, 15")
    a("v_readfirstlane_b32 s3, v2")
    a("s_waitcnt lgkmcnt(0)")
    a("s_cmp_lg_u32 s3, 0\ns_cbranch_scc1 L_consumer")
    gen_loader(a)
    gen_consumer(a)
    a("L_exit:\ns_endpgm")
    out += a.L
    out.append('.section .rodata,"a"\n.p2align 6')
    out.append(f".amdhsa_kernel {K}")
    out.append("  .amdhsa_next_free_vgpr 256\n  .amdhsa_next_free_sgpr 102\n  .amdhsa_accum_offset 256\n  .amdhsa_group_segment_fixed_size 0\n  .amdhsa_kernarg_size 96\n  .amdhsa_user_sgpr_count 2\n  .amdhsa_user_sgpr_kernarg_segment_ptr 1\n  .amdhsa_system_sgpr_workgroup_id_x 1\n.end_amdhsa_kernel")
    return "\n".join(out) + "\n"

if __name__ == "__main__":
    cfg = Cfg()
    for kv in sys.argv[2:]:
        k, v = kv.split("=")
        setattr(cfg, k, v if k in ("NT", "NTGU", "NTWO") else (v == "1" if k == "STAMP" else int(v)))
    open(sys.argv[1], "w").write(generate(cfg))
```

```python
import sys, struct, math
NAME = "sequential_preLN__sliding_block_cached__glu_gated_reglu__decode"
def f2b(x): return struct.unpack("<I", struct.pack("<f", x))[0]

class Cfg:
    W1 = 20; WWO = 14; WGU = 12; WD = 20
    NT = "nt"
    STAMP = False
    DBG = 0
    TO_H1 = 12
    MAPALT = 0
    LOCAL = 1
    DELAY = 0
    UNTIL = 0
    CPF = 0
    TPF = 0
    WOROT = 0
    NTWO = "nt"
    NTGU = "nt"
    ORD = 0
    EH3 = 0
    W0 = 0; N0 = 0
    NOX = 0
    WB = 0; TB = 310
    W2ND = 0
    DYN = 1
    TB2 = 540
    ALE = 1
    ILV = 0
    WIL = 12
    REDW = 1
    FULLN = 0
    H4M = 0
    H4P = 0
    H3Q = 0
    PFS = 0
    PF = 1
    WG0 = 14; NG0 = 0
    WG1 = 14
    WUP = 16
    GUROT = 0
    ROT = 5
    LONLY = 0
    H3GATE = 1
    T_H1 = 0
    D_H1 = 0; B_H1 = 0; B_ML = 0; B_H2 = 0; B_H3 = 0; B_H4 = 2; B_AL = 2
    SPIN = 1 << 16
    GSPIN = 1 << 13

WS_H1 = 0x00000; WS_ML = 0x10000; WS_H2 = 0x18000; WS_H3 = 0x38000; WS_AL = 0x3d000; WS_XI = 0x3e000; WS_EP = 0x3f000; WS_H4 = 0x40000; WS_ST = 0x100000
L_WQ = 0; L_K = 18432; L_V = L_K + 65536; L_SB = L_V + 65536
L_XN = L_SB
L_QB = L_XN + 1152
L_MX = L_QB + 512
L_LW = L_MX + 32
L_OP = L_LW + 32
L_R5 = L_OP + 3072
L_HN = L_R5 + 2048
L_R7 = L_HN + 1152
L_QP = L_R7 + 256
L_CT = L_QP + 256
L_END = L_CT + 64
LDS_BYTES = 161280
assert L_END <= LDS_BYTES
POIS_LO, POIS_HI = L_QB, L_CT
F_G, F_U, F_D = 0, 36864, L_V
F1_D, F1_G, F1_U = 0, 36864, L_V
O_WO = 0
CSCALE = f2b(math.log2(math.e) / math.sqrt(128.0))

class A:
    def __init__(s, cfg): s.L = []; s.cfg = cfg; s.uid = 0
    def __call__(s, t):
        for ln in t.split("\n"):
            ln = ln.strip()
            if ln: s.L.append(("" if ln.endswith(":") else "    ") + ln)
    def lab(s, base): s.uid += 1; return f"{base}_{s.uid}"
    def nop(s, n):
        while n > 0:
            k = min(n, 16); s(f"s_nop {k-1}"); n -= k
    def stamp(s, idx):
        if s.cfg.STAMP: s(f"s_memrealtime s[{64+2*idx}:{65+2*idx}]")
    def exec64(s, lo, hi): s(f"s_mov_b32 exec_lo, {hex(lo)}\ns_mov_b32 exec_hi, {hex(hi)}")
    def sleep(s, n):
        while n > 0:
            k = min(n, 127); s(f"s_sleep {k}"); n -= k

def lds_wait_ge(a, addr_v, val, tmp_v, tmp_s="s31", cnt_s="s60", off=0):
    if a.cfg.LONLY and off in (4, 8, 12, 16, 32, 36, 40, 44): return
    L = a.lab("LW"); X = a.lab("LX")
    o = f" offset:{off}" if off else ""
    a(f"s_mov_b32 {cnt_s}, 0\n{L}:\nds_read_b32 {tmp_v}, {addr_v}{o}")
    a(f"s_add_u32 {cnt_s}, {cnt_s}, 1\ns_cmp_gt_u32 {cnt_s}, {a.cfg.SPIN}\ns_cbranch_scc1 {X}")
    a(f"s_waitcnt lgkmcnt(0)\nv_readfirstlane_b32 {tmp_s}, {tmp_v}\ns_cmp_lt_u32 {tmp_s}, {val}\ns_cbranch_scc1 {L}\n{X}:\ns_waitcnt lgkmcnt(0)")

def lds_set(a, addr_v, off, val_v, op="ds_write_b32"):
    a(f"s_mov_b64 exec, 1\n{op} {addr_v}, {val_v} offset:{off}\ns_mov_b64 exec, -1")

def dpp(a, op, v, ctl): a(f"{op}_dpp {v}, {v}, {v} {ctl} row_mask:0xf bank_mask:0xf")
def row_red(a, op, vs):
    if isinstance(vs, str): vs = [vs]
    for ctl in ("quad_perm:[1,0,3,2]", "quad_perm:[2,3,0,1]", "row_half_mirror", "row_mirror"):
        a.nop(max(0, 3 - len(vs))) if len(vs) < 3 else None
        for v in vs: dpp(a, op, v, ctl)
    a.nop(0)
def xrow_red(a, op, v, t):
    a(f"v_mov_b32 {t}, {v}"); a.nop(2)
    a(f"v_permlane16_swap_b32 {v}, {t}"); a.nop(1)
    a(f"{op} {v}, {v}, {t}\nv_mov_b32 {t}, {v}"); a.nop(2)
    a(f"v_permlane32_swap_b32 {v}, {t}"); a.nop(1)
    a(f"{op} {v}, {v}, {t}")

def spin_head(a, cnt, bound, name):
    Lp, Lx = a.lab(name), a.lab(name + "X")
    a(f"s_mov_b32 {cnt}, 0\n{Lp}:")
    return Lp, Lx
def spin_bound(a, cnt, bound, Lx):
    a(f"s_add_u32 {cnt}, {cnt}, 1\ns_cmp_gt_u32 {cnt}, {bound}\ns_cbranch_scc1 {Lx}")

def tagcheck(a, acc, regs, vtag):
    regs = list(regs)
    a(f"v_xor_b32 {acc}, v{regs[0]}, v{vtag}")
    for r in regs[1:]: a(f"v_bitop3_b32 {acc}, {acc}, v{r}, v{vtag} bitop3:0xf6")
    a(f"v_and_b32 {acc}, 0x3ff, {acc}\nv_cmp_ne_u32 vcc, 0, {acc}")

def stamps_out(a, loader=False):
    if not a.cfg.STAMP: return
    if a.cfg.DBG:
        a("s_waitcnt lgkmcnt(0)\ns_mov_b64 exec, 1")
        if loader: lst = [(0, 0, 0), (255, 0, 1), (0, 3, 2), (255, 3, 3), (0, 8, 4)]
        else: lst = [(0, 7, 5), (0, 11, 6), (0, 13, 7), (144, 9, 8), (144, 10, 9), (144, 14, 10), (144, 15, 11), (145, 15, 12), (160, 15, 13), (161, 15, 14), (178, 15, 15)]
        for (wg, st, slot) in lst:
            L = a.lab("DB")
            a(f"s_cmp_lg_u32 s2, {wg}\ns_cbranch_scc1 {L}")
            if not loader: a(f"s_cmp_lg_u32 s30, 0\ns_cbranch_scc1 {L}")
            a(f"v_mov_b32 v250, {4*slot}\nv_mov_b32 v251, s{64+2*st}\nglobal_store_dword v250, v251, s[24:25]\n{L}:")
        return
    a("s_waitcnt lgkmcnt(0)")
    a(f"s_lshl_b32 s40, s2, 3\ns_add_u32 s40, s40, s3\ns_lshl_b32 s40, s40, 7\ns_add_u32 s40, s40, {WS_ST}")
    a("s_add_u32 s40, s26, s40\ns_addc_u32 s41, s27, 0\ns_mov_b64 exec, 1\nv_mov_b32 v250, 0")
    for i in range(16):
        a(f"v_mov_b32 v252, s{64+2*i}\nv_mov_b32 v253, s{65+2*i}\nglobal_store_dwordx2 v250, v[252:253], s[40:41] offset:{8*i}")
        a.nop(2)

def page_touch(a, vlo, vhi, vdst):
    a(f"v_mov_b32 v{vlo}, s4\nv_mov_b32 v{vhi}, s5")
    a(f"s_lshl_b32 s40, s28, 24\ns_lshl_b32 s41, s29, 16\ns_add_u32 s40, s40, s41\ns_add_u32 s40, s40, {(65536-4096)*256}")
    def put(lane, p, off):
        a(f"s_add_u32 s52, s{p}, {off}\ns_addc_u32 s53, s{p+1}, 0\nv_writelane_b32 v{vlo}, s52, {lane}\nv_writelane_b32 v{vhi}, s53, {lane}")
    put(0, 6, "s40"); put(1, 8, "s40")
    a("s_mul_i32 s41, s28, 294912"); put(2, 12, "s41")
    a("s_add_u32 s41, s41, 294784"); put(3, 12, "s41")
    n = 4
    for p in (16, 18):
        for off in (0, 0x200000, 0x400000): put(n, p, off); n += 1
    a("s_mul_i32 s41, s28, 331776"); put(n, 20, "s41"); n += 1
    a("s_add_u32 s41, s41, 331648"); put(n, 20, "s41"); n += 1
    put(n, 26, 0x40000); n += 1
    put(n, 22, 0); n += 1
    a(f"s_mov_b64 exec, {hex((1 << n) - 1)}\nglobal_load_dword v{vdst}, v[{vlo}:{vhi}], off nt\ns_mov_b64 exec, -1")

def alive_addr(a, VL, va, vt):
    a(f"v_lshrrev_b32 v{va}, 2, v{VL}\nv_lshlrev_b32 v{va}, 7, v{va}\nv_and_b32 v{vt}, 3, v{VL}\nv_lshl_add_u32 v{va}, v{vt}, 3, v{va}\nv_add_u32 v{va}, {WS_AL}, v{va}")
def alive_load(a, va): a(f"global_load_dwordx2 v[18:19], v{va}, s[26:27] sc1")
def alive_test(a):
    a("v_cmp_ne_u32 s[50:51], s58, v18\nv_cmp_ne_u32 s[40:41], s58, v19\ns_or_b64 s[50:51], s[50:51], s[40:41]")

def gen_loader(a):
    cfg = a.cfg; NT = cfg.NT
    V_L16, V_WQ, V_K, V_P, V_FA, V_FV, V_T = 4, 5, 6, 10, 16, 17, 18
    a(f"L_loader:")
    a("s_add_u32 s32, s10, s40\ns_addc_u32 s33, s11, 0")
    def raw(pat, off=0, pol=None):
        o = f" offset:{off}" if off else ""
        a(f"buffer_load_dwordx4 v{pat}, s[32:35], s36 offen{o} {NT if pol is None else pol} lds")
    def signal(val):
        a(f"v_mov_b32 v{V_FV}, {val}"); lds_set(a, f"v{V_FA}", 0, f"v{V_FV}")
        if val == 1: a.stamp(11)
        if val == 5: a.stamp(9)
        if val == 9: a.stamp(10)
    st = {"bar": False}
    class Seq:
        def __init__(s, W, n, pend): s.n = n; s.W = W; s.pend = pend; s.h1done = n > 0
        def after(s):
            n = s.n
            if cfg.W0 and n < 146 and not getattr(s, "fixed", False): s.W = cfg.W0 if n < cfg.N0 else cfg.W1
            if n >= s.W - 1:
                if not st["bar"]:
                    st["bar"] = True; a("s_barrier")
                a(f"s_waitcnt vmcnt({s.W-1})")
                landed = n - s.W + 1
                while s.pend and s.pend[0][0] <= landed: signal(s.pend.pop(0)[1])
                if cfg.T_H1 and not s.h1done and landed >= 18 + cfg.T_H1:
                    s.h1done = True
                    a(f"v_mov_b32 v{V_FV}, 1"); lds_set(a, f"v{V_FA}", 24, f"v{V_FV}")
            s.n += 1
        def drain(s):
            last = s.n - 1
            while s.pend:
                e, v = s.pend.pop(0)
                a(f"s_waitcnt vmcnt({last-e})"); signal(v)
    q = Seq(cfg.W1, 0, [])
    q.pend.append((17, 1))
    for i in range(18):
        if i: a("s_add_u32 m0, m0, 0x400\ns_add_u32 s36, s36, 0x10000")
        raw(V_WQ); q.after()
        if i == 0: a(f"s_setprio 1\ns_load_dword s58, s[26:27], {WS_EP}\nv_lshlrev_b32 v{V_L16}, 4, v1")
        if i == 1:
            a("v_lshrrev_b32 v20, 4, v1\nv_lshlrev_b32 v21, 2, v20\nv_and_b32 v22, 15, v1\nv_xor_b32 v22, v22, v21\nv_lshlrev_b32 v20, 8, v20")
            for p in range(4): a(f"v_xor_b32 v23, {p}, v22\nv_lshlrev_b32 v23, 4, v23\nv_add_u32 v{V_K+p}, v20, v23")
            a(f"v_mov_b32 v{V_FA}, {L_CT}")
    a.stamp(1)
    for name, p, lbase, pats in (("K", 6, L_K, [V_K, V_K+1, V_K+2, V_K+3]), ("V", 8, L_V, [V_L16]*4)):
        a(f"s_lshl_b32 s40, s28, 24\ns_lshl_b32 s42, s29, 16\ns_add_u32 s42, s42, {(65536-4096)*256}\ns_add_u32 s40, s40, s42")
        a(f"s_add_u32 s32, s{p}, s40\ns_addc_u32 s33, s{p+1}, 0\ns_mov_b32 s34, 65536\ns_mov_b32 m0, {lbase}\ns_mov_b32 s36, 0")
        if cfg.ROT: a(f"s_mul_i32 s36, s28, {cfg.ROT}\ns_add_u32 s36, s36, s29\ns_and_b32 s36, s36, 15\ns_lshl_b32 s36, s36, 12")
        base = q.n
        for r in range(4): q.pend.append((base + 16*r + 15, (2 if name == "K" else 6) + r))
        def seg(qq):
            for i in range(64):
                if i and i % 4 == 0:
                    a("s_add_u32 m0, m0, 0x1000\ns_add_u32 s36, s36, 0x1000")
                    if cfg.ROT: a("s_and_b32 s36, s36, 0xffff")
                elif i == 0: a.nop(1)
                raw(pats[i % 4], off=(i % 4) * 1024); qq.after()
                if name == "K" and i in (15, 31, 47): a.stamp(12 + (i + 1) // 16 - 1)
        if name == "V" and cfg.WB:
            a(f"s_memrealtime s[50:51]\ns_waitcnt lgkmcnt(0)\ns_sub_u32 s50, s50, s96\ns_cmp_lt_u32 s50, {cfg.TB}\ns_cbranch_scc1 L_v_normal")
            qb = Seq(cfg.WB, q.n, list(q.pend)); qb.fixed = True
            seg(qb)
            a(f"s_waitcnt vmcnt({cfg.W1-1})")
            landed = qb.n - 1 - cfg.W1 + 1
            while qb.pend and qb.pend[0][0] <= landed: signal(qb.pend.pop(0)[1])
            a("s_branch L_v_done\nL_v_normal:")
            seg(q)
            assert [x for x in q.pend] == [x for x in qb.pend], (q.pend, qb.pend)
            a("L_v_done:")
        else:
            seg(q)
        a.stamp(2 if name == "K" else 3)
    lds_wait_ge(a, f"v{V_FA}", 4, "v19", "s43", "s44", off=4)
    a.stamp(4)
    n0, p0 = q.n, list(q.pend)
    a("s_cmp_ge_u32 s29, 9\ns_cbranch_scc1 L_ld_o")
    q = Seq(cfg.WGU, n0, list(p0))
    a(f"v_lshrrev_b32 v20, 2, v1\nv_mul_u32_u24 v20, 9216, v20\nv_and_b32 v21, 3, v1\nv_lshlrev_b32 v21, 4, v21\nv_add_u32 v{V_P}, v20, v21")
    a("s_mul_i32 s45, s28, 288\ns_lshl_b32 s46, s29, 5\ns_add_u32 s45, s45, s46")
    if cfg.GUROT: a("s_add_u32 s47, s28, s29\ns_and_b32 s47, s47, 1\ns_mul_i32 s47, s47, 18")
    def gu_tile(p, lb, mile, W):
        nonlocal q
        q.W = W
        q.pend.append((q.n + 35, mile))
        a(f"s_lshl_b32 s40, s45, 1\ns_add_u32 s32, s{p}, s40\ns_addc_u32 s33, s{p+1}, 0\ns_sub_u32 s34, 5308416, s40\ns_mov_b32 m0, {lb}\ns_mov_b32 s36, 0")
        if cfg.GUROT: a(f"s_lshl_b32 s48, s47, 10\ns_add_u32 m0, s48, {lb}\ns_mul_i32 s36, s47, {16*9216}")
        for i in range(36):
            if i:
                if cfg.GUROT and i == 18:
                    a(f"s_cmp_lg_u32 s47, 0\ns_cselect_b32 s48, {36*1024}, 0\ns_cselect_b32 s52, {36*16*9216}, 0\ns_sub_u32 m0, m0, s48\ns_sub_u32 s36, s36, s52")
                a(f"s_add_u32 m0, m0, 0x400\ns_add_u32 s36, s36, {16*9216}")
            else: a.nop(1)
            if p == 16 and i < cfg.NG0: q.W = cfg.WG0
            else: q.W = W
            raw(V_P, pol=cfg.NTGU); q.after()
            if p == 18 and cfg.EH3 and i == cfg.EH3 - 1:
                a(f"v_mov_b32 v{V_FV}, 1"); lds_set(a, f"v{V_FA}", 32, f"v{V_FV}")
    def down_tile(lb, mile):
        nonlocal q
        a(f"s_mul_i32 s40, s45, 1152\ns_add_u32 s32, s20, s40\ns_addc_u32 s33, s21, 0\ns_mov_b32 s34, {32*1152}\ns_mov_b32 m0, {lb}\ns_mov_b32 s36, 0")
        q.pend.append((q.n + 35, mile)); q.W = cfg.WD
        for i in range(36):
            if i and i % 4 == 0: a("s_add_u32 m0, m0, 0x1000\ns_add_u32 s36, s36, 0x1000")
            elif i == 0: a.nop(1)
            raw(V_L16, off=(i % 4) * 1024); q.after()
    a("s_lshl_b32 s40, s45, 1\ns_add_u32 s40, s40, s16\ns_lshr_b32 s40, s40, 7\ns_and_b32 s40, s40, 7\ns_cmp_eq_u32 s40, 3\ns_cselect_b32 s49, 2, 1")
    if cfg.DYN == 0: a("s_mov_b32 s49, 1")
    if cfg.DYN == 3: a("s_mov_b32 s49, 2")
    if cfg.DYN == 2:
        a(f"s_memrealtime s[50:51]\ns_waitcnt lgkmcnt(0)\ns_sub_u32 s50, s50, s96\ns_cmp_gt_u32 s50, {cfg.TB2}\ns_cselect_b32 s49, 2, s49")
    if cfg.ILV == 1: a("s_cmp_eq_u32 s40, 3\ns_cselect_b32 s49, 3, s49")
    if cfg.ILV == 2: a("s_mov_b32 s49, 3")
    a(f"v_mov_b32 v{V_FV}, s49"); lds_set(a, f"v{V_FA}", 40, f"v{V_FV}")
    if cfg.ILV: a("s_cmp_eq_u32 s49, 3\ns_cbranch_scc1 L_ld_fc")
    a("s_cmp_eq_u32 s49, 2\ns_cbranch_scc1 L_ld_fb")
    down_tile(0, 10)
    a.stamp(7)
    gu_tile(16, 36864, 11, cfg.WG1)
    a.stamp(5)
    lds_wait_ge(a, f"v{V_FA}", 4, "v19", "s43", "s44", off=8)
    gu_tile(18, L_V, 12, cfg.WUP)
    a(f"v_mov_b32 v{V_FV}, 1"); lds_set(a, f"v{V_FA}", 12, f"v{V_FV}")
    a.stamp(6)
    q.drain()
    a("s_branch L_ld_done")
    if cfg.ILV:
        a("L_ld_fc:")
        q = Seq(cfg.WIL, n0, list(p0))
        a(f"s_mul_i32 s40, s45, 1152\ns_add_u32 s52, s20, s40\ns_addc_u32 s53, s21, 0\ns_mov_b32 s54, {32*1152}\ns_mov_b32 s55, 0x20000\ns_mov_b32 s56, 0\ns_mov_b32 s57, 0")
        nd = 0
        for (p, lb, mile) in ((16, 36864, 10), (18, L_V, 11)):
            if p == 18: lds_wait_ge(a, f"v{V_FA}", 4, "v19", "s43", "s44", off=8)
            first = q.n
            last_narrow = first + 35 + 17
            q.pend.append((last_narrow, mile))
            a(f"s_lshl_b32 s40, s45, 1\ns_add_u32 s32, s{p}, s40\ns_addc_u32 s33, s{p+1}, 0\ns_sub_u32 s34, 5308416, s40\ns_mov_b32 s59, {lb}\ns_mov_b32 s36, 0")
            if cfg.GUROT: a(f"s_lshl_b32 s48, s47, 10\ns_add_u32 s59, s48, {lb}\ns_mul_i32 s36, s47, {16*9216}")
            for i in range(36):
                if i:
                    if cfg.GUROT and i == 18:
                        a(f"s_cmp_lg_u32 s47, 0\ns_cselect_b32 s48, {36*1024}, 0\ns_cselect_b32 s51, {36*16*9216}, 0\ns_sub_u32 s59, s59, s48\ns_sub_u32 s36, s36, s51")
                    a(f"s_add_u32 s59, s59, 0x400\ns_add_u32 s36, s36, {16*9216}")
                a("s_mov_b32 m0, s59"); a.nop(1)
                raw(V_P, pol=cfg.NTGU); q.after()
                if i == 35:
                    assert q.n - 1 == last_narrow
                    if p == 18:
                        a(f"v_mov_b32 v{V_FV}, 1"); lds_set(a, f"v{V_FA}", 12, f"v{V_FV}")
                        a.stamp(6)
                    else: a.stamp(5)
                if i % 2 == 1:
                    a("s_mov_b32 m0, s57\ns_add_u32 s57, s57, 0x400")
                    a(f"buffer_load_dwordx4 v{V_L16}, s[52:55], s56 offen {NT} lds\ns_add_u32 s56, s56, 0x400")
                    nd += 1
                    if nd == 36: q.pend.append((q.n, 12))
                    q.after()
        a.stamp(7)
        q.drain()
        a("s_branch L_ld_done")
    a("L_ld_fb:")
    q = Seq(cfg.WGU, n0, list(p0))
    gu_tile(16, 36864, 10, cfg.WG1)
    a.stamp(5)
    gu_tile(18, 0, 11, cfg.WUP)
    a(f"v_mov_b32 v{V_FV}, 1"); lds_set(a, f"v{V_FA}", 12, f"v{V_FV}")
    a.stamp(6)
    if cfg.H3GATE: lds_wait_ge(a, f"v{V_FA}", 1, "v19", "s43", "s44", off=16)
    lds_wait_ge(a, f"v{V_FA}", 4, "v19", "s43", "s44", off=8)
    down_tile(L_V, 12)
    a.stamp(7)
    q.drain()
    a("s_branch L_ld_done")
    a("L_ld_o:")
    a("s_cmp_eq_u32 s29, 15\ns_cbranch_scc1 L_ld_spare")
    q = Seq(cfg.WWO, n0, list(p0))
    def alive_store():
        a(f"s_sub_u32 s41, s29, 9\ns_lshl_b32 s40, s28, 7\ns_lshl_b32 s44, s41, 2\ns_add_u32 s40, s40, s44\ns_add_u32 s40, s40, {WS_AL}")
        a(f"s_add_u32 s58, s58, 1\nv_lshlrev_b32 v20, 2, v1\nv_add_u32 v20, s40, v20\nv_mov_b32 v21, s58")
        a(f"s_mov_b64 exec, 1\ns_cmp_eq_u32 s41, 5\ns_cselect_b32 exec_lo, 7, exec_lo\nglobal_store_dword v20, v21, s[26:27] sc1\ns_mov_b64 exec, -1")
        q.n += 1
    if cfg.ALE: alive_store()
    for p in range(3):
        a(f"v_add_u32 v20, {64*p}, v1\nv_mul_u32_u24 v21, 171, v20\nv_lshrrev_b32 v21, 11, v21")
        a(f"v_mul_u32_u24 v22, 12, v21\nv_sub_u32 v22, v20, v22\nv_lshlrev_b32 v22, 4, v22\nv_mul_u32_u24 v21, 1152, v21\nv_add_u32 v{V_P+p}, v21, v22")
    a("s_mul_i32 s40, s28, 294912\ns_sub_u32 s41, s29, 9\ns_mul_i32 s41, s41, 192\ns_add_u32 s40, s40, s41")
    a(f"s_add_u32 s32, s12, s40\ns_addc_u32 s33, s13, 0\ns_sub_u32 s34, 4718592, s40\ns_mov_b32 m0, {O_WO}\ns_mov_b32 s36, 0")
    for c in range(4): q.pend.append((q.n + 12*c + 11, 10 + c))
    if cfg.WOROT:
        a(f"s_and_b32 s47, s29, 1\ns_mul_i32 s48, s47, {24*1024}\ns_add_u32 m0, s48, {O_WO}\ns_mul_i32 s36, s47, {128*1152}")
    for i in range(48):
        if i:
            if cfg.WOROT and i == 24:
                a(f"s_cmp_lg_u32 s47, 0\ns_cselect_b32 s48, {48*1024}, 0\ns_cselect_b32 s49, {256*1152}, 0\ns_sub_u32 m0, m0, s48\ns_sub_u32 s36, s36, s49")
            a("s_add_u32 m0, m0, 0x400")
            if i % 3 == 0: a(f"s_add_u32 s36, s36, {16*1152}")
            else: a.nop(1)
        else: a.nop(1)
        raw(V_P + i % 3, pol=cfg.NTWO); q.after()
    a(f"v_mov_b32 v{V_FV}, 1"); lds_set(a, f"v{V_FA}", 12, f"v{V_FV}")
    a.stamp(5)
    if not cfg.ALE:
        lds_wait_ge(a, f"v{V_FA}", 4, "v19", "s43", "s44", off=16)
        alive_store()
    elif cfg.PF:
        lds_wait_ge(a, f"v{V_FA}", 4, "v19", "s43", "s44", off=16)
    if cfg.PF:
        a("s_lshr_b32 s40, s28, 1\ns_and_b32 s44, s28, 1\ns_sub_u32 s41, s29, 9\ns_lshl_b32 s41, s41, 1\ns_add_u32 s41, s41, s44")
        a("s_mul_i32 s40, s40, 1152\ns_add_u32 s32, s18, s40\ns_addc_u32 s33, s19, 0\ns_sub_u32 s34, 5308416, s40\ns_lshl_b32 s41, s41, 6\ns_mov_b32 s46, 7282\ns_mov_b32 s47, 9216")
        for t in range(6):
            a(f"s_add_u32 s40, s41, {64*14*t}\nv_add_u32 v20, s40, v1\nv_mul_lo_u32 v21, s46, v20\nv_lshrrev_b32 v21, 16, v21")
            a(f"v_mul_u32_u24 v22, 9, v21\nv_sub_u32 v22, v20, v22\nv_lshlrev_b32 v22, 7, v22\nv_mul_lo_u32 v21, s47, v21\nv_add_u32 v{24+t}, v21, v22")
        a("s_mov_b32 s36, 0")
        npf = 6
        for t in range(npf):
            a(f"buffer_load_dword v{32+t}, v{24+t}, s[32:35], s36 offen {NT}")
            q.n += 1
    q.drain()
    a("s_branch L_ld_done")
    a("L_ld_spare:")
    q = Seq(cfg.WWO, n0, list(p0))
    q.drain()
    if cfg.PFS:
        lds_wait_ge(a, f"v{V_FA}", 1, "v19", "s43", "s44", off=44)
        a("s_lshr_b32 s45, s28, 1\ns_and_b32 s46, s28, 1\ns_mul_i32 s46, s46, 288\nv_add_u32 v20, s46, v1\ns_mov_b32 s47, 9216\nv_mul_lo_u32 v20, s47, v20")
        for t in range(1, 5): a(f"v_add_u32 v{20+t}, {64*9216*t}, v20")
        mats = {1: (18,), 2: (16, 18), 3: (18, 16)}[cfg.PFS]
        for rep in range(2):
            for p in mats:
                L = a.lab("PFS")
                a(f"s_lshr_b32 s40, s{p}, 7\ns_add_u32 s40, s40, s45\ns_sub_u32 s40, 3, s40\ns_and_b32 s40, s40, 7")
                if rep == 1: a(f"s_cmp_lg_u32 s40, 0\ns_cbranch_scc1 {L}\ns_mov_b32 s40, 8")
                a(f"s_mul_i32 s41, s45, 9\ns_add_u32 s40, s40, s41\ns_lshl_b32 s40, s40, 7")
                a(f"s_add_u32 s32, s{p}, s40\ns_addc_u32 s33, s{p+1}, 0\ns_sub_u32 s34, 5308416, s40\ns_mov_b32 s36, 0")
                for t in range(5): a(f"buffer_load_dword v{32+t}, v{20+t}, s[32:35], s36 offen")
                a(f"{L}:")
    a("L_ld_done:")
    a.stamp(8)
    if cfg.STAMP: a("s_getreg_b32 s94, hwreg(HW_REG_XCC_ID)\ns_and_b32 s94, s94, 15\ns_add_u32 s94, s94, 1\ns_mov_b32 s95, 0")
    stamps_out(a, True)
    a("s_endpgm")

def gen_consumer(a):
    cfg = a.cfg
    VL, VJ, VKG, VL16, VCT = 1, 2, 3, 4, 5
    VX = 196
    XF = 216
    VT = 12
    VTAG = 11
    a("L_consumer:")
    a(f"v_and_b32 v{VJ}, 15, v{VL}\nv_lshrrev_b32 v{VKG}, 4, v{VL}\nv_lshlrev_b32 v{VL16}, 4, v{VL}\nv_mov_b32 v{VCT}, {L_CT}\ns_sub_u32 s30, s3, 1")
    a(f"s_load_dword s58, s[26:27], {WS_EP}")
    if cfg.CPF:
        a("s_getpc_b64 s[52:53]\nL_pc:\ns_sub_u32 s52, s52, (L_pc - KSTART)\ns_subb_u32 s53, s53, 0")
        a("s_lshr_b32 s40, s2, 3\ns_lshl_b32 s40, s40, 2\ns_add_u32 s40, s40, s30\ns_lshl_b32 s40, s40, 8\ns_min_u32 s40, s40, (L_exit - KSTART - 128)")
        a("s_add_u32 s52, s52, s40\ns_addc_u32 s53, s53, 0\ns_load_dword s54, s[52:53], 0\ns_load_dword s55, s[52:53], 128")
    if not cfg.NOX:
        a(f"global_load_dwordx4 v[20:23], v{VL16}, s[4:5]")
        a(f"v_lshlrev_b32 v{VT}, 2, v{VL}\nv_mov_b32 v24, 0\ns_mov_b32 exec_hi, 0\nglobal_load_dword v24, v{VT}, s[4:5] offset:1024\ns_mov_b64 exec, -1")
    a("s_cmp_lg_u32 s30, 0\ns_cbranch_scc1 L_p0_notc0")
    a("v_mov_b32 v28, -1\nv_mov_b32 v29, -1\nv_mov_b32 v30, -1\nv_mov_b32 v31, -1")
    def wsaddr(lo): a(f"s_add_u32 s42, s26, {lo}\ns_addc_u32 s43, s27, 0")
    def pst(off=0, sc="sc1"): a(f"global_store_dwordx4 v{VL16}, v[28:31], s[42:43]" + (f" offset:{off}" if off else "") + f" {sc}")
    def h2poison(sc):
        a(f"s_lshl_b32 s46, s28, 4\ns_add_u32 s46, s46, s29\ns_lshl_b32 s40, s46, 9\ns_add_u32 s40, s40, {WS_H2}"); wsaddr("s40")
        a("s_mov_b64 exec, -1\ns_mov_b32 exec_hi, 0"); pst(0, sc); a("s_mov_b64 exec, -1")
    if cfg.LONLY != 1:
        h2poison("" if cfg.LOCAL else "sc1")
        a("s_cmp_ge_u32 s29, 9\ns_cbranch_scc1 L_p0_o")
        a(f"v_and_b32 v{VT}, 1, v{VKG}\nv_lshlrev_b32 v{VT}, 3, v{VT}\nv_lshl_add_u32 v{VT}, v{VJ}, 4, v{VT}")
        for cb in range(4): a(f"global_load_dwordx2 v[{VX+2*cb}:{VX+2*cb+1}], v{VT}, s[4:5] offset:{256*cb}")
        a(f"v_mov_b32 v{VX+8}, 0\nv_mov_b32 v{VX+9}, 0"); a.exec64(0x00ff00ff, 0x00ff00ff)
        a(f"global_load_dwordx2 v[{VX+8}:{VX+9}], v{VT}, s[4:5] offset:1024\ns_mov_b64 exec, -1")
        a("s_mov_b32 s55, 6\ns_branch L_p0_lds")
        a("L_p0_o:")
        a(f"s_sub_u32 s41, s29, 9\ns_mul_i32 s40, s41, 192\ns_mul_i32 s44, s28, 1152\ns_add_u32 s40, s40, s44\ns_add_u32 s40, s40, {WS_H3}"); wsaddr("s40")
        a("s_mov_b32 s55, 2\ns_cmp_eq_u32 s41, 6\ns_cbranch_scc1 L_p0_lds\ns_mov_b64 exec, 0xfff"); pst(); a("s_mov_b64 exec, -1")
        a("s_mov_b32 s55, 2")
    a("L_p0_lds:")
    nb = POIS_HI - POIS_LO
    a(f"v_add_u32 v{VT}, {POIS_LO}, v{VL16}")
    off = 0
    while off < nb:
        rem = nb - off
        if rem < 1024: a(f"v_cmp_gt_u32 vcc, {rem}, v{VL16}\ns_and_saveexec_b64 s[40:41], vcc")
        a(f"ds_write_b128 v{VT}, v[28:31] offset:{off}")
        if rem < 1024: a("s_mov_b64 exec, s[40:41]")
        off += 1024
    a(f"v_mov_b32 v32, 0\nv_mov_b32 v33, 0\nv_mov_b32 v34, 0\nv_mov_b32 v35, 0\nds_write_b128 v{VCT}, v[32:35]\nds_write_b128 v{VCT}, v[32:35] offset:16\nds_write_b128 v{VCT}, v[32:35] offset:32")
    a("s_waitcnt lgkmcnt(0)\ns_barrier")
    if cfg.LONLY == 1: a("s_branch L_fin")
    L = a.lab("P0W")
    a(f"s_cmp_eq_u32 s55, 2\ns_cbranch_scc1 {L}\ns_waitcnt vmcnt(6)\ns_branch L_p0_ln\n{L}:\ns_waitcnt vmcnt(1)")
    a("s_branch L_p0_ln")
    a("L_p0_notc0:")
    if cfg.TPF:
        L = a.lab("TP")
        a(f"s_cmp_lg_u32 s30, 1\ns_cbranch_scc1 {L}")
        page_touch(a, 198, 199, 200)
        a(f"s_barrier\ns_waitcnt vmcnt(1)\ns_branch L_p0_ln\n{L}:")
    a("s_barrier\ns_waitcnt vmcnt(0)")
    a("L_p0_ln:")
    if cfg.LONLY in (1, 2): a("s_branch L_fin")
    a.stamp(0)
    for i in range(5): a(f"v_lshlrev_b32 v{32+2*i}, 16, v{20+i}\nv_and_b32 v{33+2*i}, 0xffff0000, v{20+i}")
    a("v_add_f32 v42, v32, v33")
    for i in range(2, 10): a(f"v_add_f32 v42, v42, v{32+i}")
    row_red(a, "v_add_f32", "v42"); xrow_red(a, "v_add_f32", "v42", "v43")
    a(f"v_mul_f32 v42, {hex(f2b(1.0/576))}, v42")
    for i in range(10): a(f"v_sub_f32 v{32+i}, v{32+i}, v42")
    a("s_mov_b32 exec_lo, 0\nv_mov_b32 v40, 0\nv_mov_b32 v41, 0\ns_mov_b64 exec, -1")
    a("v_mul_f32 v43, v32, v32")
    for i in range(1, 10): a(f"v_fmac_f32 v43, v{32+i}, v{32+i}")
    row_red(a, "v_add_f32", "v43"); xrow_red(a, "v_add_f32", "v43", "v44")
    a(f"v_mov_b32 v44, {hex(f2b(1e-5))}\nv_fmac_f32 v44, {hex(f2b(1.0/576))}, v43\nv_rsq_f32 v44, v44")
    a.nop(1)
    for i in range(10): a(f"v_mul_f32 v{32+i}, v{32+i}, v44")
    for i in range(5): a(f"v_cvt_pk_bf16_f32 v{20+i}, v{32+2*i}, v{33+2*i}")
    a(f"v_add_u32 v{VT}, {L_XN}, v{VL16}\nds_write_b128 v{VT}, v[20:23]")
    a(f"v_lshlrev_b32 v{VT}, 2, v{VL}\nv_add_u32 v{VT}, {L_XN+1024}, v{VT}\ns_mov_b32 exec_hi, 0\nds_write_b32 v{VT}, v24\ns_mov_b64 exec, -1")
    a(f"v_bfe_u32 v{VT}, v{VL}, 2, 2\nv_lshl_add_u32 v{VT}, v{VKG}, 2, v{VT}\nv_lshlrev_b32 v{VT}, 7, v{VT}")
    a(f"v_and_b32 v{VT+1}, 3, v{VL}\nv_lshl_add_u32 v{VT}, v{VT+1}, 3, v{VT}")
    a(f"s_lshl_b32 s40, s30, 5\ns_add_u32 s40, s40, {L_WQ}\nv_add_u32 v{VT}, s40, v{VT}")
    a(f"s_lshr_b32 s40, s29, 2\ns_mul_i32 s40, s40, 288\ns_add_u32 s40, s40, {L_XN}\nv_lshlrev_b32 v{VT+1}, 3, v{VKG}\nv_add_u32 v{VT+1}, s40, v{VT+1}")
    a("s_waitcnt lgkmcnt(0)")
    for t in range(9): a(f"ds_read_b64 v[{40+2*t}:{41+2*t}], v{VT+1} offset:{32*t}")
    for r in range(4): a(f"v_mov_b32 v{60+r}, 0")
    a("s_lshr_b32 s40, s29, 2\ns_lshl_b32 s40, s40, 10\ns_and_b32 s41, s29, 3\ns_lshl_b32 s41, s41, 8\ns_add_u32 s40, s40, s41")
    a(f"s_lshl_b32 s41, s28, 12\ns_add_u32 s40, s40, s41")
    a("s_add_u32 s42, s26, s40\ns_addc_u32 s43, s27, 0")
    lds_wait_ge(a, f"v{VCT}", 1, f"v{VT+2}")
    a.stamp(1)
    for t in range(9): a(f"ds_read_b64_tr_b16 v[{20+2*t}:{21+2*t}], v{VT} offset:{2048*t}")
    for t in range(9):
        a(f"s_waitcnt lgkmcnt({8-t})")
        a(f"v_mfma_f32_16x16x16_bf16 v[60:63], v[{20+2*t}:{21+2*t}], v[{40+2*t}:{41+2*t}], v[60:63]")
    a(f"s_lshl_b32 s40, s30, 6\ns_add_u32 s40, s40, {L_QP}\nv_lshlrev_b32 v{VT}, 4, v{VKG}\nv_add_u32 v{VT}, s40, v{VT}")
    a(f"s_add_u32 s58, s58, 1\ns_and_b32 s56, s58, 0x3ff\ns_mov_b32 s57, 0xfffffc00\nv_mov_b32 v{VTAG}, s56")
    a.nop(1)
    a.exec64(0x00010001, 0x00010001)
    a(f"ds_write_b128 v{VT}, v[60:63]\ns_mov_b64 exec, -1")
    a("s_cmp_lg_u32 s30, 0\ns_cbranch_scc1 L_p1_done")
    a(f"v_add_u32 v{VT}, {L_QP}, v{VL16}\ns_mov_b64 exec, 0xffff")
    Lp, Lx = spin_head(a, "s60", cfg.SPIN, "QP")
    a(f"ds_read_b128 v[60:63], v{VT}"); spin_bound(a, "s60", cfg.SPIN, Lx)
    a(f"s_waitcnt lgkmcnt(0)\nv_max3_u32 v{VT+1}, v60, v61, v62\nv_max_u32 v{VT+1}, v{VT+1}, v63\nv_cmp_eq_u32 vcc, -1, v{VT+1}\ns_cbranch_vccnz {Lp}\n{Lx}:\ns_waitcnt lgkmcnt(0)")
    for e in range(4): a(f"v_and_or_b32 v{60+e}, v{60+e}, s57, v{VTAG}")
    a("s_mov_b64 s[48:49], s[42:43]\ns_getreg_b32 s59, hwreg(HW_REG_XCC_ID)\ns_and_b32 s59, s59, 7\ns_lshl_b32 s45, s59, 10\ns_or_b32 s45, s45, s56")
    a(f"v_mov_b32 v49, s45\ns_lshl_b32 s40, s28, 6\ns_lshl_b32 s41, s29, 2\ns_add_u32 s40, s40, s41\ns_add_u32 s40, s40, {WS_XI}\nv_mov_b32 v48, s40")
    a("s_waitcnt vmcnt(0)")
    sc0 = "" if cfg.LOCAL else "sc1"
    a(f"global_store_dwordx4 v{VL16}, v[60:63], s[48:49] {sc0}")
    if cfg.LOCAL: a(f"s_mov_b64 exec, 1\nglobal_store_dword v48, v49, s[26:27]")
    a("s_mov_b64 exec, -1")
    L = a.lab("XU")
    a(f"s_cmp_ge_u32 s29, 9\ns_cbranch_scc1 {L}")
    for i in range(10): a(f"v_lshlrev_b32 v{XF+2*i}, 16, v{VX+i}\nv_and_b32 v{XF+2*i+1}, 0xffff0000, v{VX+i}")
    a(f"{L}:")
    a("L_p1_done:")
    if cfg.LONLY == 3: a("s_branch L_fin")
    a.stamp(2)
    QF, S, AO, MK, KA, KF, O = 20, 36, 64, 52, 56, 128, 60
    a(f"v_and_b32 v{VT+1}, 3, v{VJ}\nv_lshrrev_b32 v{VT+2}, 2, v{VJ}")
    a(f"v_lshl_add_u32 v{VT+3}, v{VT+1}, 2, v{VT+2}\nv_lshlrev_b32 v{VT+3}, 8, v{VT+3}")
    a(f"s_lshl_b32 s40, s30, 12\ns_add_u32 s40, s40, {L_K}\nv_add_u32 v{VT+3}, s40, v{VT+3}\nv_xor_b32 v{VT+1}, v{VT+1}, v{VKG}")
    for dd in range(4):
        a(f"v_xor_b32 v{VT+4}, {dd}, v{VT+2}\nv_lshl_add_u32 v{VT+4}, v{VT+4}, 2, v{VT+1}\nv_lshl_add_u32 v{KA+dd}, v{VT+4}, 4, v{VT+3}")
    a(f"v_and_b32 v{VT+1}, 1, v{VJ}\nv_cmp_eq_u32 vcc, 1, v{VT+1}\nv_mov_b32 v{VT+2}, 0xffff\nv_mov_b32 v{VT+4}, 0xffff0000")
    a.nop(1)
    a(f"v_cndmask_b32 v{VT+2}, v{VT+2}, v{VT+4}, vcc\nv_bfe_u32 v{VT+1}, v{VJ}, 1, 2")
    for t in range(4):
        a(f"v_cmp_eq_u32 vcc, {t}, v{VT+1}"); a.nop(2)
        a(f"v_cndmask_b32 v{MK+t}, 0, v{VT+2}, vcc")
    a("s_cmp_lg_u32 s30, 0\ns_cbranch_scc1 L_p2_skip")
    a.sleep(cfg.D_H1)
    if cfg.T_H1: lds_wait_ge(a, f"v{VCT}", 1, f"v{VT+2}", off=24)
    a(f"s_lshl_b32 s40, s28, 12\ns_add_u32 s52, s26, s40\ns_addc_u32 s53, s27, 0\ns_mov_b32 s54, {0 if cfg.LOCAL else 1}\ns_mov_b32 s55, 0")
    a(f"s_lshl_b32 s40, s28, 6\ns_add_u32 s40, s40, {WS_XI}\nv_lshlrev_b32 v{VT}, 2, v{VJ}\nv_add_u32 v{VT}, s40, v{VT}")
    Lp, Lx = spin_head(a, "s60", cfg.GSPIN, "H1")
    if cfg.LOCAL:
        Ln = a.lab("H1N")
        a(f"s_bitcmp1_b32 s55, 0\ns_cbranch_scc0 {Ln}")
        a("s_andn2_b32 s55, s55, 1\ns_mov_b32 s54, 1")
        a("v_mov_b32 v28, -1\nv_mov_b32 v29, -1\nv_mov_b32 v30, -1\nv_mov_b32 v31, -1")
        h2poison("sc1")
        a(f"s_waitcnt vmcnt(0)\nv_or_b32 v49, 0x2000, v49\ns_mov_b64 exec, 0xffff\nglobal_store_dwordx4 v{VL16}, v[60:63], s[48:49] sc1")
        a(f"s_mov_b64 exec, 1\nglobal_store_dword v48, v49, s[26:27] sc1\ns_mov_b64 exec, -1\n{Ln}:")
    for rb in range(4): a(f"global_load_dwordx4 v[{20+4*rb}:{23+4*rb}], v{VL16}, s[52:53] offset:{1024*rb} sc1")
    if cfg.LOCAL: a(f"global_load_dword v36, v{VT}, s[26:27] sc1")
    spin_bound(a, "s60", cfg.GSPIN, Lx)
    a("s_waitcnt vmcnt(0)")
    tagcheck(a, "v40", list(range(20, 36)) + ([36] if cfg.LOCAL else []), VTAG)
    if cfg.LOCAL:
        Lf, Lg = a.lab("H1F"), a.lab("H1G")
        a(f"s_cbranch_vccnz {Lf}")
        a(f"v_bfe_u32 v40, v36, 10, 3\nv_cmp_ne_u32 vcc, s59, v40\ns_cbranch_vccz {Lx}")
        a(f"s_bitset1_b32 s55, 1\ns_cmp_lg_u32 s54, 0\ns_cbranch_scc1 {Lg}\ns_bitset1_b32 s55, 0\ns_branch {Lp}\n{Lg}:")
        a(f"v_and_b32 v40, 0x2000, v36\nv_cmp_eq_u32 vcc, 0, v40\ns_cbranch_vccz {Lx}\n{Lf}:")
        a(f"s_cmp_lg_u32 s60, {cfg.TO_H1}\ns_cbranch_scc1 {Lg}x\ns_cmp_lg_u32 s54, 0\ns_cbranch_scc1 {Lg}x\ns_bitset1_b32 s55, 0\n{Lg}x:")
        a.sleep(cfg.B_H1); a(f"s_branch {Lp}")
    else:
        a(f"s_cbranch_vccz {Lx}"); a.sleep(cfg.B_H1); a(f"s_branch {Lp}")
    a(f"{Lx}:\ns_mov_b64 exec, -1\ns_waitcnt vmcnt(0)")
    if cfg.STAMP: a("s_mov_b32 s88, s60\ns_mov_b32 s89, 0")
    a(f"v_mov_b32 v40, s54"); lds_set(a, f"v{VCT}", 28, "v40")
    for e in range(4): a(f"v_add_f32 v{36+e}, v{20+e}, v{24+e}\nv_add_f32 v{40+e}, v{28+e}, v{32+e}\nv_add_f32 v{36+e}, v{36+e}, v{40+e}")
    a("v_cvt_pk_bf16_f32 v36, v36, v37\nv_cvt_pk_bf16_f32 v37, v38, v39")
    a(f"v_lshlrev_b32 v{VT}, 3, v{VL}\nv_add_u32 v{VT}, {L_QB}, v{VT}\nds_write_b64 v{VT}, v[36:37]")
    a("L_p2_skip:")
    if cfg.LONLY == 4: a("s_branch L_fin")
    a.stamp(3)
    a(f"v_lshrrev_b32 v{VT}, 3, v{VJ}\nv_lshlrev_b32 v{VT}, 8, v{VT}\nv_lshl_add_u32 v{VT}, v{VKG}, 4, v{VT}\nv_add_u32 v{VT}, {L_QB}, v{VT}")
    Lp, Lx = spin_head(a, "s60", cfg.SPIN, "QF")
    for dd in range(4): a(f"ds_read_b128 v[{QF+4*dd}:{QF+4*dd+3}], v{VT} offset:{64*dd}")
    spin_bound(a, "s60", cfg.SPIN, Lx)
    a(f"s_waitcnt lgkmcnt(0)\nv_max3_u32 v{VT+1}, v{QF}, v{QF+1}, v{QF+2}")
    for i in range(3, 15, 2): a(f"v_max3_u32 v{VT+1}, v{VT+1}, v{QF+i}, v{QF+i+1}")
    a(f"v_max_u32 v{VT+1}, v{VT+1}, v{QF+15}\nv_cmp_eq_u32 vcc, -1, v{VT+1}\ns_cbranch_vccnz {Lp}\n{Lx}:\ns_waitcnt lgkmcnt(0)")
    a.stamp(4)
    for r in range(4):
        lds_wait_ge(a, f"v{VCT}", 2 + r, f"v{VT+2}")
        if r == 3: a.stamp(5)
        for dd in range(4): a(f"ds_read_b128 v[{KF+16*r+4*dd}:{KF+16*r+4*dd+3}], v{KA+dd} offset:{16384*r}")
        for dd in range(4):
            a(f"s_waitcnt lgkmcnt({3-dd})")
            cin = "0" if dd == 0 else f"v[{S+4*r}:{S+4*r+3}]"
            a(f"v_mfma_f32_16x16x32_bf16 v[{S+4*r}:{S+4*r+3}], v[{KF+16*r+4*dd}:{KF+16*r+4*dd+3}], v[{QF+4*dd}:{QF+4*dd+3}], {cin}")
    a(f"v_mov_b32 v{VT+2}, 1"); lds_set(a, f"v{VCT}", 4, f"v{VT+2}", "ds_add_u32")
    a.nop(8)
    a(f"v_max3_f32 v{VT+1}, v{S}, v{S+1}, v{S+2}")
    for i in range(3, 15, 2): a(f"v_max3_f32 v{VT+1}, v{VT+1}, v{S+i}, v{S+i+1}")
    a(f"v_max_f32 v{VT+1}, v{VT+1}, v{S+15}")
    xrow_red(a, "v_max_f32", f"v{VT+1}", f"v{VT+2}")
    a(f"v_lshrrev_b32 v{VT+2}, 3, v{VJ}\nv_lshlrev_b32 v{VT+2}, 4, v{VT+2}\nv_add_u32 v{VT+3}, {L_MX}, v{VT+2}")
    a(f"s_lshl_b32 s40, s30, 2\nv_add_u32 v{VT+4}, s40, v{VT+3}")
    a(f"s_mov_b64 exec, 0x101\nds_write_b32 v{VT+4}, v{VT+1}\ns_mov_b64 exec, -1")
    Lp, Lx = spin_head(a, "s60", cfg.SPIN, "MX")
    a(f"ds_read_b128 v[{KF}:{KF+3}], v{VT+3}"); spin_bound(a, "s60", cfg.SPIN, Lx)
    a(f"s_waitcnt lgkmcnt(0)\nv_max3_u32 v{VT+5}, v{KF}, v{KF+1}, v{KF+2}\nv_max_u32 v{VT+5}, v{VT+5}, v{KF+3}\nv_cmp_eq_u32 vcc, -1, v{VT+5}\ns_cbranch_vccnz {Lp}")
    a(f"{Lx}:\ns_waitcnt lgkmcnt(0)")
    a(f"v_max3_f32 v{VT+1}, v{KF}, v{KF+1}, v{KF+2}\nv_max_f32 v{VT+1}, v{VT+1}, v{KF+3}")
    a(f"s_mov_b32 s44, {hex(CSCALE)}\nv_mul_f32 v17, s44, v{VT+1}")
    a(f"v_and_or_b32 v17, v17, s57, v{VTAG}")
    for i in range(16): a(f"v_fma_f32 v{S+i}, v{S+i}, s44, -v17")
    for i in range(16): a(f"v_exp_f32 v{S+i}, v{S+i}")
    a.nop(1)
    a(f"v_add_f32 v{VT+1}, v{S}, v{S+1}")
    for i in range(2, 16): a(f"v_add_f32 v{VT+1}, v{VT+1}, v{S+i}")
    xrow_red(a, "v_add_f32", f"v{VT+1}", f"v{VT+2}")
    a(f"v_add_u32 v{VT+4}, {L_LW-L_MX}, v{VT+4}")
    a(f"s_mov_b64 exec, 0x101\nds_write_b32 v{VT+4}, v{VT+1}\ns_mov_b64 exec, -1")
    a("s_cmp_lg_u32 s30, 3\ns_cbranch_scc1 L_p3_noml")
    a(f"v_add_u32 v{VT+3}, {L_LW-L_MX}, v{VT+3}")
    Lp, Lx = spin_head(a, "s60", cfg.SPIN, "LW")
    a(f"ds_read_b128 v[{KF}:{KF+3}], v{VT+3}"); spin_bound(a, "s60", cfg.SPIN, Lx)
    a(f"s_waitcnt lgkmcnt(0)\nv_add_f32 v{KF}, v{KF}, v{KF+1}\nv_add_f32 v{KF+2}, v{KF+2}, v{KF+3}\nv_add_f32 v19, v{KF}, v{KF+2}")
    a(f"v_cmp_u_f32 vcc, v19, v19\ns_cbranch_vccnz {Lp}\n{Lx}:\ns_waitcnt lgkmcnt(0)")
    a(f"s_lshl_b32 s46, s28, 4\ns_add_u32 s40, s46, s29\ns_lshl_b32 s40, s40, 7\ns_add_u32 s40, s40, {WS_ML}\ns_add_u32 s42, s26, s40\ns_addc_u32 s43, s27, 0")
    a(f"v_and_or_b32 v19, v19, s57, v{VTAG}")
    a("v_readlane_b32 s46, v17, 0\nv_readlane_b32 s47, v19, 0\nv_readlane_b32 s48, v17, 8\nv_readlane_b32 s49, v19, 8")
    a("v_mov_b32 v28, s46\nv_mov_b32 v29, s47\nv_mov_b32 v30, s48\nv_mov_b32 v31, s49")
    a(f"ds_read_b32 v{VT+2}, v{VCT} offset:28\ns_waitcnt lgkmcnt(0)\nv_readfirstlane_b32 s54, v{VT+2}\ns_mov_b64 exec, 0xff")
    L1, L2 = a.lab("MLG"), a.lab("MLD")
    a(f"s_cmp_lg_u32 s54, 0\ns_cbranch_scc1 {L1}\nglobal_store_dwordx4 v{VL16}, v[28:31], s[42:43]\ns_branch {L2}\n{L1}:")
    a(f"global_store_dwordx4 v{VL16}, v[28:31], s[42:43] sc1\n{L2}:\ns_mov_b64 exec, -1")
    a("L_p3_noml:")
    for i in range(16):
        a(f"v_cvt_pk_bf16_f32 v{S+i}, v{S+i}, v{S+i}")
        for t in range(4): a(f"v_and_b32 v{AO+4*i+t}, v{S+i}, v{MK+t}")
    a.stamp(6)
    if cfg.LONLY == 5: a("s_branch L_fin")
    VF = KF
    MLR = 20
    a(f"s_lshl_b32 s40, s30, 12\ns_add_u32 s40, s40, {L_V}\nv_add_u32 v{VT}, s40, v{VL16}")
    a(f"s_lshl_b32 s40, s28, 11\ns_add_u32 s40, s40, {WS_ML}\ns_add_u32 s42, s26, s40\ns_addc_u32 s43, s27, 0\nv_lshlrev_b32 v16, 7, v{VJ}")
    for r in range(4): a(f"v_mov_b32 v{O+r}, 0")
    MLB, MLC = 32, 36
    a(f"s_lshl_b32 s40, s28, 4\ns_add_u32 s40, s40, s29\ns_lshl_b32 s40, s40, 9\ns_add_u32 s40, s40, {WS_H2}\ns_add_u32 s48, s26, s40\ns_addc_u32 s49, s27, 0")
    a(f"v_lshrrev_b32 v9, 1, v{VKG}\nv_lshlrev_b32 v9, 8, v9\nv_lshl_add_u32 v9, v{VJ}, 4, v9")
    def ml_merge():
        a(f"v_mov_b32 v24, v{MLR}\nv_mov_b32 v25, v{MLR+2}")
        row_red(a, "v_max_f32", ["v24", "v25"])
        a(f"v_sub_f32 v26, v{MLR}, v24\nv_sub_f32 v27, v{MLR+2}, v25\nv_exp_f32 v26, v26\nv_exp_f32 v27, v27")
        a("v_readlane_b32 s44, v17, 0\nv_readlane_b32 s45, v17, 8")
        a(f"v_mul_f32 v26, v26, v{MLR+1}\nv_mul_f32 v27, v27, v{MLR+3}")
        row_red(a, "v_add_f32", ["v26", "v27"])
        a("v_sub_f32 v24, s44, v24\nv_sub_f32 v25, s45, v25\nv_rcp_f32 v26, v26\nv_rcp_f32 v27, v27\nv_exp_f32 v24, v24\nv_exp_f32 v25, v25")
        a.nop(1)
        a("v_mul_f32 v24, v24, v26\nv_mul_f32 v25, v25, v27")
        a("s_mov_b32 exec_lo, 0\nv_mov_b32 v24, v25\ns_mov_b64 exec, -1")
    def cp4(dst, src):
        for e in range(4): a(f"v_mov_b32 v{dst+e}, v{src+e}")
    for r in range(4):
        if r == 3:
            L, Lm, Ls = a.lab("MLS"), a.lab("MLM"), a.lab("MLK")
            a(f"s_cmp_lg_u32 s30, 3\ns_cbranch_scc1 {L}\ns_mov_b32 s62, 0\ns_waitcnt vmcnt(2)")
            tagcheck(a, f"v{VT+2}", range(MLR, MLR+4), VTAG)
            a(f"s_cbranch_vccz {Lm}\ns_waitcnt vmcnt(1)")
            tagcheck(a, f"v{VT+2}", range(MLB, MLB+4), VTAG)
            cp4(MLR, MLB)
            a(f"s_cbranch_vccz {Lm}\ns_mov_b32 s62, 1\ns_branch {Ls}\n{Lm}:")
            ml_merge()
            a(f"{Ls}:")
            a(f"{L}:")
        lds_wait_ge(a, f"v{VCT}", 6 + r, f"v{VT+2}")
        for t in range(4): a(f"ds_read_b128 v[{VF+4*t}:{VF+4*t+3}], v{VT} offset:{16384*r+1024*t}")
        if r < 3:
            L = a.lab("MLI"); d = (MLR, MLB, MLC)[r]
            a(f"s_cmp_lg_u32 s30, 3\ns_cbranch_scc1 {L}\nglobal_load_dwordx4 v[{d}:{d+3}], v16, s[42:43] sc1\n{L}:")
        for t in range(4):
            a(f"s_waitcnt lgkmcnt({3-t})")
            a(f"v_mfma_f32_16x16x32_bf16 v[{O}:{O+3}], v[{AO+16*r+4*t}:{AO+16*r+4*t+3}], v[{VF+4*t}:{VF+4*t+3}], v[{O}:{O+3}]")
    a(f"v_mov_b32 v{VT+2}, 1"); lds_set(a, f"v{VCT}", 8, f"v{VT+2}", "ds_add_u32")
    a.stamp(7)
    a("s_cmp_eq_u32 s30, 3\ns_cbranch_scc1 L_p4_pub")
    a(f"s_lshl_b32 s40, s30, 10\ns_add_u32 s40, s40, {L_OP}\nv_add_u32 v{VT}, s40, v{VL16}")
    a(f"ds_write_b128 v{VT}, v[{O}:{O+3}]")
    a("s_branch L_p4_done")
    a("L_p4_pub:")
    Ld = a.lab("MLD")
    a(f"s_cmp_eq_u32 s62, 0\ns_cbranch_scc1 {Ld}\ns_waitcnt vmcnt(0)")
    cp4(MLR, MLC)
    Lp, Lx = a.lab("ML"), a.lab("MLX")
    a("s_mov_b32 s61, 0\ns_branch " + Lp + "_chk")
    a(f"{Lp}:\nglobal_load_dwordx4 v[{MLR}:{MLR+3}], v16, s[42:43] sc1")
    a(f"{Lp}_chk:")
    spin_bound(a, "s61", cfg.GSPIN, Lx)
    a("s_waitcnt vmcnt(0)")
    tagcheck(a, f"v{VT+2}", range(MLR, MLR+4), VTAG)
    a(f"s_cbranch_vccz {Lx}"); a.sleep(cfg.B_ML); a(f"s_branch {Lp}")
    a(f"{Lx}:\ns_waitcnt vmcnt(0)")
    ml_merge()
    a(f"{Ld}:")
    a(f"v_add_u32 v{VT}, {L_OP}, v{VL16}")
    Lp, Lx = spin_head(a, "s60", cfg.SPIN, "OP")
    for w in range(3): a(f"ds_read_b128 v[{VF+4*w}:{VF+4*w+3}], v{VT} offset:{1024*w}")
    spin_bound(a, "s60", cfg.SPIN, Lx)
    a("s_waitcnt lgkmcnt(0)")
    for e in range(4): a(f"v_add_f32 v{VF+12+e}, v{VF+e}, v{VF+4+e}\nv_add_f32 v{VF+12+e}, v{VF+12+e}, v{VF+8+e}")
    a(f"v_add_f32 v{VT+3}, v{VF+12}, v{VF+13}\nv_add_f32 v{VT+4}, v{VF+14}, v{VF+15}\nv_add_f32 v{VT+3}, v{VT+3}, v{VT+4}")
    a(f"v_cmp_u_f32 vcc, v{VT+3}, v{VT+3}\ns_cbranch_vccnz {Lp}\n{Lx}:\ns_waitcnt lgkmcnt(0)")
    for e in range(4): a(f"v_add_f32 v{O+e}, v{O+e}, v{VF+12+e}\nv_mul_f32 v{O+e}, v{O+e}, v24")
    a(f"v_cvt_pk_bf16_f32 v28, v{O}, v{O+1}\nv_cvt_pk_bf16_f32 v29, v{O+2}, v{O+3}\nv_mov_b32 v30, v28\nv_mov_b32 v31, v29")
    a.nop(1)
    a("v_permlane16_swap_b32 v28, v30\nv_permlane16_swap_b32 v29, v31")
    a.nop(2)
    a.exec64(0x0000ffff, 0x0000ffff)
    L1, L2 = a.lab("PUBG"), a.lab("PUBD")
    a(f"s_cmp_lg_u32 s54, 0\ns_cbranch_scc1 {L1}")
    a(f"global_store_dwordx4 v9, v[28:31], s[48:49]\ns_branch {L2}\n{L1}:")
    a(f"global_store_dwordx4 v9, v[28:31], s[48:49] sc1\n{L2}:\ns_mov_b64 exec, -1")
    if cfg.PFS:
        a(f"v_mov_b32 v{VT+2}, 1"); lds_set(a, f"v{VCT}", 44, f"v{VT+2}")
    a("L_p4_done:")
    a.stamp(8)
    a("s_cmp_lt_u32 s29, 9\ns_cbranch_scc1 L_role_f")
    G, BF, D5 = 20, 64, 112
    a("s_cmp_eq_u32 s29, 15\ns_cbranch_scc1 L_p5_done")
    a(f"s_lshl_b32 s40, s28, 13\ns_add_u32 s40, s40, {WS_H2}\ns_add_u32 s42, s26, s40\ns_addc_u32 s43, s27, 0")
    a(f"v_lshlrev_b32 v{VT}, 9, v{VJ}\nv_lshl_add_u32 v{VT}, v{VKG}, 4, v{VT}\ns_lshl_b32 s40, s30, 7\nv_add_u32 v{VT}, s40, v{VT}")
    a(f"v_bfe_u32 v{VT+2}, v{VL}, 2, 2\nv_lshl_add_u32 v{VT+2}, v{VKG}, 3, v{VT+2}\ns_lshl_b32 s40, s30, 6\nv_add_u32 v{VT+2}, s40, v{VT+2}")
    a(f"v_mul_u32_u24 v{VT+2}, 192, v{VT+2}\nv_and_b32 v{VT+3}, 3, v{VL}\nv_lshl_add_u32 v{VT+2}, v{VT+3}, 3, v{VT+2}")
    lds_wait_ge(a, f"v{VCT}", 1, f"v{VT+4}", off=12)
    a("s_mov_b32 s62, 0")
    Lp, Lx = spin_head(a, "s61", cfg.GSPIN, "H2")
    for t in range(2): a(f"global_load_dwordx4 v[{G+4*t}:{G+4*t+3}], v{VT}, s[42:43] offset:{64*t} sc1")
    Lq = a.lab("H2F")
    a(f"s_cmp_lg_u32 s62, 0\ns_cbranch_scc1 {Lq}\ns_mov_b32 s62, 1")
    a(f"v_mov_b32 v{VT+4}, 1"); lds_set(a, f"v{VCT}", 16, f"v{VT+4}", "ds_add_u32")
    if cfg.WOROT: a("s_and_b32 s63, s29, 1\ns_lshl_b32 s63, s63, 1\ns_add_u32 s63, s63, s30\ns_and_b32 s63, s63, 3\ns_add_u32 s63, s63, 10")
    else: a("s_add_u32 s63, s30, 10")
    lds_wait_ge(a, f"v{VCT}", "s63", f"v{VT+4}")
    for t in range(2):
        for nb_ in range(6):
            for h in range(2):
                a(f"ds_read_b64_tr_b16 v[{BF+8*nb_+4*t+2*h}:{BF+8*nb_+4*t+2*h+1}], v{VT+2} offset:{O_WO+t*6144+h*768+nb_*32}")
    a(f"{Lq}:")
    spin_bound(a, "s61", cfg.GSPIN, Lx)
    a(f"s_waitcnt vmcnt(0)\nv_max3_u32 v{VT+4}, v{G}, v{G+1}, v{G+2}\nv_max3_u32 v{VT+4}, v{VT+4}, v{G+3}, v{G+4}\nv_max3_u32 v{VT+4}, v{VT+4}, v{G+5}, v{G+6}\nv_max_u32 v{VT+4}, v{VT+4}, v{G+7}")
    a(f"v_cmp_eq_u32 vcc, -1, v{VT+4}\ns_and_b64 exec, exec, vcc\ns_cbranch_execz {Lx}"); a.sleep(cfg.B_H2); a(f"s_branch {Lp}")
    a(f"{Lx}:\ns_mov_b64 exec, -1\ns_waitcnt vmcnt(0) lgkmcnt(0)")
    a.stamp(9)
    for t in range(2):
        for nb_ in range(6):
            cin = "0" if t == 0 else f"v[{D5+4*nb_}:{D5+4*nb_+3}]"
            a(f"v_mfma_f32_16x16x32_bf16 v[{D5+4*nb_}:{D5+4*nb_+3}], v[{G+4*t}:{G+4*t+3}], v[{BF+8*nb_+4*t}:{BF+8*nb_+4*t+3}], {cin}")
    a.nop(4)
    for nb_ in range(6):
        b = D5 + 4*nb_
        if nb_ == 5: a.nop(4)
        a(f"v_add_f32 v{b}, v{b}, v{b+1}\nv_add_f32 v{b+2}, v{b+2}, v{b+3}\nv_add_f32 v{b}, v{b}, v{b+2}")
    a0, a1, a2, a3 = D5, D5+4, D5+8, D5+12
    b0, b1 = D5+16, D5+20
    z0, z1 = D5+1, D5+2
    a(f"v_mov_b32 v{z0}, 0\nv_mov_b32 v{z1}, 0"); a.nop(2)
    a(f"v_permlane32_swap_b32 v{a0}, v{a2}\nv_permlane32_swap_b32 v{a1}, v{a3}\nv_permlane32_swap_b32 v{b0}, v{z0}\nv_permlane32_swap_b32 v{b1}, v{z1}"); a.nop(1)
    a(f"v_add_f32 v{a0}, v{a0}, v{a2}\nv_add_f32 v{a1}, v{a1}, v{a3}\nv_add_f32 v{b0}, v{b0}, v{z0}\nv_add_f32 v{b1}, v{b1}, v{z1}"); a.nop(2)
    a(f"v_permlane16_swap_b32 v{a0}, v{a1}\nv_permlane16_swap_b32 v{b0}, v{b1}"); a.nop(1)
    a(f"v_add_f32 v{a0}, v{a0}, v{a1}\nv_add_f32 v{b0}, v{b0}, v{b1}")
    a(f"s_lshl_b32 s40, s30, 9\ns_add_u32 s40, s40, {L_R5}\nv_lshlrev_b32 v{VT}, 2, v{VL}\nv_add_u32 v{VT}, s40, v{VT}")
    a(f"ds_write_b32 v{VT}, v{a0}\nds_write_b32 v{VT}, v{b0} offset:256")
    a("s_cmp_lg_u32 s30, 3\ns_cbranch_scc1 L_p5_done")
    a(f"v_lshlrev_b32 v{VT}, 5, v{VL}\nv_add_u32 v{VT}, {L_R5}, v{VT}")
    a("s_sub_u32 s41, s29, 9\ns_mov_b64 exec, 0xfff")
    Lp, Lx = spin_head(a, "s60", cfg.SPIN, "R5")
    for w in range(4):
        for h in range(2): a(f"ds_read_b128 v[{BF+8*w+4*h}:{BF+8*w+4*h+3}], v{VT} offset:{512*w+16*h}")
    spin_bound(a, "s60", cfg.SPIN, Lx)
    a("s_waitcnt lgkmcnt(0)")
    for e in range(8): a(f"v_add_f32 v{G+e}, v{BF+e}, v{BF+8+e}\nv_add_f32 v{BF+32+e}, v{BF+16+e}, v{BF+24+e}\nv_add_f32 v{G+e}, v{G+e}, v{BF+32+e}")
    a(f"v_add_f32 v{VT+3}, v{G}, v{G+1}")
    for e in range(2, 8): a(f"v_add_f32 v{VT+3}, v{VT+3}, v{G+e}")
    a(f"v_cmp_u_f32 vcc, v{VT+3}, v{VT+3}\ns_cbranch_vccnz {Lp}\n{Lx}:\ns_waitcnt lgkmcnt(0)")
    for e in range(4): a(f"v_cvt_pk_bf16_f32 v{G+e}, v{G+2*e}, v{G+2*e+1}")
    a(f"s_mul_i32 s40, s41, 192\ns_mul_i32 s44, s28, 1152\ns_add_u32 s40, s40, s44\ns_add_u32 s40, s40, {WS_H3}\ns_add_u32 s42, s26, s40\ns_addc_u32 s43, s27, 0")
    a(f"global_store_dwordx4 v{VL16}, v[{G}:{G+3}], s[42:43] sc1\ns_mov_b64 exec, -1")
    a("L_p5_done:")
    a.stamp(10)
    a(f"s_cmp_ge_u32 s30, {cfg.REDW}\ns_cbranch_scc1 L_fin")
    a("s_lshr_b32 s40, s28, 1\ns_and_b32 s44, s28, 1\ns_sub_u32 s41, s29, 9\ns_lshl_b32 s41, s41, 1\ns_add_u32 s41, s41, s44")
    a("s_cmp_lt_u32 s41, 8\ns_cbranch_scc1 L_p9_go\ns_cmp_ge_u32 s41, 12\ns_cbranch_scc1 L_fin\ns_cmp_ge_u32 s40, 2\ns_cbranch_scc1 L_fin")
    a("L_p9_go:")
    a("s_lshr_b32 s44, s41, 2\ns_lshl_b32 s44, s44, 3\ns_add_u32 s44, s44, s40\ns_lshl_b32 s44, s44, 5\ns_and_b32 s45, s41, 3\ns_lshl_b32 s45, s45, 3\ns_add_u32 s44, s44, s45")
    alive_addr(a, VL, 9, VT+2)
    a(f"s_lshl_b32 s40, s44, 1\ns_add_u32 s40, s40, {WS_H3}\ns_add_u32 s42, s26, s40\ns_addc_u32 s43, s27, 0")
    a(f"v_mul_u32_u24 v{VT}, 1152, v{VJ}\nv_lshl_add_u32 v{VT}, v{VKG}, 1, v{VT}")
    a(f"s_lshl_b32 s40, s44, 1\ns_add_u32 s46, s4, s40\ns_addc_u32 s47, s5, 0\nv_lshlrev_b32 v{VT+1}, 1, v{VKG}")
    a(f"global_load_ushort v26, v{VT+1}, s[46:47]\nglobal_load_ushort v27, v{VT+1}, s[46:47] offset:8")
    Lp, Lx = spin_head(a, "s60", cfg.GSPIN, "HH")
    alive_load(a, 9)
    a(f"global_load_ushort v24, v{VT}, s[42:43] sc1\nglobal_load_ushort v25, v{VT}, s[42:43] offset:8 sc1"); spin_bound(a, "s60", cfg.GSPIN, Lx)
    a("s_waitcnt vmcnt(0)"); alive_test(a)
    a("v_max_u32 v28, v24, v25\nv_cmp_eq_u32 vcc, 0xffff, v28\ns_or_b64 vcc, vcc, s[50:51]")
    a(f"s_cbranch_vccz {Lx}"); a.sleep(4); a(f"s_branch {Lp}\n{Lx}:\ns_waitcnt vmcnt(0)")
    a("v_lshlrev_b32 v24, 16, v24\nv_lshlrev_b32 v25, 16, v25\nv_lshlrev_b32 v26, 16, v26\nv_lshlrev_b32 v27, 16, v27")
    row_red(a, "v_add_f32", ["v24", "v25"])
    a("v_add_f32 v24, v24, v26\nv_add_f32 v25, v25, v27")
    a.exec64(0xaaaaaaaa, 0xaaaaaaaa); a("v_mov_b32 v24, v25\ns_mov_b64 exec, -1")
    a(f"s_lshl_b32 s40, s44, 2\ns_add_u32 s40, s40, {WS_H4}\ns_add_u32 s42, s26, s40\ns_addc_u32 s43, s27, 0")
    a(f"v_lshrrev_b32 v{VT}, 1, v{VL}\nv_mul_u32_u24 v{VT}, 2304, v{VT}\nv_and_b32 v{VT+1}, 1, v{VL}\nv_lshl_add_u32 v{VT}, v{VT+1}, 4, v{VT}")
    for t in range(1, 5): a(f"v_add_u32 v{VT+t}, {32*2304*t}, v{VT}")
    for e in range(4): a(f"v_mov_b32 v{80+e}, v{VTAG}")
    a(f"s_lshl_b32 s40, s44, 1\ns_add_u32 s48, s22, s40\ns_addc_u32 s49, s23, 0\nv_and_b32 v10, 1, v{VL}\nv_lshlrev_b32 v10, 3, v10\nv_lshl_add_u32 v10, v{VKG}, 1, v10")
    if cfg.H4P:
        def issue(b):
            for t in range(4): a(f"global_load_dwordx4 v[{b+4*t}:{b+4*t+3}], v{VT+t}, s[42:43] sc1")
            a(f"s_mov_b32 exec_hi, 0\nglobal_load_dwordx4 v[{b+16}:{b+19}], v{VT+4}, s[42:43] sc1\ns_mov_b64 exec, -1")
        def sums(b):
            for e in range(4): a(f"v_add_f32 v{20+e}, v{b+e}, v{b+4+e}\nv_add_f32 v{28+e}, v{b+8+e}, v{b+12+e}\nv_add_f32 v{20+e}, v{20+e}, v{b+16+e}\nv_add_f32 v{20+e}, v{20+e}, v{28+e}")
        for e in range(4): a(f"v_mov_b32 v{100+e}, v{VTAG}")
        Lp, Lx, Lb, Ld = a.lab("H4"), a.lab("H4A"), a.lab("H4B"), a.lab("H4D")
        a("s_mov_b32 s60, 0")
        issue(64); issue(84)
        a(f"{Lp}:")
        a("s_waitcnt vmcnt(5)")
        tagcheck(a, "v28", range(64, 84), VTAG)
        a(f"s_cbranch_vccz {Lx}")
        issue(64)
        a("s_waitcnt vmcnt(5)")
        tagcheck(a, "v28", range(84, 104), VTAG)
        a(f"s_cbranch_vccz {Lb}")
        issue(84)
        a(f"s_add_u32 s60, s60, 1\ns_cmp_le_u32 s60, {cfg.GSPIN}\ns_cbranch_scc1 {Lp}\ns_waitcnt vmcnt(0)")
        a(f"{Lx}:")
        a.stamp(14)
        sums(64)
        a(f"s_branch {Ld}\n{Lb}:")
        a.stamp(14)
        sums(84)
        a(f"{Ld}:")
    elif cfg.H4M:
        M = ["s[52:53]", "s[54:55]", "s[62:63]", "s[98:99]", "s[100:101]"]
        for t in range(4): a(f"s_mov_b64 {M[t]}, -1")
        a("s_mov_b32 s100, -1\ns_mov_b32 s101, 0")
        Lp, Lx = spin_head(a, "s60", cfg.GSPIN, "H4")
        for t in range(5):
            L = a.lab("H4L")
            a(f"s_mov_b64 exec, {M[t]}\ns_cbranch_execz {L}\nglobal_load_dwordx4 v[{64+4*t}:{67+4*t}], v{VT+t}, s[42:43] sc1\n{L}:")
        a("s_mov_b64 exec, -1")
        spin_bound(a, "s60", cfg.GSPIN, Lx)
        a("s_waitcnt vmcnt(0)")
        for t in range(5):
            L = a.lab("H4C")
            a(f"s_mov_b64 exec, {M[t]}\ns_cbranch_execz {L}")
            tagcheck(a, "v28", range(64+4*t, 68+4*t), VTAG)
            a(f"s_mov_b64 {M[t]}, vcc\n{L}:")
        a(f"s_or_b64 s[46:47], {M[0]}, {M[1]}\ns_or_b64 s[46:47], s[46:47], {M[2]}\ns_or_b64 s[46:47], s[46:47], {M[3]}\ns_or_b64 s[46:47], s[46:47], {M[4]}")
        a(f"s_cbranch_scc0 {Lx}"); a.sleep(cfg.B_H4); a(f"s_branch {Lp}")
        a(f"{Lx}:\ns_mov_b64 exec, -1\ns_waitcnt vmcnt(0)")
    else:
        a("s_mov_b64 s[46:47], -1")
        Lp, Lx = spin_head(a, "s60", cfg.GSPIN, "H4")
        for t in range(4): a(f"global_load_dwordx4 v[{64+4*t}:{67+4*t}], v{VT+t}, s[42:43] sc1")
        a(f"s_mov_b32 exec_hi, 0\nglobal_load_dwordx4 v[80:83], v{VT+4}, s[42:43] sc1\ns_mov_b64 exec, s[46:47]")
        spin_bound(a, "s60", cfg.GSPIN, Lx)
        a("s_waitcnt vmcnt(0)")
        tagcheck(a, "v28", range(64, 84), VTAG)
        a(f"s_and_b64 s[46:47], exec, vcc\ns_mov_b64 exec, s[46:47]\ns_cbranch_execz {Lx}"); a.sleep(cfg.B_H4); a(f"s_branch {Lp}")
        a(f"{Lx}:\ns_mov_b64 exec, -1\ns_waitcnt vmcnt(0)")
    if not cfg.H4P: a.stamp(14)
    if cfg.UNTIL:
        L = a.lab("UNT")
        a(f"s_add_u32 s52, s96, {cfg.UNTIL}\n{L}:\ns_memrealtime s[54:55]\ns_waitcnt lgkmcnt(0)\ns_sub_u32 s54, s54, s52\ns_cmp_lt_i32 s54, 0\ns_cbranch_scc1 {L}")
    if cfg.DELAY:
        L = a.lab("DLY")
        a(f"s_memtime s[52:53]\ns_waitcnt lgkmcnt(0)\ns_add_u32 s52, s52, {cfg.DELAY}\n{L}:\ns_memtime s[54:55]\ns_waitcnt lgkmcnt(0)\ns_sub_u32 s54, s54, s52\ns_cmp_lt_i32 s54, 0\ns_cbranch_scc1 {L}")
    if not cfg.H4P:
      for e in range(4): a(f"v_add_f32 v{20+e}, v{64+e}, v{68+e}\nv_add_f32 v{28+e}, v{72+e}, v{76+e}\nv_add_f32 v{20+e}, v{20+e}, v{80+e}\nv_add_f32 v{20+e}, v{20+e}, v{28+e}")
    a.nop(2)
    a("v_permlane32_swap_b32 v20, v22\nv_permlane32_swap_b32 v21, v23"); a.nop(1)
    a("v_add_f32 v20, v20, v22\nv_add_f32 v21, v21, v23"); a.nop(2)
    a("v_permlane16_swap_b32 v20, v21"); a.nop(1)
    a("v_add_f32 v20, v20, v21")
    for ctl in ("row_ror:8", "row_ror:4", "row_ror:2"):
        a.nop(2); dpp(a, "v_add_f32", "v20", ctl)
    a("v_add_f32 v20, v20, v24\nv_cvt_pk_bf16_f32 v20, v20, v20")
    a.exec64(0x00030003, 0x00030003)
    a(f"global_store_short v10, v20, s[48:49]\ns_mov_b64 exec, -1")
    a(f"s_or_b32 s40, s44, s30\ns_cmp_lg_u32 s40, 0\ns_cbranch_scc1 L_fin\nv_mov_b32 v{VT}, {WS_EP}\nv_mov_b32 v{VT+1}, s58\ns_mov_b64 exec, 1\nglobal_store_dword v{VT}, v{VT+1}, s[26:27]\ns_mov_b64 exec, -1")
    a("s_branch L_fin")
    a("L_role_f:")
    WF, RAW, HF, AC, SEL, DF = 64, 136, 136, 236, 56, 208
    lds_wait_ge(a, f"v{VCT}", 1, f"v{VT+2}", off=40)
    a(f"s_cmp_eq_u32 s31, 2\ns_cselect_b32 s98, 0, {L_V}\ns_cselect_b32 s99, {L_V}, 0\ns_cmp_ge_u32 s31, 2\ns_cselect_b32 s100, 10, 11\ns_cselect_b32 s101, 11, 12\ns_cselect_b32 s53, 12, 10")
    TG = 36864
    a(f"v_bfe_u32 v{VT}, v{VL}, 2, 2\nv_lshl_add_u32 v{VT}, v{VKG}, 3, v{VT}\nv_lshlrev_b32 v{VT}, 6, v{VT}\nv_and_b32 v{VT+1}, 3, v{VL}\nv_lshl_add_u32 v{VT}, v{VT+1}, 3, v{VT}")
    a(f"s_and_b32 s40, s30, 1\ns_lshl_b32 s40, s40, 5\ns_cmp_ge_u32 s30, 2\ns_cselect_b32 s41, s98, {TG}\ns_add_u32 s40, s40, s41\nv_add_u32 v{VT}, s40, v{VT}")
    MG, MU, MD = "s100", "s101", "s53"
    a(f"v_bfe_u32 v10, v{VL}, 2, 2\nv_lshl_add_u32 v10, v{VKG}, 3, v10\nv_mul_u32_u24 v10, 1152, v10")
    a(f"v_and_b32 v{VT+2}, 3, v{VL}\nv_lshlrev_b32 v{VT+2}, 3, v{VT+2}\ns_mul_i32 s40, s30, {320 if cfg.FULLN else 288}\ns_add_u32 s40, s40, s99\nv_add_u32 v{VT+2}, s40, v{VT+2}\nv_add_u32 v10, v10, v{VT+2}")
    if cfg.FULLN: a("s_cmp_eq_u32 s30, 3\ns_cselect_b32 s40, 64, 0\nv_subrev_u32 v10, s40, v10")
    NB = 10 if cfg.FULLN else 9
    MSK = [6, 7, 8, 30, 31, 60, 61, 62, 63, 0]
    for n in range(NB): a(f"v_xor_b32 v{MSK[n]}, {n}, v{VJ}\nv_add_u32 v{MSK[n]}, -1, v{MSK[n]}\nv_ashrrev_i32 v{MSK[n]}, 31, v{MSK[n]}")
    def wfrags():
        for t in range(18):
            for h in range(2): a(f"ds_read_b64_tr_b16 v[{WF+4*t+2*h}:{WF+4*t+2*h+1}], v{VT} offset:{2048*t+256*h}")
    def dfrags():
        for n in range(NB):
            for h in range(2): a(f"ds_read_b64_tr_b16 v[{DF+4*n+2*h}:{DF+4*n+2*h+1}], v10 offset:{32*n+4608*h}")
    a("s_cmp_lg_u32 s30, 0\ns_cbranch_scc1 L_p6_skip")
    for t in range(4): a(f"v_and_b32 v{SEL+t}, 0x3f803f80, v{MK+t}")
    for pb in range(4):
        for e in range(4): a(f"v_mov_b32 v{RAW+64+4*pb+e}, 0")
    a(f"s_add_u32 s42, s26, {WS_H3}\ns_addc_u32 s43, s27, 0")
    a(f"v_mul_u32_u24 v{VT+1}, 1152, v{VKG}\nv_lshl_add_u32 v{VT+1}, v{VJ}, 4, v{VT+1}")
    lds_wait_ge(a, f"v{VCT}", MG, f"v{VT+2}")
    wfrags()
    alive_addr(a, VL, 9, 10 + 0) if False else None
    alive_addr(a, VL, 9, VT+2)
    lds_wait_ge(a, f"v{VCT}", 1, f"v{VT+2}", off=(32 if cfg.EH3 else 12))
    a.stamp(9)
    a("s_mov_b64 s[46:47], -1")
    Lp, Lx = spin_head(a, "s61", cfg.GSPIN, "H3")
    a("s_mov_b64 exec, -1"); alive_load(a, 9); a("s_mov_b64 exec, s[46:47]")
    a("s_mov_b32 s44, s42\ns_mov_b32 s45, s43")
    for pb in range(4):
        for cb in range(4): a(f"global_load_dwordx4 v[{RAW+16*cb+4*pb}:{RAW+16*cb+4*pb+3}], v{VT+1}, s[44:45] offset:{256*cb} sc1")
        a("s_and_b32 exec_lo, exec_lo, 0x00ff00ff\ns_and_b32 exec_hi, exec_hi, 0x00ff00ff")
        Lz = a.lab("H3Z")
        a(f"s_cbranch_execz {Lz}\nglobal_load_dwordx4 v[{RAW+64+4*pb}:{RAW+64+4*pb+3}], v{VT+1}, s[44:45] offset:1024 sc1\n{Lz}:")
        a(f"s_mov_b64 exec, s[46:47]\ns_add_u32 s44, s44, {4*1152}\ns_addc_u32 s45, s45, 0")
    a("s_mov_b64 exec, -1")
    if True:
        Lh = a.lab("H3H")
        a(f"s_cmp_lg_u32 s61, 0\ns_cbranch_scc1 {Lh}\nv_mov_b32 v{VT+2}, 1"); lds_set(a, f"v{VCT}", 16, f"v{VT+2}"); a(f"{Lh}:")
    spin_bound(a, "s61", cfg.GSPIN, Lx)
    Lw = a.lab("H3W")
    a(f"s_cmp_le_u32 s61, 1\ns_cbranch_scc1 {Lw}\ns_waitcnt vmcnt(0)")
    if cfg.H3Q:
        regs = [RAW + 16*cb + 4*pb for pb in range(4) for cb in range(5)]
        a(f"v_max3_u32 v14, v{regs[0]}, v{regs[1]}, v{regs[2]}")
        for i in range(3, 19, 2): a(f"v_max3_u32 v14, v14, v{regs[i]}, v{regs[i+1]}")
        a(f"v_max_u32 v14, v14, v{regs[19]}")
        alive_test(a)
        Lq2 = a.lab("H3Q")
        a(f"v_cmp_eq_u32 vcc, -1, v14\ns_cmp_lg_u64 s[50:51], 0\ns_cbranch_scc0 {Lq2}\ns_mov_b64 vcc, -1\n{Lq2}:")
        a(f"s_cbranch_vccz {Lw}\ns_mov_b64 s[46:47], vcc\ns_mov_b64 exec, vcc"); a.sleep(cfg.B_H3); a(f"s_branch {Lp}")
    a(f"{Lw}:")
    for pb in range(4):
        a(f"s_waitcnt vmcnt({15-5*pb})")
        if pb == 0: alive_test(a)
        for cb in range(5):
            c_in = XF + 4*cb if pb == 0 else AC + 4*cb
            a(f"v_mfma_f32_16x16x32_bf16 v[{AC+4*cb}:{AC+4*cb+3}], v[{SEL}:{SEL+3}], v[{RAW+16*cb+4*pb}:{RAW+16*cb+4*pb+3}], v[{c_in}:{c_in+3}]")
    a.nop(4)
    def pr(b): return f"v[{b}:{b+1}]"
    a(f"v_pk_add_f32 v[14:15], {pr(AC)}, {pr(AC+2)}\nv_pk_mul_f32 v[16:17], {pr(AC)}, {pr(AC)}\nv_pk_fma_f32 v[16:17], {pr(AC+2)}, {pr(AC+2)}, v[16:17]")
    for i in range(4, 20, 2):
        if i == 16: a.nop(4)
        a(f"v_pk_add_f32 v[14:15], v[14:15], {pr(AC+i)}\nv_pk_fma_f32 v[16:17], {pr(AC+i)}, {pr(AC+i)}, v[16:17]")
    a("v_add_f32 v14, v14, v15\nv_add_f32 v16, v16, v17")
    Lr = a.lab("H3R")
    a(f"v_cmp_u_f32 vcc, v14, v14\ns_cmp_lg_u64 s[50:51], 0\ns_cbranch_scc0 {Lr}\ns_mov_b64 vcc, -1\n{Lr}:")
    a(f"s_cbranch_vccz {Lx}\ns_mov_b64 s[46:47], vcc")
    if cfg.EH3 or cfg.W2ND:
        Le = a.lab("H3E")
        a(f"s_cmp_lg_u32 s61, 1\ns_cbranch_scc1 {Le}")
        lds_wait_ge(a, f"v{VCT}", 1, f"v{VT+3}", off=(36 if cfg.W2ND else 12))
        a(f"{Le}:")
    a("s_mov_b64 exec, s[46:47]"); a.sleep(cfg.B_H3); a(f"s_branch {Lp}")
    a(f"{Lx}:\ns_mov_b64 exec, -1\ns_waitcnt vmcnt(0) lgkmcnt(0)")
    a.stamp(11)
    row_red(a, "v_add_f32", ["v14", "v16"])
    a("v_mov_b32 v15, v14\nv_mov_b32 v17, v16"); a.nop(1)
    a("v_permlane16_swap_b32 v14, v15\nv_permlane16_swap_b32 v16, v17"); a.nop(1)
    a("v_add_f32 v14, v14, v15\nv_add_f32 v16, v16, v17")
    a(f"v_mul_f32 v14, {hex(f2b(1.0/576))}, v14\nv_mul_f32 v16, {hex(f2b(1.0/576))}, v16")
    a(f"v_fma_f32 v16, -v14, v14, v16\nv_max_f32 v16, 0, v16\nv_add_f32 v16, {hex(f2b(1e-5))}, v16\nv_rsq_f32 v16, v16")
    a(f"v_and_b32 v{VT+1}, 1, v{VKG}\nv_lshlrev_b32 v{VT+1}, 3, v{VT+1}\nv_lshl_add_u32 v{VT+1}, v{VJ}, 4, v{VT+1}\nv_add_u32 v{VT+1}, {L_HN}, v{VT+1}")
    a("v_mul_f32 v14, v14, v16\nv_mov_b32 v17, v16\nv_sub_f32 v14, 0, v14\nv_mov_b32 v15, v14")
    a("s_mov_b32 exec_hi, 0")
    for cb in range(5):
        a(f"v_pk_fma_f32 {pr(AC+4*cb)}, {pr(AC+4*cb)}, v[16:17], v[14:15]\nv_pk_fma_f32 {pr(AC+4*cb+2)}, {pr(AC+4*cb+2)}, v[16:17], v[14:15]")
        a(f"v_cvt_pk_bf16_f32 v{20+2*cb}, v{AC+4*cb}, v{AC+4*cb+1}\nv_cvt_pk_bf16_f32 v{21+2*cb}, v{AC+4*cb+2}, v{AC+4*cb+3}")
        if cb == 4: a("s_mov_b32 exec_lo, 0x00ff00ff")
        a(f"ds_write_b64 v{VT+1}, v[{20+2*cb}:{21+2*cb}] offset:{256*cb}")
    a("s_mov_b64 exec, -1")
    a(f"v_mov_b32 v{VT+2}, 1"); lds_set(a, f"v{VCT}", 20, f"v{VT+2}")
    a("s_branch L_p7_go")
    a("L_p6_skip:")
    a(f"s_cmp_ge_u32 s30, 2\ns_cselect_b32 s63, {MU}, {MG}")
    lds_wait_ge(a, f"v{VCT}", "s63", f"v{VT+2}")
    wfrags()
    L = a.lab("DFA")
    a(f"s_cmp_lg_u32 s53, 10\ns_cbranch_scc1 {L}")
    lds_wait_ge(a, f"v{VCT}", MD, f"v{VT+2}")
    dfrags()
    a(f"{L}:")
    lds_wait_ge(a, f"v{VCT}", 1, f"v{VT+2}", off=20)
    a("L_p7_go:")
    D7 = 20
    a(f"v_lshlrev_b32 v{VT+1}, 4, v{VKG}\nv_add_u32 v{VT+1}, {L_HN}, v{VT+1}")
    a("s_waitcnt lgkmcnt(0)")
    for t in range(14): a(f"ds_read_b128 v[{HF+4*t}:{HF+4*t+3}], v{VT+1} offset:{64*t}")
    for t in range(18):
        if t + 14 < 18: a("s_waitcnt lgkmcnt(13)")
        else: a(f"s_waitcnt lgkmcnt({17-t})")
        cin = "0" if t < 2 else f"v[{D7+4*(t&1)}:{D7+4*(t&1)+3}]"
        a(f"v_mfma_f32_16x16x32_bf16 v[{D7+4*(t&1)}:{D7+4*(t&1)+3}], v[{WF+4*t}:{WF+4*t+3}], v[{HF+4*t}:{HF+4*t+3}], {cin}")
        if t + 14 < 18: a(f"ds_read_b128 v[{HF+4*(t+14)}:{HF+4*(t+14)+3}], v{VT+1} offset:{64*(t+14)}")
    a(f"s_lshl_b32 s40, s30, 6\ns_add_u32 s40, s40, {L_R7}\nv_lshlrev_b32 v{VT}, 4, v{VKG}\nv_add_u32 v{VT}, s40, v{VT}")
    a(f"v_lshlrev_b32 v{VT+1}, 5, v{VKG}\nv_add_u32 v{VT+1}, {L_R7}, v{VT+1}")
    a(f"s_mul_i32 s40, s28, 9\ns_add_u32 s40, s40, s29\ns_mul_i32 s40, s40, 2304\ns_mul_i32 s41, s30, {640 if cfg.FULLN else 576}\ns_add_u32 s40, s40, s41\ns_add_u32 s40, s40, {WS_H4}")
    if cfg.FULLN: a("s_cmp_eq_u32 s30, 3\ns_cselect_b32 s41, 128, 0\ns_sub_u32 s40, s40, s41")
    a(f"s_add_u32 s42, s26, s40\ns_addc_u32 s43, s27, 0")
    for e in range(4): a(f"v_add_f32 v{D7+e}, v{D7+e}, v{D7+4+e}")
    a.exec64(0x00010001, 0x00010001)
    a(f"ds_write_b128 v{VT}, v[{D7}:{D7+3}]\ns_mov_b64 exec, -1")
    L, L2 = a.lab("DFB"), a.lab("DFC")
    a(f"s_cmp_eq_u32 s30, 0\ns_cbranch_scc1 {L2}\ns_cmp_eq_u32 s53, 10\ns_cbranch_scc1 {L}\n{L2}:")
    lds_wait_ge(a, f"v{VCT}", MD, f"v{VT+2}")
    dfrags()
    a(f"{L}:")
    a.stamp(12)
    BB, D8 = 136, 20
    a(f"v_lshlrev_b32 v{VT}, 6, v{VJ}\nv_lshl_add_u32 v{VT}, v{VKG}, 4, v{VT}")
    Lp, Lx = spin_head(a, "s60", cfg.SPIN, "R7")
    a(f"ds_read_b128 v[32:35], v{VT+1}\nds_read_b128 v[36:39], v{VT+1} offset:16\nds_read_b128 v[40:43], v{VT+1} offset:128\nds_read_b128 v[44:47], v{VT+1} offset:144")
    spin_bound(a, "s60", cfg.SPIN, Lx)
    a("s_waitcnt lgkmcnt(0)")
    for e in range(8): a(f"v_max_f32 v{48+e}, 0, v{32+e}")
    for e in range(0, 8, 2): a(f"v_pk_mul_f32 {pr(48+e)}, {pr(48+e)}, {pr(40+e)}")
    a("v_max3_u32 v56, v32, v33, v34\nv_max3_u32 v57, v35, v36, v37\nv_max3_u32 v56, v56, v38, v39\nv_max3_u32 v57, v57, v40, v41\nv_max3_u32 v56, v56, v42, v43\nv_max3_u32 v57, v57, v44, v45\nv_max3_u32 v56, v56, v46, v47\nv_max_u32 v56, v56, v57")
    a(f"v_cmp_eq_u32 vcc, -1, v56\ns_cbranch_vccnz {Lp}\n{Lx}:\ns_waitcnt lgkmcnt(0)")
    for e in range(4): a(f"v_cvt_pk_bf16_f32 v{32+e}, v{48+2*e}, v{49+2*e}")
    for n in range(NB):
        for h in range(4): a(f"v_and_b32 v{BB+4*n+h}, v{32+h}, v{MSK[n]}")
        if n:
            cin = "0" if n == 1 else f"v[{D8}:{D8+3}]"
            a(f"v_mfma_f32_16x16x32_bf16 v[{D8}:{D8+3}], v[{DF+4*(n-1)}:{DF+4*(n-1)+3}], v[{BB+4*(n-1)}:{BB+4*(n-1)+3}], {cin}")
    a.nop(2)
    a(f"v_mfma_f32_16x16x32_bf16 v[{D8}:{D8+3}], v[{DF+4*(NB-1)}:{DF+4*(NB-1)+3}], v[{BB+4*(NB-1)}:{BB+4*(NB-1)+3}], v[{D8}:{D8+3}]")
    a.nop(8)
    for e in range(4): a(f"v_and_or_b32 v{D8+e}, v{D8+e}, s57, v{VTAG}")
    if cfg.FULLN: a("s_mov_b32 s40, 0x03ff03ff\ns_cmp_ge_u32 s30, 2\ns_cselect_b32 s40, 0x00ff00ff, s40\ns_mov_b32 exec_lo, s40\ns_mov_b32 exec_hi, s40")
    else: a.exec64(0x01ff01ff, 0x01ff01ff)
    a(f"global_store_dwordx4 v{VT}, v[{D8}:{D8+3}], s[42:43] sc1\ns_mov_b64 exec, -1")
    a.stamp(13)
    a("L_fin:")
    a.stamp(15)
    stamps_out(a)
    a("s_endpgm")

def generate(cfg):
    a = A(cfg)
    K = NAME + "_kernel"
    hdr = open("cdna_kernels/" + NAME + ".s.ref").read().split("; Override launch geometry")[0]
    out = [hdr.rstrip(), "; Override launch geometry by editing the next line (default: block=256,", "; grid=ceil(out_elems/256), lds=0). Harness parses it; keep it on one line.",
           f"; @launch grid=(256,1,1) block=(320,1,1) lds={LDS_BYTES}", '.amdgcn_target "amdgcn-amd-amdhsa--gfx950"\n.text', f".globl {K}\n.p2align 8\n.type {K},@function\n{K}:"]
    a("KSTART:")
    a("s_cmp_ge_u32 s2, 256\ns_cbranch_scc1 L_exit")
    if cfg.UNTIL or cfg.WB or cfg.DYN == 2: a("s_memrealtime s[96:97]")
    a("s_load_dwordx16 s[4:19], s[0:1], 0\ns_load_dwordx8 s[20:27], s[0:1], 64")
    if cfg.STAMP:
        for i in range(16): a(f"s_mov_b64 s[{64+2*i}:{65+2*i}], 0")
        a("s_memrealtime s[64:65]")
    a("v_and_b32 v1, 63, v0\nv_lshrrev_b32 v2, 6, v0")
    a("s_and_b32 s28, s2, 7\ns_lshl_b32 s28, s28, 1\ns_lshr_b32 s29, s2, 3\ns_and_b32 s29, s29, 1\ns_or_b32 s28, s28, s29\ns_lshr_b32 s29, s2, 4")
    if cfg.MAPALT: a("s_lshr_b32 s28, s2, 4\ns_and_b32 s29, s2, 15")
    a("v_readfirstlane_b32 s3, v2")
    a("v_lshrrev_b32 v20, 3, v1\nv_lshlrev_b32 v20, 13, v20\nv_and_b32 v21, 7, v1\nv_lshlrev_b32 v21, 4, v21\nv_add_u32 v5, v20, v21")
    a("s_lshr_b32 s40, s29, 2\ns_mul_i32 s40, s40, 1179648\ns_and_b32 s41, s29, 3\ns_lshl_b32 s41, s41, 7\ns_lshl_b32 s42, s28, 9\ns_add_u32 s41, s41, s42\ns_add_u32 s40, s40, s41")
    a(f"s_sub_u32 s34, 4718592, s40\ns_mov_b32 s35, 0x20000\ns_mov_b32 m0, {L_WQ}\ns_mov_b32 s36, 0")
    a("s_waitcnt lgkmcnt(0)")
    a("s_cmp_lg_u32 s3, 0\ns_cbranch_scc1 L_consumer")
    gen_loader(a)
    gen_consumer(a)
    a("L_exit:\ns_endpgm")
    out += a.L
    out.append('.section .rodata,"a"\n.p2align 6')
    out.append(f".amdhsa_kernel {K}")
    out.append("  .amdhsa_next_free_vgpr 256\n  .amdhsa_next_free_sgpr 102\n  .amdhsa_accum_offset 256\n  .amdhsa_group_segment_fixed_size 0\n  .amdhsa_kernarg_size 96\n  .amdhsa_user_sgpr_count 2\n  .amdhsa_user_sgpr_kernarg_segment_ptr 1\n  .amdhsa_system_sgpr_workgroup_id_x 1\n.end_amdhsa_kernel")
    return "\n".join(out) + "\n"

if __name__ == "__main__":
    cfg = Cfg()
    for kv in sys.argv[2:]:
        k, v = kv.split("=")
        setattr(cfg, k, v if k in ("NT", "NTGU", "NTWO") else (v == "1" if k == "STAMP" else int(v)))
    open(sys.argv[1], "w").write(generate(cfg))
```

```python
import sys, struct, math
NAME = "sequential_preLN__sliding_block_cached__glu_gated_reglu__decode"
def f2b(x): return struct.unpack("<I", struct.pack("<f", x))[0]

class Cfg:
    W1 = 22; WWO = 22; WGU = 12; WD = 20
    NT = "nt"
    STAMP = False
    DBG = 0
    TO_H1 = 12
    MAPALT = 0
    LOCAL = 1
    DELAY = 0
    UNTIL = 0
    CPF = 0
    TPF = 0
    WOROT = 1
    NTWO = ""
    NTGU = ""
    ORD = 0
    EH3 = 0
    W0 = 0; N0 = 0
    NOX = 0
    WB = 0; TB = 310
    W2ND = 0
    DYN = 0
    TB2 = 540
    ALE = 1
    ILV = 0
    WIL = 12
    REDW = 1
    FULLN = 1
    H4M = 0
    H4P = 1
    H3Q = 1
    JIT = 0
    PFS = 1
    PF = 0
    WG0 = 14; NG0 = 0
    WG1 = 16
    WUP = 16
    GUROT = 1
    ROT = 5
    LONLY = 0
    H3GATE = 1
    T_H1 = 24
    D_H1 = 0; B_H1 = 0; B_ML = 2; B_H2 = 0; B_H3 = 0; B_H4 = 0; B_AL = 2
    SPIN = 1 << 18
    GSPIN = 1 << 15

WS_H1 = 0x00000; WS_ML = 0x10000; WS_H2 = 0x18000; WS_H3 = 0x38000; WS_AL = 0x3d000; WS_XI = 0x3e000; WS_EP = 0x3f000; WS_H4 = 0x40000; WS_ST = 0x100000
L_WQ = 0; L_K = 18432; L_V = L_K + 65536; L_SB = L_V + 65536
L_XN = L_SB
L_QB = L_XN + 1152
L_MX = L_QB + 512
L_LW = L_MX + 32
L_OP = L_LW + 32
L_R5 = L_OP + 3072
L_HN = L_R5 + 2048
L_R7 = L_HN + 1152
L_QP = L_R7 + 256
L_CT = L_QP + 256
L_END = L_CT + 64
LDS_BYTES = 161280
assert L_END <= LDS_BYTES
POIS_LO, POIS_HI = L_QB, L_CT
F_G, F_U, F_D = 0, 36864, L_V
F1_D, F1_G, F1_U = 0, 36864, L_V
O_WO = 0
CSCALE = f2b(math.log2(math.e) / math.sqrt(128.0))

class A:
    def __init__(s, cfg): s.L = []; s.cfg = cfg; s.uid = 0
    def __call__(s, t):
        for ln in t.split("\n"):
            ln = ln.strip()
            if ln: s.L.append(("" if ln.endswith(":") else "    ") + ln)
    def lab(s, base): s.uid += 1; return f"{base}_{s.uid}"
    def nop(s, n):
        while n > 0:
            k = min(n, 16); s(f"s_nop {k-1}"); n -= k
    def stamp(s, idx):
        if s.cfg.STAMP: s(f"s_memrealtime s[{64+2*idx}:{65+2*idx}]")
        if s.cfg.JIT:
            L = s.lab("JIT")
            k = (idx * 2654435761 + s.cfg.JIT * 40503) & 0xffff
            s(f"s_mul_i32 s102x, s2, {k | 1}".replace("s102x", "s97"))
            s(f"s_lshl_b32 s96, s3, 5\ns_add_u32 s97, s97, s96\ns_lshr_b32 s97, s97, 3\ns_and_b32 s97, s97, 63\n{L}:\ns_sleep 1\ns_sub_u32 s97, s97, 1\ns_cmp_gt_i32 s97, 0\ns_cbranch_scc1 {L}")
    def exec64(s, lo, hi): s(f"s_mov_b32 exec_lo, {hex(lo)}\ns_mov_b32 exec_hi, {hex(hi)}")
    def sleep(s, n):
        while n > 0:
            k = min(n, 127); s(f"s_sleep {k}"); n -= k

def lds_wait_ge(a, addr_v, val, tmp_v, tmp_s="s31", cnt_s="s60", off=0):
    if a.cfg.LONLY and off in (4, 8, 12, 16, 32, 36, 40, 44): return
    L = a.lab("LW"); X = a.lab("LX")
    o = f" offset:{off}" if off else ""
    a(f"s_mov_b32 {cnt_s}, 0\n{L}:\nds_read_b32 {tmp_v}, {addr_v}{o}")
    a(f"s_add_u32 {cnt_s}, {cnt_s}, 1\ns_cmp_gt_u32 {cnt_s}, {a.cfg.SPIN}\ns_cbranch_scc1 {X}")
    a(f"s_waitcnt lgkmcnt(0)\nv_readfirstlane_b32 {tmp_s}, {tmp_v}\ns_cmp_lt_u32 {tmp_s}, {val}\ns_cbranch_scc1 {L}\n{X}:\ns_waitcnt lgkmcnt(0)")

def lds_set(a, addr_v, off, val_v, op="ds_write_b32"):
    a(f"s_mov_b64 exec, 1\n{op} {addr_v}, {val_v} offset:{off}\ns_mov_b64 exec, -1")

def dpp(a, op, v, ctl): a(f"{op}_dpp {v}, {v}, {v} {ctl} row_mask:0xf bank_mask:0xf")
def row_red(a, op, vs):
    if isinstance(vs, str): vs = [vs]
    for ctl in ("quad_perm:[1,0,3,2]", "quad_perm:[2,3,0,1]", "row_half_mirror", "row_mirror"):
        a.nop(max(0, 3 - len(vs))) if len(vs) < 3 else None
        for v in vs: dpp(a, op, v, ctl)
    a.nop(0)
def xrow_red(a, op, v, t):
    a(f"v_mov_b32 {t}, {v}"); a.nop(2)
    a(f"v_permlane16_swap_b32 {v}, {t}"); a.nop(1)
    a(f"{op} {v}, {v}, {t}\nv_mov_b32 {t}, {v}"); a.nop(2)
    a(f"v_permlane32_swap_b32 {v}, {t}"); a.nop(1)
    a(f"{op} {v}, {v}, {t}")

def spin_head(a, cnt, bound, name):
    Lp, Lx = a.lab(name), a.lab(name + "X")
    a(f"s_mov_b32 {cnt}, 0\n{Lp}:")
    return Lp, Lx
def spin_bound(a, cnt, bound, Lx):
    a(f"s_add_u32 {cnt}, {cnt}, 1\ns_cmp_gt_u32 {cnt}, {bound}\ns_cbranch_scc1 {Lx}")

def tagcheck(a, acc, regs, vtag):
    regs = list(regs)
    a(f"v_xor_b32 {acc}, v{regs[0]}, v{vtag}")
    for r in regs[1:]: a(f"v_bitop3_b32 {acc}, {acc}, v{r}, v{vtag} bitop3:0xf6")
    a(f"v_and_b32 {acc}, 0x3ff, {acc}\nv_cmp_ne_u32 vcc, 0, {acc}")

def stamps_out(a, loader=False):
    if not a.cfg.STAMP: return
    if a.cfg.DBG:
        a("s_waitcnt lgkmcnt(0)\ns_mov_b64 exec, 1")
        if loader: lst = [(0, 0, 0), (255, 0, 1), (0, 3, 2), (255, 3, 3), (0, 8, 4)]
        else: lst = [(0, 7, 5), (0, 11, 6), (0, 13, 7), (144, 9, 8), (144, 10, 9), (144, 14, 10), (144, 15, 11), (145, 15, 12), (160, 15, 13), (161, 15, 14), (178, 15, 15)]
        for (wg, st, slot) in lst:
            L = a.lab("DB")
            a(f"s_cmp_lg_u32 s2, {wg}\ns_cbranch_scc1 {L}")
            if not loader: a(f"s_cmp_lg_u32 s30, 0\ns_cbranch_scc1 {L}")
            a(f"v_mov_b32 v250, {4*slot}\nv_mov_b32 v251, s{64+2*st}\nglobal_store_dword v250, v251, s[24:25]\n{L}:")
        return
    a("s_waitcnt lgkmcnt(0)")
    a(f"s_lshl_b32 s40, s2, 3\ns_add_u32 s40, s40, s3\ns_lshl_b32 s40, s40, 7\ns_add_u32 s40, s40, {WS_ST}")
    a("s_add_u32 s40, s26, s40\ns_addc_u32 s41, s27, 0\ns_mov_b64 exec, 1\nv_mov_b32 v250, 0")
    for i in range(16):
        a(f"v_mov_b32 v252, s{64+2*i}\nv_mov_b32 v253, s{65+2*i}\nglobal_store_dwordx2 v250, v[252:253], s[40:41] offset:{8*i}")
        a.nop(2)

def page_touch(a, vlo, vhi, vdst):
    a(f"v_mov_b32 v{vlo}, s4\nv_mov_b32 v{vhi}, s5")
    a(f"s_lshl_b32 s40, s28, 24\ns_lshl_b32 s41, s29, 16\ns_add_u32 s40, s40, s41\ns_add_u32 s40, s40, {(65536-4096)*256}")
    def put(lane, p, off):
        a(f"s_add_u32 s52, s{p}, {off}\ns_addc_u32 s53, s{p+1}, 0\nv_writelane_b32 v{vlo}, s52, {lane}\nv_writelane_b32 v{vhi}, s53, {lane}")
    put(0, 6, "s40"); put(1, 8, "s40")
    a("s_mul_i32 s41, s28, 294912"); put(2, 12, "s41")
    a("s_add_u32 s41, s41, 294784"); put(3, 12, "s41")
    n = 4
    for p in (16, 18):
        for off in (0, 0x200000, 0x400000): put(n, p, off); n += 1
    a("s_mul_i32 s41, s28, 331776"); put(n, 20, "s41"); n += 1
    a("s_add_u32 s41, s41, 331648"); put(n, 20, "s41"); n += 1
    put(n, 26, 0x40000); n += 1
    put(n, 22, 0); n += 1
    a(f"s_mov_b64 exec, {hex((1 << n) - 1)}\nglobal_load_dword v{vdst}, v[{vlo}:{vhi}], off nt\ns_mov_b64 exec, -1")

def alive_addr(a, VL, va, vt):
    a(f"v_lshrrev_b32 v{va}, 2, v{VL}\nv_lshlrev_b32 v{va}, 7, v{va}\nv_and_b32 v{vt}, 3, v{VL}\nv_lshl_add_u32 v{va}, v{vt}, 3, v{va}\nv_add_u32 v{va}, {WS_AL}, v{va}")
def alive_load(a, va): a(f"global_load_dwordx2 v[18:19], v{va}, s[26:27] sc1")
def alive_test(a):
    a("v_cmp_ne_u32 s[50:51], s58, v18\nv_cmp_ne_u32 s[40:41], s58, v19\ns_or_b64 s[50:51], s[50:51], s[40:41]")

def gen_loader(a):
    cfg = a.cfg; NT = cfg.NT
    V_L16, V_WQ, V_K, V_P, V_FA, V_FV, V_T = 4, 5, 6, 10, 16, 17, 18
    a(f"L_loader:")
    a("s_add_u32 s32, s10, s40\ns_addc_u32 s33, s11, 0")
    def raw(pat, off=0, pol=None):
        o = f" offset:{off}" if off else ""
        a(f"buffer_load_dwordx4 v{pat}, s[32:35], s36 offen{o} {NT if pol is None else pol} lds")
    def signal(val):
        a(f"v_mov_b32 v{V_FV}, {val}"); lds_set(a, f"v{V_FA}", 0, f"v{V_FV}")
        if val == 1: a.stamp(11)
        if val == 5: a.stamp(9)
        if val == 9: a.stamp(10)
    st = {"bar": False}
    class Seq:
        def __init__(s, W, n, pend): s.n = n; s.W = W; s.pend = pend; s.h1done = n > 0
        def after(s):
            n = s.n
            if cfg.W0 and n < 146 and not getattr(s, "fixed", False): s.W = cfg.W0 if n < cfg.N0 else cfg.W1
            if n >= s.W - 1:
                if not st["bar"]:
                    st["bar"] = True; a("s_barrier")
                a(f"s_waitcnt vmcnt({s.W-1})")
                landed = n - s.W + 1
                while s.pend and s.pend[0][0] <= landed: signal(s.pend.pop(0)[1])
                if cfg.T_H1 and not s.h1done and landed >= 18 + cfg.T_H1:
                    s.h1done = True
                    a(f"v_mov_b32 v{V_FV}, 1"); lds_set(a, f"v{V_FA}", 24, f"v{V_FV}")
            s.n += 1
        def drain(s):
            last = s.n - 1
            while s.pend:
                e, v = s.pend.pop(0)
                a(f"s_waitcnt vmcnt({last-e})"); signal(v)
    q = Seq(cfg.W1, 0, [])
    q.pend.append((17, 1))
    for i in range(18):
        if i: a("s_add_u32 m0, m0, 0x400\ns_add_u32 s36, s36, 0x10000")
        raw(V_WQ); q.after()
        if i == 0: a(f"s_setprio 1\ns_load_dword s58, s[26:27], {WS_EP}\nv_lshlrev_b32 v{V_L16}, 4, v1")
        if i == 1:
            a("v_lshrrev_b32 v20, 4, v1\nv_lshlrev_b32 v21, 2, v20\nv_and_b32 v22, 15, v1\nv_xor_b32 v22, v22, v21\nv_lshlrev_b32 v20, 8, v20")
            for p in range(4): a(f"v_xor_b32 v23, {p}, v22\nv_lshlrev_b32 v23, 4, v23\nv_add_u32 v{V_K+p}, v20, v23")
            a(f"v_mov_b32 v{V_FA}, {L_CT}")
    a.stamp(1)
    for name, p, lbase, pats in (("K", 6, L_K, [V_K, V_K+1, V_K+2, V_K+3]), ("V", 8, L_V, [V_L16]*4)):
        a(f"s_lshl_b32 s40, s28, 24\ns_lshl_b32 s42, s29, 16\ns_add_u32 s42, s42, {(65536-4096)*256}\ns_add_u32 s40, s40, s42")
        a(f"s_add_u32 s32, s{p}, s40\ns_addc_u32 s33, s{p+1}, 0\ns_mov_b32 s34, 65536\ns_mov_b32 m0, {lbase}\ns_mov_b32 s36, 0")
        if cfg.ROT: a(f"s_mul_i32 s36, s28, {cfg.ROT}\ns_add_u32 s36, s36, s29\ns_and_b32 s36, s36, 15\ns_lshl_b32 s36, s36, 12")
        base = q.n
        for r in range(4): q.pend.append((base + 16*r + 15, (2 if name == "K" else 6) + r))
        def seg(qq):
            for i in range(64):
                if i and i % 4 == 0:
                    a("s_add_u32 m0, m0, 0x1000\ns_add_u32 s36, s36, 0x1000")
                    if cfg.ROT: a("s_and_b32 s36, s36, 0xffff")
                elif i == 0: a.nop(1)
                raw(pats[i % 4], off=(i % 4) * 1024); qq.after()
                if name == "K" and i in (15, 31, 47): a.stamp(12 + (i + 1) // 16 - 1)
        if name == "V" and cfg.WB:
            a(f"s_memrealtime s[50:51]\ns_waitcnt lgkmcnt(0)\ns_sub_u32 s50, s50, s96\ns_cmp_lt_u32 s50, {cfg.TB}\ns_cbranch_scc1 L_v_normal")
            qb = Seq(cfg.WB, q.n, list(q.pend)); qb.fixed = True
            seg(qb)
            a(f"s_waitcnt vmcnt({cfg.W1-1})")
            landed = qb.n - 1 - cfg.W1 + 1
            while qb.pend and qb.pend[0][0] <= landed: signal(qb.pend.pop(0)[1])
            a("s_branch L_v_done\nL_v_normal:")
            seg(q)
            assert [x for x in q.pend] == [x for x in qb.pend], (q.pend, qb.pend)
            a("L_v_done:")
        else:
            seg(q)
        a.stamp(2 if name == "K" else 3)
    lds_wait_ge(a, f"v{V_FA}", 4, "v19", "s43", "s44", off=4)
    a.stamp(4)
    n0, p0 = q.n, list(q.pend)
    a("s_cmp_ge_u32 s29, 9\ns_cbranch_scc1 L_ld_o")
    q = Seq(cfg.WGU, n0, list(p0))
    a(f"v_lshrrev_b32 v20, 2, v1\nv_mul_u32_u24 v20, 9216, v20\nv_and_b32 v21, 3, v1\nv_lshlrev_b32 v21, 4, v21\nv_add_u32 v{V_P}, v20, v21")
    a("s_mul_i32 s45, s28, 288\ns_lshl_b32 s46, s29, 5\ns_add_u32 s45, s45, s46")
    if cfg.GUROT: a("s_add_u32 s47, s28, s29\ns_and_b32 s47, s47, 1\ns_mul_i32 s47, s47, 18")
    def gu_tile(p, lb, mile, W):
        nonlocal q
        q.W = W
        q.pend.append((q.n + 35, mile))
        a(f"s_lshl_b32 s40, s45, 1\ns_add_u32 s32, s{p}, s40\ns_addc_u32 s33, s{p+1}, 0\ns_sub_u32 s34, 5308416, s40\ns_mov_b32 m0, {lb}\ns_mov_b32 s36, 0")
        if cfg.GUROT: a(f"s_lshl_b32 s48, s47, 10\ns_add_u32 m0, s48, {lb}\ns_mul_i32 s36, s47, {16*9216}")
        for i in range(36):
            if i:
                if cfg.GUROT and i == 18:
                    a(f"s_cmp_lg_u32 s47, 0\ns_cselect_b32 s48, {36*1024}, 0\ns_cselect_b32 s52, {36*16*9216}, 0\ns_sub_u32 m0, m0, s48\ns_sub_u32 s36, s36, s52")
                a(f"s_add_u32 m0, m0, 0x400\ns_add_u32 s36, s36, {16*9216}")
            else: a.nop(1)
            if p == 16 and i < cfg.NG0: q.W = cfg.WG0
            else: q.W = W
            raw(V_P, pol=cfg.NTGU); q.after()
            if p == 18 and cfg.EH3 and i == cfg.EH3 - 1:
                a(f"v_mov_b32 v{V_FV}, 1"); lds_set(a, f"v{V_FA}", 32, f"v{V_FV}")
    def down_tile(lb, mile):
        nonlocal q
        a(f"s_mul_i32 s40, s45, 1152\ns_add_u32 s32, s20, s40\ns_addc_u32 s33, s21, 0\ns_mov_b32 s34, {32*1152}\ns_mov_b32 m0, {lb}\ns_mov_b32 s36, 0")
        q.pend.append((q.n + 35, mile)); q.W = cfg.WD
        for i in range(36):
            if i and i % 4 == 0: a("s_add_u32 m0, m0, 0x1000\ns_add_u32 s36, s36, 0x1000")
            elif i == 0: a.nop(1)
            raw(V_L16, off=(i % 4) * 1024); q.after()
    a("s_lshl_b32 s40, s45, 1\ns_add_u32 s40, s40, s16\ns_lshr_b32 s40, s40, 7\ns_and_b32 s40, s40, 7\ns_cmp_eq_u32 s40, 3\ns_cselect_b32 s49, 2, 1")
    if cfg.DYN == 0: a("s_mov_b32 s49, 1")
    if cfg.DYN == 3: a("s_mov_b32 s49, 2")
    if cfg.DYN == 2:
        a(f"s_memrealtime s[50:51]\ns_waitcnt lgkmcnt(0)\ns_sub_u32 s50, s50, s96\ns_cmp_gt_u32 s50, {cfg.TB2}\ns_cselect_b32 s49, 2, s49")
    if cfg.ILV == 1: a("s_cmp_eq_u32 s40, 3\ns_cselect_b32 s49, 3, s49")
    if cfg.ILV == 2: a("s_mov_b32 s49, 3")
    a(f"v_mov_b32 v{V_FV}, s49"); lds_set(a, f"v{V_FA}", 40, f"v{V_FV}")
    if cfg.ILV: a("s_cmp_eq_u32 s49, 3\ns_cbranch_scc1 L_ld_fc")
    if cfg.DYN: a("s_cmp_eq_u32 s49, 2\ns_cbranch_scc1 L_ld_fb")
    down_tile(0, 10)
    a.stamp(7)
    gu_tile(16, 36864, 11, cfg.WG1)
    a.stamp(5)
    lds_wait_ge(a, f"v{V_FA}", 4, "v19", "s43", "s44", off=8)
    gu_tile(18, L_V, 12, cfg.WUP)
    a(f"v_mov_b32 v{V_FV}, 1"); lds_set(a, f"v{V_FA}", 12, f"v{V_FV}")
    a.stamp(6)
    q.drain()
    a("s_branch L_ld_done")
    if cfg.ILV:
        a("L_ld_fc:")
        q = Seq(cfg.WIL, n0, list(p0))
        a(f"s_mul_i32 s40, s45, 1152\ns_add_u32 s52, s20, s40\ns_addc_u32 s53, s21, 0\ns_mov_b32 s54, {32*1152}\ns_mov_b32 s55, 0x20000\ns_mov_b32 s56, 0\ns_mov_b32 s57, 0")
        nd = 0
        for (p, lb, mile) in ((16, 36864, 10), (18, L_V, 11)):
            if p == 18: lds_wait_ge(a, f"v{V_FA}", 4, "v19", "s43", "s44", off=8)
            first = q.n
            last_narrow = first + 35 + 17
            q.pend.append((last_narrow, mile))
            a(f"s_lshl_b32 s40, s45, 1\ns_add_u32 s32, s{p}, s40\ns_addc_u32 s33, s{p+1}, 0\ns_sub_u32 s34, 5308416, s40\ns_mov_b32 s59, {lb}\ns_mov_b32 s36, 0")
            if cfg.GUROT: a(f"s_lshl_b32 s48, s47, 10\ns_add_u32 s59, s48, {lb}\ns_mul_i32 s36, s47, {16*9216}")
            for i in range(36):
                if i:
                    if cfg.GUROT and i == 18:
                        a(f"s_cmp_lg_u32 s47, 0\ns_cselect_b32 s48, {36*1024}, 0\ns_cselect_b32 s51, {36*16*9216}, 0\ns_sub_u32 s59, s59, s48\ns_sub_u32 s36, s36, s51")
                    a(f"s_add_u32 s59, s59, 0x400\ns_add_u32 s36, s36, {16*9216}")
                a("s_mov_b32 m0, s59"); a.nop(1)
                raw(V_P, pol=cfg.NTGU); q.after()
                if i == 35:
                    assert q.n - 1 == last_narrow
                    if p == 18:
                        a(f"v_mov_b32 v{V_FV}, 1"); lds_set(a, f"v{V_FA}", 12, f"v{V_FV}")
                        a.stamp(6)
                    else: a.stamp(5)
                if i % 2 == 1:
                    a("s_mov_b32 m0, s57\ns_add_u32 s57, s57, 0x400")
                    a(f"buffer_load_dwordx4 v{V_L16}, s[52:55], s56 offen {NT} lds\ns_add_u32 s56, s56, 0x400")
                    nd += 1
                    if nd == 36: q.pend.append((q.n, 12))
                    q.after()
        a.stamp(7)
        q.drain()
        a("s_branch L_ld_done")
    if cfg.DYN:
      a("L_ld_fb:")
      q = Seq(cfg.WGU, n0, list(p0))
      gu_tile(16, 36864, 10, cfg.WG1)
      a.stamp(5)
      gu_tile(18, 0, 11, cfg.WUP)
      a(f"v_mov_b32 v{V_FV}, 1"); lds_set(a, f"v{V_FA}", 12, f"v{V_FV}")
      a.stamp(6)
      if cfg.H3GATE: lds_wait_ge(a, f"v{V_FA}", 1, "v19", "s43", "s44", off=16)
      lds_wait_ge(a, f"v{V_FA}", 4, "v19", "s43", "s44", off=8)
      down_tile(L_V, 12)
      a.stamp(7)
      q.drain()
      a("s_branch L_ld_done")
    a("L_ld_o:")
    a("s_cmp_eq_u32 s29, 15\ns_cbranch_scc1 L_ld_spare")
    q = Seq(cfg.WWO, n0, list(p0))
    def alive_store():
        a(f"s_sub_u32 s41, s29, 9\ns_lshl_b32 s40, s28, 7\ns_lshl_b32 s44, s41, 2\ns_add_u32 s40, s40, s44\ns_add_u32 s40, s40, {WS_AL}")
        a(f"s_add_u32 s58, s58, 1\nv_lshlrev_b32 v20, 2, v1\nv_add_u32 v20, s40, v20\nv_mov_b32 v21, s58")
        a(f"s_mov_b64 exec, 1\ns_cmp_eq_u32 s41, 5\ns_cselect_b32 exec_lo, 7, exec_lo\nglobal_store_dword v20, v21, s[26:27] sc1\ns_mov_b64 exec, -1")
        q.n += 1
    if cfg.ALE: alive_store()
    for p in range(3):
        a(f"v_add_u32 v20, {64*p}, v1\nv_mul_u32_u24 v21, 171, v20\nv_lshrrev_b32 v21, 11, v21")
        a(f"v_mul_u32_u24 v22, 12, v21\nv_sub_u32 v22, v20, v22\nv_lshlrev_b32 v22, 4, v22\nv_mul_u32_u24 v21, 1152, v21\nv_add_u32 v{V_P+p}, v21, v22")
    a("s_mul_i32 s40, s28, 294912\ns_sub_u32 s41, s29, 9\ns_mul_i32 s41, s41, 192\ns_add_u32 s40, s40, s41")
    a(f"s_add_u32 s32, s12, s40\ns_addc_u32 s33, s13, 0\ns_sub_u32 s34, 4718592, s40\ns_mov_b32 m0, {O_WO}\ns_mov_b32 s36, 0")
    for c in range(4): q.pend.append((q.n + 12*c + 11, 10 + c))
    if cfg.WOROT:
        a(f"s_and_b32 s47, s29, 1\ns_mul_i32 s48, s47, {24*1024}\ns_add_u32 m0, s48, {O_WO}\ns_mul_i32 s36, s47, {128*1152}")
    for i in range(48):
        if i:
            if cfg.WOROT and i == 24:
                a(f"s_cmp_lg_u32 s47, 0\ns_cselect_b32 s48, {48*1024}, 0\ns_cselect_b32 s49, {256*1152}, 0\ns_sub_u32 m0, m0, s48\ns_sub_u32 s36, s36, s49")
            a("s_add_u32 m0, m0, 0x400")
            if i % 3 == 0: a(f"s_add_u32 s36, s36, {16*1152}")
            else: a.nop(1)
        else: a.nop(1)
        raw(V_P + i % 3, pol=cfg.NTWO); q.after()
    a(f"v_mov_b32 v{V_FV}, 1"); lds_set(a, f"v{V_FA}", 12, f"v{V_FV}")
    a.stamp(5)
    if not cfg.ALE:
        lds_wait_ge(a, f"v{V_FA}", 4, "v19", "s43", "s44", off=16)
        alive_store()
    elif cfg.PF:
        lds_wait_ge(a, f"v{V_FA}", 4, "v19", "s43", "s44", off=16)
    if cfg.PF:
        a("s_lshr_b32 s40, s28, 1\ns_and_b32 s44, s28, 1\ns_sub_u32 s41, s29, 9\ns_lshl_b32 s41, s41, 1\ns_add_u32 s41, s41, s44")
        a("s_mul_i32 s40, s40, 1152\ns_add_u32 s32, s18, s40\ns_addc_u32 s33, s19, 0\ns_sub_u32 s34, 5308416, s40\ns_lshl_b32 s41, s41, 6\ns_mov_b32 s46, 7282\ns_mov_b32 s47, 9216")
        for t in range(6):
            a(f"s_add_u32 s40, s41, {64*14*t}\nv_add_u32 v20, s40, v1\nv_mul_lo_u32 v21, s46, v20\nv_lshrrev_b32 v21, 16, v21")
            a(f"v_mul_u32_u24 v22, 9, v21\nv_sub_u32 v22, v20, v22\nv_lshlrev_b32 v22, 7, v22\nv_mul_lo_u32 v21, s47, v21\nv_add_u32 v{24+t}, v21, v22")
        a("s_mov_b32 s36, 0")
        npf = 6
        for t in range(npf):
            a(f"buffer_load_dword v{32+t}, v{24+t}, s[32:35], s36 offen {NT}")
            q.n += 1
    q.drain()
    a("s_branch L_ld_done")
    a("L_ld_spare:")
    q = Seq(cfg.WWO, n0, list(p0))
    q.drain()
    if cfg.PFS:
        lds_wait_ge(a, f"v{V_FA}", 1, "v19", "s43", "s44", off=44)
        a("s_lshr_b32 s45, s28, 1\ns_and_b32 s46, s28, 1\ns_mul_i32 s46, s46, 288\nv_add_u32 v20, s46, v1\ns_mov_b32 s47, 9216\nv_mul_lo_u32 v20, s47, v20")
        for t in range(1, 5): a(f"v_add_u32 v{20+t}, {64*9216*t}, v20")
        mats = {1: (18,), 2: (16, 18), 3: (18, 16)}[cfg.PFS]
        for rep in range(2):
            for p in mats:
                L = a.lab("PFS")
                a(f"s_lshr_b32 s40, s{p}, 7\ns_add_u32 s40, s40, s45\ns_sub_u32 s40, 3, s40\ns_and_b32 s40, s40, 7")
                if rep == 1: a(f"s_cmp_lg_u32 s40, 0\ns_cbranch_scc1 {L}\ns_mov_b32 s40, 8")
                a(f"s_mul_i32 s41, s45, 9\ns_add_u32 s40, s40, s41\ns_lshl_b32 s40, s40, 7")
                a(f"s_add_u32 s32, s{p}, s40\ns_addc_u32 s33, s{p+1}, 0\ns_sub_u32 s34, 5308416, s40\ns_mov_b32 s36, 0")
                for t in range(5): a(f"buffer_load_dword v{32+t}, v{20+t}, s[32:35], s36 offen")
                a(f"{L}:")
    a("L_ld_done:")
    a.stamp(8)
    if cfg.STAMP: a("s_getreg_b32 s94, hwreg(HW_REG_XCC_ID)\ns_and_b32 s94, s94, 15\ns_add_u32 s94, s94, 1\ns_mov_b32 s95, 0")
    stamps_out(a, True)
    a("s_endpgm")

def gen_consumer(a):
    cfg = a.cfg
    VL, VJ, VKG, VL16, VCT = 1, 2, 3, 4, 5
    VX = 196
    XF = 216
    VT = 12
    VTAG = 11
    a("L_consumer:")
    a(f"v_and_b32 v{VJ}, 15, v{VL}\nv_lshrrev_b32 v{VKG}, 4, v{VL}\nv_lshlrev_b32 v{VL16}, 4, v{VL}\nv_mov_b32 v{VCT}, {L_CT}\ns_sub_u32 s30, s3, 1")
    a(f"s_load_dword s58, s[26:27], {WS_EP}")
    if cfg.CPF == 1:
        a("s_getpc_b64 s[52:53]\nL_pc:\ns_sub_u32 s52, s52, (L_pc - KSTART)\ns_subb_u32 s53, s53, 0")
        a("s_lshr_b32 s40, s2, 3\ns_lshl_b32 s40, s40, 2\ns_add_u32 s40, s40, s30\ns_lshl_b32 s40, s40, 8\ns_min_u32 s40, s40, (L_exit - KSTART - 128)")
        a("s_add_u32 s52, s52, s40\ns_addc_u32 s53, s53, 0\ns_load_dword s54, s[52:53], 0\ns_load_dword s55, s[52:53], 128")
    if not cfg.NOX:
        a(f"global_load_dwordx4 v[20:23], v{VL16}, s[4:5]")
        a(f"v_lshlrev_b32 v{VT}, 2, v{VL}\nv_mov_b32 v24, 0\ns_mov_b32 exec_hi, 0\nglobal_load_dword v24, v{VT}, s[4:5] offset:1024\ns_mov_b64 exec, -1")
    a("s_cmp_lg_u32 s30, 0\ns_cbranch_scc1 L_p0_notc0")
    a("v_mov_b32 v28, -1\nv_mov_b32 v29, -1\nv_mov_b32 v30, -1\nv_mov_b32 v31, -1")
    def wsaddr(lo): a(f"s_add_u32 s42, s26, {lo}\ns_addc_u32 s43, s27, 0")
    def pst(off=0, sc="sc1"): a(f"global_store_dwordx4 v{VL16}, v[28:31], s[42:43]" + (f" offset:{off}" if off else "") + f" {sc}")
    def h2poison(sc):
        a(f"s_lshl_b32 s46, s28, 4\ns_add_u32 s46, s46, s29\ns_lshl_b32 s40, s46, 9\ns_add_u32 s40, s40, {WS_H2}"); wsaddr("s40")
        a("s_mov_b64 exec, -1\ns_mov_b32 exec_hi, 0"); pst(0, sc); a("s_mov_b64 exec, -1")
    if cfg.LONLY != 1:
        h2poison("" if cfg.LOCAL else "sc1")
        a("s_cmp_ge_u32 s29, 9\ns_cbranch_scc1 L_p0_o")
        a(f"v_and_b32 v{VT}, 1, v{VKG}\nv_lshlrev_b32 v{VT}, 3, v{VT}\nv_lshl_add_u32 v{VT}, v{VJ}, 4, v{VT}")
        for cb in range(4): a(f"global_load_dwordx2 v[{VX+2*cb}:{VX+2*cb+1}], v{VT}, s[4:5] offset:{256*cb}")
        a(f"v_mov_b32 v{VX+8}, 0\nv_mov_b32 v{VX+9}, 0"); a.exec64(0x00ff00ff, 0x00ff00ff)
        a(f"global_load_dwordx2 v[{VX+8}:{VX+9}], v{VT}, s[4:5] offset:1024\ns_mov_b64 exec, -1")
        a("s_mov_b32 s55, 6\ns_branch L_p0_lds")
        a("L_p0_o:")
        a(f"s_sub_u32 s41, s29, 9\ns_mul_i32 s40, s41, 192\ns_mul_i32 s44, s28, 1152\ns_add_u32 s40, s40, s44\ns_add_u32 s40, s40, {WS_H3}"); wsaddr("s40")
        a("s_mov_b32 s55, 2\ns_cmp_eq_u32 s41, 6\ns_cbranch_scc1 L_p0_lds\ns_mov_b64 exec, 0xfff"); pst(); a("s_mov_b64 exec, -1")
        a("s_mov_b32 s55, 2")
    a("L_p0_lds:")
    nb = POIS_HI - POIS_LO
    a(f"v_add_u32 v{VT}, {POIS_LO}, v{VL16}")
    off = 0
    while off < nb:
        rem = nb - off
        if rem < 1024: a(f"v_cmp_gt_u32 vcc, {rem}, v{VL16}\ns_and_saveexec_b64 s[40:41], vcc")
        a(f"ds_write_b128 v{VT}, v[28:31] offset:{off}")
        if rem < 1024: a("s_mov_b64 exec, s[40:41]")
        off += 1024
    a(f"v_mov_b32 v32, 0\nv_mov_b32 v33, 0\nv_mov_b32 v34, 0\nv_mov_b32 v35, 0\nds_write_b128 v{VCT}, v[32:35]\nds_write_b128 v{VCT}, v[32:35] offset:16\nds_write_b128 v{VCT}, v[32:35] offset:32")
    a("s_waitcnt lgkmcnt(0)\ns_barrier")
    if cfg.LONLY == 1: a("s_branch L_fin")
    L = a.lab("P0W")
    a(f"s_cmp_eq_u32 s55, 2\ns_cbranch_scc1 {L}\ns_waitcnt vmcnt(6)\ns_branch L_p0_ln\n{L}:\ns_waitcnt vmcnt(1)")
    a("s_branch L_p0_ln")
    a("L_p0_notc0:")
    if cfg.CPF == 2:
        L = a.lab("CP")
        a(f"s_cmp_lg_u32 s30, 2\ns_cbranch_scc1 {L}")
        a("s_getpc_b64 s[52:53]\nL_pc2:\ns_sub_u32 s52, s52, (L_pc2 - KSTART)\ns_subb_u32 s53, s53, 0")
        a(f"s_lshr_b32 s40, s2, 3\ns_mul_i32 s40, s40, 6\nv_add_u32 v198, s40, v{VL}\nv_lshlrev_b32 v198, 7, v198\nv_min_u32 v198, (L_exit - KSTART - 4), v198")
        a("s_mov_b64 exec, 0x3f\nglobal_load_dword v200, v198, s[52:53]\ns_mov_b64 exec, -1")
        a(f"s_barrier\ns_waitcnt vmcnt(1)\ns_branch L_p0_ln\n{L}:")
    if cfg.TPF:
        L = a.lab("TP")
        a(f"s_cmp_lg_u32 s30, 1\ns_cbranch_scc1 {L}")
        page_touch(a, 198, 199, 200)
        a(f"s_barrier\ns_waitcnt vmcnt(1)\ns_branch L_p0_ln\n{L}:")
    a("s_barrier\ns_waitcnt vmcnt(0)")
    a("L_p0_ln:")
    if cfg.LONLY in (1, 2): a("s_branch L_fin")
    a.stamp(0)
    for i in range(5): a(f"v_lshlrev_b32 v{32+2*i}, 16, v{20+i}\nv_and_b32 v{33+2*i}, 0xffff0000, v{20+i}")
    a("v_add_f32 v42, v32, v33")
    for i in range(2, 10): a(f"v_add_f32 v42, v42, v{32+i}")
    row_red(a, "v_add_f32", "v42"); xrow_red(a, "v_add_f32", "v42", "v43")
    a(f"v_mul_f32 v42, {hex(f2b(1.0/576))}, v42")
    for i in range(10): a(f"v_sub_f32 v{32+i}, v{32+i}, v42")
    a("s_mov_b32 exec_lo, 0\nv_mov_b32 v40, 0\nv_mov_b32 v41, 0\ns_mov_b64 exec, -1")
    a("v_mul_f32 v43, v32, v32")
    for i in range(1, 10): a(f"v_fmac_f32 v43, v{32+i}, v{32+i}")
    row_red(a, "v_add_f32", "v43"); xrow_red(a, "v_add_f32", "v43", "v44")
    a(f"v_mov_b32 v44, {hex(f2b(1e-5))}\nv_fmac_f32 v44, {hex(f2b(1.0/576))}, v43\nv_rsq_f32 v44, v44")
    a.nop(1)
    for i in range(10): a(f"v_mul_f32 v{32+i}, v{32+i}, v44")
    for i in range(5): a(f"v_cvt_pk_bf16_f32 v{20+i}, v{32+2*i}, v{33+2*i}")
    a(f"v_add_u32 v{VT}, {L_XN}, v{VL16}\nds_write_b128 v{VT}, v[20:23]")
    a(f"v_lshlrev_b32 v{VT}, 2, v{VL}\nv_add_u32 v{VT}, {L_XN+1024}, v{VT}\ns_mov_b32 exec_hi, 0\nds_write_b32 v{VT}, v24\ns_mov_b64 exec, -1")
    a(f"v_bfe_u32 v{VT}, v{VL}, 2, 2\nv_lshl_add_u32 v{VT}, v{VKG}, 2, v{VT}\nv_lshlrev_b32 v{VT}, 7, v{VT}")
    a(f"v_and_b32 v{VT+1}, 3, v{VL}\nv_lshl_add_u32 v{VT}, v{VT+1}, 3, v{VT}")
    a(f"s_lshl_b32 s40, s30, 5\ns_add_u32 s40, s40, {L_WQ}\nv_add_u32 v{VT}, s40, v{VT}")
    a(f"s_lshr_b32 s40, s29, 2\ns_mul_i32 s40, s40, 288\ns_add_u32 s40, s40, {L_XN}\nv_lshlrev_b32 v{VT+1}, 3, v{VKG}\nv_add_u32 v{VT+1}, s40, v{VT+1}")
    a("s_waitcnt lgkmcnt(0)")
    for t in range(9): a(f"ds_read_b64 v[{40+2*t}:{41+2*t}], v{VT+1} offset:{32*t}")
    for r in range(4): a(f"v_mov_b32 v{60+r}, 0")
    a("s_lshr_b32 s40, s29, 2\ns_lshl_b32 s40, s40, 10\ns_and_b32 s41, s29, 3\ns_lshl_b32 s41, s41, 8\ns_add_u32 s40, s40, s41")
    a(f"s_lshl_b32 s41, s28, 12\ns_add_u32 s40, s40, s41")
    a("s_add_u32 s42, s26, s40\ns_addc_u32 s43, s27, 0")
    lds_wait_ge(a, f"v{VCT}", 1, f"v{VT+2}")
    a.stamp(1)
    for t in range(9): a(f"ds_read_b64_tr_b16 v[{20+2*t}:{21+2*t}], v{VT} offset:{2048*t}")
    for t in range(9):
        a(f"s_waitcnt lgkmcnt({8-t})")
        a(f"v_mfma_f32_16x16x16_bf16 v[60:63], v[{20+2*t}:{21+2*t}], v[{40+2*t}:{41+2*t}], v[60:63]")
    a(f"s_lshl_b32 s40, s30, 6\ns_add_u32 s40, s40, {L_QP}\nv_lshlrev_b32 v{VT}, 4, v{VKG}\nv_add_u32 v{VT}, s40, v{VT}")
    a(f"s_add_u32 s58, s58, 1\ns_and_b32 s56, s58, 0x3ff\ns_mov_b32 s57, 0xfffffc00\nv_mov_b32 v{VTAG}, s56")
    a.nop(1)
    a.exec64(0x00010001, 0x00010001)
    a(f"ds_write_b128 v{VT}, v[60:63]\ns_mov_b64 exec, -1")
    a("s_cmp_lg_u32 s30, 0\ns_cbranch_scc1 L_p1_done")
    a(f"v_add_u32 v{VT}, {L_QP}, v{VL16}\ns_mov_b64 exec, 0xffff")
    Lp, Lx = spin_head(a, "s60", cfg.SPIN, "QP")
    a(f"ds_read_b128 v[60:63], v{VT}"); spin_bound(a, "s60", cfg.SPIN, Lx)
    a(f"s_waitcnt lgkmcnt(0)\nv_max3_u32 v{VT+1}, v60, v61, v62\nv_max_u32 v{VT+1}, v{VT+1}, v63\nv_cmp_eq_u32 vcc, -1, v{VT+1}\ns_cbranch_vccnz {Lp}\n{Lx}:\ns_waitcnt lgkmcnt(0)")
    for e in range(4): a(f"v_and_or_b32 v{60+e}, v{60+e}, s57, v{VTAG}")
    a("s_mov_b64 s[48:49], s[42:43]\ns_getreg_b32 s59, hwreg(HW_REG_XCC_ID)\ns_and_b32 s59, s59, 7\ns_lshl_b32 s45, s58, 4\ns_or_b32 s45, s45, s59")
    a(f"v_mov_b32 v49, s45\ns_lshl_b32 s40, s28, 6\ns_lshl_b32 s41, s29, 2\ns_add_u32 s40, s40, s41\ns_add_u32 s40, s40, {WS_XI}\nv_mov_b32 v48, s40")
    a("s_waitcnt vmcnt(0)")
    sc0 = "" if cfg.LOCAL else "sc1"
    a(f"global_store_dwordx4 v{VL16}, v[60:63], s[48:49] {sc0}")
    if cfg.LOCAL: a(f"s_mov_b64 exec, 1\nglobal_store_dword v48, v49, s[26:27]")
    a("s_mov_b64 exec, -1")
    L = a.lab("XU")
    a(f"s_cmp_ge_u32 s29, 9\ns_cbranch_scc1 {L}")
    for i in range(10): a(f"v_lshlrev_b32 v{XF+2*i}, 16, v{VX+i}\nv_and_b32 v{XF+2*i+1}, 0xffff0000, v{VX+i}")
    a(f"{L}:")
    a("L_p1_done:")
    if cfg.LONLY == 3: a("s_branch L_fin")
    a.stamp(2)
    QF, S, AO, MK, KA, KF, O = 20, 36, 64, 52, 56, 128, 60
    a(f"v_and_b32 v{VT+1}, 3, v{VJ}\nv_lshrrev_b32 v{VT+2}, 2, v{VJ}")
    a(f"v_lshl_add_u32 v{VT+3}, v{VT+1}, 2, v{VT+2}\nv_lshlrev_b32 v{VT+3}, 8, v{VT+3}")
    a(f"s_lshl_b32 s40, s30, 12\ns_add_u32 s40, s40, {L_K}\nv_add_u32 v{VT+3}, s40, v{VT+3}\nv_xor_b32 v{VT+1}, v{VT+1}, v{VKG}")
    for dd in range(4):
        a(f"v_xor_b32 v{VT+4}, {dd}, v{VT+2}\nv_lshl_add_u32 v{VT+4}, v{VT+4}, 2, v{VT+1}\nv_lshl_add_u32 v{KA+dd}, v{VT+4}, 4, v{VT+3}")
    a(f"v_and_b32 v{VT+1}, 1, v{VJ}\nv_cmp_eq_u32 vcc, 1, v{VT+1}\nv_mov_b32 v{VT+2}, 0xffff\nv_mov_b32 v{VT+4}, 0xffff0000")
    a.nop(1)
    a(f"v_cndmask_b32 v{VT+2}, v{VT+2}, v{VT+4}, vcc\nv_bfe_u32 v{VT+1}, v{VJ}, 1, 2")
    for t in range(4):
        a(f"v_cmp_eq_u32 vcc, {t}, v{VT+1}"); a.nop(2)
        a(f"v_cndmask_b32 v{MK+t}, 0, v{VT+2}, vcc")
    a("s_cmp_lg_u32 s30, 0\ns_cbranch_scc1 L_p2_skip")
    a.sleep(cfg.D_H1)
    if cfg.T_H1: lds_wait_ge(a, f"v{VCT}", 1, f"v{VT+2}", off=24)
    a(f"s_lshl_b32 s40, s28, 12\ns_add_u32 s52, s26, s40\ns_addc_u32 s53, s27, 0\ns_mov_b32 s54, {0 if cfg.LOCAL else 1}\ns_mov_b32 s55, 0")
    a(f"s_lshl_b32 s40, s28, 6\ns_add_u32 s40, s40, {WS_XI}\nv_lshlrev_b32 v{VT}, 2, v{VJ}\nv_add_u32 v{VT}, s40, v{VT}")
    Lp, Lx = spin_head(a, "s60", cfg.GSPIN, "H1")
    if cfg.LOCAL:
        Ln = a.lab("H1N")
        a(f"s_bitcmp1_b32 s55, 0\ns_cbranch_scc0 {Ln}")
        a("s_andn2_b32 s55, s55, 1\ns_mov_b32 s54, 1")
        a("v_mov_b32 v28, -1\nv_mov_b32 v29, -1\nv_mov_b32 v30, -1\nv_mov_b32 v31, -1")
        h2poison("sc1")
        a(f"s_waitcnt vmcnt(0)\nv_or_b32 v49, 8, v49\ns_mov_b64 exec, 0xffff\nglobal_store_dwordx4 v{VL16}, v[60:63], s[48:49] sc1")
        a(f"s_mov_b64 exec, 1\nglobal_store_dword v48, v49, s[26:27] sc1\ns_mov_b64 exec, -1\n{Ln}:")
    for rb in range(4): a(f"global_load_dwordx4 v[{20+4*rb}:{23+4*rb}], v{VL16}, s[52:53] offset:{1024*rb} sc1")
    if cfg.LOCAL: a(f"global_load_dword v36, v{VT}, s[26:27] sc1")
    spin_bound(a, "s60", cfg.GSPIN, Lx)
    a("s_waitcnt vmcnt(0)")
    tagcheck(a, "v40", range(20, 36), VTAG)
    if cfg.LOCAL:
        a("s_and_b32 s40, s58, 0x0fffffff\nv_lshrrev_b32 v40, 4, v36\nv_cmp_ne_u32 s[44:45], s40, v40\ns_or_b64 vcc, vcc, s[44:45]")
        Lf, Lg = a.lab("H1F"), a.lab("H1G")
        a(f"s_cbranch_vccnz {Lf}")
        a(f"v_and_b32 v40, 7, v36\nv_cmp_ne_u32 vcc, s59, v40\ns_cbranch_vccz {Lx}")
        a(f"s_bitset1_b32 s55, 1\ns_cmp_lg_u32 s54, 0\ns_cbranch_scc1 {Lg}\ns_bitset1_b32 s55, 0\ns_branch {Lp}\n{Lg}:")
        a(f"v_and_b32 v40, 8, v36\nv_cmp_eq_u32 vcc, 0, v40\ns_cbranch_vccz {Lx}\n{Lf}:")
        a(f"s_cmp_lg_u32 s60, {cfg.TO_H1}\ns_cbranch_scc1 {Lg}x\ns_cmp_lg_u32 s54, 0\ns_cbranch_scc1 {Lg}x\ns_bitset1_b32 s55, 0\n{Lg}x:")
        a.sleep(cfg.B_H1); a(f"s_branch {Lp}")
    else:
        a(f"s_cbranch_vccz {Lx}"); a.sleep(cfg.B_H1); a(f"s_branch {Lp}")
    a(f"{Lx}:\ns_mov_b64 exec, -1\ns_waitcnt vmcnt(0)")
    if cfg.STAMP: a("s_mov_b32 s88, s60\ns_mov_b32 s89, 0")
    a(f"v_mov_b32 v40, s54"); lds_set(a, f"v{VCT}", 28, "v40")
    for e in range(4): a(f"v_add_f32 v{36+e}, v{20+e}, v{24+e}\nv_add_f32 v{40+e}, v{28+e}, v{32+e}\nv_add_f32 v{36+e}, v{36+e}, v{40+e}")
    a("v_cvt_pk_bf16_f32 v36, v36, v37\nv_cvt_pk_bf16_f32 v37, v38, v39")
    a(f"v_lshlrev_b32 v{VT}, 3, v{VL}\nv_add_u32 v{VT}, {L_QB}, v{VT}\nds_write_b64 v{VT}, v[36:37]")
    a("L_p2_skip:")
    if cfg.LONLY == 4: a("s_branch L_fin")
    a.stamp(3)
    a(f"v_lshrrev_b32 v{VT}, 3, v{VJ}\nv_lshlrev_b32 v{VT}, 8, v{VT}\nv_lshl_add_u32 v{VT}, v{VKG}, 4, v{VT}\nv_add_u32 v{VT}, {L_QB}, v{VT}")
    Lp, Lx = spin_head(a, "s60", cfg.SPIN, "QF")
    for dd in range(4): a(f"ds_read_b128 v[{QF+4*dd}:{QF+4*dd+3}], v{VT} offset:{64*dd}")
    spin_bound(a, "s60", cfg.SPIN, Lx)
    a(f"s_waitcnt lgkmcnt(0)\nv_max3_u32 v{VT+1}, v{QF}, v{QF+1}, v{QF+2}")
    for i in range(3, 15, 2): a(f"v_max3_u32 v{VT+1}, v{VT+1}, v{QF+i}, v{QF+i+1}")
    a(f"v_max_u32 v{VT+1}, v{VT+1}, v{QF+15}\nv_cmp_eq_u32 vcc, -1, v{VT+1}\ns_cbranch_vccnz {Lp}\n{Lx}:\ns_waitcnt lgkmcnt(0)")
    a.stamp(4)
    for r in range(4):
        lds_wait_ge(a, f"v{VCT}", 2 + r, f"v{VT+2}")
        if r == 3: a.stamp(5)
        for dd in range(4): a(f"ds_read_b128 v[{KF+16*r+4*dd}:{KF+16*r+4*dd+3}], v{KA+dd} offset:{16384*r}")
        for dd in range(4):
            a(f"s_waitcnt lgkmcnt({3-dd})")
            cin = "0" if dd == 0 else f"v[{S+4*r}:{S+4*r+3}]"
            a(f"v_mfma_f32_16x16x32_bf16 v[{S+4*r}:{S+4*r+3}], v[{KF+16*r+4*dd}:{KF+16*r+4*dd+3}], v[{QF+4*dd}:{QF+4*dd+3}], {cin}")
    a(f"v_mov_b32 v{VT+2}, 1"); lds_set(a, f"v{VCT}", 4, f"v{VT+2}", "ds_add_u32")
    a.nop(8)
    a(f"v_max3_f32 v{VT+1}, v{S}, v{S+1}, v{S+2}")
    for i in range(3, 15, 2): a(f"v_max3_f32 v{VT+1}, v{VT+1}, v{S+i}, v{S+i+1}")
    a(f"v_max_f32 v{VT+1}, v{VT+1}, v{S+15}")
    xrow_red(a, "v_max_f32", f"v{VT+1}", f"v{VT+2}")
    a(f"v_lshrrev_b32 v{VT+2}, 3, v{VJ}\nv_lshlrev_b32 v{VT+2}, 4, v{VT+2}\nv_add_u32 v{VT+3}, {L_MX}, v{VT+2}")
    a(f"s_lshl_b32 s40, s30, 2\nv_add_u32 v{VT+4}, s40, v{VT+3}")
    a(f"s_mov_b64 exec, 0x101\nds_write_b32 v{VT+4}, v{VT+1}\ns_mov_b64 exec, -1")
    Lp, Lx = spin_head(a, "s60", cfg.SPIN, "MX")
    a(f"ds_read_b128 v[{KF}:{KF+3}], v{VT+3}"); spin_bound(a, "s60", cfg.SPIN, Lx)
    a(f"s_waitcnt lgkmcnt(0)\nv_max3_u32 v{VT+5}, v{KF}, v{KF+1}, v{KF+2}\nv_max_u32 v{VT+5}, v{VT+5}, v{KF+3}\nv_cmp_eq_u32 vcc, -1, v{VT+5}\ns_cbranch_vccnz {Lp}")
    a(f"{Lx}:\ns_waitcnt lgkmcnt(0)")
    a(f"v_max3_f32 v{VT+1}, v{KF}, v{KF+1}, v{KF+2}\nv_max_f32 v{VT+1}, v{VT+1}, v{KF+3}")
    a(f"s_mov_b32 s44, {hex(CSCALE)}\nv_mul_f32 v17, s44, v{VT+1}")
    a(f"v_and_or_b32 v17, v17, s57, v{VTAG}")
    for i in range(16): a(f"v_fma_f32 v{S+i}, v{S+i}, s44, -v17")
    for i in range(16): a(f"v_exp_f32 v{S+i}, v{S+i}")
    a.nop(1)
    a(f"v_add_f32 v{VT+1}, v{S}, v{S+1}")
    for i in range(2, 16): a(f"v_add_f32 v{VT+1}, v{VT+1}, v{S+i}")
    xrow_red(a, "v_add_f32", f"v{VT+1}", f"v{VT+2}")
    a(f"v_add_u32 v{VT+4}, {L_LW-L_MX}, v{VT+4}")
    a(f"s_mov_b64 exec, 0x101\nds_write_b32 v{VT+4}, v{VT+1}\ns_mov_b64 exec, -1")
    a("s_cmp_lg_u32 s30, 3\ns_cbranch_scc1 L_p3_noml")
    a(f"v_add_u32 v{VT+3}, {L_LW-L_MX}, v{VT+3}")
    Lp, Lx = spin_head(a, "s60", cfg.SPIN, "LW")
    a(f"ds_read_b128 v[{KF}:{KF+3}], v{VT+3}"); spin_bound(a, "s60", cfg.SPIN, Lx)
    a(f"s_waitcnt lgkmcnt(0)\nv_add_f32 v{KF}, v{KF}, v{KF+1}\nv_add_f32 v{KF+2}, v{KF+2}, v{KF+3}\nv_add_f32 v19, v{KF}, v{KF+2}")
    a(f"v_cmp_u_f32 vcc, v19, v19\ns_cbranch_vccnz {Lp}\n{Lx}:\ns_waitcnt lgkmcnt(0)")
    a(f"s_lshl_b32 s46, s28, 4\ns_add_u32 s40, s46, s29\ns_lshl_b32 s40, s40, 7\ns_add_u32 s40, s40, {WS_ML}\ns_add_u32 s42, s26, s40\ns_addc_u32 s43, s27, 0")
    a(f"v_and_or_b32 v19, v19, s57, v{VTAG}")
    a("v_readlane_b32 s46, v17, 0\nv_readlane_b32 s47, v19, 0\nv_readlane_b32 s48, v17, 8\nv_readlane_b32 s49, v19, 8")
    a("v_mov_b32 v28, s46\nv_mov_b32 v29, s47\nv_mov_b32 v30, s48\nv_mov_b32 v31, s49")
    a(f"ds_read_b32 v{VT+2}, v{VCT} offset:28\ns_waitcnt lgkmcnt(0)\nv_readfirstlane_b32 s54, v{VT+2}\ns_mov_b64 exec, 0xff")
    L1, L2 = a.lab("MLG"), a.lab("MLD")
    a(f"s_cmp_lg_u32 s54, 0\ns_cbranch_scc1 {L1}\nglobal_store_dwordx4 v{VL16}, v[28:31], s[42:43]\ns_branch {L2}\n{L1}:")
    a(f"global_store_dwordx4 v{VL16}, v[28:31], s[42:43] sc1\n{L2}:\ns_mov_b64 exec, -1")
    a("L_p3_noml:")
    for i in range(16):
        a(f"v_cvt_pk_bf16_f32 v{S+i}, v{S+i}, v{S+i}")
        for t in range(4): a(f"v_and_b32 v{AO+4*i+t}, v{S+i}, v{MK+t}")
    a.stamp(6)
    if cfg.LONLY == 5: a("s_branch L_fin")
    VF = KF
    MLR = 20
    a(f"s_lshl_b32 s40, s30, 12\ns_add_u32 s40, s40, {L_V}\nv_add_u32 v{VT}, s40, v{VL16}")
    a(f"s_lshl_b32 s40, s28, 11\ns_add_u32 s40, s40, {WS_ML}\ns_add_u32 s42, s26, s40\ns_addc_u32 s43, s27, 0\nv_lshlrev_b32 v16, 7, v{VJ}")
    for r in range(4): a(f"v_mov_b32 v{O+r}, 0")
    MLB, MLC = 32, 36
    a(f"s_lshl_b32 s40, s28, 4\ns_add_u32 s40, s40, s29\ns_lshl_b32 s40, s40, 9\ns_add_u32 s40, s40, {WS_H2}\ns_add_u32 s48, s26, s40\ns_addc_u32 s49, s27, 0")
    a(f"v_lshrrev_b32 v9, 1, v{VKG}\nv_lshlrev_b32 v9, 8, v9\nv_lshl_add_u32 v9, v{VJ}, 4, v9")
    def ml_merge():
        a(f"v_mov_b32 v24, v{MLR}\nv_mov_b32 v25, v{MLR+2}")
        row_red(a, "v_max_f32", ["v24", "v25"])
        a(f"v_sub_f32 v26, v{MLR}, v24\nv_sub_f32 v27, v{MLR+2}, v25\nv_exp_f32 v26, v26\nv_exp_f32 v27, v27")
        a("v_readlane_b32 s44, v17, 0\nv_readlane_b32 s45, v17, 8")
        a(f"v_mul_f32 v26, v26, v{MLR+1}\nv_mul_f32 v27, v27, v{MLR+3}")
        row_red(a, "v_add_f32", ["v26", "v27"])
        a("v_sub_f32 v24, s44, v24\nv_sub_f32 v25, s45, v25\nv_rcp_f32 v26, v26\nv_rcp_f32 v27, v27\nv_exp_f32 v24, v24\nv_exp_f32 v25, v25")
        a.nop(1)
        a("v_mul_f32 v24, v24, v26\nv_mul_f32 v25, v25, v27")
        a("s_mov_b32 exec_lo, 0\nv_mov_b32 v24, v25\ns_mov_b64 exec, -1")
    def cp4(dst, src):
        for e in range(4): a(f"v_mov_b32 v{dst+e}, v{src+e}")
    for r in range(4):
        if r == 3:
            L, Lm, Ls = a.lab("MLS"), a.lab("MLM"), a.lab("MLK")
            a(f"s_cmp_lg_u32 s30, 3\ns_cbranch_scc1 {L}\ns_mov_b32 s62, 0\ns_waitcnt vmcnt(2)")
            tagcheck(a, f"v{VT+2}", range(MLR, MLR+4), VTAG)
            a(f"s_cbranch_vccz {Lm}\ns_waitcnt vmcnt(1)")
            tagcheck(a, f"v{VT+2}", range(MLB, MLB+4), VTAG)
            cp4(MLR, MLB)
            a(f"s_cbranch_vccz {Lm}\ns_mov_b32 s62, 1\ns_branch {Ls}\n{Lm}:")
            ml_merge()
            a(f"{Ls}:")
            a(f"{L}:")
        lds_wait_ge(a, f"v{VCT}", 6 + r, f"v{VT+2}")
        for t in range(4): a(f"ds_read_b128 v[{VF+4*t}:{VF+4*t+3}], v{VT} offset:{16384*r+1024*t}")
        if r < 3:
            L = a.lab("MLI"); d = (MLR, MLB, MLC)[r]
            a(f"s_cmp_lg_u32 s30, 3\ns_cbranch_scc1 {L}\nglobal_load_dwordx4 v[{d}:{d+3}], v16, s[42:43] sc1\n{L}:")
        for t in range(4):
            a(f"s_waitcnt lgkmcnt({3-t})")
            a(f"v_mfma_f32_16x16x32_bf16 v[{O}:{O+3}], v[{AO+16*r+4*t}:{AO+16*r+4*t+3}], v[{VF+4*t}:{VF+4*t+3}], v[{O}:{O+3}]")
    a(f"v_mov_b32 v{VT+2}, 1"); lds_set(a, f"v{VCT}", 8, f"v{VT+2}", "ds_add_u32")
    a.stamp(7)
    a("s_cmp_eq_u32 s30, 3\ns_cbranch_scc1 L_p4_pub")
    a(f"s_lshl_b32 s40, s30, 10\ns_add_u32 s40, s40, {L_OP}\nv_add_u32 v{VT}, s40, v{VL16}")
    a(f"ds_write_b128 v{VT}, v[{O}:{O+3}]")
    a("s_branch L_p4_done")
    a("L_p4_pub:")
    Ld = a.lab("MLD")
    a(f"s_cmp_eq_u32 s62, 0\ns_cbranch_scc1 {Ld}\ns_waitcnt vmcnt(0)")
    cp4(MLR, MLC)
    Lp, Lx = a.lab("ML"), a.lab("MLX")
    a("s_mov_b32 s61, 0\ns_branch " + Lp + "_chk")
    a(f"{Lp}:\nglobal_load_dwordx4 v[{MLR}:{MLR+3}], v16, s[42:43] sc1")
    a(f"{Lp}_chk:")
    spin_bound(a, "s61", cfg.GSPIN, Lx)
    a("s_waitcnt vmcnt(0)")
    tagcheck(a, f"v{VT+2}", range(MLR, MLR+4), VTAG)
    a(f"s_cbranch_vccz {Lx}"); a.sleep(cfg.B_ML); a(f"s_branch {Lp}")
    a(f"{Lx}:\ns_waitcnt vmcnt(0)")
    ml_merge()
    a(f"{Ld}:")
    a(f"v_add_u32 v{VT}, {L_OP}, v{VL16}")
    Lp, Lx = spin_head(a, "s60", cfg.SPIN, "OP")
    for w in range(3): a(f"ds_read_b128 v[{VF+4*w}:{VF+4*w+3}], v{VT} offset:{1024*w}")
    spin_bound(a, "s60", cfg.SPIN, Lx)
    a("s_waitcnt lgkmcnt(0)")
    for e in range(4): a(f"v_add_f32 v{VF+12+e}, v{VF+e}, v{VF+4+e}\nv_add_f32 v{VF+12+e}, v{VF+12+e}, v{VF+8+e}")
    a(f"v_add_f32 v{VT+3}, v{VF+12}, v{VF+13}\nv_add_f32 v{VT+4}, v{VF+14}, v{VF+15}\nv_add_f32 v{VT+3}, v{VT+3}, v{VT+4}")
    a(f"v_cmp_u_f32 vcc, v{VT+3}, v{VT+3}\ns_cbranch_vccnz {Lp}\n{Lx}:\ns_waitcnt lgkmcnt(0)")
    for e in range(4): a(f"v_add_f32 v{O+e}, v{O+e}, v{VF+12+e}\nv_mul_f32 v{O+e}, v{O+e}, v24")
    a(f"v_cvt_pk_bf16_f32 v28, v{O}, v{O+1}\nv_cvt_pk_bf16_f32 v29, v{O+2}, v{O+3}\nv_mov_b32 v30, v28\nv_mov_b32 v31, v29")
    a.nop(1)
    a("v_permlane16_swap_b32 v28, v30\nv_permlane16_swap_b32 v29, v31")
    a.nop(2)
    a.exec64(0x0000ffff, 0x0000ffff)
    L1, L2 = a.lab("PUBG"), a.lab("PUBD")
    a(f"s_cmp_lg_u32 s54, 0\ns_cbranch_scc1 {L1}")
    a(f"global_store_dwordx4 v9, v[28:31], s[48:49]\ns_branch {L2}\n{L1}:")
    a(f"global_store_dwordx4 v9, v[28:31], s[48:49] sc1\n{L2}:\ns_mov_b64 exec, -1")
    if cfg.PFS:
        a(f"v_mov_b32 v{VT+2}, 1"); lds_set(a, f"v{VCT}", 44, f"v{VT+2}")
    a("L_p4_done:")
    a.stamp(8)
    a("s_cmp_lt_u32 s29, 9\ns_cbranch_scc1 L_role_f")
    G, BF, D5 = 20, 64, 112
    a("s_cmp_eq_u32 s29, 15\ns_cbranch_scc1 L_p5_done")
    a(f"s_lshl_b32 s40, s28, 13\ns_add_u32 s40, s40, {WS_H2}\ns_add_u32 s42, s26, s40\ns_addc_u32 s43, s27, 0")
    a(f"v_lshlrev_b32 v{VT}, 9, v{VJ}\nv_lshl_add_u32 v{VT}, v{VKG}, 4, v{VT}\ns_lshl_b32 s40, s30, 7\nv_add_u32 v{VT}, s40, v{VT}")
    a(f"v_bfe_u32 v{VT+2}, v{VL}, 2, 2\nv_lshl_add_u32 v{VT+2}, v{VKG}, 3, v{VT+2}\ns_lshl_b32 s40, s30, 6\nv_add_u32 v{VT+2}, s40, v{VT+2}")
    a(f"v_mul_u32_u24 v{VT+2}, 192, v{VT+2}\nv_and_b32 v{VT+3}, 3, v{VL}\nv_lshl_add_u32 v{VT+2}, v{VT+3}, 3, v{VT+2}")
    lds_wait_ge(a, f"v{VCT}", 1, f"v{VT+4}", off=12)
    a("s_mov_b32 s62, 0")
    Lp, Lx = spin_head(a, "s61", cfg.GSPIN, "H2")
    for t in range(2): a(f"global_load_dwordx4 v[{G+4*t}:{G+4*t+3}], v{VT}, s[42:43] offset:{64*t} sc1")
    Lq = a.lab("H2F")
    a(f"s_cmp_lg_u32 s62, 0\ns_cbranch_scc1 {Lq}\ns_mov_b32 s62, 1")
    a(f"v_mov_b32 v{VT+4}, 1"); lds_set(a, f"v{VCT}", 16, f"v{VT+4}", "ds_add_u32")
    if cfg.WOROT: a("s_and_b32 s63, s29, 1\ns_lshl_b32 s63, s63, 1\ns_add_u32 s63, s63, s30\ns_and_b32 s63, s63, 3\ns_add_u32 s63, s63, 10")
    else: a("s_add_u32 s63, s30, 10")
    lds_wait_ge(a, f"v{VCT}", "s63", f"v{VT+4}")
    for t in range(2):
        for nb_ in range(6):
            for h in range(2):
                a(f"ds_read_b64_tr_b16 v[{BF+8*nb_+4*t+2*h}:{BF+8*nb_+4*t+2*h+1}], v{VT+2} offset:{O_WO+t*6144+h*768+nb_*32}")
    a(f"{Lq}:")
    spin_bound(a, "s61", cfg.GSPIN, Lx)
    a(f"s_waitcnt vmcnt(0)\nv_max3_u32 v{VT+4}, v{G}, v{G+1}, v{G+2}\nv_max3_u32 v{VT+4}, v{VT+4}, v{G+3}, v{G+4}\nv_max3_u32 v{VT+4}, v{VT+4}, v{G+5}, v{G+6}\nv_max_u32 v{VT+4}, v{VT+4}, v{G+7}")
    a(f"v_cmp_eq_u32 vcc, -1, v{VT+4}\ns_and_b64 exec, exec, vcc\ns_cbranch_execz {Lx}"); a.sleep(cfg.B_H2); a(f"s_branch {Lp}")
    a(f"{Lx}:\ns_mov_b64 exec, -1\ns_waitcnt vmcnt(0) lgkmcnt(0)")
    a.stamp(9)
    for t in range(2):
        for nb_ in range(6):
            cin = "0" if t == 0 else f"v[{D5+4*nb_}:{D5+4*nb_+3}]"
            a(f"v_mfma_f32_16x16x32_bf16 v[{D5+4*nb_}:{D5+4*nb_+3}], v[{G+4*t}:{G+4*t+3}], v[{BF+8*nb_+4*t}:{BF+8*nb_+4*t+3}], {cin}")
    a.nop(4)
    for nb_ in range(6):
        b = D5 + 4*nb_
        if nb_ == 5: a.nop(4)
        a(f"v_add_f32 v{b}, v{b}, v{b+1}\nv_add_f32 v{b+2}, v{b+2}, v{b+3}\nv_add_f32 v{b}, v{b}, v{b+2}")
    a0, a1, a2, a3 = D5, D5+4, D5+8, D5+12
    b0, b1 = D5+16, D5+20
    z0, z1 = D5+1, D5+2
    a(f"v_mov_b32 v{z0}, 0\nv_mov_b32 v{z1}, 0"); a.nop(2)
    a(f"v_permlane32_swap_b32 v{a0}, v{a2}\nv_permlane32_swap_b32 v{a1}, v{a3}\nv_permlane32_swap_b32 v{b0}, v{z0}\nv_permlane32_swap_b32 v{b1}, v{z1}"); a.nop(1)
    a(f"v_add_f32 v{a0}, v{a0}, v{a2}\nv_add_f32 v{a1}, v{a1}, v{a3}\nv_add_f32 v{b0}, v{b0}, v{z0}\nv_add_f32 v{b1}, v{b1}, v{z1}"); a.nop(2)
    a(f"v_permlane16_swap_b32 v{a0}, v{a1}\nv_permlane16_swap_b32 v{b0}, v{b1}"); a.nop(1)
    a(f"v_add_f32 v{a0}, v{a0}, v{a1}\nv_add_f32 v{b0}, v{b0}, v{b1}")
    a(f"s_lshl_b32 s40, s30, 9\ns_add_u32 s40, s40, {L_R5}\nv_lshlrev_b32 v{VT}, 2, v{VL}\nv_add_u32 v{VT}, s40, v{VT}")
    a(f"ds_write_b32 v{VT}, v{a0}\nds_write_b32 v{VT}, v{b0} offset:256")
    a("s_cmp_lg_u32 s30, 3\ns_cbranch_scc1 L_p5_done")
    a(f"v_lshlrev_b32 v{VT}, 5, v{VL}\nv_add_u32 v{VT}, {L_R5}, v{VT}")
    a("s_sub_u32 s41, s29, 9\ns_mov_b64 exec, 0xfff")
    Lp, Lx = spin_head(a, "s60", cfg.SPIN, "R5")
    for w in range(4):
        for h in range(2): a(f"ds_read_b128 v[{BF+8*w+4*h}:{BF+8*w+4*h+3}], v{VT} offset:{512*w+16*h}")
    spin_bound(a, "s60", cfg.SPIN, Lx)
    a("s_waitcnt lgkmcnt(0)")
    for e in range(8): a(f"v_add_f32 v{G+e}, v{BF+e}, v{BF+8+e}\nv_add_f32 v{BF+32+e}, v{BF+16+e}, v{BF+24+e}\nv_add_f32 v{G+e}, v{G+e}, v{BF+32+e}")
    a(f"v_add_f32 v{VT+3}, v{G}, v{G+1}")
    for e in range(2, 8): a(f"v_add_f32 v{VT+3}, v{VT+3}, v{G+e}")
    a(f"v_cmp_u_f32 vcc, v{VT+3}, v{VT+3}\ns_cbranch_vccnz {Lp}\n{Lx}:\ns_waitcnt lgkmcnt(0)")
    for e in range(4): a(f"v_cvt_pk_bf16_f32 v{G+e}, v{G+2*e}, v{G+2*e+1}")
    a(f"s_mul_i32 s40, s41, 192\ns_mul_i32 s44, s28, 1152\ns_add_u32 s40, s40, s44\ns_add_u32 s40, s40, {WS_H3}\ns_add_u32 s42, s26, s40\ns_addc_u32 s43, s27, 0")
    a(f"global_store_dwordx4 v{VL16}, v[{G}:{G+3}], s[42:43] sc1\ns_mov_b64 exec, -1")
    a("L_p5_done:")
    a.stamp(10)
    a(f"s_cmp_ge_u32 s30, {cfg.REDW}\ns_cbranch_scc1 L_fin")
    a("s_lshr_b32 s40, s28, 1\ns_and_b32 s44, s28, 1\ns_sub_u32 s41, s29, 9\ns_lshl_b32 s41, s41, 1\ns_add_u32 s41, s41, s44")
    a("s_cmp_lt_u32 s41, 8\ns_cbranch_scc1 L_p9_go\ns_cmp_ge_u32 s41, 12\ns_cbranch_scc1 L_fin\ns_cmp_ge_u32 s40, 2\ns_cbranch_scc1 L_fin")
    a("L_p9_go:")
    a("s_lshr_b32 s44, s41, 2\ns_lshl_b32 s44, s44, 3\ns_add_u32 s44, s44, s40\ns_lshl_b32 s44, s44, 5\ns_and_b32 s45, s41, 3\ns_lshl_b32 s45, s45, 3\ns_add_u32 s44, s44, s45")
    alive_addr(a, VL, 9, VT+2)
    a(f"s_lshl_b32 s40, s44, 1\ns_add_u32 s40, s40, {WS_H3}\ns_add_u32 s42, s26, s40\ns_addc_u32 s43, s27, 0")
    a(f"v_mul_u32_u24 v{VT}, 1152, v{VJ}\nv_lshl_add_u32 v{VT}, v{VKG}, 1, v{VT}")
    a(f"s_lshl_b32 s40, s44, 1\ns_add_u32 s46, s4, s40\ns_addc_u32 s47, s5, 0\nv_lshlrev_b32 v{VT+1}, 1, v{VKG}")
    a(f"global_load_ushort v26, v{VT+1}, s[46:47]\nglobal_load_ushort v27, v{VT+1}, s[46:47] offset:8")
    Lp, Lx = spin_head(a, "s60", cfg.GSPIN, "HH")
    alive_load(a, 9)
    a(f"global_load_ushort v24, v{VT}, s[42:43] sc1\nglobal_load_ushort v25, v{VT}, s[42:43] offset:8 sc1"); spin_bound(a, "s60", cfg.GSPIN, Lx)
    a("s_waitcnt vmcnt(0)"); alive_test(a)
    a("v_max_u32 v28, v24, v25\nv_cmp_eq_u32 vcc, 0xffff, v28\ns_or_b64 vcc, vcc, s[50:51]")
    a(f"s_cbranch_vccz {Lx}"); a.sleep(4); a(f"s_branch {Lp}\n{Lx}:\ns_waitcnt vmcnt(0)")
    a("v_lshlrev_b32 v24, 16, v24\nv_lshlrev_b32 v25, 16, v25\nv_lshlrev_b32 v26, 16, v26\nv_lshlrev_b32 v27, 16, v27")
    row_red(a, "v_add_f32", ["v24", "v25"])
    a("v_add_f32 v24, v24, v26\nv_add_f32 v25, v25, v27")
    a.exec64(0xaaaaaaaa, 0xaaaaaaaa); a("v_mov_b32 v24, v25\ns_mov_b64 exec, -1")
    a(f"s_lshl_b32 s40, s44, 2\ns_add_u32 s40, s40, {WS_H4}\ns_add_u32 s42, s26, s40\ns_addc_u32 s43, s27, 0")
    a(f"v_lshrrev_b32 v{VT}, 1, v{VL}\nv_mul_u32_u24 v{VT}, 2304, v{VT}\nv_and_b32 v{VT+1}, 1, v{VL}\nv_lshl_add_u32 v{VT}, v{VT+1}, 4, v{VT}")
    for t in range(1, 5): a(f"v_add_u32 v{VT+t}, {32*2304*t}, v{VT}")
    for e in range(4): a(f"v_mov_b32 v{80+e}, v{VTAG}")
    a(f"s_lshl_b32 s40, s44, 1\ns_add_u32 s48, s22, s40\ns_addc_u32 s49, s23, 0\nv_and_b32 v10, 1, v{VL}\nv_lshlrev_b32 v10, 3, v10\nv_lshl_add_u32 v10, v{VKG}, 1, v10")
    if cfg.H4P:
        def issue(b):
            for t in range(4): a(f"global_load_dwordx4 v[{b+4*t}:{b+4*t+3}], v{VT+t}, s[42:43] sc1")
            a(f"s_mov_b32 exec_hi, 0\nglobal_load_dwordx4 v[{b+16}:{b+19}], v{VT+4}, s[42:43] sc1\ns_mov_b64 exec, -1")
        def sums(b):
            for e in range(4): a(f"v_add_f32 v{20+e}, v{b+e}, v{b+4+e}\nv_add_f32 v{28+e}, v{b+8+e}, v{b+12+e}\nv_add_f32 v{20+e}, v{20+e}, v{b+16+e}\nv_add_f32 v{20+e}, v{20+e}, v{28+e}")
        for e in range(4): a(f"v_mov_b32 v{100+e}, v{VTAG}")
        Lp, Lx, Lb, Ld = a.lab("H4"), a.lab("H4A"), a.lab("H4B"), a.lab("H4D")
        a("s_mov_b32 s60, 0")
        issue(64); issue(84)
        a(f"{Lp}:")
        a("s_waitcnt vmcnt(5)")
        tagcheck(a, "v28", range(64, 84), VTAG)
        a(f"s_cbranch_vccz {Lx}")
        issue(64)
        a("s_waitcnt vmcnt(5)")
        tagcheck(a, "v28", range(84, 104), VTAG)
        a(f"s_cbranch_vccz {Lb}")
        issue(84)
        a(f"s_add_u32 s60, s60, 1\ns_cmp_le_u32 s60, {cfg.GSPIN}\ns_cbranch_scc1 {Lp}\ns_waitcnt vmcnt(0)")
        a(f"{Lx}:")
        a.stamp(14)
        sums(64)
        a(f"s_branch {Ld}\n{Lb}:")
        a.stamp(14)
        sums(84)
        a(f"{Ld}:")
    elif cfg.H4M:
        M = ["s[52:53]", "s[54:55]", "s[62:63]", "s[98:99]", "s[100:101]"]
        for t in range(4): a(f"s_mov_b64 {M[t]}, -1")
        a("s_mov_b32 s100, -1\ns_mov_b32 s101, 0")
        Lp, Lx = spin_head(a, "s60", cfg.GSPIN, "H4")
        for t in range(5):
            L = a.lab("H4L")
            a(f"s_mov_b64 exec, {M[t]}\ns_cbranch_execz {L}\nglobal_load_dwordx4 v[{64+4*t}:{67+4*t}], v{VT+t}, s[42:43] sc1\n{L}:")
        a("s_mov_b64 exec, -1")
        spin_bound(a, "s60", cfg.GSPIN, Lx)
        a("s_waitcnt vmcnt(0)")
        for t in range(5):
            L = a.lab("H4C")
            a(f"s_mov_b64 exec, {M[t]}\ns_cbranch_execz {L}")
            tagcheck(a, "v28", range(64+4*t, 68+4*t), VTAG)
            a(f"s_mov_b64 {M[t]}, vcc\n{L}:")
        a(f"s_or_b64 s[46:47], {M[0]}, {M[1]}\ns_or_b64 s[46:47], s[46:47], {M[2]}\ns_or_b64 s[46:47], s[46:47], {M[3]}\ns_or_b64 s[46:47], s[46:47], {M[4]}")
        a(f"s_cbranch_scc0 {Lx}"); a.sleep(cfg.B_H4); a(f"s_branch {Lp}")
        a(f"{Lx}:\ns_mov_b64 exec, -1\ns_waitcnt vmcnt(0)")
    else:
        a("s_mov_b64 s[46:47], -1")
        Lp, Lx = spin_head(a, "s60", cfg.GSPIN, "H4")
        for t in range(4): a(f"global_load_dwordx4 v[{64+4*t}:{67+4*t}], v{VT+t}, s[42:43] sc1")
        a(f"s_mov_b32 exec_hi, 0\nglobal_load_dwordx4 v[80:83], v{VT+4}, s[42:43] sc1\ns_mov_b64 exec, s[46:47]")
        spin_bound(a, "s60", cfg.GSPIN, Lx)
        a("s_waitcnt vmcnt(0)")
        tagcheck(a, "v28", range(64, 84), VTAG)
        a(f"s_and_b64 s[46:47], exec, vcc\ns_mov_b64 exec, s[46:47]\ns_cbranch_execz {Lx}"); a.sleep(cfg.B_H4); a(f"s_branch {Lp}")
        a(f"{Lx}:\ns_mov_b64 exec, -1\ns_waitcnt vmcnt(0)")
    if not cfg.H4P: a.stamp(14)
    if cfg.UNTIL:
        L = a.lab("UNT")
        a(f"s_add_u32 s52, s96, {cfg.UNTIL}\n{L}:\ns_memrealtime s[54:55]\ns_waitcnt lgkmcnt(0)\ns_sub_u32 s54, s54, s52\ns_cmp_lt_i32 s54, 0\ns_cbranch_scc1 {L}")
    if cfg.DELAY:
        L = a.lab("DLY")
        a(f"s_memtime s[52:53]\ns_waitcnt lgkmcnt(0)\ns_add_u32 s52, s52, {cfg.DELAY}\n{L}:\ns_memtime s[54:55]\ns_waitcnt lgkmcnt(0)\ns_sub_u32 s54, s54, s52\ns_cmp_lt_i32 s54, 0\ns_cbranch_scc1 {L}")
    if not cfg.H4P:
      for e in range(4): a(f"v_add_f32 v{20+e}, v{64+e}, v{68+e}\nv_add_f32 v{28+e}, v{72+e}, v{76+e}\nv_add_f32 v{20+e}, v{20+e}, v{80+e}\nv_add_f32 v{20+e}, v{20+e}, v{28+e}")
    a.nop(2)
    a("v_permlane32_swap_b32 v20, v22\nv_permlane32_swap_b32 v21, v23"); a.nop(1)
    a("v_add_f32 v20, v20, v22\nv_add_f32 v21, v21, v23"); a.nop(2)
    a("v_permlane16_swap_b32 v20, v21"); a.nop(1)
    a("v_add_f32 v20, v20, v21")
    for ctl in ("row_ror:8", "row_ror:4", "row_ror:2"):
        a.nop(2); dpp(a, "v_add_f32", "v20", ctl)
    a("v_add_f32 v20, v20, v24\nv_cvt_pk_bf16_f32 v20, v20, v20")
    a.exec64(0x00030003, 0x00030003)
    a(f"global_store_short v10, v20, s[48:49]\ns_mov_b64 exec, -1")
    a(f"s_or_b32 s40, s44, s30\ns_cmp_lg_u32 s40, 0\ns_cbranch_scc1 L_fin\nv_mov_b32 v{VT}, {WS_EP}\nv_mov_b32 v{VT+1}, s58\ns_mov_b64 exec, 1\nglobal_store_dword v{VT}, v{VT+1}, s[26:27]\ns_mov_b64 exec, -1")
    a("s_branch L_fin")
    a("L_role_f:")
    WF, RAW, HF, AC, SEL, DF = 64, 136, 136, 236, 56, 208
    lds_wait_ge(a, f"v{VCT}", 1, f"v{VT+2}", off=40)
    a(f"s_cmp_eq_u32 s31, 2\ns_cselect_b32 s98, 0, {L_V}\ns_cselect_b32 s99, {L_V}, 0\ns_cmp_ge_u32 s31, 2\ns_cselect_b32 s100, 10, 11\ns_cselect_b32 s101, 11, 12\ns_cselect_b32 s53, 12, 10")
    TG = 36864
    a(f"v_bfe_u32 v{VT}, v{VL}, 2, 2\nv_lshl_add_u32 v{VT}, v{VKG}, 3, v{VT}\nv_lshlrev_b32 v{VT}, 6, v{VT}\nv_and_b32 v{VT+1}, 3, v{VL}\nv_lshl_add_u32 v{VT}, v{VT+1}, 3, v{VT}")
    a(f"s_and_b32 s40, s30, 1\ns_lshl_b32 s40, s40, 5\ns_cmp_ge_u32 s30, 2\ns_cselect_b32 s41, s98, {TG}\ns_add_u32 s40, s40, s41\nv_add_u32 v{VT}, s40, v{VT}")
    MG, MU, MD = "s100", "s101", "s53"
    a(f"v_bfe_u32 v10, v{VL}, 2, 2\nv_lshl_add_u32 v10, v{VKG}, 3, v10\nv_mul_u32_u24 v10, 1152, v10")
    a(f"v_and_b32 v{VT+2}, 3, v{VL}\nv_lshlrev_b32 v{VT+2}, 3, v{VT+2}\ns_mul_i32 s40, s30, {320 if cfg.FULLN else 288}\ns_add_u32 s40, s40, s99\nv_add_u32 v{VT+2}, s40, v{VT+2}\nv_add_u32 v10, v10, v{VT+2}")
    if cfg.FULLN: a("s_cmp_eq_u32 s30, 3\ns_cselect_b32 s40, 64, 0\nv_subrev_u32 v10, s40, v10")
    NB = 10 if cfg.FULLN else 9
    MSK = [6, 7, 8, 30, 31, 60, 61, 62, 63, 0]
    for n in range(NB): a(f"v_xor_b32 v{MSK[n]}, {n}, v{VJ}\nv_add_u32 v{MSK[n]}, -1, v{MSK[n]}\nv_ashrrev_i32 v{MSK[n]}, 31, v{MSK[n]}")
    def wfrags():
        for t in range(18):
            for h in range(2): a(f"ds_read_b64_tr_b16 v[{WF+4*t+2*h}:{WF+4*t+2*h+1}], v{VT} offset:{2048*t+256*h}")
    def dfrags():
        for n in range(NB):
            for h in range(2): a(f"ds_read_b64_tr_b16 v[{DF+4*n+2*h}:{DF+4*n+2*h+1}], v10 offset:{32*n+4608*h}")
    a("s_cmp_lg_u32 s30, 0\ns_cbranch_scc1 L_p6_skip")
    for t in range(4): a(f"v_and_b32 v{SEL+t}, 0x3f803f80, v{MK+t}")
    for pb in range(4):
        for e in range(4): a(f"v_mov_b32 v{RAW+64+4*pb+e}, 0")
    a(f"s_add_u32 s42, s26, {WS_H3}\ns_addc_u32 s43, s27, 0")
    a(f"v_mul_u32_u24 v{VT+1}, 1152, v{VKG}\nv_lshl_add_u32 v{VT+1}, v{VJ}, 4, v{VT+1}")
    lds_wait_ge(a, f"v{VCT}", MG, f"v{VT+2}")
    wfrags()
    alive_addr(a, VL, 9, 10 + 0) if False else None
    alive_addr(a, VL, 9, VT+2)
    lds_wait_ge(a, f"v{VCT}", 1, f"v{VT+2}", off=(32 if cfg.EH3 else 12))
    a.stamp(9)
    a("s_mov_b64 s[46:47], -1")
    Lp, Lx = spin_head(a, "s61", cfg.GSPIN, "H3")
    a("s_mov_b64 exec, -1"); alive_load(a, 9); a("s_mov_b64 exec, s[46:47]")
    a("s_mov_b32 s44, s42\ns_mov_b32 s45, s43")
    for pb in range(4):
        for cb in range(4): a(f"global_load_dwordx4 v[{RAW+16*cb+4*pb}:{RAW+16*cb+4*pb+3}], v{VT+1}, s[44:45] offset:{256*cb} sc1")
        a("s_and_b32 exec_lo, exec_lo, 0x00ff00ff\ns_and_b32 exec_hi, exec_hi, 0x00ff00ff")
        Lz = a.lab("H3Z")
        a(f"s_cbranch_execz {Lz}\nglobal_load_dwordx4 v[{RAW+64+4*pb}:{RAW+64+4*pb+3}], v{VT+1}, s[44:45] offset:1024 sc1\n{Lz}:")
        a(f"s_mov_b64 exec, s[46:47]\ns_add_u32 s44, s44, {4*1152}\ns_addc_u32 s45, s45, 0")
    a("s_mov_b64 exec, -1")
    if True:
        Lh = a.lab("H3H")
        a(f"s_cmp_lg_u32 s61, 0\ns_cbranch_scc1 {Lh}\nv_mov_b32 v{VT+2}, 1"); lds_set(a, f"v{VCT}", 16, f"v{VT+2}"); a(f"{Lh}:")
    spin_bound(a, "s61", cfg.GSPIN, Lx)
    Lw = a.lab("H3W")
    a(f"s_cmp_le_u32 s61, 1\ns_cbranch_scc1 {Lw}\ns_waitcnt vmcnt(0)")
    if cfg.H3Q:
        regs = [RAW + 16*cb + 4*pb for pb in range(4) for cb in range(5)]
        a(f"v_max3_u32 v14, v{regs[0]}, v{regs[1]}, v{regs[2]}")
        for i in range(3, 19, 2): a(f"v_max3_u32 v14, v14, v{regs[i]}, v{regs[i+1]}")
        a(f"v_max_u32 v14, v14, v{regs[19]}")
        alive_test(a)
        Lq2 = a.lab("H3Q")
        a(f"v_cmp_eq_u32 vcc, -1, v14\ns_cmp_lg_u64 s[50:51], 0\ns_cbranch_scc0 {Lq2}\ns_mov_b64 vcc, -1\n{Lq2}:")
        a(f"s_cbranch_vccz {Lw}\ns_mov_b64 s[46:47], vcc\ns_mov_b64 exec, vcc"); a.sleep(cfg.B_H3); a(f"s_branch {Lp}")
    a(f"{Lw}:")
    for pb in range(4):
        a(f"s_waitcnt vmcnt({15-5*pb})")
        if pb == 0: alive_test(a)
        for cb in range(5):
            c_in = XF + 4*cb if pb == 0 else AC + 4*cb
            a(f"v_mfma_f32_16x16x32_bf16 v[{AC+4*cb}:{AC+4*cb+3}], v[{SEL}:{SEL+3}], v[{RAW+16*cb+4*pb}:{RAW+16*cb+4*pb+3}], v[{c_in}:{c_in+3}]")
    a.nop(4)
    def pr(b): return f"v[{b}:{b+1}]"
    a(f"v_pk_add_f32 v[14:15], {pr(AC)}, {pr(AC+2)}\nv_pk_mul_f32 v[16:17], {pr(AC)}, {pr(AC)}\nv_pk_fma_f32 v[16:17], {pr(AC+2)}, {pr(AC+2)}, v[16:17]")
    for i in range(4, 20, 2):
        if i == 16: a.nop(4)
        a(f"v_pk_add_f32 v[14:15], v[14:15], {pr(AC+i)}\nv_pk_fma_f32 v[16:17], {pr(AC+i)}, {pr(AC+i)}, v[16:17]")
    a("v_add_f32 v14, v14, v15\nv_add_f32 v16, v16, v17")
    Lr = a.lab("H3R")
    a(f"v_cmp_u_f32 vcc, v14, v14\ns_cmp_lg_u64 s[50:51], 0\ns_cbranch_scc0 {Lr}\ns_mov_b64 vcc, -1\n{Lr}:")
    a(f"s_cbranch_vccz {Lx}\ns_mov_b64 s[46:47], vcc")
    if cfg.EH3 or cfg.W2ND:
        Le = a.lab("H3E")
        a(f"s_cmp_lg_u32 s61, 1\ns_cbranch_scc1 {Le}")
        lds_wait_ge(a, f"v{VCT}", 1, f"v{VT+3}", off=(36 if cfg.W2ND else 12))
        a(f"{Le}:")
    a("s_mov_b64 exec, s[46:47]"); a.sleep(cfg.B_H3); a(f"s_branch {Lp}")
    a(f"{Lx}:\ns_mov_b64 exec, -1\ns_waitcnt vmcnt(0) lgkmcnt(0)")
    a.stamp(11)
    row_red(a, "v_add_f32", ["v14", "v16"])
    a("v_mov_b32 v15, v14\nv_mov_b32 v17, v16"); a.nop(1)
    a("v_permlane16_swap_b32 v14, v15\nv_permlane16_swap_b32 v16, v17"); a.nop(1)
    a("v_add_f32 v14, v14, v15\nv_add_f32 v16, v16, v17")
    a(f"v_mul_f32 v14, {hex(f2b(1.0/576))}, v14\nv_mul_f32 v16, {hex(f2b(1.0/576))}, v16")
    a(f"v_fma_f32 v16, -v14, v14, v16\nv_max_f32 v16, 0, v16\nv_add_f32 v16, {hex(f2b(1e-5))}, v16\nv_rsq_f32 v16, v16")
    a(f"v_and_b32 v{VT+1}, 1, v{VKG}\nv_lshlrev_b32 v{VT+1}, 3, v{VT+1}\nv_lshl_add_u32 v{VT+1}, v{VJ}, 4, v{VT+1}\nv_add_u32 v{VT+1}, {L_HN}, v{VT+1}")
    a("v_mul_f32 v14, v14, v16\nv_mov_b32 v17, v16\nv_sub_f32 v14, 0, v14\nv_mov_b32 v15, v14")
    a("s_mov_b32 exec_hi, 0")
    for cb in range(5):
        a(f"v_pk_fma_f32 {pr(AC+4*cb)}, {pr(AC+4*cb)}, v[16:17], v[14:15]\nv_pk_fma_f32 {pr(AC+4*cb+2)}, {pr(AC+4*cb+2)}, v[16:17], v[14:15]")
        a(f"v_cvt_pk_bf16_f32 v{20+2*cb}, v{AC+4*cb}, v{AC+4*cb+1}\nv_cvt_pk_bf16_f32 v{21+2*cb}, v{AC+4*cb+2}, v{AC+4*cb+3}")
        if cb == 4: a("s_mov_b32 exec_lo, 0x00ff00ff")
        a(f"ds_write_b64 v{VT+1}, v[{20+2*cb}:{21+2*cb}] offset:{256*cb}")
    a("s_mov_b64 exec, -1")
    a(f"v_mov_b32 v{VT+2}, 1"); lds_set(a, f"v{VCT}", 20, f"v{VT+2}")
    a("s_branch L_p7_go")
    a("L_p6_skip:")
    a(f"s_cmp_ge_u32 s30, 2\ns_cselect_b32 s63, {MU}, {MG}")
    lds_wait_ge(a, f"v{VCT}", "s63", f"v{VT+2}")
    wfrags()
    L = a.lab("DFA")
    a(f"s_cmp_lg_u32 s53, 10\ns_cbranch_scc1 {L}")
    lds_wait_ge(a, f"v{VCT}", MD, f"v{VT+2}")
    dfrags()
    a(f"{L}:")
    lds_wait_ge(a, f"v{VCT}", 1, f"v{VT+2}", off=20)
    a("L_p7_go:")
    D7 = 20
    a(f"v_lshlrev_b32 v{VT+1}, 4, v{VKG}\nv_add_u32 v{VT+1}, {L_HN}, v{VT+1}")
    a("s_waitcnt lgkmcnt(0)")
    for t in range(14): a(f"ds_read_b128 v[{HF+4*t}:{HF+4*t+3}], v{VT+1} offset:{64*t}")
    for t in range(18):
        if t + 14 < 18: a("s_waitcnt lgkmcnt(13)")
        else: a(f"s_waitcnt lgkmcnt({17-t})")
        cin = "0" if t < 2 else f"v[{D7+4*(t&1)}:{D7+4*(t&1)+3}]"
        a(f"v_mfma_f32_16x16x32_bf16 v[{D7+4*(t&1)}:{D7+4*(t&1)+3}], v[{WF+4*t}:{WF+4*t+3}], v[{HF+4*t}:{HF+4*t+3}], {cin}")
        if t + 14 < 18: a(f"ds_read_b128 v[{HF+4*(t+14)}:{HF+4*(t+14)+3}], v{VT+1} offset:{64*(t+14)}")
    a(f"s_lshl_b32 s40, s30, 6\ns_add_u32 s40, s40, {L_R7}\nv_lshlrev_b32 v{VT}, 4, v{VKG}\nv_add_u32 v{VT}, s40, v{VT}")
    a(f"v_lshlrev_b32 v{VT+1}, 5, v{VKG}\nv_add_u32 v{VT+1}, {L_R7}, v{VT+1}")
    a(f"s_mul_i32 s40, s28, 9\ns_add_u32 s40, s40, s29\ns_mul_i32 s40, s40, 2304\ns_mul_i32 s41, s30, {640 if cfg.FULLN else 576}\ns_add_u32 s40, s40, s41\ns_add_u32 s40, s40, {WS_H4}")
    if cfg.FULLN: a("s_cmp_eq_u32 s30, 3\ns_cselect_b32 s41, 128, 0\ns_sub_u32 s40, s40, s41")
    a(f"s_add_u32 s42, s26, s40\ns_addc_u32 s43, s27, 0")
    for e in range(4): a(f"v_add_f32 v{D7+e}, v{D7+e}, v{D7+4+e}")
    a.exec64(0x00010001, 0x00010001)
    a(f"ds_write_b128 v{VT}, v[{D7}:{D7+3}]\ns_mov_b64 exec, -1")
    L, L2 = a.lab("DFB"), a.lab("DFC")
    a(f"s_cmp_eq_u32 s30, 0\ns_cbranch_scc1 {L2}\ns_cmp_eq_u32 s53, 10\ns_cbranch_scc1 {L}\n{L2}:")
    lds_wait_ge(a, f"v{VCT}", MD, f"v{VT+2}")
    dfrags()
    a(f"{L}:")
    a.stamp(12)
    BB, D8 = 136, 20
    a(f"v_lshlrev_b32 v{VT}, 6, v{VJ}\nv_lshl_add_u32 v{VT}, v{VKG}, 4, v{VT}")
    Lp, Lx = spin_head(a, "s60", cfg.SPIN, "R7")
    a(f"ds_read_b128 v[32:35], v{VT+1}\nds_read_b128 v[36:39], v{VT+1} offset:16\nds_read_b128 v[40:43], v{VT+1} offset:128\nds_read_b128 v[44:47], v{VT+1} offset:144")
    spin_bound(a, "s60", cfg.SPIN, Lx)
    a("s_waitcnt lgkmcnt(0)")
    for e in range(8): a(f"v_max_f32 v{48+e}, 0, v{32+e}")
    for e in range(0, 8, 2): a(f"v_pk_mul_f32 {pr(48+e)}, {pr(48+e)}, {pr(40+e)}")
    a("v_max3_u32 v56, v32, v33, v34\nv_max3_u32 v57, v35, v36, v37\nv_max3_u32 v56, v56, v38, v39\nv_max3_u32 v57, v57, v40, v41\nv_max3_u32 v56, v56, v42, v43\nv_max3_u32 v57, v57, v44, v45\nv_max3_u32 v56, v56, v46, v47\nv_max_u32 v56, v56, v57")
    a(f"v_cmp_eq_u32 vcc, -1, v56\ns_cbranch_vccnz {Lp}\n{Lx}:\ns_waitcnt lgkmcnt(0)")
    for e in range(4): a(f"v_cvt_pk_bf16_f32 v{32+e}, v{48+2*e}, v{49+2*e}")
    for n in range(NB):
        for h in range(4): a(f"v_and_b32 v{BB+4*n+h}, v{32+h}, v{MSK[n]}")
        if n:
            cin = "0" if n == 1 else f"v[{D8}:{D8+3}]"
            a(f"v_mfma_f32_16x16x32_bf16 v[{D8}:{D8+3}], v[{DF+4*(n-1)}:{DF+4*(n-1)+3}], v[{BB+4*(n-1)}:{BB+4*(n-1)+3}], {cin}")
    a.nop(2)
    a(f"v_mfma_f32_16x16x32_bf16 v[{D8}:{D8+3}], v[{DF+4*(NB-1)}:{DF+4*(NB-1)+3}], v[{BB+4*(NB-1)}:{BB+4*(NB-1)+3}], v[{D8}:{D8+3}]")
    a.nop(8)
    for e in range(4): a(f"v_and_or_b32 v{D8+e}, v{D8+e}, s57, v{VTAG}")
    if cfg.FULLN: a("s_mov_b32 s40, 0x03ff03ff\ns_cmp_ge_u32 s30, 2\ns_cselect_b32 s40, 0x00ff00ff, s40\ns_mov_b32 exec_lo, s40\ns_mov_b32 exec_hi, s40")
    else: a.exec64(0x01ff01ff, 0x01ff01ff)
    a(f"global_store_dwordx4 v{VT}, v[{D8}:{D8+3}], s[42:43] sc1\ns_mov_b64 exec, -1")
    a.stamp(13)
    a("L_fin:")
    a.stamp(15)
    stamps_out(a)
    a("s_endpgm")

def generate(cfg):
    a = A(cfg)
    K = NAME + "_kernel"
    hdr = open("cdna_kernels/" + NAME + ".s.ref").read().split("; Override launch geometry")[0]
    out = [hdr.rstrip(), "; Override launch geometry by editing the next line (default: block=256,", "; grid=ceil(out_elems/256), lds=0). Harness parses it; keep it on one line.",
           f"; @launch grid=(256,1,1) block=(320,1,1) lds={LDS_BYTES}", '.amdgcn_target "amdgcn-amd-amdhsa--gfx950"\n.text', f".globl {K}\n.p2align 8\n.type {K},@function\n{K}:"]
    a("KSTART:")
    a("s_cmp_ge_u32 s2, 256\ns_cbranch_scc1 L_exit")
    if cfg.UNTIL or cfg.WB or cfg.DYN == 2: a("s_memrealtime s[96:97]")
    a("s_load_dwordx16 s[4:19], s[0:1], 0\ns_load_dwordx8 s[20:27], s[0:1], 64")
    if cfg.STAMP:
        for i in range(16): a(f"s_mov_b64 s[{64+2*i}:{65+2*i}], 0")
        a("s_memrealtime s[64:65]")
    a("v_and_b32 v1, 63, v0\nv_lshrrev_b32 v2, 6, v0")
    a("s_and_b32 s28, s2, 7\ns_lshl_b32 s28, s28, 1\ns_lshr_b32 s29, s2, 3\ns_and_b32 s29, s29, 1\ns_or_b32 s28, s28, s29\ns_lshr_b32 s29, s2, 4")
    if cfg.MAPALT: a("s_lshr_b32 s28, s2, 4\ns_and_b32 s29, s2, 15")
    a("v_readfirstlane_b32 s3, v2")
    a("v_lshrrev_b32 v20, 3, v1\nv_lshlrev_b32 v20, 13, v20\nv_and_b32 v21, 7, v1\nv_lshlrev_b32 v21, 4, v21\nv_add_u32 v5, v20, v21")
    a("s_lshr_b32 s40, s29, 2\ns_mul_i32 s40, s40, 1179648\ns_and_b32 s41, s29, 3\ns_lshl_b32 s41, s41, 7\ns_lshl_b32 s42, s28, 9\ns_add_u32 s41, s41, s42\ns_add_u32 s40, s40, s41")
    a(f"s_sub_u32 s34, 4718592, s40\ns_mov_b32 s35, 0x20000\ns_mov_b32 m0, {L_WQ}\ns_mov_b32 s36, 0")
    a("s_waitcnt lgkmcnt(0)")
    a("s_cmp_lg_u32 s3, 0\ns_cbranch_scc1 L_consumer")
    gen_loader(a)
    gen_consumer(a)
    a("L_exit:\ns_endpgm")
    out += a.L
    out.append('.section .rodata,"a"\n.p2align 6')
    out.append(f".amdhsa_kernel {K}")
    out.append("  .amdhsa_next_free_vgpr 256\n  .amdhsa_next_free_sgpr 102\n  .amdhsa_accum_offset 256\n  .amdhsa_group_segment_fixed_size 0\n  .amdhsa_kernarg_size 96\n  .amdhsa_user_sgpr_count 2\n  .amdhsa_user_sgpr_kernarg_segment_ptr 1\n  .amdhsa_system_sgpr_workgroup_id_x 1\n.end_amdhsa_kernel")
    return "\n".join(out) + "\n"

if __name__ == "__main__":
    cfg = Cfg()
    for kv in sys.argv[2:]:
        k, v = kv.split("=")
        setattr(cfg, k, v if k in ("NT", "NTGU", "NTWO") else (v == "1" if k == "STAMP" else int(v)))
    open(sys.argv[1], "w").write(generate(cfg))
```

```python
import sys, struct, math
NAME = "sequential_preLN__sliding_block_cached__glu_gated_reglu__decode"
def f2b(x): return struct.unpack("<I", struct.pack("<f", x))[0]

class Cfg:
    W1 = 22; WWO = 22; WGU = 12; WD = 20
    NT = "nt"
    STAMP = False
    DBG = 0
    TO_H1 = 12
    MAPALT = 0
    LOCAL = 1
    DELAY = 0
    UNTIL = 0
    CPF = 0
    TPF = 0
    WOROT = 1
    NTWO = ""
    NTGU = ""
    ORD = 0
    EH3 = 0
    W0 = 0; N0 = 0
    NOX = 0
    WB = 0; TB = 310
    W2ND = 0
    DYN = 0
    TB2 = 540
    ALE = 1
    ILV = 0
    WIL = 12
    REDW = 1
    FULLN = 1
    H4M = 0
    H4P = 1
    H3Q = 1
    PFS = 1
    PF = 0
    WG0 = 14; NG0 = 0
    WG1 = 16
    WUP = 16
    GUROT = 1
    ROT = 5
    LONLY = 0
    H3GATE = 1
    T_H1 = 24
    D_H1 = 0; B_H1 = 0; B_ML = 2; B_H2 = 0; B_H3 = 0; B_H4 = 0; B_AL = 2
    SPIN = 1 << 18
    GSPIN = 1 << 15

WS_H1 = 0x00000; WS_ML = 0x10000; WS_H2 = 0x18000; WS_H3 = 0x38000; WS_AL = 0x3d000; WS_XI = 0x3e000; WS_EP = 0x3f000; WS_H4 = 0x40000; WS_ST = 0x100000
L_WQ = 0; L_K = 18432; L_V = L_K + 65536; L_SB = L_V + 65536
L_XN = L_SB
L_QB = L_XN + 1152
L_MX = L_QB + 512
L_LW = L_MX + 32
L_OP = L_LW + 32
L_R5 = L_OP + 3072
L_HN = L_R5 + 2048
L_R7 = L_HN + 1152
L_QP = L_R7 + 256
L_CT = L_QP + 256
L_END = L_CT + 64
LDS_BYTES = 161280
assert L_END <= LDS_BYTES
POIS_LO, POIS_HI = L_QB, L_CT
F_G, F_U, F_D = 0, 36864, L_V
F1_D, F1_G, F1_U = 0, 36864, L_V
O_WO = 0
CSCALE = f2b(math.log2(math.e) / math.sqrt(128.0))

class A:
    def __init__(s, cfg): s.L = []; s.cfg = cfg; s.uid = 0
    def __call__(s, t):
        for ln in t.split("\n"):
            ln = ln.strip()
            if ln: s.L.append(("" if ln.endswith(":") else "    ") + ln)
    def lab(s, base): s.uid += 1; return f"{base}_{s.uid}"
    def nop(s, n):
        while n > 0:
            k = min(n, 16); s(f"s_nop {k-1}"); n -= k
    def stamp(s, idx):
        if s.cfg.STAMP: s(f"s_memrealtime s[{64+2*idx}:{65+2*idx}]")
    def exec64(s, lo, hi): s(f"s_mov_b32 exec_lo, {hex(lo)}\ns_mov_b32 exec_hi, {hex(hi)}")
    def sleep(s, n):
        while n > 0:
            k = min(n, 127); s(f"s_sleep {k}"); n -= k

def lds_wait_ge(a, addr_v, val, tmp_v, tmp_s="s31", cnt_s="s60", off=0):
    if a.cfg.LONLY and off in (4, 8, 12, 16, 32, 36, 40, 44): return
    L = a.lab("LW"); X = a.lab("LX")
    o = f" offset:{off}" if off else ""
    a(f"s_mov_b32 {cnt_s}, 0\n{L}:\nds_read_b32 {tmp_v}, {addr_v}{o}")
    a(f"s_add_u32 {cnt_s}, {cnt_s}, 1\ns_cmp_gt_u32 {cnt_s}, {a.cfg.SPIN}\ns_cbranch_scc1 {X}")
    a(f"s_waitcnt lgkmcnt(0)\nv_readfirstlane_b32 {tmp_s}, {tmp_v}\ns_cmp_lt_u32 {tmp_s}, {val}\ns_cbranch_scc1 {L}\n{X}:\ns_waitcnt lgkmcnt(0)")

def lds_set(a, addr_v, off, val_v, op="ds_write_b32"):
    a(f"s_mov_b64 exec, 1\n{op} {addr_v}, {val_v} offset:{off}\ns_mov_b64 exec, -1")

def dpp(a, op, v, ctl): a(f"{op}_dpp {v}, {v}, {v} {ctl} row_mask:0xf bank_mask:0xf")
def row_red(a, op, vs):
    if isinstance(vs, str): vs = [vs]
    for ctl in ("quad_perm:[1,0,3,2]", "quad_perm:[2,3,0,1]", "row_half_mirror", "row_mirror"):
        a.nop(max(0, 3 - len(vs))) if len(vs) < 3 else None
        for v in vs: dpp(a, op, v, ctl)
    a.nop(0)
def xrow_red(a, op, v, t):
    a(f"v_mov_b32 {t}, {v}"); a.nop(2)
    a(f"v_permlane16_swap_b32 {v}, {t}"); a.nop(1)
    a(f"{op} {v}, {v}, {t}\nv_mov_b32 {t}, {v}"); a.nop(2)
    a(f"v_permlane32_swap_b32 {v}, {t}"); a.nop(1)
    a(f"{op} {v}, {v}, {t}")

def spin_head(a, cnt, bound, name):
    Lp, Lx = a.lab(name), a.lab(name + "X")
    a(f"s_mov_b32 {cnt}, 0\n{Lp}:")
    return Lp, Lx
def spin_bound(a, cnt, bound, Lx):
    a(f"s_add_u32 {cnt}, {cnt}, 1\ns_cmp_gt_u32 {cnt}, {bound}\ns_cbranch_scc1 {Lx}")

def tagcheck(a, acc, regs, vtag):
    regs = list(regs)
    a(f"v_xor_b32 {acc}, v{regs[0]}, v{vtag}")
    for r in regs[1:]: a(f"v_bitop3_b32 {acc}, {acc}, v{r}, v{vtag} bitop3:0xf6")
    a(f"v_and_b32 {acc}, 0x3ff, {acc}\nv_cmp_ne_u32 vcc, 0, {acc}")

def stamps_out(a, loader=False):
    if not a.cfg.STAMP: return
    if a.cfg.DBG:
        a("s_waitcnt lgkmcnt(0)\ns_mov_b64 exec, 1")
        if loader: lst = [(0, 0, 0), (255, 0, 1), (0, 3, 2), (255, 3, 3), (0, 8, 4)]
        else: lst = [(0, 7, 5), (0, 11, 6), (0, 13, 7), (144, 9, 8), (144, 10, 9), (144, 14, 10), (144, 15, 11), (145, 15, 12), (160, 15, 13), (161, 15, 14), (178, 15, 15)]
        for (wg, st, slot) in lst:
            L = a.lab("DB")
            a(f"s_cmp_lg_u32 s2, {wg}\ns_cbranch_scc1 {L}")
            if not loader: a(f"s_cmp_lg_u32 s30, 0\ns_cbranch_scc1 {L}")
            a(f"v_mov_b32 v250, {4*slot}\nv_mov_b32 v251, s{64+2*st}\nglobal_store_dword v250, v251, s[24:25]\n{L}:")
        return
    a("s_waitcnt lgkmcnt(0)")
    a(f"s_lshl_b32 s40, s2, 3\ns_add_u32 s40, s40, s3\ns_lshl_b32 s40, s40, 7\ns_add_u32 s40, s40, {WS_ST}")
    a("s_add_u32 s40, s26, s40\ns_addc_u32 s41, s27, 0\ns_mov_b64 exec, 1\nv_mov_b32 v250, 0")
    for i in range(16):
        a(f"v_mov_b32 v252, s{64+2*i}\nv_mov_b32 v253, s{65+2*i}\nglobal_store_dwordx2 v250, v[252:253], s[40:41] offset:{8*i}")
        a.nop(2)

def page_touch(a, vlo, vhi, vdst):
    a(f"v_mov_b32 v{vlo}, s4\nv_mov_b32 v{vhi}, s5")
    a(f"s_lshl_b32 s40, s28, 24\ns_lshl_b32 s41, s29, 16\ns_add_u32 s40, s40, s41\ns_add_u32 s40, s40, {(65536-4096)*256}")
    def put(lane, p, off):
        a(f"s_add_u32 s52, s{p}, {off}\ns_addc_u32 s53, s{p+1}, 0\nv_writelane_b32 v{vlo}, s52, {lane}\nv_writelane_b32 v{vhi}, s53, {lane}")
    put(0, 6, "s40"); put(1, 8, "s40")
    a("s_mul_i32 s41, s28, 294912"); put(2, 12, "s41")
    a("s_add_u32 s41, s41, 294784"); put(3, 12, "s41")
    n = 4
    for p in (16, 18):
        for off in (0, 0x200000, 0x400000): put(n, p, off); n += 1
    a("s_mul_i32 s41, s28, 331776"); put(n, 20, "s41"); n += 1
    a("s_add_u32 s41, s41, 331648"); put(n, 20, "s41"); n += 1
    put(n, 26, 0x40000); n += 1
    put(n, 22, 0); n += 1
    a(f"s_mov_b64 exec, {hex((1 << n) - 1)}\nglobal_load_dword v{vdst}, v[{vlo}:{vhi}], off nt\ns_mov_b64 exec, -1")

def alive_addr(a, VL, va, vt):
    a(f"v_lshrrev_b32 v{va}, 2, v{VL}\nv_lshlrev_b32 v{va}, 7, v{va}\nv_and_b32 v{vt}, 3, v{VL}\nv_lshl_add_u32 v{va}, v{vt}, 3, v{va}\nv_add_u32 v{va}, {WS_AL}, v{va}")
def alive_load(a, va): a(f"global_load_dwordx2 v[18:19], v{va}, s[26:27] sc1")
def alive_test(a):
    a("v_cmp_ne_u32 s[50:51], s58, v18\nv_cmp_ne_u32 s[40:41], s58, v19\ns_or_b64 s[50:51], s[50:51], s[40:41]")

def gen_loader(a):
    cfg = a.cfg; NT = cfg.NT
    V_L16, V_WQ, V_K, V_P, V_FA, V_FV, V_T = 4, 5, 6, 10, 16, 17, 18
    a(f"L_loader:")
    a("s_add_u32 s32, s10, s40\ns_addc_u32 s33, s11, 0")
    def raw(pat, off=0, pol=None):
        o = f" offset:{off}" if off else ""
        a(f"buffer_load_dwordx4 v{pat}, s[32:35], s36 offen{o} {NT if pol is None else pol} lds")
    def signal(val):
        a(f"v_mov_b32 v{V_FV}, {val}"); lds_set(a, f"v{V_FA}", 0, f"v{V_FV}")
        if val == 1: a.stamp(11)
        if val == 5: a.stamp(9)
        if val == 9: a.stamp(10)
    st = {"bar": False}
    class Seq:
        def __init__(s, W, n, pend): s.n = n; s.W = W; s.pend = pend; s.h1done = n > 0
        def after(s):
            n = s.n
            if cfg.W0 and n < 146 and not getattr(s, "fixed", False): s.W = cfg.W0 if n < cfg.N0 else cfg.W1
            if n >= s.W - 1:
                if not st["bar"]:
                    st["bar"] = True; a("s_barrier")
                a(f"s_waitcnt vmcnt({s.W-1})")
                landed = n - s.W + 1
                while s.pend and s.pend[0][0] <= landed: signal(s.pend.pop(0)[1])
                if cfg.T_H1 and not s.h1done and landed >= 18 + cfg.T_H1:
                    s.h1done = True
                    a(f"v_mov_b32 v{V_FV}, 1"); lds_set(a, f"v{V_FA}", 24, f"v{V_FV}")
            s.n += 1
        def drain(s):
            last = s.n - 1
            while s.pend:
                e, v = s.pend.pop(0)
                a(f"s_waitcnt vmcnt({last-e})"); signal(v)
    q = Seq(cfg.W1, 0, [])
    q.pend.append((17, 1))
    for i in range(18):
        if i: a("s_add_u32 m0, m0, 0x400\ns_add_u32 s36, s36, 0x10000")
        raw(V_WQ); q.after()
        if i == 0: a(f"s_setprio 1\ns_load_dword s58, s[26:27], {WS_EP}\nv_lshlrev_b32 v{V_L16}, 4, v1")
        if i == 1:
            a("v_lshrrev_b32 v20, 4, v1\nv_lshlrev_b32 v21, 2, v20\nv_and_b32 v22, 15, v1\nv_xor_b32 v22, v22, v21\nv_lshlrev_b32 v20, 8, v20")
            for p in range(4): a(f"v_xor_b32 v23, {p}, v22\nv_lshlrev_b32 v23, 4, v23\nv_add_u32 v{V_K+p}, v20, v23")
            a(f"v_mov_b32 v{V_FA}, {L_CT}")
    a.stamp(1)
    for name, p, lbase, pats in (("K", 6, L_K, [V_K, V_K+1, V_K+2, V_K+3]), ("V", 8, L_V, [V_L16]*4)):
        a(f"s_lshl_b32 s40, s28, 24\ns_lshl_b32 s42, s29, 16\ns_add_u32 s42, s42, {(65536-4096)*256}\ns_add_u32 s40, s40, s42")
        a(f"s_add_u32 s32, s{p}, s40\ns_addc_u32 s33, s{p+1}, 0\ns_mov_b32 s34, 65536\ns_mov_b32 m0, {lbase}\ns_mov_b32 s36, 0")
        if cfg.ROT: a(f"s_mul_i32 s36, s28, {cfg.ROT}\ns_add_u32 s36, s36, s29\ns_and_b32 s36, s36, 15\ns_lshl_b32 s36, s36, 12")
        base = q.n
        for r in range(4): q.pend.append((base + 16*r + 15, (2 if name == "K" else 6) + r))
        def seg(qq):
            for i in range(64):
                if i and i % 4 == 0:
                    a("s_add_u32 m0, m0, 0x1000\ns_add_u32 s36, s36, 0x1000")
                    if cfg.ROT: a("s_and_b32 s36, s36, 0xffff")
                elif i == 0: a.nop(1)
                raw(pats[i % 4], off=(i % 4) * 1024); qq.after()
                if name == "K" and i in (15, 31, 47): a.stamp(12 + (i + 1) // 16 - 1)
        if name == "V" and cfg.WB:
            a(f"s_memrealtime s[50:51]\ns_waitcnt lgkmcnt(0)\ns_sub_u32 s50, s50, s96\ns_cmp_lt_u32 s50, {cfg.TB}\ns_cbranch_scc1 L_v_normal")
            qb = Seq(cfg.WB, q.n, list(q.pend)); qb.fixed = True
            seg(qb)
            a(f"s_waitcnt vmcnt({cfg.W1-1})")
            landed = qb.n - 1 - cfg.W1 + 1
            while qb.pend and qb.pend[0][0] <= landed: signal(qb.pend.pop(0)[1])
            a("s_branch L_v_done\nL_v_normal:")
            seg(q)
            assert [x for x in q.pend] == [x for x in qb.pend], (q.pend, qb.pend)
            a("L_v_done:")
        else:
            seg(q)
        a.stamp(2 if name == "K" else 3)
    lds_wait_ge(a, f"v{V_FA}", 4, "v19", "s43", "s44", off=4)
    a.stamp(4)
    n0, p0 = q.n, list(q.pend)
    a("s_cmp_ge_u32 s29, 9\ns_cbranch_scc1 L_ld_o")
    q = Seq(cfg.WGU, n0, list(p0))
    a(f"v_lshrrev_b32 v20, 2, v1\nv_mul_u32_u24 v20, 9216, v20\nv_and_b32 v21, 3, v1\nv_lshlrev_b32 v21, 4, v21\nv_add_u32 v{V_P}, v20, v21")
    a("s_mul_i32 s45, s28, 288\ns_lshl_b32 s46, s29, 5\ns_add_u32 s45, s45, s46")
    if cfg.GUROT: a("s_add_u32 s47, s28, s29\ns_and_b32 s47, s47, 1\ns_mul_i32 s47, s47, 18")
    def gu_tile(p, lb, mile, W):
        nonlocal q
        q.W = W
        q.pend.append((q.n + 35, mile))
        a(f"s_lshl_b32 s40, s45, 1\ns_add_u32 s32, s{p}, s40\ns_addc_u32 s33, s{p+1}, 0\ns_sub_u32 s34, 5308416, s40\ns_mov_b32 m0, {lb}\ns_mov_b32 s36, 0")
        if cfg.GUROT: a(f"s_lshl_b32 s48, s47, 10\ns_add_u32 m0, s48, {lb}\ns_mul_i32 s36, s47, {16*9216}")
        for i in range(36):
            if i:
                if cfg.GUROT and i == 18:
                    a(f"s_cmp_lg_u32 s47, 0\ns_cselect_b32 s48, {36*1024}, 0\ns_cselect_b32 s52, {36*16*9216}, 0\ns_sub_u32 m0, m0, s48\ns_sub_u32 s36, s36, s52")
                a(f"s_add_u32 m0, m0, 0x400\ns_add_u32 s36, s36, {16*9216}")
            else: a.nop(1)
            if p == 16 and i < cfg.NG0: q.W = cfg.WG0
            else: q.W = W
            raw(V_P, pol=cfg.NTGU); q.after()
            if p == 18 and cfg.EH3 and i == cfg.EH3 - 1:
                a(f"v_mov_b32 v{V_FV}, 1"); lds_set(a, f"v{V_FA}", 32, f"v{V_FV}")
    def down_tile(lb, mile):
        nonlocal q
        a(f"s_mul_i32 s40, s45, 1152\ns_add_u32 s32, s20, s40\ns_addc_u32 s33, s21, 0\ns_mov_b32 s34, {32*1152}\ns_mov_b32 m0, {lb}\ns_mov_b32 s36, 0")
        q.pend.append((q.n + 35, mile)); q.W = cfg.WD
        for i in range(36):
            if i and i % 4 == 0: a("s_add_u32 m0, m0, 0x1000\ns_add_u32 s36, s36, 0x1000")
            elif i == 0: a.nop(1)
            raw(V_L16, off=(i % 4) * 1024); q.after()
    a("s_lshl_b32 s40, s45, 1\ns_add_u32 s40, s40, s16\ns_lshr_b32 s40, s40, 7\ns_and_b32 s40, s40, 7\ns_cmp_eq_u32 s40, 3\ns_cselect_b32 s49, 2, 1")
    if cfg.DYN == 0: a("s_mov_b32 s49, 1")
    if cfg.DYN == 3: a("s_mov_b32 s49, 2")
    if cfg.DYN == 2:
        a(f"s_memrealtime s[50:51]\ns_waitcnt lgkmcnt(0)\ns_sub_u32 s50, s50, s96\ns_cmp_gt_u32 s50, {cfg.TB2}\ns_cselect_b32 s49, 2, s49")
    if cfg.ILV == 1: a("s_cmp_eq_u32 s40, 3\ns_cselect_b32 s49, 3, s49")
    if cfg.ILV == 2: a("s_mov_b32 s49, 3")
    a(f"v_mov_b32 v{V_FV}, s49"); lds_set(a, f"v{V_FA}", 40, f"v{V_FV}")
    if cfg.ILV: a("s_cmp_eq_u32 s49, 3\ns_cbranch_scc1 L_ld_fc")
    if cfg.DYN: a("s_cmp_eq_u32 s49, 2\ns_cbranch_scc1 L_ld_fb")
    down_tile(0, 10)
    a.stamp(7)
    gu_tile(16, 36864, 11, cfg.WG1)
    a.stamp(5)
    lds_wait_ge(a, f"v{V_FA}", 4, "v19", "s43", "s44", off=8)
    gu_tile(18, L_V, 12, cfg.WUP)
    a(f"v_mov_b32 v{V_FV}, 1"); lds_set(a, f"v{V_FA}", 12, f"v{V_FV}")
    a.stamp(6)
    q.drain()
    a("s_branch L_ld_done")
    if cfg.ILV:
        a("L_ld_fc:")
        q = Seq(cfg.WIL, n0, list(p0))
        a(f"s_mul_i32 s40, s45, 1152\ns_add_u32 s52, s20, s40\ns_addc_u32 s53, s21, 0\ns_mov_b32 s54, {32*1152}\ns_mov_b32 s55, 0x20000\ns_mov_b32 s56, 0\ns_mov_b32 s57, 0")
        nd = 0
        for (p, lb, mile) in ((16, 36864, 10), (18, L_V, 11)):
            if p == 18: lds_wait_ge(a, f"v{V_FA}", 4, "v19", "s43", "s44", off=8)
            first = q.n
            last_narrow = first + 35 + 17
            q.pend.append((last_narrow, mile))
            a(f"s_lshl_b32 s40, s45, 1\ns_add_u32 s32, s{p}, s40\ns_addc_u32 s33, s{p+1}, 0\ns_sub_u32 s34, 5308416, s40\ns_mov_b32 s59, {lb}\ns_mov_b32 s36, 0")
            if cfg.GUROT: a(f"s_lshl_b32 s48, s47, 10\ns_add_u32 s59, s48, {lb}\ns_mul_i32 s36, s47, {16*9216}")
            for i in range(36):
                if i:
                    if cfg.GUROT and i == 18:
                        a(f"s_cmp_lg_u32 s47, 0\ns_cselect_b32 s48, {36*1024}, 0\ns_cselect_b32 s51, {36*16*9216}, 0\ns_sub_u32 s59, s59, s48\ns_sub_u32 s36, s36, s51")
                    a(f"s_add_u32 s59, s59, 0x400\ns_add_u32 s36, s36, {16*9216}")
                a("s_mov_b32 m0, s59"); a.nop(1)
                raw(V_P, pol=cfg.NTGU); q.after()
                if i == 35:
                    assert q.n - 1 == last_narrow
                    if p == 18:
                        a(f"v_mov_b32 v{V_FV}, 1"); lds_set(a, f"v{V_FA}", 12, f"v{V_FV}")
                        a.stamp(6)
                    else: a.stamp(5)
                if i % 2 == 1:
                    a("s_mov_b32 m0, s57\ns_add_u32 s57, s57, 0x400")
                    a(f"buffer_load_dwordx4 v{V_L16}, s[52:55], s56 offen {NT} lds\ns_add_u32 s56, s56, 0x400")
                    nd += 1
                    if nd == 36: q.pend.append((q.n, 12))
                    q.after()
        a.stamp(7)
        q.drain()
        a("s_branch L_ld_done")
    if cfg.DYN:
      a("L_ld_fb:")
      q = Seq(cfg.WGU, n0, list(p0))
      gu_tile(16, 36864, 10, cfg.WG1)
      a.stamp(5)
      gu_tile(18, 0, 11, cfg.WUP)
      a(f"v_mov_b32 v{V_FV}, 1"); lds_set(a, f"v{V_FA}", 12, f"v{V_FV}")
      a.stamp(6)
      if cfg.H3GATE: lds_wait_ge(a, f"v{V_FA}", 1, "v19", "s43", "s44", off=16)
      lds_wait_ge(a, f"v{V_FA}", 4, "v19", "s43", "s44", off=8)
      down_tile(L_V, 12)
      a.stamp(7)
      q.drain()
      a("s_branch L_ld_done")
    a("L_ld_o:")
    a("s_cmp_eq_u32 s29, 15\ns_cbranch_scc1 L_ld_spare")
    q = Seq(cfg.WWO, n0, list(p0))
    def alive_store():
        a(f"s_sub_u32 s41, s29, 9\ns_lshl_b32 s40, s28, 7\ns_lshl_b32 s44, s41, 2\ns_add_u32 s40, s40, s44\ns_add_u32 s40, s40, {WS_AL}")
        a(f"s_add_u32 s58, s58, 1\nv_lshlrev_b32 v20, 2, v1\nv_add_u32 v20, s40, v20\nv_mov_b32 v21, s58")
        a(f"s_mov_b64 exec, 1\ns_cmp_eq_u32 s41, 5\ns_cselect_b32 exec_lo, 7, exec_lo\nglobal_store_dword v20, v21, s[26:27] sc1\ns_mov_b64 exec, -1")
        q.n += 1
    if cfg.ALE: alive_store()
    for p in range(3):
        a(f"v_add_u32 v20, {64*p}, v1\nv_mul_u32_u24 v21, 171, v20\nv_lshrrev_b32 v21, 11, v21")
        a(f"v_mul_u32_u24 v22, 12, v21\nv_sub_u32 v22, v20, v22\nv_lshlrev_b32 v22, 4, v22\nv_mul_u32_u24 v21, 1152, v21\nv_add_u32 v{V_P+p}, v21, v22")
    a("s_mul_i32 s40, s28, 294912\ns_sub_u32 s41, s29, 9\ns_mul_i32 s41, s41, 192\ns_add_u32 s40, s40, s41")
    a(f"s_add_u32 s32, s12, s40\ns_addc_u32 s33, s13, 0\ns_sub_u32 s34, 4718592, s40\ns_mov_b32 m0, {O_WO}\ns_mov_b32 s36, 0")
    for c in range(4): q.pend.append((q.n + 12*c + 11, 10 + c))
    if cfg.WOROT:
        a(f"s_and_b32 s47, s29, 1\ns_mul_i32 s48, s47, {24*1024}\ns_add_u32 m0, s48, {O_WO}\ns_mul_i32 s36, s47, {128*1152}")
    for i in range(48):
        if i:
            if cfg.WOROT and i == 24:
                a(f"s_cmp_lg_u32 s47, 0\ns_cselect_b32 s48, {48*1024}, 0\ns_cselect_b32 s49, {256*1152}, 0\ns_sub_u32 m0, m0, s48\ns_sub_u32 s36, s36, s49")
            a("s_add_u32 m0, m0, 0x400")
            if i % 3 == 0: a(f"s_add_u32 s36, s36, {16*1152}")
            else: a.nop(1)
        else: a.nop(1)
        raw(V_P + i % 3, pol=cfg.NTWO); q.after()
    a(f"v_mov_b32 v{V_FV}, 1"); lds_set(a, f"v{V_FA}", 12, f"v{V_FV}")
    a.stamp(5)
    if not cfg.ALE:
        lds_wait_ge(a, f"v{V_FA}", 4, "v19", "s43", "s44", off=16)
        alive_store()
    elif cfg.PF:
        lds_wait_ge(a, f"v{V_FA}", 4, "v19", "s43", "s44", off=16)
    if cfg.PF:
        a("s_lshr_b32 s40, s28, 1\ns_and_b32 s44, s28, 1\ns_sub_u32 s41, s29, 9\ns_lshl_b32 s41, s41, 1\ns_add_u32 s41, s41, s44")
        a("s_mul_i32 s40, s40, 1152\ns_add_u32 s32, s18, s40\ns_addc_u32 s33, s19, 0\ns_sub_u32 s34, 5308416, s40\ns_lshl_b32 s41, s41, 6\ns_mov_b32 s46, 7282\ns_mov_b32 s47, 9216")
        for t in range(6):
            a(f"s_add_u32 s40, s41, {64*14*t}\nv_add_u32 v20, s40, v1\nv_mul_lo_u32 v21, s46, v20\nv_lshrrev_b32 v21, 16, v21")
            a(f"v_mul_u32_u24 v22, 9, v21\nv_sub_u32 v22, v20, v22\nv_lshlrev_b32 v22, 7, v22\nv_mul_lo_u32 v21, s47, v21\nv_add_u32 v{24+t}, v21, v22")
        a("s_mov_b32 s36, 0")
        npf = 6
        for t in range(npf):
            a(f"buffer_load_dword v{32+t}, v{24+t}, s[32:35], s36 offen {NT}")
            q.n += 1
    q.drain()
    a("s_branch L_ld_done")
    a("L_ld_spare:")
    q = Seq(cfg.WWO, n0, list(p0))
    q.drain()
    if cfg.PFS:
        lds_wait_ge(a, f"v{V_FA}", 1, "v19", "s43", "s44", off=44)
        a("s_lshr_b32 s45, s28, 1\ns_and_b32 s46, s28, 1\ns_mul_i32 s46, s46, 288\nv_add_u32 v20, s46, v1\ns_mov_b32 s47, 9216\nv_mul_lo_u32 v20, s47, v20")
        for t in range(1, 5): a(f"v_add_u32 v{20+t}, {64*9216*t}, v20")
        mats = {1: (18,), 2: (16, 18), 3: (18, 16)}[cfg.PFS]
        for rep in range(2):
            for p in mats:
                L = a.lab("PFS")
                a(f"s_lshr_b32 s40, s{p}, 7\ns_add_u32 s40, s40, s45\ns_sub_u32 s40, 3, s40\ns_and_b32 s40, s40, 7")
                if rep == 1: a(f"s_cmp_lg_u32 s40, 0\ns_cbranch_scc1 {L}\ns_mov_b32 s40, 8")
                a(f"s_mul_i32 s41, s45, 9\ns_add_u32 s40, s40, s41\ns_lshl_b32 s40, s40, 7")
                a(f"s_add_u32 s32, s{p}, s40\ns_addc_u32 s33, s{p+1}, 0\ns_sub_u32 s34, 5308416, s40\ns_mov_b32 s36, 0")
                for t in range(5): a(f"buffer_load_dword v{32+t}, v{20+t}, s[32:35], s36 offen")
                a(f"{L}:")
    a("L_ld_done:")
    a.stamp(8)
    if cfg.STAMP: a("s_getreg_b32 s94, hwreg(HW_REG_XCC_ID)\ns_and_b32 s94, s94, 15\ns_add_u32 s94, s94, 1\ns_mov_b32 s95, 0")
    stamps_out(a, True)
    a("s_endpgm")

def gen_consumer(a):
    cfg = a.cfg
    VL, VJ, VKG, VL16, VCT = 1, 2, 3, 4, 5
    VX = 196
    XF = 216
    VT = 12
    VTAG = 11
    a("L_consumer:")
    a(f"v_and_b32 v{VJ}, 15, v{VL}\nv_lshrrev_b32 v{VKG}, 4, v{VL}\nv_lshlrev_b32 v{VL16}, 4, v{VL}\nv_mov_b32 v{VCT}, {L_CT}\ns_sub_u32 s30, s3, 1")
    a(f"s_load_dword s58, s[26:27], {WS_EP}")
    if cfg.CPF:
        a("s_getpc_b64 s[52:53]\nL_pc:\ns_sub_u32 s52, s52, (L_pc - KSTART)\ns_subb_u32 s53, s53, 0")
        a("s_lshr_b32 s40, s2, 3\ns_lshl_b32 s40, s40, 2\ns_add_u32 s40, s40, s30\ns_lshl_b32 s40, s40, 8\ns_min_u32 s40, s40, (L_exit - KSTART - 128)")
        a("s_add_u32 s52, s52, s40\ns_addc_u32 s53, s53, 0\ns_load_dword s54, s[52:53], 0\ns_load_dword s55, s[52:53], 128")
    if not cfg.NOX:
        a(f"global_load_dwordx4 v[20:23], v{VL16}, s[4:5]")
        a(f"v_lshlrev_b32 v{VT}, 2, v{VL}\nv_mov_b32 v24, 0\ns_mov_b32 exec_hi, 0\nglobal_load_dword v24, v{VT}, s[4:5] offset:1024\ns_mov_b64 exec, -1")
    a("s_cmp_lg_u32 s30, 0\ns_cbranch_scc1 L_p0_notc0")
    a("v_mov_b32 v28, -1\nv_mov_b32 v29, -1\nv_mov_b32 v30, -1\nv_mov_b32 v31, -1")
    def wsaddr(lo): a(f"s_add_u32 s42, s26, {lo}\ns_addc_u32 s43, s27, 0")
    def pst(off=0, sc="sc1"): a(f"global_store_dwordx4 v{VL16}, v[28:31], s[42:43]" + (f" offset:{off}" if off else "") + f" {sc}")
    def h2poison(sc):
        a(f"s_lshl_b32 s46, s28, 4\ns_add_u32 s46, s46, s29\ns_lshl_b32 s40, s46, 9\ns_add_u32 s40, s40, {WS_H2}"); wsaddr("s40")
        a("s_mov_b64 exec, -1\ns_mov_b32 exec_hi, 0"); pst(0, sc); a("s_mov_b64 exec, -1")
    if cfg.LONLY != 1:
        h2poison("" if cfg.LOCAL else "sc1")
        a("s_cmp_ge_u32 s29, 9\ns_cbranch_scc1 L_p0_o")
        a(f"v_and_b32 v{VT}, 1, v{VKG}\nv_lshlrev_b32 v{VT}, 3, v{VT}\nv_lshl_add_u32 v{VT}, v{VJ}, 4, v{VT}")
        for cb in range(4): a(f"global_load_dwordx2 v[{VX+2*cb}:{VX+2*cb+1}], v{VT}, s[4:5] offset:{256*cb}")
        a(f"v_mov_b32 v{VX+8}, 0\nv_mov_b32 v{VX+9}, 0"); a.exec64(0x00ff00ff, 0x00ff00ff)
        a(f"global_load_dwordx2 v[{VX+8}:{VX+9}], v{VT}, s[4:5] offset:1024\ns_mov_b64 exec, -1")
        a("s_mov_b32 s55, 6\ns_branch L_p0_lds")
        a("L_p0_o:")
        a(f"s_sub_u32 s41, s29, 9\ns_mul_i32 s40, s41, 192\ns_mul_i32 s44, s28, 1152\ns_add_u32 s40, s40, s44\ns_add_u32 s40, s40, {WS_H3}"); wsaddr("s40")
        a("s_mov_b32 s55, 2\ns_cmp_eq_u32 s41, 6\ns_cbranch_scc1 L_p0_lds\ns_mov_b64 exec, 0xfff"); pst(); a("s_mov_b64 exec, -1")
        a("s_mov_b32 s55, 2")
    a("L_p0_lds:")
    nb = POIS_HI - POIS_LO
    a(f"v_add_u32 v{VT}, {POIS_LO}, v{VL16}")
    off = 0
    while off < nb:
        rem = nb - off
        if rem < 1024: a(f"v_cmp_gt_u32 vcc, {rem}, v{VL16}\ns_and_saveexec_b64 s[40:41], vcc")
        a(f"ds_write_b128 v{VT}, v[28:31] offset:{off}")
        if rem < 1024: a("s_mov_b64 exec, s[40:41]")
        off += 1024
    a(f"v_mov_b32 v32, 0\nv_mov_b32 v33, 0\nv_mov_b32 v34, 0\nv_mov_b32 v35, 0\nds_write_b128 v{VCT}, v[32:35]\nds_write_b128 v{VCT}, v[32:35] offset:16\nds_write_b128 v{VCT}, v[32:35] offset:32")
    a("s_waitcnt lgkmcnt(0)\ns_barrier")
    if cfg.LONLY == 1: a("s_branch L_fin")
    L = a.lab("P0W")
    a(f"s_cmp_eq_u32 s55, 2\ns_cbranch_scc1 {L}\ns_waitcnt vmcnt(6)\ns_branch L_p0_ln\n{L}:\ns_waitcnt vmcnt(1)")
    a("s_branch L_p0_ln")
    a("L_p0_notc0:")
    if cfg.TPF:
        L = a.lab("TP")
        a(f"s_cmp_lg_u32 s30, 1\ns_cbranch_scc1 {L}")
        page_touch(a, 198, 199, 200)
        a(f"s_barrier\ns_waitcnt vmcnt(1)\ns_branch L_p0_ln\n{L}:")
    a("s_barrier\ns_waitcnt vmcnt(0)")
    a("L_p0_ln:")
    if cfg.LONLY in (1, 2): a("s_branch L_fin")
    a.stamp(0)
    for i in range(5): a(f"v_lshlrev_b32 v{32+2*i}, 16, v{20+i}\nv_and_b32 v{33+2*i}, 0xffff0000, v{20+i}")
    a("v_add_f32 v42, v32, v33")
    for i in range(2, 10): a(f"v_add_f32 v42, v42, v{32+i}")
    row_red(a, "v_add_f32", "v42"); xrow_red(a, "v_add_f32", "v42", "v43")
    a(f"v_mul_f32 v42, {hex(f2b(1.0/576))}, v42")
    for i in range(10): a(f"v_sub_f32 v{32+i}, v{32+i}, v42")
    a("s_mov_b32 exec_lo, 0\nv_mov_b32 v40, 0\nv_mov_b32 v41, 0\ns_mov_b64 exec, -1")
    a("v_mul_f32 v43, v32, v32")
    for i in range(1, 10): a(f"v_fmac_f32 v43, v{32+i}, v{32+i}")
    row_red(a, "v_add_f32", "v43"); xrow_red(a, "v_add_f32", "v43", "v44")
    a(f"v_mov_b32 v44, {hex(f2b(1e-5))}\nv_fmac_f32 v44, {hex(f2b(1.0/576))}, v43\nv_rsq_f32 v44, v44")
    a.nop(1)
    for i in range(10): a(f"v_mul_f32 v{32+i}, v{32+i}, v44")
    for i in range(5): a(f"v_cvt_pk_bf16_f32 v{20+i}, v{32+2*i}, v{33+2*i}")
    a(f"v_add_u32 v{VT}, {L_XN}, v{VL16}\nds_write_b128 v{VT}, v[20:23]")
    a(f"v_lshlrev_b32 v{VT}, 2, v{VL}\nv_add_u32 v{VT}, {L_XN+1024}, v{VT}\ns_mov_b32 exec_hi, 0\nds_write_b32 v{VT}, v24\ns_mov_b64 exec, -1")
    a(f"v_bfe_u32 v{VT}, v{VL}, 2, 2\nv_lshl_add_u32 v{VT}, v{VKG}, 2, v{VT}\nv_lshlrev_b32 v{VT}, 7, v{VT}")
    a(f"v_and_b32 v{VT+1}, 3, v{VL}\nv_lshl_add_u32 v{VT}, v{VT+1}, 3, v{VT}")
    a(f"s_lshl_b32 s40, s30, 5\ns_add_u32 s40, s40, {L_WQ}\nv_add_u32 v{VT}, s40, v{VT}")
    a(f"s_lshr_b32 s40, s29, 2\ns_mul_i32 s40, s40, 288\ns_add_u32 s40, s40, {L_XN}\nv_lshlrev_b32 v{VT+1}, 3, v{VKG}\nv_add_u32 v{VT+1}, s40, v{VT+1}")
    a("s_waitcnt lgkmcnt(0)")
    for t in range(9): a(f"ds_read_b64 v[{40+2*t}:{41+2*t}], v{VT+1} offset:{32*t}")
    for r in range(4): a(f"v_mov_b32 v{60+r}, 0")
    a("s_lshr_b32 s40, s29, 2\ns_lshl_b32 s40, s40, 10\ns_and_b32 s41, s29, 3\ns_lshl_b32 s41, s41, 8\ns_add_u32 s40, s40, s41")
    a(f"s_lshl_b32 s41, s28, 12\ns_add_u32 s40, s40, s41")
    a("s_add_u32 s42, s26, s40\ns_addc_u32 s43, s27, 0")
    lds_wait_ge(a, f"v{VCT}", 1, f"v{VT+2}")
    a.stamp(1)
    for t in range(9): a(f"ds_read_b64_tr_b16 v[{20+2*t}:{21+2*t}], v{VT} offset:{2048*t}")
    for t in range(9):
        a(f"s_waitcnt lgkmcnt({8-t})")
        a(f"v_mfma_f32_16x16x16_bf16 v[60:63], v[{20+2*t}:{21+2*t}], v[{40+2*t}:{41+2*t}], v[60:63]")
    a(f"s_lshl_b32 s40, s30, 6\ns_add_u32 s40, s40, {L_QP}\nv_lshlrev_b32 v{VT}, 4, v{VKG}\nv_add_u32 v{VT}, s40, v{VT}")
    a(f"s_add_u32 s58, s58, 1\ns_and_b32 s56, s58, 0x3ff\ns_mov_b32 s57, 0xfffffc00\nv_mov_b32 v{VTAG}, s56")
    a.nop(1)
    a.exec64(0x00010001, 0x00010001)
    a(f"ds_write_b128 v{VT}, v[60:63]\ns_mov_b64 exec, -1")
    a("s_cmp_lg_u32 s30, 0\ns_cbranch_scc1 L_p1_done")
    a(f"v_add_u32 v{VT}, {L_QP}, v{VL16}\ns_mov_b64 exec, 0xffff")
    Lp, Lx = spin_head(a, "s60", cfg.SPIN, "QP")
    a(f"ds_read_b128 v[60:63], v{VT}"); spin_bound(a, "s60", cfg.SPIN, Lx)
    a(f"s_waitcnt lgkmcnt(0)\nv_max3_u32 v{VT+1}, v60, v61, v62\nv_max_u32 v{VT+1}, v{VT+1}, v63\nv_cmp_eq_u32 vcc, -1, v{VT+1}\ns_cbranch_vccnz {Lp}\n{Lx}:\ns_waitcnt lgkmcnt(0)")
    for e in range(4): a(f"v_and_or_b32 v{60+e}, v{60+e}, s57, v{VTAG}")
    a("s_mov_b64 s[48:49], s[42:43]\ns_getreg_b32 s59, hwreg(HW_REG_XCC_ID)\ns_and_b32 s59, s59, 7\ns_lshl_b32 s45, s58, 4\ns_or_b32 s45, s45, s59")
    a(f"v_mov_b32 v49, s45\ns_lshl_b32 s40, s28, 6\ns_lshl_b32 s41, s29, 2\ns_add_u32 s40, s40, s41\ns_add_u32 s40, s40, {WS_XI}\nv_mov_b32 v48, s40")
    a("s_waitcnt vmcnt(0)")
    sc0 = "" if cfg.LOCAL else "sc1"
    a(f"global_store_dwordx4 v{VL16}, v[60:63], s[48:49] {sc0}")
    if cfg.LOCAL: a(f"s_mov_b64 exec, 1\nglobal_store_dword v48, v49, s[26:27]")
    a("s_mov_b64 exec, -1")
    L = a.lab("XU")
    a(f"s_cmp_ge_u32 s29, 9\ns_cbranch_scc1 {L}")
    for i in range(10): a(f"v_lshlrev_b32 v{XF+2*i}, 16, v{VX+i}\nv_and_b32 v{XF+2*i+1}, 0xffff0000, v{VX+i}")
    a(f"{L}:")
    a("L_p1_done:")
    if cfg.LONLY == 3: a("s_branch L_fin")
    a.stamp(2)
    QF, S, AO, MK, KA, KF, O = 20, 36, 64, 52, 56, 128, 60
    a(f"v_and_b32 v{VT+1}, 3, v{VJ}\nv_lshrrev_b32 v{VT+2}, 2, v{VJ}")
    a(f"v_lshl_add_u32 v{VT+3}, v{VT+1}, 2, v{VT+2}\nv_lshlrev_b32 v{VT+3}, 8, v{VT+3}")
    a(f"s_lshl_b32 s40, s30, 12\ns_add_u32 s40, s40, {L_K}\nv_add_u32 v{VT+3}, s40, v{VT+3}\nv_xor_b32 v{VT+1}, v{VT+1}, v{VKG}")
    for dd in range(4):
        a(f"v_xor_b32 v{VT+4}, {dd}, v{VT+2}\nv_lshl_add_u32 v{VT+4}, v{VT+4}, 2, v{VT+1}\nv_lshl_add_u32 v{KA+dd}, v{VT+4}, 4, v{VT+3}")
    a(f"v_and_b32 v{VT+1}, 1, v{VJ}\nv_cmp_eq_u32 vcc, 1, v{VT+1}\nv_mov_b32 v{VT+2}, 0xffff\nv_mov_b32 v{VT+4}, 0xffff0000")
    a.nop(1)
    a(f"v_cndmask_b32 v{VT+2}, v{VT+2}, v{VT+4}, vcc\nv_bfe_u32 v{VT+1}, v{VJ}, 1, 2")
    for t in range(4):
        a(f"v_cmp_eq_u32 vcc, {t}, v{VT+1}"); a.nop(2)
        a(f"v_cndmask_b32 v{MK+t}, 0, v{VT+2}, vcc")
    a("s_cmp_lg_u32 s30, 0\ns_cbranch_scc1 L_p2_skip")
    a.sleep(cfg.D_H1)
    if cfg.T_H1: lds_wait_ge(a, f"v{VCT}", 1, f"v{VT+2}", off=24)
    a(f"s_lshl_b32 s40, s28, 12\ns_add_u32 s52, s26, s40\ns_addc_u32 s53, s27, 0\ns_mov_b32 s54, {0 if cfg.LOCAL else 1}\ns_mov_b32 s55, 0")
    a(f"s_lshl_b32 s40, s28, 6\ns_add_u32 s40, s40, {WS_XI}\nv_lshlrev_b32 v{VT}, 2, v{VJ}\nv_add_u32 v{VT}, s40, v{VT}")
    Lp, Lx = spin_head(a, "s60", cfg.GSPIN, "H1")
    if cfg.LOCAL:
        Ln = a.lab("H1N")
        a(f"s_bitcmp1_b32 s55, 0\ns_cbranch_scc0 {Ln}")
        a("s_andn2_b32 s55, s55, 1\ns_mov_b32 s54, 1")
        a("v_mov_b32 v28, -1\nv_mov_b32 v29, -1\nv_mov_b32 v30, -1\nv_mov_b32 v31, -1")
        h2poison("sc1")
        a(f"s_waitcnt vmcnt(0)\nv_or_b32 v49, 8, v49\ns_mov_b64 exec, 0xffff\nglobal_store_dwordx4 v{VL16}, v[60:63], s[48:49] sc1")
        a(f"s_mov_b64 exec, 1\nglobal_store_dword v48, v49, s[26:27] sc1\ns_mov_b64 exec, -1\n{Ln}:")
    for rb in range(4): a(f"global_load_dwordx4 v[{20+4*rb}:{23+4*rb}], v{VL16}, s[52:53] offset:{1024*rb} sc1")
    if cfg.LOCAL: a(f"global_load_dword v36, v{VT}, s[26:27] sc1")
    spin_bound(a, "s60", cfg.GSPIN, Lx)
    a("s_waitcnt vmcnt(0)")
    tagcheck(a, "v40", range(20, 36), VTAG)
    if cfg.LOCAL:
        a("s_and_b32 s40, s58, 0x0fffffff\nv_lshrrev_b32 v40, 4, v36\nv_cmp_ne_u32 s[44:45], s40, v40\ns_or_b64 vcc, vcc, s[44:45]")
        Lf, Lg = a.lab("H1F"), a.lab("H1G")
        a(f"s_cbranch_vccnz {Lf}")
        a(f"v_and_b32 v40, 7, v36\nv_cmp_ne_u32 vcc, s59, v40\ns_cbranch_vccz {Lx}")
        a(f"s_bitset1_b32 s55, 1\ns_cmp_lg_u32 s54, 0\ns_cbranch_scc1 {Lg}\ns_bitset1_b32 s55, 0\ns_branch {Lp}\n{Lg}:")
        a(f"v_and_b32 v40, 8, v36\nv_cmp_eq_u32 vcc, 0, v40\ns_cbranch_vccz {Lx}\n{Lf}:")
        a(f"s_cmp_lg_u32 s60, {cfg.TO_H1}\ns_cbranch_scc1 {Lg}x\ns_cmp_lg_u32 s54, 0\ns_cbranch_scc1 {Lg}x\ns_bitset1_b32 s55, 0\n{Lg}x:")
        a.sleep(cfg.B_H1); a(f"s_branch {Lp}")
    else:
        a(f"s_cbranch_vccz {Lx}"); a.sleep(cfg.B_H1); a(f"s_branch {Lp}")
    a(f"{Lx}:\ns_mov_b64 exec, -1\ns_waitcnt vmcnt(0)")
    if cfg.STAMP: a("s_mov_b32 s88, s60\ns_mov_b32 s89, 0")
    a(f"v_mov_b32 v40, s54"); lds_set(a, f"v{VCT}", 28, "v40")
    for e in range(4): a(f"v_add_f32 v{36+e}, v{20+e}, v{24+e}\nv_add_f32 v{40+e}, v{28+e}, v{32+e}\nv_add_f32 v{36+e}, v{36+e}, v{40+e}")
    a("v_cvt_pk_bf16_f32 v36, v36, v37\nv_cvt_pk_bf16_f32 v37, v38, v39")
    a(f"v_lshlrev_b32 v{VT}, 3, v{VL}\nv_add_u32 v{VT}, {L_QB}, v{VT}\nds_write_b64 v{VT}, v[36:37]")
    a("L_p2_skip:")
    if cfg.LONLY == 4: a("s_branch L_fin")
    a.stamp(3)
    a(f"v_lshrrev_b32 v{VT}, 3, v{VJ}\nv_lshlrev_b32 v{VT}, 8, v{VT}\nv_lshl_add_u32 v{VT}, v{VKG}, 4, v{VT}\nv_add_u32 v{VT}, {L_QB}, v{VT}")
    Lp, Lx = spin_head(a, "s60", cfg.SPIN, "QF")
    for dd in range(4): a(f"ds_read_b128 v[{QF+4*dd}:{QF+4*dd+3}], v{VT} offset:{64*dd}")
    spin_bound(a, "s60", cfg.SPIN, Lx)
    a(f"s_waitcnt lgkmcnt(0)\nv_max3_u32 v{VT+1}, v{QF}, v{QF+1}, v{QF+2}")
    for i in range(3, 15, 2): a(f"v_max3_u32 v{VT+1}, v{VT+1}, v{QF+i}, v{QF+i+1}")
    a(f"v_max_u32 v{VT+1}, v{VT+1}, v{QF+15}\nv_cmp_eq_u32 vcc, -1, v{VT+1}\ns_cbranch_vccnz {Lp}\n{Lx}:\ns_waitcnt lgkmcnt(0)")
    a.stamp(4)
    for r in range(4):
        lds_wait_ge(a, f"v{VCT}", 2 + r, f"v{VT+2}")
        if r == 3: a.stamp(5)
        for dd in range(4): a(f"ds_read_b128 v[{KF+16*r+4*dd}:{KF+16*r+4*dd+3}], v{KA+dd} offset:{16384*r}")
        for dd in range(4):
            a(f"s_waitcnt lgkmcnt({3-dd})")
            cin = "0" if dd == 0 else f"v[{S+4*r}:{S+4*r+3}]"
            a(f"v_mfma_f32_16x16x32_bf16 v[{S+4*r}:{S+4*r+3}], v[{KF+16*r+4*dd}:{KF+16*r+4*dd+3}], v[{QF+4*dd}:{QF+4*dd+3}], {cin}")
    a(f"v_mov_b32 v{VT+2}, 1"); lds_set(a, f"v{VCT}", 4, f"v{VT+2}", "ds_add_u32")
    a.nop(8)
    a(f"v_max3_f32 v{VT+1}, v{S}, v{S+1}, v{S+2}")
    for i in range(3, 15, 2): a(f"v_max3_f32 v{VT+1}, v{VT+1}, v{S+i}, v{S+i+1}")
    a(f"v_max_f32 v{VT+1}, v{VT+1}, v{S+15}")
    xrow_red(a, "v_max_f32", f"v{VT+1}", f"v{VT+2}")
    a(f"v_lshrrev_b32 v{VT+2}, 3, v{VJ}\nv_lshlrev_b32 v{VT+2}, 4, v{VT+2}\nv_add_u32 v{VT+3}, {L_MX}, v{VT+2}")
    a(f"s_lshl_b32 s40, s30, 2\nv_add_u32 v{VT+4}, s40, v{VT+3}")
    a(f"s_mov_b64 exec, 0x101\nds_write_b32 v{VT+4}, v{VT+1}\ns_mov_b64 exec, -1")
    Lp, Lx = spin_head(a, "s60", cfg.SPIN, "MX")
    a(f"ds_read_b128 v[{KF}:{KF+3}], v{VT+3}"); spin_bound(a, "s60", cfg.SPIN, Lx)
    a(f"s_waitcnt lgkmcnt(0)\nv_max3_u32 v{VT+5}, v{KF}, v{KF+1}, v{KF+2}\nv_max_u32 v{VT+5}, v{VT+5}, v{KF+3}\nv_cmp_eq_u32 vcc, -1, v{VT+5}\ns_cbranch_vccnz {Lp}")
    a(f"{Lx}:\ns_waitcnt lgkmcnt(0)")
    a(f"v_max3_f32 v{VT+1}, v{KF}, v{KF+1}, v{KF+2}\nv_max_f32 v{VT+1}, v{VT+1}, v{KF+3}")
    a(f"s_mov_b32 s44, {hex(CSCALE)}\nv_mul_f32 v17, s44, v{VT+1}")
    a(f"v_and_or_b32 v17, v17, s57, v{VTAG}")
    for i in range(16): a(f"v_fma_f32 v{S+i}, v{S+i}, s44, -v17")
    for i in range(16): a(f"v_exp_f32 v{S+i}, v{S+i}")
    a.nop(1)
    a(f"v_add_f32 v{VT+1}, v{S}, v{S+1}")
    for i in range(2, 16): a(f"v_add_f32 v{VT+1}, v{VT+1}, v{S+i}")
    xrow_red(a, "v_add_f32", f"v{VT+1}", f"v{VT+2}")
    a(f"v_add_u32 v{VT+4}, {L_LW-L_MX}, v{VT+4}")
    a(f"s_mov_b64 exec, 0x101\nds_write_b32 v{VT+4}, v{VT+1}\ns_mov_b64 exec, -1")
    a("s_cmp_lg_u32 s30, 3\ns_cbranch_scc1 L_p3_noml")
    a(f"v_add_u32 v{VT+3}, {L_LW-L_MX}, v{VT+3}")
    Lp, Lx = spin_head(a, "s60", cfg.SPIN, "LW")
    a(f"ds_read_b128 v[{KF}:{KF+3}], v{VT+3}"); spin_bound(a, "s60", cfg.SPIN, Lx)
    a(f"s_waitcnt lgkmcnt(0)\nv_add_f32 v{KF}, v{KF}, v{KF+1}\nv_add_f32 v{KF+2}, v{KF+2}, v{KF+3}\nv_add_f32 v19, v{KF}, v{KF+2}")
    a(f"v_cmp_u_f32 vcc, v19, v19\ns_cbranch_vccnz {Lp}\n{Lx}:\ns_waitcnt lgkmcnt(0)")
    a(f"s_lshl_b32 s46, s28, 4\ns_add_u32 s40, s46, s29\ns_lshl_b32 s40, s40, 7\ns_add_u32 s40, s40, {WS_ML}\ns_add_u32 s42, s26, s40\ns_addc_u32 s43, s27, 0")
    a(f"v_and_or_b32 v19, v19, s57, v{VTAG}")
    a("v_readlane_b32 s46, v17, 0\nv_readlane_b32 s47, v19, 0\nv_readlane_b32 s48, v17, 8\nv_readlane_b32 s49, v19, 8")
    a("v_mov_b32 v28, s46\nv_mov_b32 v29, s47\nv_mov_b32 v30, s48\nv_mov_b32 v31, s49")
    a(f"ds_read_b32 v{VT+2}, v{VCT} offset:28\ns_waitcnt lgkmcnt(0)\nv_readfirstlane_b32 s54, v{VT+2}\ns_mov_b64 exec, 0xff")
    L1, L2 = a.lab("MLG"), a.lab("MLD")
    a(f"s_cmp_lg_u32 s54, 0\ns_cbranch_scc1 {L1}\nglobal_store_dwordx4 v{VL16}, v[28:31], s[42:43]\ns_branch {L2}\n{L1}:")
    a(f"global_store_dwordx4 v{VL16}, v[28:31], s[42:43] sc1\n{L2}:\ns_mov_b64 exec, -1")
    a("L_p3_noml:")
    for i in range(16):
        a(f"v_cvt_pk_bf16_f32 v{S+i}, v{S+i}, v{S+i}")
        for t in range(4): a(f"v_and_b32 v{AO+4*i+t}, v{S+i}, v{MK+t}")
    a.stamp(6)
    if cfg.LONLY == 5: a("s_branch L_fin")
    VF = KF
    MLR = 20
    a(f"s_lshl_b32 s40, s30, 12\ns_add_u32 s40, s40, {L_V}\nv_add_u32 v{VT}, s40, v{VL16}")
    a(f"s_lshl_b32 s40, s28, 11\ns_add_u32 s40, s40, {WS_ML}\ns_add_u32 s42, s26, s40\ns_addc_u32 s43, s27, 0\nv_lshlrev_b32 v16, 7, v{VJ}")
    for r in range(4): a(f"v_mov_b32 v{O+r}, 0")
    MLB, MLC = 32, 36
    a(f"s_lshl_b32 s40, s28, 4\ns_add_u32 s40, s40, s29\ns_lshl_b32 s40, s40, 9\ns_add_u32 s40, s40, {WS_H2}\ns_add_u32 s48, s26, s40\ns_addc_u32 s49, s27, 0")
    a(f"v_lshrrev_b32 v9, 1, v{VKG}\nv_lshlrev_b32 v9, 8, v9\nv_lshl_add_u32 v9, v{VJ}, 4, v9")
    def ml_merge():
        a(f"v_mov_b32 v24, v{MLR}\nv_mov_b32 v25, v{MLR+2}")
        row_red(a, "v_max_f32", ["v24", "v25"])
        a(f"v_sub_f32 v26, v{MLR}, v24\nv_sub_f32 v27, v{MLR+2}, v25\nv_exp_f32 v26, v26\nv_exp_f32 v27, v27")
        a("v_readlane_b32 s44, v17, 0\nv_readlane_b32 s45, v17, 8")
        a(f"v_mul_f32 v26, v26, v{MLR+1}\nv_mul_f32 v27, v27, v{MLR+3}")
        row_red(a, "v_add_f32", ["v26", "v27"])
        a("v_sub_f32 v24, s44, v24\nv_sub_f32 v25, s45, v25\nv_rcp_f32 v26, v26\nv_rcp_f32 v27, v27\nv_exp_f32 v24, v24\nv_exp_f32 v25, v25")
        a.nop(1)
        a("v_mul_f32 v24, v24, v26\nv_mul_f32 v25, v25, v27")
        a("s_mov_b32 exec_lo, 0\nv_mov_b32 v24, v25\ns_mov_b64 exec, -1")
    def cp4(dst, src):
        for e in range(4): a(f"v_mov_b32 v{dst+e}, v{src+e}")
    for r in range(4):
        if r == 3:
            L, Lm, Ls = a.lab("MLS"), a.lab("MLM"), a.lab("MLK")
            a(f"s_cmp_lg_u32 s30, 3\ns_cbranch_scc1 {L}\ns_mov_b32 s62, 0\ns_waitcnt vmcnt(2)")
            tagcheck(a, f"v{VT+2}", range(MLR, MLR+4), VTAG)
            a(f"s_cbranch_vccz {Lm}\ns_waitcnt vmcnt(1)")
            tagcheck(a, f"v{VT+2}", range(MLB, MLB+4), VTAG)
            cp4(MLR, MLB)
            a(f"s_cbranch_vccz {Lm}\ns_mov_b32 s62, 1\ns_branch {Ls}\n{Lm}:")
            ml_merge()
            a(f"{Ls}:")
            a(f"{L}:")
        lds_wait_ge(a, f"v{VCT}", 6 + r, f"v{VT+2}")
        for t in range(4): a(f"ds_read_b128 v[{VF+4*t}:{VF+4*t+3}], v{VT} offset:{16384*r+1024*t}")
        if r < 3:
            L = a.lab("MLI"); d = (MLR, MLB, MLC)[r]
            a(f"s_cmp_lg_u32 s30, 3\ns_cbranch_scc1 {L}\nglobal_load_dwordx4 v[{d}:{d+3}], v16, s[42:43] sc1\n{L}:")
        for t in range(4):
            a(f"s_waitcnt lgkmcnt({3-t})")
            a(f"v_mfma_f32_16x16x32_bf16 v[{O}:{O+3}], v[{AO+16*r+4*t}:{AO+16*r+4*t+3}], v[{VF+4*t}:{VF+4*t+3}], v[{O}:{O+3}]")
    a(f"v_mov_b32 v{VT+2}, 1"); lds_set(a, f"v{VCT}", 8, f"v{VT+2}", "ds_add_u32")
    a.stamp(7)
    a("s_cmp_eq_u32 s30, 3\ns_cbranch_scc1 L_p4_pub")
    a(f"s_lshl_b32 s40, s30, 10\ns_add_u32 s40, s40, {L_OP}\nv_add_u32 v{VT}, s40, v{VL16}")
    a(f"ds_write_b128 v{VT}, v[{O}:{O+3}]")
    a("s_branch L_p4_done")
    a("L_p4_pub:")
    Ld = a.lab("MLD")
    a(f"s_cmp_eq_u32 s62, 0\ns_cbranch_scc1 {Ld}\ns_waitcnt vmcnt(0)")
    cp4(MLR, MLC)
    Lp, Lx = a.lab("ML"), a.lab("MLX")
    a("s_mov_b32 s61, 0\ns_branch " + Lp + "_chk")
    a(f"{Lp}:\nglobal_load_dwordx4 v[{MLR}:{MLR+3}], v16, s[42:43] sc1")
    a(f"{Lp}_chk:")
    spin_bound(a, "s61", cfg.GSPIN, Lx)
    a("s_waitcnt vmcnt(0)")
    tagcheck(a, f"v{VT+2}", range(MLR, MLR+4), VTAG)
    a(f"s_cbranch_vccz {Lx}"); a.sleep(cfg.B_ML); a(f"s_branch {Lp}")
    a(f"{Lx}:\ns_waitcnt vmcnt(0)")
    ml_merge()
    a(f"{Ld}:")
    a(f"v_add_u32 v{VT}, {L_OP}, v{VL16}")
    Lp, Lx = spin_head(a, "s60", cfg.SPIN, "OP")
    for w in range(3): a(f"ds_read_b128 v[{VF+4*w}:{VF+4*w+3}], v{VT} offset:{1024*w}")
    spin_bound(a, "s60", cfg.SPIN, Lx)
    a("s_waitcnt lgkmcnt(0)")
    for e in range(4): a(f"v_add_f32 v{VF+12+e}, v{VF+e}, v{VF+4+e}\nv_add_f32 v{VF+12+e}, v{VF+12+e}, v{VF+8+e}")
    a(f"v_add_f32 v{VT+3}, v{VF+12}, v{VF+13}\nv_add_f32 v{VT+4}, v{VF+14}, v{VF+15}\nv_add_f32 v{VT+3}, v{VT+3}, v{VT+4}")
    a(f"v_cmp_u_f32 vcc, v{VT+3}, v{VT+3}\ns_cbranch_vccnz {Lp}\n{Lx}:\ns_waitcnt lgkmcnt(0)")
    for e in range(4): a(f"v_add_f32 v{O+e}, v{O+e}, v{VF+12+e}\nv_mul_f32 v{O+e}, v{O+e}, v24")
    a(f"v_cvt_pk_bf16_f32 v28, v{O}, v{O+1}\nv_cvt_pk_bf16_f32 v29, v{O+2}, v{O+3}\nv_mov_b32 v30, v28\nv_mov_b32 v31, v29")
    a.nop(1)
    a("v_permlane16_swap_b32 v28, v30\nv_permlane16_swap_b32 v29, v31")
    a.nop(2)
    a.exec64(0x0000ffff, 0x0000ffff)
    L1, L2 = a.lab("PUBG"), a.lab("PUBD")
    a(f"s_cmp_lg_u32 s54, 0\ns_cbranch_scc1 {L1}")
    a(f"global_store_dwordx4 v9, v[28:31], s[48:49]\ns_branch {L2}\n{L1}:")
    a(f"global_store_dwordx4 v9, v[28:31], s[48:49] sc1\n{L2}:\ns_mov_b64 exec, -1")
    if cfg.PFS:
        a(f"v_mov_b32 v{VT+2}, 1"); lds_set(a, f"v{VCT}", 44, f"v{VT+2}")
    a("L_p4_done:")
    a.stamp(8)
    a("s_cmp_lt_u32 s29, 9\ns_cbranch_scc1 L_role_f")
    G, BF, D5 = 20, 64, 112
    a("s_cmp_eq_u32 s29, 15\ns_cbranch_scc1 L_p5_done")
    a(f"s_lshl_b32 s40, s28, 13\ns_add_u32 s40, s40, {WS_H2}\ns_add_u32 s42, s26, s40\ns_addc_u32 s43, s27, 0")
    a(f"v_lshlrev_b32 v{VT}, 9, v{VJ}\nv_lshl_add_u32 v{VT}, v{VKG}, 4, v{VT}\ns_lshl_b32 s40, s30, 7\nv_add_u32 v{VT}, s40, v{VT}")
    a(f"v_bfe_u32 v{VT+2}, v{VL}, 2, 2\nv_lshl_add_u32 v{VT+2}, v{VKG}, 3, v{VT+2}\ns_lshl_b32 s40, s30, 6\nv_add_u32 v{VT+2}, s40, v{VT+2}")
    a(f"v_mul_u32_u24 v{VT+2}, 192, v{VT+2}\nv_and_b32 v{VT+3}, 3, v{VL}\nv_lshl_add_u32 v{VT+2}, v{VT+3}, 3, v{VT+2}")
    lds_wait_ge(a, f"v{VCT}", 1, f"v{VT+4}", off=12)
    a("s_mov_b32 s62, 0")
    Lp, Lx = spin_head(a, "s61", cfg.GSPIN, "H2")
    for t in range(2): a(f"global_load_dwordx4 v[{G+4*t}:{G+4*t+3}], v{VT}, s[42:43] offset:{64*t} sc1")
    Lq = a.lab("H2F")
    a(f"s_cmp_lg_u32 s62, 0\ns_cbranch_scc1 {Lq}\ns_mov_b32 s62, 1")
    a(f"v_mov_b32 v{VT+4}, 1"); lds_set(a, f"v{VCT}", 16, f"v{VT+4}", "ds_add_u32")
    if cfg.WOROT: a("s_and_b32 s63, s29, 1\ns_lshl_b32 s63, s63, 1\ns_add_u32 s63, s63, s30\ns_and_b32 s63, s63, 3\ns_add_u32 s63, s63, 10")
    else: a("s_add_u32 s63, s30, 10")
    lds_wait_ge(a, f"v{VCT}", "s63", f"v{VT+4}")
    for t in range(2):
        for nb_ in range(6):
            for h in range(2):
                a(f"ds_read_b64_tr_b16 v[{BF+8*nb_+4*t+2*h}:{BF+8*nb_+4*t+2*h+1}], v{VT+2} offset:{O_WO+t*6144+h*768+nb_*32}")
    a(f"{Lq}:")
    spin_bound(a, "s61", cfg.GSPIN, Lx)
    a(f"s_waitcnt vmcnt(0)\nv_max3_u32 v{VT+4}, v{G}, v{G+1}, v{G+2}\nv_max3_u32 v{VT+4}, v{VT+4}, v{G+3}, v{G+4}\nv_max3_u32 v{VT+4}, v{VT+4}, v{G+5}, v{G+6}\nv_max_u32 v{VT+4}, v{VT+4}, v{G+7}")
    a(f"v_cmp_eq_u32 vcc, -1, v{VT+4}\ns_and_b64 exec, exec, vcc\ns_cbranch_execz {Lx}"); a.sleep(cfg.B_H2); a(f"s_branch {Lp}")
    a(f"{Lx}:\ns_mov_b64 exec, -1\ns_waitcnt vmcnt(0) lgkmcnt(0)")
    a.stamp(9)
    for t in range(2):
        for nb_ in range(6):
            cin = "0" if t == 0 else f"v[{D5+4*nb_}:{D5+4*nb_+3}]"
            a(f"v_mfma_f32_16x16x32_bf16 v[{D5+4*nb_}:{D5+4*nb_+3}], v[{G+4*t}:{G+4*t+3}], v[{BF+8*nb_+4*t}:{BF+8*nb_+4*t+3}], {cin}")
    a.nop(4)
    for nb_ in range(6):
        b = D5 + 4*nb_
        if nb_ == 5: a.nop(4)
        a(f"v_add_f32 v{b}, v{b}, v{b+1}\nv_add_f32 v{b+2}, v{b+2}, v{b+3}\nv_add_f32 v{b}, v{b}, v{b+2}")
    a0, a1, a2, a3 = D5, D5+4, D5+8, D5+12
    b0, b1 = D5+16, D5+20
    z0, z1 = D5+1, D5+2
    a(f"v_mov_b32 v{z0}, 0\nv_mov_b32 v{z1}, 0"); a.nop(2)
    a(f"v_permlane32_swap_b32 v{a0}, v{a2}\nv_permlane32_swap_b32 v{a1}, v{a3}\nv_permlane32_swap_b32 v{b0}, v{z0}\nv_permlane32_swap_b32 v{b1}, v{z1}"); a.nop(1)
    a(f"v_add_f32 v{a0}, v{a0}, v{a2}\nv_add_f32 v{a1}, v{a1}, v{a3}\nv_add_f32 v{b0}, v{b0}, v{z0}\nv_add_f32 v{b1}, v{b1}, v{z1}"); a.nop(2)
    a(f"v_permlane16_swap_b32 v{a0}, v{a1}\nv_permlane16_swap_b32 v{b0}, v{b1}"); a.nop(1)
    a(f"v_add_f32 v{a0}, v{a0}, v{a1}\nv_add_f32 v{b0}, v{b0}, v{b1}")
    a(f"s_lshl_b32 s40, s30, 9\ns_add_u32 s40, s40, {L_R5}\nv_lshlrev_b32 v{VT}, 2, v{VL}\nv_add_u32 v{VT}, s40, v{VT}")
    a(f"ds_write_b32 v{VT}, v{a0}\nds_write_b32 v{VT}, v{b0} offset:256")
    a("s_cmp_lg_u32 s30, 3\ns_cbranch_scc1 L_p5_done")
    a(f"v_lshlrev_b32 v{VT}, 5, v{VL}\nv_add_u32 v{VT}, {L_R5}, v{VT}")
    a("s_sub_u32 s41, s29, 9\ns_mov_b64 exec, 0xfff")
    Lp, Lx = spin_head(a, "s60", cfg.SPIN, "R5")
    for w in range(4):
        for h in range(2): a(f"ds_read_b128 v[{BF+8*w+4*h}:{BF+8*w+4*h+3}], v{VT} offset:{512*w+16*h}")
    spin_bound(a, "s60", cfg.SPIN, Lx)
    a("s_waitcnt lgkmcnt(0)")
    for e in range(8): a(f"v_add_f32 v{G+e}, v{BF+e}, v{BF+8+e}\nv_add_f32 v{BF+32+e}, v{BF+16+e}, v{BF+24+e}\nv_add_f32 v{G+e}, v{G+e}, v{BF+32+e}")
    a(f"v_add_f32 v{VT+3}, v{G}, v{G+1}")
    for e in range(2, 8): a(f"v_add_f32 v{VT+3}, v{VT+3}, v{G+e}")
    a(f"v_cmp_u_f32 vcc, v{VT+3}, v{VT+3}\ns_cbranch_vccnz {Lp}\n{Lx}:\ns_waitcnt lgkmcnt(0)")
    for e in range(4): a(f"v_cvt_pk_bf16_f32 v{G+e}, v{G+2*e}, v{G+2*e+1}")
    a(f"s_mul_i32 s40, s41, 192\ns_mul_i32 s44, s28, 1152\ns_add_u32 s40, s40, s44\ns_add_u32 s40, s40, {WS_H3}\ns_add_u32 s42, s26, s40\ns_addc_u32 s43, s27, 0")
    a(f"global_store_dwordx4 v{VL16}, v[{G}:{G+3}], s[42:43] sc1\ns_mov_b64 exec, -1")
    a("L_p5_done:")
    a.stamp(10)
    a(f"s_cmp_ge_u32 s30, {cfg.REDW}\ns_cbranch_scc1 L_fin")
    a("s_lshr_b32 s40, s28, 1\ns_and_b32 s44, s28, 1\ns_sub_u32 s41, s29, 9\ns_lshl_b32 s41, s41, 1\ns_add_u32 s41, s41, s44")
    a("s_cmp_lt_u32 s41, 8\ns_cbranch_scc1 L_p9_go\ns_cmp_ge_u32 s41, 12\ns_cbranch_scc1 L_fin\ns_cmp_ge_u32 s40, 2\ns_cbranch_scc1 L_fin")
    a("L_p9_go:")
    a("s_lshr_b32 s44, s41, 2\ns_lshl_b32 s44, s44, 3\ns_add_u32 s44, s44, s40\ns_lshl_b32 s44, s44, 5\ns_and_b32 s45, s41, 3\ns_lshl_b32 s45, s45, 3\ns_add_u32 s44, s44, s45")
    alive_addr(a, VL, 9, VT+2)
    a(f"s_lshl_b32 s40, s44, 1\ns_add_u32 s40, s40, {WS_H3}\ns_add_u32 s42, s26, s40\ns_addc_u32 s43, s27, 0")
    a(f"v_mul_u32_u24 v{VT}, 1152, v{VJ}\nv_lshl_add_u32 v{VT}, v{VKG}, 1, v{VT}")
    a(f"s_lshl_b32 s40, s44, 1\ns_add_u32 s46, s4, s40\ns_addc_u32 s47, s5, 0\nv_lshlrev_b32 v{VT+1}, 1, v{VKG}")
    a(f"global_load_ushort v26, v{VT+1}, s[46:47]\nglobal_load_ushort v27, v{VT+1}, s[46:47] offset:8")
    Lp, Lx = spin_head(a, "s60", cfg.GSPIN, "HH")
    alive_load(a, 9)
    a(f"global_load_ushort v24, v{VT}, s[42:43] sc1\nglobal_load_ushort v25, v{VT}, s[42:43] offset:8 sc1"); spin_bound(a, "s60", cfg.GSPIN, Lx)
    a("s_waitcnt vmcnt(0)"); alive_test(a)
    a("v_max_u32 v28, v24, v25\nv_cmp_eq_u32 vcc, 0xffff, v28\ns_or_b64 vcc, vcc, s[50:51]")
    a(f"s_cbranch_vccz {Lx}"); a.sleep(4); a(f"s_branch {Lp}\n{Lx}:\ns_waitcnt vmcnt(0)")
    a("v_lshlrev_b32 v24, 16, v24\nv_lshlrev_b32 v25, 16, v25\nv_lshlrev_b32 v26, 16, v26\nv_lshlrev_b32 v27, 16, v27")
    row_red(a, "v_add_f32", ["v24", "v25"])
    a("v_add_f32 v24, v24, v26\nv_add_f32 v25, v25, v27")
    a.exec64(0xaaaaaaaa, 0xaaaaaaaa); a("v_mov_b32 v24, v25\ns_mov_b64 exec, -1")
    a(f"s_lshl_b32 s40, s44, 2\ns_add_u32 s40, s40, {WS_H4}\ns_add_u32 s42, s26, s40\ns_addc_u32 s43, s27, 0")
    a(f"v_lshrrev_b32 v{VT}, 1, v{VL}\nv_mul_u32_u24 v{VT}, 2304, v{VT}\nv_and_b32 v{VT+1}, 1, v{VL}\nv_lshl_add_u32 v{VT}, v{VT+1}, 4, v{VT}")
    for t in range(1, 5): a(f"v_add_u32 v{VT+t}, {32*2304*t}, v{VT}")
    for e in range(4): a(f"v_mov_b32 v{80+e}, v{VTAG}")
    a(f"s_lshl_b32 s40, s44, 1\ns_add_u32 s48, s22, s40\ns_addc_u32 s49, s23, 0\nv_and_b32 v10, 1, v{VL}\nv_lshlrev_b32 v10, 3, v10\nv_lshl_add_u32 v10, v{VKG}, 1, v10")
    if cfg.H4P:
        def issue(b):
            for t in range(4): a(f"global_load_dwordx4 v[{b+4*t}:{b+4*t+3}], v{VT+t}, s[42:43] sc1")
            a(f"s_mov_b32 exec_hi, 0\nglobal_load_dwordx4 v[{b+16}:{b+19}], v{VT+4}, s[42:43] sc1\ns_mov_b64 exec, -1")
        def sums(b):
            for e in range(4): a(f"v_add_f32 v{20+e}, v{b+e}, v{b+4+e}\nv_add_f32 v{28+e}, v{b+8+e}, v{b+12+e}\nv_add_f32 v{20+e}, v{20+e}, v{b+16+e}\nv_add_f32 v{20+e}, v{20+e}, v{28+e}")
        for e in range(4): a(f"v_mov_b32 v{100+e}, v{VTAG}")
        Lp, Lx, Lb, Ld = a.lab("H4"), a.lab("H4A"), a.lab("H4B"), a.lab("H4D")
        a("s_mov_b32 s60, 0")
        issue(64); issue(84)
        a(f"{Lp}:")
        a("s_waitcnt vmcnt(5)")
        tagcheck(a, "v28", range(64, 84), VTAG)
        a(f"s_cbranch_vccz {Lx}")
        issue(64)
        a("s_waitcnt vmcnt(5)")
        tagcheck(a, "v28", range(84, 104), VTAG)
        a(f"s_cbranch_vccz {Lb}")
        issue(84)
        a(f"s_add_u32 s60, s60, 1\ns_cmp_le_u32 s60, {cfg.GSPIN}\ns_cbranch_scc1 {Lp}\ns_waitcnt vmcnt(0)")
        a(f"{Lx}:")
        a.stamp(14)
        sums(64)
        a(f"s_branch {Ld}\n{Lb}:")
        a.stamp(14)
        sums(84)
        a(f"{Ld}:")
    elif cfg.H4M:
        M = ["s[52:53]", "s[54:55]", "s[62:63]", "s[98:99]", "s[100:101]"]
        for t in range(4): a(f"s_mov_b64 {M[t]}, -1")
        a("s_mov_b32 s100, -1\ns_mov_b32 s101, 0")
        Lp, Lx = spin_head(a, "s60", cfg.GSPIN, "H4")
        for t in range(5):
            L = a.lab("H4L")
            a(f"s_mov_b64 exec, {M[t]}\ns_cbranch_execz {L}\nglobal_load_dwordx4 v[{64+4*t}:{67+4*t}], v{VT+t}, s[42:43] sc1\n{L}:")
        a("s_mov_b64 exec, -1")
        spin_bound(a, "s60", cfg.GSPIN, Lx)
        a("s_waitcnt vmcnt(0)")
        for t in range(5):
            L = a.lab("H4C")
            a(f"s_mov_b64 exec, {M[t]}\ns_cbranch_execz {L}")
            tagcheck(a, "v28", range(64+4*t, 68+4*t), VTAG)
            a(f"s_mov_b64 {M[t]}, vcc\n{L}:")
        a(f"s_or_b64 s[46:47], {M[0]}, {M[1]}\ns_or_b64 s[46:47], s[46:47], {M[2]}\ns_or_b64 s[46:47], s[46:47], {M[3]}\ns_or_b64 s[46:47], s[46:47], {M[4]}")
        a(f"s_cbranch_scc0 {Lx}"); a.sleep(cfg.B_H4); a(f"s_branch {Lp}")
        a(f"{Lx}:\ns_mov_b64 exec, -1\ns_waitcnt vmcnt(0)")
    else:
        a("s_mov_b64 s[46:47], -1")
        Lp, Lx = spin_head(a, "s60", cfg.GSPIN, "H4")
        for t in range(4): a(f"global_load_dwordx4 v[{64+4*t}:{67+4*t}], v{VT+t}, s[42:43] sc1")
        a(f"s_mov_b32 exec_hi, 0\nglobal_load_dwordx4 v[80:83], v{VT+4}, s[42:43] sc1\ns_mov_b64 exec, s[46:47]")
        spin_bound(a, "s60", cfg.GSPIN, Lx)
        a("s_waitcnt vmcnt(0)")
        tagcheck(a, "v28", range(64, 84), VTAG)
        a(f"s_and_b64 s[46:47], exec, vcc\ns_mov_b64 exec, s[46:47]\ns_cbranch_execz {Lx}"); a.sleep(cfg.B_H4); a(f"s_branch {Lp}")
        a(f"{Lx}:\ns_mov_b64 exec, -1\ns_waitcnt vmcnt(0)")
    if not cfg.H4P: a.stamp(14)
    if cfg.UNTIL:
        L = a.lab("UNT")
        a(f"s_add_u32 s52, s96, {cfg.UNTIL}\n{L}:\ns_memrealtime s[54:55]\ns_waitcnt lgkmcnt(0)\ns_sub_u32 s54, s54, s52\ns_cmp_lt_i32 s54, 0\ns_cbranch_scc1 {L}")
    if cfg.DELAY:
        L = a.lab("DLY")
        a(f"s_memtime s[52:53]\ns_waitcnt lgkmcnt(0)\ns_add_u32 s52, s52, {cfg.DELAY}\n{L}:\ns_memtime s[54:55]\ns_waitcnt lgkmcnt(0)\ns_sub_u32 s54, s54, s52\ns_cmp_lt_i32 s54, 0\ns_cbranch_scc1 {L}")
    if not cfg.H4P:
      for e in range(4): a(f"v_add_f32 v{20+e}, v{64+e}, v{68+e}\nv_add_f32 v{28+e}, v{72+e}, v{76+e}\nv_add_f32 v{20+e}, v{20+e}, v{80+e}\nv_add_f32 v{20+e}, v{20+e}, v{28+e}")
    a.nop(2)
    a("v_permlane32_swap_b32 v20, v22\nv_permlane32_swap_b32 v21, v23"); a.nop(1)
    a("v_add_f32 v20, v20, v22\nv_add_f32 v21, v21, v23"); a.nop(2)
    a("v_permlane16_swap_b32 v20, v21"); a.nop(1)
    a("v_add_f32 v20, v20, v21")
    for ctl in ("row_ror:8", "row_ror:4", "row_ror:2"):
        a.nop(2); dpp(a, "v_add_f32", "v20", ctl)
    a("v_add_f32 v20, v20, v24\nv_cvt_pk_bf16_f32 v20, v20, v20")
    a.exec64(0x00030003, 0x00030003)
    a(f"global_store_short v10, v20, s[48:49]\ns_mov_b64 exec, -1")
    a(f"s_or_b32 s40, s44, s30\ns_cmp_lg_u32 s40, 0\ns_cbranch_scc1 L_fin\nv_mov_b32 v{VT}, {WS_EP}\nv_mov_b32 v{VT+1}, s58\ns_mov_b64 exec, 1\nglobal_store_dword v{VT}, v{VT+1}, s[26:27]\ns_mov_b64 exec, -1")
    a("s_branch L_fin")
    a("L_role_f:")
    WF, RAW, HF, AC, SEL, DF = 64, 136, 136, 236, 56, 208
    lds_wait_ge(a, f"v{VCT}", 1, f"v{VT+2}", off=40)
    a(f"s_cmp_eq_u32 s31, 2\ns_cselect_b32 s98, 0, {L_V}\ns_cselect_b32 s99, {L_V}, 0\ns_cmp_ge_u32 s31, 2\ns_cselect_b32 s100, 10, 11\ns_cselect_b32 s101, 11, 12\ns_cselect_b32 s53, 12, 10")
    TG = 36864
    a(f"v_bfe_u32 v{VT}, v{VL}, 2, 2\nv_lshl_add_u32 v{VT}, v{VKG}, 3, v{VT}\nv_lshlrev_b32 v{VT}, 6, v{VT}\nv_and_b32 v{VT+1}, 3, v{VL}\nv_lshl_add_u32 v{VT}, v{VT+1}, 3, v{VT}")
    a(f"s_and_b32 s40, s30, 1\ns_lshl_b32 s40, s40, 5\ns_cmp_ge_u32 s30, 2\ns_cselect_b32 s41, s98, {TG}\ns_add_u32 s40, s40, s41\nv_add_u32 v{VT}, s40, v{VT}")
    MG, MU, MD = "s100", "s101", "s53"
    a(f"v_bfe_u32 v10, v{VL}, 2, 2\nv_lshl_add_u32 v10, v{VKG}, 3, v10\nv_mul_u32_u24 v10, 1152, v10")
    a(f"v_and_b32 v{VT+2}, 3, v{VL}\nv_lshlrev_b32 v{VT+2}, 3, v{VT+2}\ns_mul_i32 s40, s30, {320 if cfg.FULLN else 288}\ns_add_u32 s40, s40, s99\nv_add_u32 v{VT+2}, s40, v{VT+2}\nv_add_u32 v10, v10, v{VT+2}")
    if cfg.FULLN: a("s_cmp_eq_u32 s30, 3\ns_cselect_b32 s40, 64, 0\nv_subrev_u32 v10, s40, v10")
    NB = 10 if cfg.FULLN else 9
    MSK = [6, 7, 8, 30, 31, 60, 61, 62, 63, 0]
    for n in range(NB): a(f"v_xor_b32 v{MSK[n]}, {n}, v{VJ}\nv_add_u32 v{MSK[n]}, -1, v{MSK[n]}\nv_ashrrev_i32 v{MSK[n]}, 31, v{MSK[n]}")
    def wfrags():
        for t in range(18):
            for h in range(2): a(f"ds_read_b64_tr_b16 v[{WF+4*t+2*h}:{WF+4*t+2*h+1}], v{VT} offset:{2048*t+256*h}")
    def dfrags():
        for n in range(NB):
            for h in range(2): a(f"ds_read_b64_tr_b16 v[{DF+4*n+2*h}:{DF+4*n+2*h+1}], v10 offset:{32*n+4608*h}")
    a("s_cmp_lg_u32 s30, 0\ns_cbranch_scc1 L_p6_skip")
    for t in range(4): a(f"v_and_b32 v{SEL+t}, 0x3f803f80, v{MK+t}")
    for pb in range(4):
        for e in range(4): a(f"v_mov_b32 v{RAW+64+4*pb+e}, 0")
    a(f"s_add_u32 s42, s26, {WS_H3}\ns_addc_u32 s43, s27, 0")
    a(f"v_mul_u32_u24 v{VT+1}, 1152, v{VKG}\nv_lshl_add_u32 v{VT+1}, v{VJ}, 4, v{VT+1}")
    lds_wait_ge(a, f"v{VCT}", MG, f"v{VT+2}")
    wfrags()
    alive_addr(a, VL, 9, 10 + 0) if False else None
    alive_addr(a, VL, 9, VT+2)
    lds_wait_ge(a, f"v{VCT}", 1, f"v{VT+2}", off=(32 if cfg.EH3 else 12))
    a.stamp(9)
    a("s_mov_b64 s[46:47], -1")
    Lp, Lx = spin_head(a, "s61", cfg.GSPIN, "H3")
    a("s_mov_b64 exec, -1"); alive_load(a, 9); a("s_mov_b64 exec, s[46:47]")
    a("s_mov_b32 s44, s42\ns_mov_b32 s45, s43")
    for pb in range(4):
        for cb in range(4): a(f"global_load_dwordx4 v[{RAW+16*cb+4*pb}:{RAW+16*cb+4*pb+3}], v{VT+1}, s[44:45] offset:{256*cb} sc1")
        a("s_and_b32 exec_lo, exec_lo, 0x00ff00ff\ns_and_b32 exec_hi, exec_hi, 0x00ff00ff")
        Lz = a.lab("H3Z")
        a(f"s_cbranch_execz {Lz}\nglobal_load_dwordx4 v[{RAW+64+4*pb}:{RAW+64+4*pb+3}], v{VT+1}, s[44:45] offset:1024 sc1\n{Lz}:")
        a(f"s_mov_b64 exec, s[46:47]\ns_add_u32 s44, s44, {4*1152}\ns_addc_u32 s45, s45, 0")
    a("s_mov_b64 exec, -1")
    if True:
        Lh = a.lab("H3H")
        a(f"s_cmp_lg_u32 s61, 0\ns_cbranch_scc1 {Lh}\nv_mov_b32 v{VT+2}, 1"); lds_set(a, f"v{VCT}", 16, f"v{VT+2}"); a(f"{Lh}:")
    spin_bound(a, "s61", cfg.GSPIN, Lx)
    Lw = a.lab("H3W")
    a(f"s_cmp_le_u32 s61, 1\ns_cbranch_scc1 {Lw}\ns_waitcnt vmcnt(0)")
    if cfg.H3Q:
        regs = [RAW + 16*cb + 4*pb for pb in range(4) for cb in range(5)]
        a(f"v_max3_u32 v14, v{regs[0]}, v{regs[1]}, v{regs[2]}")
        for i in range(3, 19, 2): a(f"v_max3_u32 v14, v14, v{regs[i]}, v{regs[i+1]}")
        a(f"v_max_u32 v14, v14, v{regs[19]}")
        alive_test(a)
        Lq2 = a.lab("H3Q")
        a(f"v_cmp_eq_u32 vcc, -1, v14\ns_cmp_lg_u64 s[50:51], 0\ns_cbranch_scc0 {Lq2}\ns_mov_b64 vcc, -1\n{Lq2}:")
        a(f"s_cbranch_vccz {Lw}\ns_mov_b64 s[46:47], vcc\ns_mov_b64 exec, vcc"); a.sleep(cfg.B_H3); a(f"s_branch {Lp}")
    a(f"{Lw}:")
    for pb in range(4):
        a(f"s_waitcnt vmcnt({15-5*pb})")
        if pb == 0: alive_test(a)
        for cb in range(5):
            c_in = XF + 4*cb if pb == 0 else AC + 4*cb
            a(f"v_mfma_f32_16x16x32_bf16 v[{AC+4*cb}:{AC+4*cb+3}], v[{SEL}:{SEL+3}], v[{RAW+16*cb+4*pb}:{RAW+16*cb+4*pb+3}], v[{c_in}:{c_in+3}]")
    a.nop(4)
    def pr(b): return f"v[{b}:{b+1}]"
    a(f"v_pk_add_f32 v[14:15], {pr(AC)}, {pr(AC+2)}\nv_pk_mul_f32 v[16:17], {pr(AC)}, {pr(AC)}\nv_pk_fma_f32 v[16:17], {pr(AC+2)}, {pr(AC+2)}, v[16:17]")
    for i in range(4, 20, 2):
        if i == 16: a.nop(4)
        a(f"v_pk_add_f32 v[14:15], v[14:15], {pr(AC+i)}\nv_pk_fma_f32 v[16:17], {pr(AC+i)}, {pr(AC+i)}, v[16:17]")
    a("v_add_f32 v14, v14, v15\nv_add_f32 v16, v16, v17")
    Lr = a.lab("H3R")
    a(f"v_cmp_u_f32 vcc, v14, v14\ns_cmp_lg_u64 s[50:51], 0\ns_cbranch_scc0 {Lr}\ns_mov_b64 vcc, -1\n{Lr}:")
    a(f"s_cbranch_vccz {Lx}\ns_mov_b64 s[46:47], vcc")
    if cfg.EH3 or cfg.W2ND:
        Le = a.lab("H3E")
        a(f"s_cmp_lg_u32 s61, 1\ns_cbranch_scc1 {Le}")
        lds_wait_ge(a, f"v{VCT}", 1, f"v{VT+3}", off=(36 if cfg.W2ND else 12))
        a(f"{Le}:")
    a("s_mov_b64 exec, s[46:47]"); a.sleep(cfg.B_H3); a(f"s_branch {Lp}")
    a(f"{Lx}:\ns_mov_b64 exec, -1\ns_waitcnt vmcnt(0) lgkmcnt(0)")
    a.stamp(11)
    row_red(a, "v_add_f32", ["v14", "v16"])
    a("v_mov_b32 v15, v14\nv_mov_b32 v17, v16"); a.nop(1)
    a("v_permlane16_swap_b32 v14, v15\nv_permlane16_swap_b32 v16, v17"); a.nop(1)
    a("v_add_f32 v14, v14, v15\nv_add_f32 v16, v16, v17")
    a(f"v_mul_f32 v14, {hex(f2b(1.0/576))}, v14\nv_mul_f32 v16, {hex(f2b(1.0/576))}, v16")
    a(f"v_fma_f32 v16, -v14, v14, v16\nv_max_f32 v16, 0, v16\nv_add_f32 v16, {hex(f2b(1e-5))}, v16\nv_rsq_f32 v16, v16")
    a(f"v_and_b32 v{VT+1}, 1, v{VKG}\nv_lshlrev_b32 v{VT+1}, 3, v{VT+1}\nv_lshl_add_u32 v{VT+1}, v{VJ}, 4, v{VT+1}\nv_add_u32 v{VT+1}, {L_HN}, v{VT+1}")
    a("v_mul_f32 v14, v14, v16\nv_mov_b32 v17, v16\nv_sub_f32 v14, 0, v14\nv_mov_b32 v15, v14")
    a("s_mov_b32 exec_hi, 0")
    for cb in range(5):
        a(f"v_pk_fma_f32 {pr(AC+4*cb)}, {pr(AC+4*cb)}, v[16:17], v[14:15]\nv_pk_fma_f32 {pr(AC+4*cb+2)}, {pr(AC+4*cb+2)}, v[16:17], v[14:15]")
        a(f"v_cvt_pk_bf16_f32 v{20+2*cb}, v{AC+4*cb}, v{AC+4*cb+1}\nv_cvt_pk_bf16_f32 v{21+2*cb}, v{AC+4*cb+2}, v{AC+4*cb+3}")
        if cb == 4: a("s_mov_b32 exec_lo, 0x00ff00ff")
        a(f"ds_write_b64 v{VT+1}, v[{20+2*cb}:{21+2*cb}] offset:{256*cb}")
    a("s_mov_b64 exec, -1")
    a(f"v_mov_b32 v{VT+2}, 1"); lds_set(a, f"v{VCT}", 20, f"v{VT+2}")
    a("s_branch L_p7_go")
    a("L_p6_skip:")
    a(f"s_cmp_ge_u32 s30, 2\ns_cselect_b32 s63, {MU}, {MG}")
    lds_wait_ge(a, f"v{VCT}", "s63", f"v{VT+2}")
    wfrags()
    L = a.lab("DFA")
    a(f"s_cmp_lg_u32 s53, 10\ns_cbranch_scc1 {L}")
    lds_wait_ge(a, f"v{VCT}", MD, f"v{VT+2}")
    dfrags()
    a(f"{L}:")
    lds_wait_ge(a, f"v{VCT}", 1, f"v{VT+2}", off=20)
    a("L_p7_go:")
    D7 = 20
    a(f"v_lshlrev_b32 v{VT+1}, 4, v{VKG}\nv_add_u32 v{VT+1}, {L_HN}, v{VT+1}")
    a("s_waitcnt lgkmcnt(0)")
    for t in range(14): a(f"ds_read_b128 v[{HF+4*t}:{HF+4*t+3}], v{VT+1} offset:{64*t}")
    for t in range(18):
        if t + 14 < 18: a("s_waitcnt lgkmcnt(13)")
        else: a(f"s_waitcnt lgkmcnt({17-t})")
        cin = "0" if t < 2 else f"v[{D7+4*(t&1)}:{D7+4*(t&1)+3}]"
        a(f"v_mfma_f32_16x16x32_bf16 v[{D7+4*(t&1)}:{D7+4*(t&1)+3}], v[{WF+4*t}:{WF+4*t+3}], v[{HF+4*t}:{HF+4*t+3}], {cin}")
        if t + 14 < 18: a(f"ds_read_b128 v[{HF+4*(t+14)}:{HF+4*(t+14)+3}], v{VT+1} offset:{64*(t+14)}")
    a(f"s_lshl_b32 s40, s30, 6\ns_add_u32 s40, s40, {L_R7}\nv_lshlrev_b32 v{VT}, 4, v{VKG}\nv_add_u32 v{VT}, s40, v{VT}")
    a(f"v_lshlrev_b32 v{VT+1}, 5, v{VKG}\nv_add_u32 v{VT+1}, {L_R7}, v{VT+1}")
    a(f"s_mul_i32 s40, s28, 9\ns_add_u32 s40, s40, s29\ns_mul_i32 s40, s40, 2304\ns_mul_i32 s41, s30, {640 if cfg.FULLN else 576}\ns_add_u32 s40, s40, s41\ns_add_u32 s40, s40, {WS_H4}")
    if cfg.FULLN: a("s_cmp_eq_u32 s30, 3\ns_cselect_b32 s41, 128, 0\ns_sub_u32 s40, s40, s41")
    a(f"s_add_u32 s42, s26, s40\ns_addc_u32 s43, s27, 0")
    for e in range(4): a(f"v_add_f32 v{D7+e}, v{D7+e}, v{D7+4+e}")
    a.exec64(0x00010001, 0x00010001)
    a(f"ds_write_b128 v{VT}, v[{D7}:{D7+3}]\ns_mov_b64 exec, -1")
    L, L2 = a.lab("DFB"), a.lab("DFC")
    a(f"s_cmp_eq_u32 s30, 0\ns_cbranch_scc1 {L2}\ns_cmp_eq_u32 s53, 10\ns_cbranch_scc1 {L}\n{L2}:")
    lds_wait_ge(a, f"v{VCT}", MD, f"v{VT+2}")
    dfrags()
    a(f"{L}:")
    a.stamp(12)
    BB, D8 = 136, 20
    a(f"v_lshlrev_b32 v{VT}, 6, v{VJ}\nv_lshl_add_u32 v{VT}, v{VKG}, 4, v{VT}")
    Lp, Lx = spin_head(a, "s60", cfg.SPIN, "R7")
    a(f"ds_read_b128 v[32:35], v{VT+1}\nds_read_b128 v[36:39], v{VT+1} offset:16\nds_read_b128 v[40:43], v{VT+1} offset:128\nds_read_b128 v[44:47], v{VT+1} offset:144")
    spin_bound(a, "s60", cfg.SPIN, Lx)
    a("s_waitcnt lgkmcnt(0)")
    for e in range(8): a(f"v_max_f32 v{48+e}, 0, v{32+e}")
    for e in range(0, 8, 2): a(f"v_pk_mul_f32 {pr(48+e)}, {pr(48+e)}, {pr(40+e)}")
    a("v_max3_u32 v56, v32, v33, v34\nv_max3_u32 v57, v35, v36, v37\nv_max3_u32 v56, v56, v38, v39\nv_max3_u32 v57, v57, v40, v41\nv_max3_u32 v56, v56, v42, v43\nv_max3_u32 v57, v57, v44, v45\nv_max3_u32 v56, v56, v46, v47\nv_max_u32 v56, v56, v57")
    a(f"v_cmp_eq_u32 vcc, -1, v56\ns_cbranch_vccnz {Lp}\n{Lx}:\ns_waitcnt lgkmcnt(0)")
    for e in range(4): a(f"v_cvt_pk_bf16_f32 v{32+e}, v{48+2*e}, v{49+2*e}")
    for n in range(NB):
        for h in range(4): a(f"v_and_b32 v{BB+4*n+h}, v{32+h}, v{MSK[n]}")
        if n:
            cin = "0" if n == 1 else f"v[{D8}:{D8+3}]"
            a(f"v_mfma_f32_16x16x32_bf16 v[{D8}:{D8+3}], v[{DF+4*(n-1)}:{DF+4*(n-1)+3}], v[{BB+4*(n-1)}:{BB+4*(n-1)+3}], {cin}")
    a.nop(2)
    a(f"v_mfma_f32_16x16x32_bf16 v[{D8}:{D8+3}], v[{DF+4*(NB-1)}:{DF+4*(NB-1)+3}], v[{BB+4*(NB-1)}:{BB+4*(NB-1)+3}], v[{D8}:{D8+3}]")
    a.nop(8)
    for e in range(4): a(f"v_and_or_b32 v{D8+e}, v{D8+e}, s57, v{VTAG}")
    if cfg.FULLN: a("s_mov_b32 s40, 0x03ff03ff\ns_cmp_ge_u32 s30, 2\ns_cselect_b32 s40, 0x00ff00ff, s40\ns_mov_b32 exec_lo, s40\ns_mov_b32 exec_hi, s40")
    else: a.exec64(0x01ff01ff, 0x01ff01ff)
    a(f"global_store_dwordx4 v{VT}, v[{D8}:{D8+3}], s[42:43] sc1\ns_mov_b64 exec, -1")
    a.stamp(13)
    a("L_fin:")
    a.stamp(15)
    stamps_out(a)
    a("s_endpgm")

def generate(cfg):
    a = A(cfg)
    K = NAME + "_kernel"
    hdr = open("cdna_kernels/" + NAME + ".s.ref").read().split("; Override launch geometry")[0]
    out = [hdr.rstrip(), "; Override launch geometry by editing the next line (default: block=256,", "; grid=ceil(out_elems/256), lds=0). Harness parses it; keep it on one line.",
           f"; @launch grid=(256,1,1) block=(320,1,1) lds={LDS_BYTES}", '.amdgcn_target "amdgcn-amd-amdhsa--gfx950"\n.text', f".globl {K}\n.p2align 8\n.type {K},@function\n{K}:"]
    a("KSTART:")
    a("s_cmp_ge_u32 s2, 256\ns_cbranch_scc1 L_exit")
    if cfg.UNTIL or cfg.WB or cfg.DYN == 2: a("s_memrealtime s[96:97]")
    a("s_load_dwordx16 s[4:19], s[0:1], 0\ns_load_dwordx8 s[20:27], s[0:1], 64")
    if cfg.STAMP:
        for i in range(16): a(f"s_mov_b64 s[{64+2*i}:{65+2*i}], 0")
        a("s_memrealtime s[64:65]")
    a("v_and_b32 v1, 63, v0\nv_lshrrev_b32 v2, 6, v0")
    a("s_and_b32 s28, s2, 7\ns_lshl_b32 s28, s28, 1\ns_lshr_b32 s29, s2, 3\ns_and_b32 s29, s29, 1\ns_or_b32 s28, s28, s29\ns_lshr_b32 s29, s2, 4")
    if cfg.MAPALT: a("s_lshr_b32 s28, s2, 4\ns_and_b32 s29, s2, 15")
    a("v_readfirstlane_b32 s3, v2")
    a("v_lshrrev_b32 v20, 3, v1\nv_lshlrev_b32 v20, 13, v20\nv_and_b32 v21, 7, v1\nv_lshlrev_b32 v21, 4, v21\nv_add_u32 v5, v20, v21")
    a("s_lshr_b32 s40, s29, 2\ns_mul_i32 s40, s40, 1179648\ns_and_b32 s41, s29, 3\ns_lshl_b32 s41, s41, 7\ns_lshl_b32 s42, s28, 9\ns_add_u32 s41, s41, s42\ns_add_u32 s40, s40, s41")
    a(f"s_sub_u32 s34, 4718592, s40\ns_mov_b32 s35, 0x20000\ns_mov_b32 m0, {L_WQ}\ns_mov_b32 s36, 0")
    a("s_waitcnt lgkmcnt(0)")
    a("s_cmp_lg_u32 s3, 0\ns_cbranch_scc1 L_consumer")
    gen_loader(a)
    gen_consumer(a)
    a("L_exit:\ns_endpgm")
    out += a.L
    out.append('.section .rodata,"a"\n.p2align 6')
    out.append(f".amdhsa_kernel {K}")
    out.append("  .amdhsa_next_free_vgpr 256\n  .amdhsa_next_free_sgpr 102\n  .amdhsa_accum_offset 256\n  .amdhsa_group_segment_fixed_size 0\n  .amdhsa_kernarg_size 96\n  .amdhsa_user_sgpr_count 2\n  .amdhsa_user_sgpr_kernarg_segment_ptr 1\n  .amdhsa_system_sgpr_workgroup_id_x 1\n.end_amdhsa_kernel")
    return "\n".join(out) + "\n"

if __name__ == "__main__":
    cfg = Cfg()
    for kv in sys.argv[2:]:
        k, v = kv.split("=")
        setattr(cfg, k, v if k in ("NT", "NTGU", "NTWO") else (v == "1" if k == "STAMP" else int(v)))
    open(sys.argv[1], "w").write(generate(cfg))
```
